```python
import torch

def _softmax(x, axis=-1):
    return torch.softmax(x, dim=axis)
def _gelu(x):
    return torch.nn.functional.gelu(x, approximate="tanh")
def _silu(x):
    return torch.nn.functional.silu(x)
def _sigmoid(x):
    return torch.sigmoid(x)
def _layernorm(x, axis=-1, eps=1e-5):
    m = x.mean(dim=axis, keepdim=True)
    v = x.var(dim=axis, keepdim=True, unbiased=False)
    return (x - m) / torch.sqrt(v + eps)
def _scatter_add(tgt, idx, src, axis=0):
    return tgt.clone().index_add_(axis, idx, src)
def _segment_sum(src, seg, n):
    out = torch.zeros((n,) + src.shape[1:], dtype=src.dtype)
    return out.index_add_(0, seg, src)
def _pad(x, pw):
    flat = tuple(v for pair in reversed(pw) for v in pair)
    return torch.nn.functional.pad(x, flat)

kernel_name = 'gated_mix__ssm_conv_s5__dense_activation_squared_relu__prompt'

def setup_inputs():

    _w = (lambda a: (lambda t: t.to(torch.bfloat16) if t.is_floating_point() else t)(torch.as_tensor(a)))
    def _A_setup():
        B, S, D = 1, 2048, 640
        P = D
        Lambda_re = -0.5 * (lambda _x: torch.exp(torch.as_tensor(_x)))((lambda *s: torch.randn(*s, dtype=torch.bfloat16) * 0.4)(P))
        Lambda_im = (lambda *s: torch.randn(*s, dtype=torch.bfloat16) * 0.8)(P) * 1.0
        B_re = (lambda *s: torch.randn(*s, dtype=torch.bfloat16) * 0.8)(P, D) * (D ** -0.5)
        B_im = (lambda *s: torch.randn(*s, dtype=torch.bfloat16) * 0.8)(P, D) * (D ** -0.5)
        C_re = (lambda *s: torch.randn(*s, dtype=torch.bfloat16) * 0.4)(D, P) * (P ** -0.5)
        C_im = (lambda *s: torch.randn(*s, dtype=torch.bfloat16) * 0.8)(D, P) * (P ** -0.5)
        log_dt = (lambda *s: torch.randn(*s, dtype=torch.bfloat16) * 0.4)(P) * 0.3 - 2.0
        Dskip = (lambda *s: torch.randn(*s, dtype=torch.bfloat16) * 0.2)(D)
        return {
            "x": _w((lambda *s: torch.randn(*s, dtype=torch.bfloat16) * 0.05)(B, S, D)),
            "Lambda_re": _w(Lambda_re),
            "Lambda_im": _w(Lambda_im),
            "B_re": _w(B_re),
            "B_im": _w(B_im),
            "C_re": _w(C_re),
            "C_im": _w(C_im),
            "log_dt": _w(log_dt),
            "Dskip": _w(Dskip),
        }
    _A_in = _A_setup()

    def _B_setup():
        B, S, D, F = 1, 2048, 640, 1536
        return {
            "x": _w((lambda *s: torch.randn(*s, dtype=torch.bfloat16) * 0.05)(B, S, D)),
            "w1": _w((lambda *s: torch.randn(*s, dtype=torch.bfloat16) * 0.05)(D, F)),
            "b1": _w((lambda *s: torch.randn(*s, dtype=torch.bfloat16) * 0.05)(F)),
            "w2": _w((lambda *s: torch.randn(*s, dtype=torch.bfloat16) * 0.05)(F, D)),
            "b2": _w((lambda *s: torch.randn(*s, dtype=torch.bfloat16) * 0.05)(D)),
        }
    _B_in = _B_setup()

    return {
        "A_x": _A_in["x"],
        "A_Lambda_re": _A_in["Lambda_re"],
        "A_Lambda_im": _A_in["Lambda_im"],
        "A_B_re": _A_in["B_re"],
        "A_B_im": _A_in["B_im"],
        "A_C_re": _A_in["C_re"],
        "A_C_im": _A_in["C_im"],
        "A_log_dt": _A_in["log_dt"],
        "A_Dskip": _A_in["Dskip"],
        "B_x": _B_in["x"],
        "B_w1": _B_in["w1"],
        "B_b1": _B_in["b1"],
        "B_w2": _B_in["w2"],
        "B_b2": _B_in["b2"],
        "gate_w": _w((lambda *s: torch.randn(*s, dtype=torch.bfloat16) * 0.05)(640) * 16.0),
    }

def reference(A_x, A_Lambda_re, A_Lambda_im, A_B_re, A_B_im, A_C_re, A_C_im, A_log_dt, A_Dskip, B_x, B_w1, B_b1, B_w2, B_b2, gate_w):
    def _A_ref(x, Lambda_re, Lambda_im, B_re, B_im, C_re, C_im, log_dt, Dskip):
        Bsz, L, H = x.shape
        Lam = Lambda_re + 1j * Lambda_im
        Bmat = B_re + 1j * B_im
        Cmat = C_re + 1j * C_im
        dt = torch.exp(log_dt)
        Lam_bar = torch.exp(dt * Lam)
        B_bar = ((Lam_bar - 1.0) / Lam)[:, None] * Bmat
        Bu = torch.einsum("bld,pd->blp", x + 0j, B_bar)
        h = torch.zeros_like(Bu[:, 0, :])
        hs = []
        for t in range(L):
            h = Lam_bar[None, :] * h + Bu[:, t, :]
            hs.append(h)
        hseq = torch.stack(hs, 1)
        y = 2.0 * torch.einsum("blp,dp->bld", hseq, Cmat).real + x * Dskip[None, None, :]
        return y

    def _B_ref(x, w1, b1, w2, b2):
        h = torch.einsum("bsd,df->bsf", x, w1) + b1
        zero = torch.zeros_like(h)
        r = torch.where(h > zero, h, zero)
        h = r * r
        out = torch.einsum("bsf,fd->bsd", h, w2) + b2
        return out

    x = A_x
    g = _sigmoid((x * gate_w).sum(-1, keepdims=True))
    a = _A_ref(x, A_Lambda_re, A_Lambda_im, A_B_re, A_B_im, A_C_re, A_C_im, A_log_dt, A_Dskip)
    b = _B_ref(x, B_w1, B_b1, B_w2, B_b2)
    return g * a + (1 - g) * b
```

```python
NAME = 'gated_mix__ssm_conv_s5__dense_activation_squared_relu__prompt'
HID_RT = 88 * 4096
WS_HID = 0
WS_W2P = 0xB00000
W2P_CT = 88 * 5120
WS_E   = 0xF00000
WS_G   = 0xF40000
WS_TS  = 0xF80000
WS_USED = 0x1000000
KA = dict(x=0, lre=8, lim=16, bre=24, bim=32, cre=40, cim=48, logdt=56, dskip=64, bx=72, w1=80, b1=88, w2=96, b2=104,
          gate=112, out=120, dbg=128, ws=136)

def srd(p, d, base, size, off=None):
    if off is None:
        p('s_mov_b32 s%d, s%d' % (d, base)); p('s_mov_b32 s%d, s%d' % (d + 1, base + 1))
    else:
        p('s_add_u32 s%d, s%d, %s' % (d, base, off)); p('s_addc_u32 s%d, s%d, 0' % (d + 1, base + 1))
    p('s_mov_b32 s%d, %s' % (d + 2, size)); p('s_mov_b32 s%d, 0x20000' % (d + 3))

def vr(k, a, n=1):
    return '%s%d' % (k, a) if n == 1 else '%s[%d:%d]' % (k, a, a + n - 1)

def kernel_desc(name, nvgpr, accum, nsgpr=102):
    return """.section .rodata,"a"
.p2align 6
.amdhsa_kernel %s
  .amdhsa_next_free_vgpr %d
  .amdhsa_next_free_sgpr %d
  .amdhsa_accum_offset %d
  .amdhsa_group_segment_fixed_size 0
  .amdhsa_kernarg_size 144
  .amdhsa_user_sgpr_count 2
  .amdhsa_user_sgpr_kernarg_segment_ptr 1
  .amdhsa_system_sgpr_workgroup_id_x 1
  .amdhsa_float_denorm_mode_32 3
.end_amdhsa_kernel
""" % (name, nvgpr, nsgpr, accum)

def code_prefetch(p, end_label, v, sreg, s_slot):
    l = p.newlabel('L_pc')
    p('s_getpc_b64 s[%d:%d]' % (sreg, sreg + 1))
    p.label(l)
    p('v_lshrrev_b32 v%d, 4, v0' % v)
    p('v_lshl_add_u32 v%d, s%d, 4, v%d' % (v, s_slot, v))
    p('v_lshlrev_b32 v%d, 7, v%d' % (v, v))
    p('v_min_u32 v%d, %s-%s-4, v%d' % (v, end_label, l, v))
    p('v_mov_b32 v%d, s%d' % (v + 1, sreg + 1))
    p('v_add_co_u32 v%d, vcc, s%d, v%d' % (v, sreg, v))
    p('v_addc_co_u32 v%d, vcc, 0, v%d, vcc' % (v + 1, v + 1))
    p('global_load_dword v%d, v[%d:%d], off' % (v + 3, v, v + 1), tag='pf')

class Stamps:
    def __init__(self, p, regs, on):
        self.p, self.regs, self.on, self.n = p, regs, on, 0
        self.names = []
    def __call__(self, name):
        if not self.on: return
        r = self.regs[self.n]
        self.p('%s s[%d:%d]' % ('s_memrealtime' if name.startswith('rt') else 's_memtime', r, r + 1))
        self.names.append(name); self.n += 1
    def dump(self, s_ws, s_tmp, vt, region):
        if not self.on: return
        p = self.p
        p.wait(lg='all', force=True)
        srd(p, s_tmp, s_ws, 0x20000, hex(WS_TS + region * 0x10000))
        p('v_lshrrev_b32 v%d, 6, v0' % vt)
        p('v_lshl_add_u32 v%d, s2, 2, v%d' % (vt, vt))
        p('v_lshlrev_b32 v%d, 6, v%d' % (vt, vt))
        p('s_mov_b64 exec, 1')
        for i in range(self.n):
            p('v_mov_b32 v%d, s%d' % (vt + 1, self.regs[i]))
            p('buffer_store_dword v%d, v%d, s[%d:%d], 0 offen offset:%d' % (vt + 1, vt, s_tmp, s_tmp + 3, 4 * i))
            p('s_nop 1')
        p('s_mov_b64 exec, -1')
```

```python
import re

REG_RE = re.compile(r'^(-|neg\()?(\|)?(abs\()?([vas])(\d+|\[(\d+):(\d+)\])\)?\|?\)?$')

def regs_of(op):
    op = op.strip()
    if op in ('vcc', 'exec', 'm0', 'scc'):
        return [op]
    if op in ('vcc_lo', 'vcc_hi'): return ['vcc']
    if op in ('exec_lo', 'exec_hi'): return ['exec']
    m = REG_RE.match(op)
    if not m:
        return []
    k = m.group(4)
    if m.group(6) is not None:
        return [k + str(i) for i in range(int(m.group(6)), int(m.group(7)) + 1)]
    return [k + m.group(5)]

TRANS = ('v_exp_f32', 'v_log_f32', 'v_rcp_f32', 'v_rsq_f32', 'v_sqrt_f32', 'v_sin_f32', 'v_cos_f32', 'v_rcp_iflag_f32')

class Ins:
    __slots__ = ('text', 'mn', 'kind', 'rd', 'wr', 'srcC', 'srcAB', 'passes', 'dpp', 'nop', 'storedata', 'lds_dma', 'opsel')
    def __init__(self, text):
        self.text = text
        t = text.split(';')[0].split('//')[0].strip()
        self.rd, self.wr, self.srcC, self.srcAB = set(), set(), [], set()
        self.passes = 0; self.dpp = False; self.nop = 1; self.storedata = set(); self.lds_dma = False; self.opsel = False
        if t.endswith(':') or t.startswith('.') or not t:
            self.mn = ''; self.kind = 'label'; self.nop = 0; return
        parts = t.split(None, 1)
        mn = parts[0]; self.mn = mn
        rest = parts[1] if len(parts) > 1 else ''
        ops = []; depth = 0; cur = ''
        for ch in rest:
            if ch in '[(': depth += 1
            if ch in '])': depth -= 1
            if ch == ',' and depth == 0:
                ops.append(cur.strip()); cur = ''
            else: cur += ch
        if cur.strip(): ops.append(cur.strip())
        mods = ''
        if ops:
            last = ops[-1].split()
            ops[-1] = last[0]; mods = ' '.join(last[1:])
        R = lambda o: regs_of(o)
        base = re.sub(r'_(e32|e64|dpp|sdwa)$', '', mn)
        if mn.startswith('v_mfma'):
            self.kind = 'mfma'
            self.wr = set(R(ops[0])); self.srcAB = set(R(ops[1]) + R(ops[2])); self.srcC = R(ops[3])
            self.rd = self.srcAB | set(self.srcC) | {'exec'}
            self.passes = 8 if '32x32x16' in mn else 4
        elif mn.startswith('v_'):
            self.kind = 'trans' if base in TRANS else 'valu'
            self.dpp = ('quad_perm' in mods or 'row_' in mods or 'wave_' in mods or mn.endswith('_dpp'))
            self.opsel = ('op_sel:' in mods and not mn.startswith('v_pk_')) or 'dst_sel' in mods
            if base.startswith('v_cmp'):
                self.wr = set(R(ops[0])); src = ops[1:]
                if base.startswith('v_cmpx'): self.wr.add('exec')
            elif base.startswith('v_permlane') and 'swap' in base:
                self.wr = set(R(ops[0]) + R(ops[1])); src = ops
            elif base in ('v_add_co_u32', 'v_sub_co_u32', 'v_addc_co_u32', 'v_subb_co_u32'):
                self.wr = set(R(ops[0]) + R(ops[1])); src = ops[2:]
            else:
                self.wr = set(R(ops[0])); src = ops[1:]
                if base.startswith('v_fmac') or base.startswith('v_dot2c') or base == 'v_writelane_b32' or self.dpp:
                    src = ops
                if base == 'v_cndmask_b32' and len(ops) == 3: self.rd.add('vcc')
            for o in src: self.rd |= set(R(o))
            self.rd.add('exec')
        elif mn.startswith('ds_'):
            self.kind = 'ds'
            if mn.startswith('ds_read') or mn.startswith('ds_bpermute') or mn.startswith('ds_swizzle'):
                self.wr = set(R(ops[0])); src = ops[1:]
            else: src = ops
            for o in src: self.rd |= set(R(o))
        elif mn.startswith('buffer_') or mn.startswith('global_'):
            self.kind = 'vmem'
            ml = mods.split()
            if mn in ('buffer_wbl2', 'buffer_inv'):
                pass
            elif 'load' in mn and ('lds' in ml or '_lds_' in mn):
                self.lds_dma = True
                for o in ops: self.rd |= set(R(o))
                self.rd.add('m0')
            elif 'load' in mn:
                self.wr = set(R(ops[0]))
                for o in ops[1:]: self.rd |= set(R(o))
            else:
                for o in ops: self.rd |= set(R(o))
                d = ops[0] if mn.startswith('buffer_') else ops[1]
                if 'x3' in mn or 'x4' in mn: self.storedata = set(R(d))
                if 'atomic' in mn and 'sc0' in ml and mn.startswith('buffer_'): self.wr = set(R(ops[0]))
                if 'atomic' in mn and 'sc0' in ml and mn.startswith('global_'):
                    self.wr = set(R(ops[0]))
        elif mn.startswith('s_'):
            self.kind = 'salu'
            if mn == 's_nop': self.nop = int(ops[0], 0) + 1
            elif mn.startswith('s_cmp') or mn in ('s_waitcnt', 's_barrier', 's_endpgm', 's_branch', 's_setprio', 's_sleep') or mn.startswith('s_cbranch'):
                for o in ops: self.rd |= set(R(o))
            else:
                self.wr = set(R(ops[0]))
                for o in ops[1:]: self.rd |= set(R(o))
                if 'saveexec' in mn: self.wr.add('exec'); self.rd.add('exec')
        else:
            raise ValueError('unknown instr: ' + text)

def need(p, c):
    n = 0
    pv = p.kind in ('valu', 'trans')
    cv = c.kind in ('valu', 'trans')
    if pv:
        vw = {r for r in p.wr if r[0] in 'va' and r not in ('vcc',)}
        sw = {r for r in p.wr if r[0] == 's' or r == 'vcc'}
        if c.kind == 'mfma' and vw & c.rd: n = max(n, 2)
        if c.kind == 'mfma' and 'exec' in p.wr: n = max(n, 4)
        if p.kind == 'trans' and cv and c.kind != 'trans' and vw & c.rd: n = max(n, 1)
        if p.kind == 'trans' and c.kind == 'trans' and vw & c.rd: n = max(n, 1)
        if p.opsel and cv and vw & (c.rd | c.wr): n = max(n, 1)
        if cv and c.dpp and vw & c.rd: n = max(n, 2)
        if cv and c.dpp and 'exec' in p.wr: n = max(n, 5)
        if c.mn.startswith('v_permlane') and vw & c.rd: n = max(n, 2)
        if c.mn.startswith('v_permlane') and 'exec' in p.wr: n = max(n, 4)
        if c.mn.startswith('v_readlane') or c.mn.startswith('v_readfirstlane'):
            if vw & c.rd: n = max(n, 1)
            if 'exec' in p.wr: n = max(n, 4)
            if sw & c.rd: n = max(n, 4)
        if cv and sw & c.rd: n = max(n, 2)
        if c.kind == 'vmem' and sw & c.rd: n = max(n, 5)
        if c.kind == 'salu' and sw & c.rd: n = max(n, 1)
    if p.kind == 'salu':
        if 'm0' in p.wr and c.lds_dma: n = max(n, 1)
    if p.kind == 'mfma':
        big = {4: 8, 8: 12}[p.passes]
        if c.kind == 'mfma':
            if p.wr & c.srcAB: n = max(n, big)
            if p.wr & set(c.srcC):
                if not (set(c.srcC) == p.wr and c.passes == p.passes): n = max(n, p.passes + 2)
            elif p.wr & c.wr: n = max(n, big)
        elif c.kind in ('valu', 'trans', 'ds', 'vmem'):
            if p.wr & (c.rd | c.wr): n = max(n, big)
        if cv and set(p.srcC) & c.wr: n = max(n, {4: 3, 8: 7}[p.passes])
    if p.kind == 'vmem' and p.storedata:
        if cv and p.storedata & c.wr: n = max(n, 2)
        elif p.storedata & c.wr: n = max(n, 1)
    return n

class Prog:
    nlabel = 0
    def __init__(self):
        self.ins = []
        self.vm = []
        self.lg = []
        self.smem = False
    def raw(self, text):
        self.ins.append(Ins(text))
    def __call__(self, text, tag=None, optional=False):
        for line in text.split('\n'):
            line = line.strip()
            if not line or line.startswith(';'): continue
            i = Ins(line)
            self.ins.append(i)
            if i.kind == 'vmem' and not optional: self.vm.append(tag)
            if i.kind == 'ds' and not optional: self.lg.append(tag)
            if i.mn.startswith('s_load') or i.mn.startswith('s_memtime') or i.mn.startswith('s_memrealtime'): self.smem = True
    def label(self, name): self.raw(name + ':')
    def newlabel(self, base):
        Prog.nlabel += 1
        return '%s_%d' % (base, Prog.nlabel)
    def _cnt(self, q, tags):
        if tags is None: return None
        if tags == 'all': return 0
        if not isinstance(tags, (list, tuple, set)): tags = [tags]
        last = -1
        for k, t in enumerate(q):
            if t in tags: last = k
        if last < 0: return None
        return len(q) - 1 - last
    def wait(self, vm=None, lg=None, force=False):
        a = self._cnt(self.vm, vm); b = self._cnt(self.lg, lg)
        if lg is not None and self.smem: b = 0
        if vm == 'all' and not self.vm and not force: a = None
        if lg == 'all' and not self.lg and not self.smem and not force: b = None
        s = []
        if a is not None:
            assert a <= 63, a
            s.append('vmcnt(%d)' % a); self.vm = self.vm[len(self.vm) - a:] if a else []
        if b is not None:
            b = min(b, 15)
            s.append('lgkmcnt(%d)' % b); self.lg = self.lg[len(self.lg) - b:] if b else []
            if b == 0: self.smem = False
        if s: self.raw('s_waitcnt ' + ' '.join(s))
    def check_depth(self):
        assert len(self.vm) <= 63, len(self.vm)
    def finalize(self, verbose=False):
        out = []; added = 0
        for c in self.ins:
            if c.kind == 'label':
                out.append(c); continue
            req = 0; dist = 0
            for p in reversed(out):
                if dist >= 20: break
                if p.kind == 'label': continue
                n = need(p, c)
                if n - dist > req: req = n - dist
                dist += p.nop
            if req > 0:
                out.append(Ins('s_nop %d' % (req - 1))); added += 1
                if verbose: print('  pad %d before %s' % (req, c.text))
            out.append(c)
        self.ins = out
        return added
    def text(self):
        return '\n'.join((i.text if i.kind == 'label' else '    ' + i.text) for i in self.ins) + '\n'
```

```python
from emit import Prog
from common import *

K1_LDS = 163840
SPIN_MAX = 100000
SLOT = 32768
XREG = 4 * SLOT
EXO = 16384
LOG2E = '0x3fb8aa3b'
INV2PI = '0.15915494'

vLANE, vWAVE = 1, 2
vDX = 4
vDS = 8
vDF = 10
vRX = 12
vRS = 20
vRF = 28
vSTF = 32
vL16 = 33
vEXA = 34
vTW = 36
vEO = 40
vDJ = 41
vPF = 44
vT = 48
vC = 96
ACC = 160
AX = 0
AW = 160

def gen_k1(name, end_label, opt):
    p = Prog()
    st = Stamps(p, [70, 72, 74, 76, 78, 80, 82, 100, 6, 8, 10, 12, 18, 20], opt.get('stamps'))
    DIST = opt.get('dist', 2)
    NBUF = DIST + 1
    SC = ' sc1'
    def put(x):
        if callable(x): x()
        elif isinstance(x, tuple): p(x[0], tag=x[1])
        else: p(x)
    p.label(name)
    st('rt0'); st('start')
    p('s_cmp_ge_u32 s2, 256')
    p('s_cbranch_scc1 %s_end' % name)
    p('s_load_dwordx16 s[4:19], s[0:1], 0')
    p('s_load_dwordx4 s[20:23], s[0:1], 80')
    p('s_load_dwordx2 s[24:25], s[0:1], 96')
    p('s_load_dwordx2 s[26:27], s[0:1], 112')
    p('s_load_dwordx4 s[28:31], s[0:1], 128')
    p('s_memrealtime s[32:33]')
    p('s_lshr_b32 s3, s2, 3')
    code_prefetch(p, end_label, vPF, 34, 3)
    p('v_and_b32 v%d, 63, v0' % vLANE)
    p('v_lshrrev_b32 v%d, 6, v0' % vWAVE)
    p('s_and_b32 s34, s2, 7')
    p('s_lshr_b32 s35, s34, 1')
    p('s_lshl_b32 s35, s35, 2')
    p('s_and_b32 s36, s3, 3')
    p('v_readfirstlane_b32 s39, v%d' % vWAVE)
    p('s_add_u32 s35, s35, s36')
    p('s_and_b32 s34, s34, 1')
    p('s_lshr_b32 s36, s3, 2')
    p('s_mul_i32 s37, s34, 10')
    p('s_lshl_b32 s38, s36, 1')
    p('s_add_u32 s40, s36, 2')
    p('s_cmp_lt_u32 s36, 2')
    p('s_cselect_b32 s38, s38, s40')
    p('s_add_u32 s37, s37, s38')
    p('s_mul_i32 s38, s34, 12')
    p('s_lshl_b32 s40, s36, 1')
    p('s_add_u32 s38, s38, s40')
    p('s_sub_u32 s38, s38, 4')
    t = vT
    p('v_lshrrev_b32 v%d, 3, v%d' % (t, vLANE))
    p('v_and_b32 v%d, 7, v%d' % (t + 1, vLANE))
    p('v_lshrrev_b32 v%d, 4, v%d' % (t + 2, vLANE))
    p('v_and_b32 v%d, 3, v%d' % (t + 3, t))
    p('v_lshrrev_b32 v%d, 5, v%d' % (t + 4, vLANE))
    p('v_lshl_add_u32 v%d, v%d, 4, v%d' % (t + 3, t + 4, t + 3))
    p('v_lshl_add_u32 v%d, v%d, 5, v%d' % (t + 3, vWAVE, t + 3))
    p('v_mul_u32_u24 v%d, 1280, v%d' % (t + 3, t + 3))
    p('v_xor_b32 v%d, v%d, v%d' % (t + 5, t + 1, t + 2))
    p('v_xor_b32 v%d, 4, v%d' % (t + 6, t + 5))
    for i in range(4):
        p('v_lshl_add_u32 v%d, v%d, 4, v%d' % (vDX + i, t + 5 + (i & 1), t + 3))
        if i: p('v_add_u32 v%d, %d, v%d' % (vDX + i, 4096 * i, vDX + i))
    p('v_and_b32 v%d, 1, v%d' % (t + 7, vWAVE))
    p('v_lshl_add_u32 v%d, v%d, 4, v%d' % (t + 7, t + 7, t))
    p('v_mul_u32_u24 v%d, 1280, v%d' % (t + 7, t + 7))
    p('v_lshl_add_u32 v%d, v%d, 4, v%d' % (vDS, t + 5, t + 7))
    p('v_lshl_add_u32 v%d, v%d, 4, v%d' % (vDS + 1, t + 6, t + 7))
    p('v_add_u32 v%d, %d, v%d' % (vDS + 1, 8 * 1280 - 1024, vDS + 1))
    p('v_lshl_add_u32 v%d, v%d, 4, v%d' % (t + 7, vWAVE, t))
    p('v_mul_u32_u24 v%d, 3072, v%d' % (t + 7, t + 7))
    p('v_and_b32 v%d, 1, v%d' % (t + 8, t + 2))
    p('v_lshlrev_b32 v%d, 2, v%d' % (t + 8, t + 8))
    p('v_xor_b32 v%d, v%d, v%d' % (t + 8, t + 8, t + 1))
    p('v_lshl_add_u32 v%d, v%d, 4, v%d' % (vDF, t + 8, t + 7))
    p('v_add_u32 v%d, %d, v%d' % (vDF + 1, 8 * 3072 - 1024, vDF))
    p('s_mul_i32 s40, s35, %d' % (128 * 1280))
    p('s_mul_i32 s41, s37, %d' % (32 * 1280))
    p('s_lshl_b32 s42, s38, 7')
    p('s_lshl_b32 s43, s39, 13')
    p.wait(lg='all')
    srd(p, 44, 4, 128 * 1280, 's40')
    p('s_cmp_lt_u32 s39, 2')
    p('s_cselect_b32 s48, s10, s12')
    p('s_cselect_b32 s49, s11, s13')
    p('s_add_u32 s48, s48, s41')
    p('s_addc_u32 s49, s49, 0')
    p('s_sub_u32 s50, %d, s41' % (640 * 1280))
    p('s_mov_b32 s51, 0x20000')
    srd(p, 52, 20, 640 * 3072)
    srd(p, 56, 30, WS_USED)
    p('s_or_b32 s32, s32, 1')
    l = p.newlabel('L_nn')
    p('s_or_b32 s33, s2, s39')
    p('s_cmp_lg_u32 s33, 0')
    p('s_cbranch_scc1 ' + l)
    p('v_mov_b32 v%d, s32' % (t + 10))
    p('v_mov_b32 v%d, 0' % (t + 11))
    p('s_mov_b64 exec, 1')
    p('global_store_dword v%d, v%d, s[28:29] sc1' % (t + 11, t + 10), optional=True)
    p('s_mov_b64 exec, -1')
    p.label(l)
    p('s_cmp_lt_u32 s36, 2')
    p('s_cbranch_scc1 %s_A' % name)
    vm0, lg0 = list(p.vm), list(p.lg)
    body(p, name, 'B', opt, st, put, DIST, NBUF, SC)
    p('s_branch %s_fin' % name)
    p.label(name + '_A')
    p.vm, p.lg = list(vm0), list(lg0)
    n0 = st.n; names0 = list(st.names)
    st.n = min(2, st.n); st.names = st.names[:2]
    body(p, name, 'A', opt, st, put, DIST, NBUF, SC)
    assert st.n == n0, (st.names, names0)
    p.label(name + '_fin')
    if opt.get('stamps'):
        p.wait(vm='all', force=True); st('drained'); st('rt1')
    st.dump(30, 60, vT, 0)
    p.label(name + '_end')
    p('s_endpgm')
    p.finalize(opt.get('verbose'))
    return p, st.names

def cmul(d, a, b):
    return ['v_mul_f32 v%d, v%d, v%d' % (d, a, b), 'v_mul_f32 v%d, v%d, v%d' % (d + 1, a, b + 1),
            'v_fma_f32 v%d, -v%d, v%d, v%d' % (d, a + 1, b + 1, d), 'v_fmac_f32 v%d, v%d, v%d' % (d + 1, a + 1, b)]
def cfma(dr, di, a, br, bi):
    return ['v_fmac_f32 v%d, v%d, v%d' % (dr, a, br), 'v_fmac_f32 v%d, v%d, v%d' % (di, a, bi),
            'v_fma_f32 v%d, -v%d, v%d, v%d' % (dr, a + 1, bi, dr), 'v_fmac_f32 v%d, v%d, v%d' % (di, a + 1, br)]
def csq(d, a):
    return ['v_mul_f32 v%d, v%d, v%d' % (d, a, a), 'v_add_f32 v%d, v%d, v%d' % (d + 1, a, a),
            'v_fma_f32 v%d, -v%d, v%d, v%d' % (d, a + 1, a + 1, d), 'v_mul_f32 v%d, v%d, v%d' % (d + 1, d + 1, a + 1)]
def interleave(*ls):
    out = []; ls = [list(l) for l in ls]
    while any(ls):
        for l in ls:
            if l: out.append(l.pop(0))
    return out

def body(p, name, ty, opt, st, put, DIST, NBUF, SC):
    B = ty == 'B'
    NG = 1 if B else 2
    t = vT
    CON = [96, 112]; TAB = [128, 224]
    vPAR = 72
    vGX, vGW = 52, 62
    vB1 = 80
    def dma_stage(s):
        sl = (s % 4) * SLOT; tg = 'st%d' % s
        r = ['s_mov_b32 s60, %d' % (128 * s), 's_add_u32 m0, s43, %d' % sl]
        r += [('buffer_load_dwordx4 v%d, s[44:47], s60 offen offset:%d lds' % (vDX + i, 1024 * i), tg) for i in range(4)]
        r += ['s_add_u32 m0, s43, %d' % (sl + 4096)]
        r += [('buffer_load_dwordx4 v%d, s[48:51], s60 offen offset:%d lds' % (vDS + i, 1024 * i), tg) for i in range(2)]
        if B:
            r += ['s_add_u32 s61, s42, %d' % (s * 64 * 3072 - 2048)] if s else ['s_add_u32 m0, s43, %d' % (sl + 6144)]
            r += [('buffer_load_dwordx4 v%d, s[52:55], %s offen offset:%d lds' % (vDF + i, 's61' if s else 's42', 1024 * i + (2048 if s else 0)), tg) for i in range(2)]
        else:
            r += ['s_mov_b32 s61, %d' % (128 * s + 32 * 1280 - 2048)]
            r += [('buffer_load_dwordx4 v%d, s[48:51], s61 offen offset:%d lds' % (vDS + i, 1024 * i + 2048), tg) for i in range(2)]
        return r
    F2SLOT = [2, 3, 0]
    def dma_f2(c):
        r = []
        for sg in range(4 if c < 2 else 2):
            s = 4 * c + sg
            if sg % 2 == 0: r.append('s_add_u32 m0, s43, %d' % (F2SLOT[c] * SLOT + 2048 * sg)) if c < 2 else r.append('s_lshr_b32 s61, s43, 1') or r.append('s_mov_b32 m0, s61')
            r.append('s_add_u32 s61, s42, %d' % (s * 64 * 3072 + 128 - 2048 * (sg & 1)))
            r += [('buffer_load_dwordx4 v%d, s[52:55], s61 offen offset:%d lds' % (vDF + i, 1024 * i + 2048 * (sg & 1)), 'f2c%d' % c) for i in range(2)]
        return r
    hh = t + 4
    if B:
        p('v_lshlrev_b32 v%d, 5, v%d' % (t + 9, hh))
        p('v_add_u32 v%d, s42, v%d' % (t + 9, t + 9))
        for T in range(2):
            for q in range(2):
                p('global_load_dwordx4 v[%d:%d], v%d, s[22:23] offset:%d' % (128 + 8 * T + 4 * q, 131 + 8 * T + 4 * q, t + 9, 64 * T + 16 * q), tag='b1a')
    for x in dma_stage(0): put(x)
    p('v_and_b32 v%d, 31, v%d' % (t + 10, vLANE))
    p('s_lshl_b32 s60, s37, 6')
    p('v_lshl_add_u32 v%d, v%d, 1, s60' % (t + 11, t + 10))
    for g in range(NG):
        for k, sb in enumerate((6, 8, 18)):
            p('global_load_ushort v%d, v%d, s[%d:%d] offset:%d' % (vPAR + 3 * g + k, t + 11, sb, sb + 1, 64 * g), tag='par')
    p('s_lshl_b32 s60, s2, 3')
    p('v_lshl_add_u32 v%d, v%d, 1, v%d' % (t + 1, vWAVE, hh))
    p('v_add_u32 v%d, s60, v%d' % (t + 1, t + 1))
    p('v_lshlrev_b32 v%d, 3, v%d' % (78, t + 1))
    p('v_mul_u32_u24 v%d, 1280, v%d' % (t + 1, t + 1))
    p('v_lshlrev_b32 v%d, 3, v%d' % (t + 2, t + 10))
    p('v_add_u32 v%d, v%d, v%d' % (t + 1, t + 1, t + 2))
    p('v_mov_b32 v79, v%d' % (t + 10))
    if B:
        for T in range(2):
            for q in range(2):
                p('global_load_dwordx4 v[%d:%d], v%d, s[22:23] offset:%d' % (vB1 + 8 * T + 4 * q, vB1 + 3 + 8 * T + 4 * q, t + 9, 128 + 64 * T + 16 * q), tag='b1b')
    p('v_mov_b32 v3, v%d' % hh)
    for i in range(5):
        p('global_load_dwordx2 v[%d:%d], v%d, s[4:5] offset:%d' % (vGX + 2 * i, vGX + 2 * i + 1, t + 1, 256 * i), tag='gate')
    for i in range(5):
        p('global_load_dwordx2 v[%d:%d], v%d, s[26:27] offset:%d' % (vGW + 2 * i, vGW + 2 * i + 1, t + 2, 256 * i), tag='gate')
    for s in range(1, 4):
        for x in dma_stage(s): put(x)
    p.check_depth()
    st('issued')
    n_, h_ = 79, 3
    p('v_lshrrev_b32 v48, 1, v%d' % n_)
    p('v_and_b32 v48, 7, v48')
    p('v_xor_b32 v48, v48, v%d' % h_)
    p('v_lshlrev_b32 v49, 7, v%d' % n_)
    p('v_add_u32 v49, s43, v49')
    p('v_lshrrev_b32 v50, 4, v%d' % n_)
    p('v_lshlrev_b32 v50, 13, v50')
    p('v_and_b32 v51, 15, v%d' % n_)
    p('v_lshl_add_u32 v50, v51, 7, v50')
    for s in range(4):
        p('v_xor_b32 v51, %d, v48' % (2 * s))
        p('v_lshl_add_u32 v%d, v51, 4, v49' % (vRX + s))
        p('v_lshl_add_u32 v%d, v51, 4, v50' % (vRS + s))
        p('v_add_u32 v%d, 0x10000, v%d' % (vRX + 4 + s, vRX + s))
        p('v_add_u32 v%d, 0x10000, v%d' % (vRS + 4 + s, vRS + s))
    p('v_bfe_u32 v48, v%d, 2, 2' % vLANE)
    p('v_lshl_add_u32 v49, v%d, 3, v48' % h_)
    p('v_lshlrev_b32 v49, 7, v49')
    p('v_lshrrev_b32 v50, 1, v48')
    p('v_lshl_add_u32 v49, v50, 6, v49')
    p('v_and_b32 v50, 1, v%d' % vLANE)
    p('v_lshl_add_u32 v49, v50, 5, v49')
    p('v_bfe_u32 v50, v%d, 4, 1' % vLANE)
    p('v_lshl_add_u32 v49, v50, 4, v49')
    p('v_bfe_u32 v50, v%d, 1, 1' % vLANE)
    p('v_lshl_add_u32 v%d, v50, 3, v49' % vRF)
    p('v_xor_b32 v%d, 64, v%d' % (vRF + 1, vRF))
    p('v_add_u32 v%d, 0x10000, v%d' % (vRF + 2, vRF))
    p('v_add_u32 v%d, 0x10000, v%d' % (vRF + 3, vRF + 1))
    p('v_lshlrev_b32 v%d, 4, v%d' % (vL16, vLANE))
    p('v_bfe_u32 v48, v%d, 2, 1' % n_)
    p('v_lshlrev_b32 v48, 10, v48')
    p('v_lshl_add_u32 v48, v%d, 9, v48' % h_)
    p('v_lshrrev_b32 v49, 3, v%d' % n_)
    p('v_lshl_add_u32 v48, v49, 6, v48')
    p('v_and_b32 v49, 3, v%d' % n_)
    p('v_lshl_add_u32 v%d, v49, 4, v48' % vSTF)
    p('v_lshlrev_b32 v%d, 3, v%d' % (vEXA + 1, n_))
    p('v_lshl_add_u32 v48, v%d, 1, v%d' % (vWAVE, h_))
    p('v_lshl_add_u32 v%d, v48, 8, v%d' % (vEXA, vEXA + 1))
    p('s_lshr_b32 s62, s43, 1')
    p('s_add_u32 s63, s62, %d' % (XREG + 16384))
    p('v_lshlrev_b32 v48, 10, v%d' % h_)
    p('v_lshl_add_u32 v48, v%d, 4, v48' % n_)
    p('v_add_u32 v%d, s63, v48' % vTW)
    p('v_xor_b32 v%d, 0x240, v%d' % (vTW + 1, vTW))
    p('v_lshrrev_b32 v48, 4, v%d' % vLANE)
    p('v_lshlrev_b32 v48, 7, v48')
    p('v_bfe_u32 v49, v%d, 2, 2' % vLANE)
    p('v_lshl_add_u32 v48, v49, 4, v48')
    p('v_and_b32 v49, 1, v%d' % vLANE)
    p('v_lshl_add_u32 v48, v49, 3, v48')
    p('v_bfe_u32 v49, v%d, 1, 1' % vLANE)
    p('v_mul_u32_u24 v49, 0x240, v49')
    p('v_add_u32 v48, v48, v49')
    p('v_add_u32 v%d, s63, v48' % (vTW + 2))
    p('v_xor_b32 v%d, 64, v%d' % (vTW + 3, vTW + 2))
    p('s_sub_u32 s60, s35, 1')
    p('v_sub_u32 v48, s60, v%d' % h_)
    p('v_lshlrev_b32 v48, 9, v48')
    p('v_lshl_add_u32 v%d, v%d, 4, v48' % (vEO, n_))
    p('s_lshl_b32 s64, s35, 1')
    p('s_lshr_b32 s60, s39, 1')
    p('s_add_u32 s64, s64, s60')
    p('s_mul_i32 s64, s64, %d' % HID_RT)
    p('s_and_b32 s60, s39, 1')
    p('s_lshl_b32 s60, s60, 11')
    p('s_add_u32 s64, s64, s60')
    p('s_bitcmp1_b32 s39, 0')
    p('s_cselect_b64 s[66:67], -1, 0')
    p('s_bitcmp1_b32 s39, 1')
    p('s_cselect_b64 s[68:69], -1, 0')
    def unpack(dst, src, n):
        r = []
        for k in range(n):
            r.append('v_lshlrev_b32 v%d, 16, v%d' % (dst + 2 * k, src + k))
            r.append('v_and_b32 v%d, 0xffff0000, v%d' % (dst + 2 * k + 1, src + k))
        return r
    if B:
        p.wait(vm='b1a')
        for x in unpack(ACC + 32, 128, 16): put(x)
    def setup(g):
        c = CON[g]; tb = TAB[g]; pr = vPAR + 3 * g
        a, b = 48, 50
        r = ['v_lshlrev_b32 v%d, 16, v%d' % (pr + k, pr + k) for k in range(3)]
        r += ['v_mul_f32 v%d, %s, v%d' % (a, LOG2E, pr + 2), 'v_exp_f32 v%d, v%d' % (a, a),
              'v_cvt_pk_bf16_f32 v%d, v%d, v%d' % (a, a, a), 'v_lshlrev_b32 v%d, 16, v%d' % (a, a),
              'v_mul_f32 v%d, v%d, v%d' % (a + 1, a, pr + 1), 'v_mul_f32 v%d, v%d, v%d' % (a, a, pr),
              'v_mul_f32 v%d, %s, v%d' % (a + 1, INV2PI, a + 1), 'v_mul_f32 v%d, %s, v%d' % (a, LOG2E, a),
              'v_fract_f32 v%d, v%d' % (a + 1, a + 1), 'v_exp_f32 v%d, v%d' % (a, a),
              'v_cos_f32 v%d, v%d' % (b, a + 1), 'v_sin_f32 v%d, v%d' % (b + 1, a + 1),
              'v_mul_f32 v%d, v%d, v%d' % (c, a, b), 'v_mul_f32 v%d, v%d, v%d' % (c + 1, a, b + 1),
              'v_mul_f32 v%d, v%d, v%d' % (a, pr, pr), 'v_add_f32 v%d, -1.0, v%d' % (b, c),
              'v_fmac_f32 v%d, v%d, v%d' % (a, pr + 1, pr + 1), 'v_mul_f32 v%d, v%d, v%d' % (c + 2, b, pr),
              'v_rcp_f32 v%d, v%d' % (a, a), 'v_mul_f32 v%d, v%d, v%d' % (c + 3, c + 1, pr),
              'v_fmac_f32 v%d, v%d, v%d' % (c + 2, c + 1, pr + 1), 'v_fma_f32 v%d, -v%d, v%d, v%d' % (c + 3, b, pr + 1, c + 3),
              'v_mul_f32 v%d, v%d, v%d' % (c + 2, c + 2, a), 'v_mul_f32 v%d, v%d, v%d' % (c + 3, c + 3, a),
              'v_mov_b32 v%d, v%d' % (tb, c), 'v_mov_b32 v%d, v%d' % (tb + 1, c + 1)]
        for k in range(1, 16): r += cmul(tb + 2 * k, tb + 2 * k - 2, c)
        mu = tb + 30
        r += ['v_mov_b32 v%d, v%d' % (c + 4, mu), 'v_mov_b32 v%d, v%d' % (c + 5, mu + 1)]
        r += ['v_cmp_eq_u32 vcc, 1, v3', 'v_cndmask_b32 v%d, 1.0, v%d, vcc' % (b, mu), 'v_cndmask_b32 v%d, 0, v%d, vcc' % (b + 1, mu + 1)]
        r += cmul(c + 6, c + 2, b)
        r += csq(a, mu)
        r += ['v_cndmask_b32 v%d, 1.0, v%d, s[66:67]' % (b, a), 'v_cndmask_b32 v%d, 0, v%d, s[66:67]' % (b + 1, a + 1)]
        r += cmul(c + 12, c + 6, b)
        r += csq(c + 8, a)
        r += ['v_cndmask_b32 v%d, 1.0, v%d, s[68:69]' % (b, c + 8), 'v_cndmask_b32 v%d, 0, v%d, s[68:69]' % (b + 1, c + 9)]
        r += cmul(c + 6, c + 12, b)
        r += csq(a, c + 8)
        r += ['v_cndmask_b32 v%d, 1.0, v%d, vcc' % (c + 10, a), 'v_cndmask_b32 v%d, 0, v%d, vcc' % (c + 11, a + 1)]
        r += csq(c + 8, a)
        return r
    def gate():
        r = []; a = 48
        r.append('v_mov_b32 v%d, 0' % (a + 3))
        for k in range(10):
            x, w = vGX + k, vGW + k
            r += ['v_lshlrev_b32 v%d, 16, v%d' % (a, x), 'v_lshlrev_b32 v%d, 16, v%d' % (a + 1, w),
                  'v_and_b32 v%d, 0xffff0000, v%d' % (x, x), 'v_and_b32 v%d, 0xffff0000, v%d' % (w, w),
                  'v_mul_f32 v%d, v%d, v%d' % (a, a, a + 1), 'v_mul_f32 v%d, v%d, v%d' % (x, x, w),
                  'v_cvt_pk_bf16_f32 v%d, v%d, v%d' % (a, a, x),
                  'v_lshlrev_b32 v%d, 16, v%d' % (a + 1, a), 'v_and_b32 v%d, 0xffff0000, v%d' % (a, a),
                  'v_add_f32 v%d, v%d, v%d' % (a + 3, a + 3, a + 1), 'v_add_f32 v%d, v%d, v%d' % (a + 3, a + 3, a)]
        s = a + 3
        for m in ('quad_perm:[1,0,3,2]', 'quad_perm:[2,3,0,1]', 'row_half_mirror', 'row_mirror'):
            r.append('v_add_f32_dpp v%d, v%d, v%d %s row_mask:0xf bank_mask:0xf' % (s, s, s, m))
        r += ['v_mov_b32 v%d, v%d' % (a, s), 'v_permlane16_swap_b32 v%d, v%d' % (a, s), 'v_add_f32 v%d, v%d, v%d' % (s, s, a),
              'v_cvt_pk_bf16_f32 v%d, v%d, v%d' % (s, s, s), 'v_lshlrev_b32 v%d, 16, v%d' % (s, s),
              'v_mul_f32 v%d, 0xbfb8aa3b, v%d' % (s, s), 'v_exp_f32 v%d, v%d' % (s, s), 'v_add_f32 v%d, 1.0, v%d' % (s, s),
              'v_rcp_f32 v%d, v%d' % (s, s), 'v_cvt_pk_bf16_f32 v%d, v%d, v%d' % (s, s, s), 'v_lshlrev_b32 v%d, 16, v%d' % (a, s),
              'v_sub_f32 v%d, 1.0, v%d' % (a + 1, a), 'v_cvt_pk_bf16_f32 v%d, v%d, v%d' % (a + 1, a + 1, a + 1),
              'v_lshlrev_b32 v%d, 16, v%d' % (a + 1, a + 1)]
        def store():
            p('s_mov_b32 s40, %d' % WS_G)
            p('s_mov_b32 exec_lo, 1'); p('s_mov_b32 exec_hi, 1')
            p('buffer_store_dwordx2 v[%d:%d], v78, s[56:59], s40 offen%s' % (a, a + 1, SC), tag='gst')
            p('s_mov_b64 exec, -1')
        r.append(store)
        return r
    def sidejob_setup():
        r = ['s_lshl_b32 s40, s2, 2', 's_add_u32 s40, s40, s39',
             's_mul_i32 s41, s40, 6554', 's_lshr_b32 s41, s41, 16',
             's_mul_i32 s65, s41, 10', 's_sub_u32 s65, s40, s65',
             's_mul_i32 s92, s41, %d' % (32 * 1280), 's_lshl_b32 s93, s65, 7', 's_add_u32 s92, s92, s93',
             's_lshl_b32 s65, s65, 2',
             's_mul_i32 s41, s41, 5120',
             's_mov_b32 s88, s24', 's_mov_b32 s89, s25', 's_mov_b32 s90, %d' % (1536 * 1280), 's_mov_b32 s91, 0x20000',
             's_mov_b32 s97, 1']
        def part2():
            la, lb = p.newlabel('L_sj'), p.newlabel('L_sj')
            p('s_cmp_ge_u32 s40, 480'); p('s_cbranch_scc1 ' + la)
            for e in range(4):
                p('s_add_u32 s98, s65, %d' % e); p('s_mul_i32 s99, s98, 52'); p('s_lshr_b32 s99, s99, 8')
                p('s_mul_i32 s%d, s99, %d' % (93 + e, W2P_CT - 5 * 1024)); p('s_lshl_b32 s98, s98, 10')
                p('s_add_u32 s%d, s%d, s98' % (93 + e, 93 + e)); p('s_add_u32 s%d, s%d, s41' % (93 + e, 93 + e))
            p('s_branch ' + lb)
            p.label(la)
            p('s_sub_u32 s40, s40, 480'); p('s_cmp_ge_u32 s40, 200')
            p('s_cselect_b32 s88, s16, s14'); p('s_cselect_b32 s89, s17, s15'); p('s_cselect_b32 s41, 1, 0')
            p('s_cselect_b32 s65, 200, 0'); p('s_sub_u32 s40, s40, s65')
            p('s_cmp_ge_u32 s40, 200'); p('s_cselect_b32 s90, 0, %d' % (640 * 1280)); p('s_cselect_b32 s97, 2, 0')
            p('s_mul_i32 s65, s40, 3277'); p('s_lshr_b32 s65, s65, 16')
            p('s_mul_i32 s98, s65, 20'); p('s_sub_u32 s40, s40, s98')
            p('s_mul_i32 s92, s40, %d' % (32 * 1280)); p('s_lshl_b32 s98, s65, 7'); p('s_add_u32 s92, s92, s98')
            p('s_lshl_b32 s65, s65, 2'); p('s_add_u32 s41, s41, s65'); p('s_add_u32 s41, s41, 48'); p('s_mul_i32 s41, s41, 5120')
            p('s_lshl_b32 s40, s40, 1')
            for e in range(2):
                p('s_add_u32 s98, s40, %d' % e); p('s_mul_i32 s99, s98, 52'); p('s_lshr_b32 s99, s99, 8')
                p('s_mul_i32 s%d, s99, %d' % (93 + 2 * e, W2P_CT - 5 * 1024)); p('s_lshl_b32 s98, s98, 10')
                p('s_add_u32 s%d, s%d, s98' % (93 + 2 * e, 93 + 2 * e)); p('s_add_u32 s%d, s%d, s41' % (93 + 2 * e, 93 + 2 * e))
                p('s_add_u32 s%d, s%d, %d' % (94 + 2 * e, 93 + 2 * e, 2 * 5120))
            p.label(lb)
        r.append(part2)
        r += ['v_lshrrev_b32 v48, 3, v%d' % vLANE, 'v_mul_u32_u24 v48, 1280, v48', 'v_and_b32 v49, 7, v%d' % vLANE,
              'v_lshl_add_u32 v%d, v49, 4, v48' % vDJ]
        r += ['v_add_u32 v%d, %d, v%d' % (vDJ + i, i * (8 * 1280 - 1024), vDJ) for i in range(1, 4)]
        return r
    def sidejob_dma():
        return ['s_add_u32 m0, s62, %d' % XREG] + [('buffer_load_dwordx4 v%d, s[88:91], s92 offen offset:%d lds' % (vDJ + i, 1024 * i), 'sj') for i in range(4)]
    def sidejob_run():
        d = 52
        la, lb, lc = p.newlabel('L_sr'), p.newlabel('L_sr'), p.newlabel('L_sr')
        p.wait(vm='sj')
        p('s_add_u32 s40, s62, %d' % XREG)
        p('s_cmp_eq_u32 s97, 2'); p('s_cbranch_scc1 ' + lc)
        p('s_cmp_eq_u32 s97, 1'); p('s_cbranch_scc0 ' + la)
        p('v_lshrrev_b32 v48, 4, v%d' % vLANE); p('v_bfe_u32 v49, v%d, 2, 2' % vLANE)
        p('v_lshl_add_u32 v48, v48, 3, v49'); p('v_lshlrev_b32 v48, 7, v48')
        p('v_and_b32 v49, 3, v%d' % vLANE); p('v_lshl_add_u32 v48, v49, 3, v48'); p('v_add_u32 v48, s40, v48')
        for e in range(4):
            for j in range(2):
                p('ds_read_b64_tr_b16 v[%d:%d], v48 offset:%d' % (d + 4 * e + 2 * j, d + 4 * e + 2 * j + 1, 32 * e + 512 * j), optional=True)
        p('s_branch ' + lb)
        p.label(la)
        p('v_and_b32 v48, 15, v%d' % vLANE); p('v_lshlrev_b32 v48, 7, v48'); p('v_lshrrev_b32 v49, 4, v%d' % vLANE)
        p('v_lshl_add_u32 v48, v49, 4, v48'); p('v_add_u32 v48, s40, v48')
        for e in range(2):
            for gg in range(2):
                p('ds_read_b128 v[%d:%d], v48 offset:%d' % (d + 8 * e + 4 * gg, d + 8 * e + 4 * gg + 3, 2048 * e + 64 * gg), optional=True)
        p.label(lb)
        p('v_add_u32 v49, %d, v%d' % (WS_W2P, vL16))
        p.wait(lg='all', force=True)
        for e in range(4):
            p('buffer_store_dwordx4 v[%d:%d], v49, s[56:59], s%d offen%s' % (d + 4 * e, d + 4 * e + 3, 93 + e, SC), optional=True)
        p.label(lc)
    fill = sidejob_setup() + [lambda: p.wait(vm='par')]
    for g in range(NG): fill += setup(g)
    fill += [lambda: p.wait(vm=['gate', 'b1b'])] + gate()
    if B: fill += unpack(ACC + 64, vB1, 16)
    def reads1(k):
        s, ks = divmod(k, 4); sl = s % 4; hi = 4 * (sl >> 1); o = (sl & 1) * SLOT
        w = AW + 16 * (k % NBUF); tg = 'k%d' % k
        r = [('ds_read_b128 a[%d:%d], v%d offset:%d' % (AX + 4 * k, AX + 4 * k + 3, vRX + hi + ks, o), tg)]
        for T in range(2):
            r.append(('ds_read_b128 a[%d:%d], v%d offset:%d' % (w + 4 * T, w + 4 * T + 3, vRS + hi + ks, o + 4096 + 16384 * T), tg))
        for T in range(2):
            if B:
                for j in range(2):
                    r.append(('ds_read_b64_tr_b16 a[%d:%d], v%d offset:%d' % (w + 8 + 4 * T + 2 * j, w + 9 + 4 * T + 2 * j, vRF + (hi >> 1) + T, o + ks * 8192 + 6144 + 512 * j), tg))
            else:
                r.append(('ds_read_b128 a[%d:%d], v%d offset:%d' % (w + 8 + 4 * T, w + 11 + 4 * T, vRS + hi + ks, o + 6144 + 16384 * T), tg))
        return r
    def reads2(k):
        s, ks = divmod(k, 4); c, sg = divmod(s, 4); sl = F2SLOT[c]
        w = AW + 16 * ((40 + k) % NBUF); tg = 'k%d' % (40 + k)
        o = (sl & 1) * SLOT + ks * (8192 if c < 2 else 4096) + sg * 2048
        return [('ds_read_b64_tr_b16 a[%d:%d], v%d offset:%d' % (w + 4 * T + 2 * j, w + 1 + 4 * T + 2 * j, vRF + 2 * (sl >> 1) + T, o + 512 * j), tg)
                for T in range(2) for j in range(2)]
    NK = 80 if B else 40
    def reads(k):
        if k >= NK: return []
        return reads1(k) if k < 40 else reads2(k - 40)
    def sync_for(k):
        if k < 40 and k % 4 == 0:
            s = k // 4
            p.wait(vm='st%d' % s, lg='all'); p('s_barrier')
            if s == 0: return []
            if s <= 6: return dma_stage(s + 3)
            if B: return dma_f2(s - 7) + (sidejob_dma() if s == 9 else [])
            return sidejob_dma() if s == 9 else []
        if k >= 40 and k < NK and (k - 40) % 16 == 0:
            p.wait(vm='f2c%d' % ((k - 40) // 16), lg='all'); p('s_barrier')
        return []
    def mfmas(k):
        w = AW + 16 * (k % NBUF)
        mf = 'v_mfma_f32_32x32x16_bf16 v[%d:%d], a[%d:%d], a[%d:%d], %s'
        r = []
        if k < 40:
            x = AX + 4 * k
            for T in range(4):
                a = ACC + 16 * T; f = w + 4 * T
                c = '0' if (k == 0 and (T < 2 or not B)) else 'v[%d:%d]' % (a, a + 15)
                if T < 2 or not B: r.append(mf % (a, a + 15, x, x + 3, f, f + 3, c))
                else: r.append(mf % (a, a + 15, f, f + 3, x, x + 3, c))
        else:
            x = AX + 4 * (k - 40)
            for T in range(2):
                a = ACC + 64 + 16 * T; f = w + 4 * T
                r.append(mf % (a, a + 15, f, f + 3, x, x + 3, 'v[%d:%d]' % (a, a + 15)))
        return r
    def scanA1(g):
        c = CON[g]; re, im = ACC + 32 * g, ACC + 32 * g + 16
        r = []
        for k in range(1, 16): r += cfma(re + k, im + k, c, re + k - 1, im + k - 1)
        r += ['v_mov_b32 v%d, v%d' % (48 + 2 * g, re + 15), 'v_mov_b32 v%d, v%d' % (49 + 2 * g, im + 15),
              ('ds_write_b64 v%d, v[%d:%d] offset:%d' % (vEXA, 48 + 2 * g, 49 + 2 * g, EXO + 2048 * g), 'ex')]
        return r
    def scanA2(g):
        c = CON[g]; re, im = ACC + 32 * g, ACC + 32 * g + 16; tt = 48 + g
        r = []
        for k in range(16):
            r += ['v_mul_f32 v%d, v%d, v%d' % (tt, c + 3, re + k), 'v_mul_f32 v%d, v%d, v%d' % (re + k, c + 2, re + k),
                  'v_fma_f32 v%d, -v%d, v%d, v%d' % (re + k, c + 3, im + k, re + k), 'v_fma_f32 v%d, v%d, v%d, v%d' % (im + k, c + 2, im + k, tt)]
        return r
    def exch(g):
        c = CON[g]; e = 52 + 16 * g if not B else 52
        r = [('ds_read_b64 v[%d:%d], v%d offset:%d' % (e + 2 * k, e + 2 * k + 1, vEXA + 1, EXO + 2048 * g + 256 * k), 'exr%d' % g) for k in range(8)]
        r += ['v_lshl_add_u32 v%d, v%d, 1, v3' % (c + 14, vWAVE), 'v_mov_b32 v%d, 0' % (c + 12), 'v_mov_b32 v%d, 0' % (c + 13),
              lambda: p.wait(lg='exr%d' % g)]
        for k in range(1, 8):
            r += ['v_cmp_eq_u32 vcc, %d, v%d' % (k, c + 14)]
            r += cfma(e + 2 * k, e + 2 * k + 1, c + 4, e + 2 * k - 2, e + 2 * k - 1)
            r += ['v_cndmask_b32 v%d, v%d, v%d, vcc' % (c + 12, c + 12, e + 2 * k - 2), 'v_cndmask_b32 v%d, v%d, v%d, vcc' % (c + 13, c + 13, e + 2 * k - 1)]
        def pub():
            if g == 0: get_nonce()
            p('v_mov_b32 v%d, v%d' % (e, e + 14)); p('v_mov_b32 v%d, s32' % (e + 1))
            p('v_mov_b32 v%d, v%d' % (e + 2, e + 15)); p('v_mov_b32 v%d, s32' % (e + 3))
            p('s_add_u32 s40, s37, %d' % g); p('s_lshl_b32 s40, s40, 4'); p('s_add_u32 s40, s40, s35'); p('s_lshl_b32 s40, s40, 9')
            p('s_add_u32 s40, s40, %d' % WS_E)
            p('s_lshl_b32 s41, s39, 3'); p('s_lshl_b32 exec_lo, 0xff, s41'); p('s_mov_b32 exec_hi, 0')
            p('buffer_store_dwordx4 v[%d:%d], v%d, s[56:59], s40 offen%s' % (e, e + 3, vL16, SC), tag='pub')
            p('s_mov_b64 exec, -1')
        r.append(pub)
        r += ['v_mov_b32 v%d, v%d' % (e + 4, c + 12), 'v_mov_b32 v%d, v%d' % (e + 5, c + 13)] + cmul(c + 12, c + 2, e + 4)
        return r
    def nonce_load():
        return ['v_mov_b32 v45, 0', ('global_load_dword v46, v45, s[28:29] sc1', 'nonce')]
    def get_nonce():
        l1, l2 = p.newlabel('L_np'), p.newlabel('L_np')
        p.wait(vm='nonce')
        p('s_mov_b32 s65, 0')
        p.label(l1)
        p('v_readfirstlane_b32 s32, v46')
        p('s_cmp_lg_u32 s32, 0'); p('s_cbranch_scc1 ' + l2)
        p('s_add_u32 s65, s65, 1'); p('s_cmp_gt_u32 s65, %d' % SPIN_MAX); p('s_cbranch_scc1 ' + l2)
        p('global_load_dword v46, v45, s[28:29] sc1', optional=True)
        p('s_waitcnt vmcnt(0)'); p('s_branch ' + l1)
        p.label(l2)
    def ffn_epi(T):
        a = ACC + 16 * T; r = []
        for k in range(16): r += ['v_max_f32 v%d, 0, v%d' % (a + k, a + k), 'v_mul_f32 v%d, v%d, v%d' % (a + k, a + k, a + k)]
        for k in range(8): r.append('v_cvt_pk_bf16_f32 v%d, v%d, v%d' % (a + k, a + 2 * k, a + 2 * k + 1))
        r += ['s_lshl_b32 s40, s38, 13', 's_add_u32 s40, s40, s64', 's_add_u32 s40, s40, %d' % ((T - 2) * 4096)]
        r += [('buffer_store_dwordx4 v[%d:%d], v%d, s[56:59], s40 offen offset:%d%s' % (a + 4 * q, a + 4 * q + 3, vSTF, 256 * q, SC), 'hst') for q in range(2)]
        return r
    def lb_issue(g, e):
        p('s_add_u32 s40, s37, %d' % g); p('s_lshl_b32 s40, s40, 13'); p('s_add_u32 s40, s40, %d' % WS_E)
        srd(p, 84, 30, 8192, 's40')
        for k in range(8):
            p('v_add_u32 v48, %d, v%d' % (-1024 * k, vEO)) if k else p('v_mov_b32 v48, v%d' % vEO)
            p('buffer_load_dwordx4 v[%d:%d], v48, s[84:87], 0 offen sc1' % (e[k], e[k] + 3), tag='lb%d' % g)
    def lb_finish(g, e):
        c = CON[g]; l1, l2 = p.newlabel('L_lb'), p.newlabel('L_lb')
        p.wait(vm='lb%d' % g)
        p('s_mov_b32 s65, 0')
        p.label(l1)
        p('v_mov_b32 v49, 0')
        for k in range(8):
            p('v_cmp_le_i32 vcc, %d, v%d' % (1024 * k, vEO)) if k else p('v_cmp_le_i32 vcc, 0, v%d' % vEO)
            p('v_xor_b32 v50, s32, v%d' % (e[k] + 1)); p('v_xor_b32 v51, s32, v%d' % (e[k] + 3))
            p('v_or_b32 v50, v50, v51'); p('v_cndmask_b32 v50, 0, v50, vcc'); p('v_or_b32 v49, v49, v50')
        p('v_cmp_ne_u32 vcc, 0, v49')
        p('s_cbranch_vccz ' + l2)
        p('s_add_u32 s65, s65, 1'); p('s_cmp_gt_u32 s65, %d' % SPIN_MAX); p('s_cbranch_scc1 ' + l2)
        p('s_add_u32 s40, s37, %d' % g); p('s_lshl_b32 s40, s40, 13'); p('s_add_u32 s40, s40, %d' % WS_E)
        srd(p, 84, 30, 8192, 's40')
        for k in range(8):
            p('v_add_u32 v48, %d, v%d' % (-1024 * k, vEO)) if k else p('v_mov_b32 v48, v%d' % vEO)
            p('buffer_load_dwordx4 v[%d:%d], v48, s[84:87], 0 offen sc1' % (e[k], e[k] + 3), optional=True)
        p('s_waitcnt vmcnt(0)'); p('s_branch ' + l1)
        p.label(l2)
        for k in range(6, -1, -1):
            for x in cfma(e[k], e[k] + 2, c + 8, e[k + 1], e[k + 1] + 2): put(x)
        p('v_mov_b32 v%d, v%d' % (e[0] + 1, e[0] + 2))
        for x in cmul(48, c + 10, e[0]): put(x)
        p('v_mov_b32 v50, v48'); p('v_mov_b32 v51, v49')
        p('v_permlane32_swap_b32 v48, v50'); p('v_permlane32_swap_b32 v49, v51')
        p('v_add_f32 v48, v48, v50'); p('v_add_f32 v49, v49, v51')
        for x in cfma(c + 12, c + 13, c + 6, 48, 49): put(x)
    def scanB(g):
        c = CON[g]; tb = TAB[g]; re, im = ACC + 32 * g, ACC + 32 * g + 16
        tb_off = 0 if g == 0 else (2 * SLOT - (XREG + 16384))
        if g == 1:
            for k in range(4): p('v_add_u32 v%d, %d, v%d' % (vTW + k, tb_off, vTW + k))
        p('s_add_u32 s40, s37, %d' % g); p('s_lshl_b32 s40, s40, 13'); p('s_add_u32 s40, s40, s64'); p('s_add_u32 s40, s40, %d' % (48 * 4096))
        p('s_add_u32 s41, s40, 4096')
        for q in range(2):
            for k in range(8 * q, 8 * q + 8):
                for x in cfma(re + k, im + k, tb + 2 * k, c + 12, c + 13): put(x)
            for k in range(4):
                p('v_cvt_pk_bf16_f32 v%d, v%d, v%d' % (re + 8 * q + k, re + 8 * q + 2 * k, re + 8 * q + 2 * k + 1))
                p('v_cvt_pk_bf16_f32 v%d, -v%d, -v%d' % (im + 8 * q + k, im + 8 * q + 2 * k, im + 8 * q + 2 * k + 1))
            p('ds_write_b128 v%d, v[%d:%d]' % (vTW + q, re + 8 * q, re + 8 * q + 3), tag='tw')
            p('ds_write_b128 v%d, v[%d:%d] offset:2048' % (vTW + q, im + 8 * q, im + 8 * q + 3), tag='tw')
        p.wait(lg='tw')
        for part in range(2):
            for b in range(2):
                for j in range(2):
                    o = re + 16 * part + 8 * b + 4 + 2 * j
                    p('ds_read_b64_tr_b16 v[%d:%d], v%d offset:%d' % (o, o + 1, vTW + 2 + j, 2048 * part + 1024 * b), tag='tr%d%d' % (part, b))
        for part in range(2):
            for b in range(2):
                o = re + 16 * part + 8 * b + 4
                p.wait(lg='tr%d%d' % (part, b))
                p('buffer_store_dwordx4 v[%d:%d], v%d, s[56:59], s%d offen offset:%d%s' % (o, o + 3, vL16, 40 + part, 1024 * b, SC), tag='hst')
    pend = []
    pend += sync_for(0)
    st('first')
    for k in range(DIST):
        if k: pend += sync_for(k)
        for x in reads(k): put(x)
    fill2 = []
    if B:
        def exbar(): p.wait(lg='ex'); p('s_barrier')
        fill2 = scanA1(0) + [exbar] + exch(0) + [lambda: st('pub')] + ffn_epi(2) + ffn_epi(3) + scanA2(0)
    for k in range(NK):
        if k == 20: fill += nonce_load()
        if k == 40:
            assert not fill, len(fill)
            st('pass1'); fill = fill2
        pend += sync_for(k + DIST)
        rd = reads(k + DIST)
        p.wait(lg='k%d' % k)
        ms = mfmas(k)
        for j, m in enumerate(ms):
            p(m)
            budget = opt.get('gap1', 5) if k < 40 else opt.get('gap2', 6)
            nrd = -(-len(rd) // (len(ms) - j))
            for _ in range(nrd): put(rd.pop(0)); budget -= 1
            nd = 0
            while pend and nd < 1:
                x = pend.pop(0); put(x); budget -= 1
                if isinstance(x, tuple): nd += 1
            if k == 40 and j == 0: continue
            while fill and budget > 0 and k >= 2:
                put(fill.pop(0)); budget -= 1
        p.check_depth()
    assert not pend
    if B:
        for x in fill: put(x)
        st('pass2')
        e0 = [ACC + 32 + 4 * k for k in range(8)]
        lb_issue(0, e0)
        for x in interleave(ffn_epi(4), []) + ffn_epi(5): put(x)
        sidejob_run()
        st('lbstart')
        lb_finish(0, e0)
        st('lbdone')
        scanB(0)
    else:
        for x in fill: put(x)
        st('pass1')
        for x in interleave(scanA1(0), scanA1(1)): put(x)
        p.wait(lg='ex'); p('s_barrier')
        for x in exch(0) + exch(1): put(x)
        st('pub')
        for x in scanA2(0) + scanA2(1): put(x)
        st('pass2')
        sidejob_run()
        e0 = [64 + 4 * k for k in range(8)]; e1 = [4 + 4 * k for k in range(7)] + [60]
        lb_issue(0, e0)
        lb_issue(1, e1)
        st('lbstart')
        lb_finish(0, e0)
        scanB(0)
        lb_finish(1, e1)
        st('lbdone')
        scanB(1)
    st('end')
```

```python
from emit import Prog
from common import *

K2_LDS = 4 * 64 * 336 + 1024
RING = 6

def gen_k2(name, opt):
    p = Prog()
    st = Stamps(p, list(range(64, 100, 2)), opt.get('stamps'))
    SC = opt.get('out_sc', ' sc1')
    ACCB, ACCA = 0, 80
    ACCB, ACCA = 96, 176
    vA, vB, vB2 = 4, 5, 6
    vG = 8
    vX = 16
    vBias = 26
    vLR = 46
    vOut = 51
    vCol = 56
    vRow = 61
    vLW = 66
    vT = 68
    SM = 0
    p.label(name)
    st('rt0'); st('start')
    p('s_cmp_ge_u32 s2, 256')
    p('s_cbranch_scc1 %s_end' % name)
    p('s_load_dwordx2 s[4:5], s[0:1], %d' % KA['x'])
    p('s_load_dwordx2 s[6:7], s[0:1], %d' % KA['dskip'])
    p('s_load_dwordx2 s[36:37], s[0:1], %d' % KA['b2'])
    p('s_load_dwordx2 s[38:39], s[0:1], %d' % KA['out'])
    p('s_load_dwordx2 s[40:41], s[0:1], %d' % KA['ws'])
    p('s_lshr_b32 s3, s2, 3')
    if opt.get('k2_prefetch', True): code_prefetch(p, name + '_end', vT, 42, 3)
    p('s_and_b32 s44, s2, 7')
    p('s_lshr_b32 s45, s44, 1')
    p('s_lshl_b32 s45, s45, 3')
    p('s_and_b32 s46, s3, 7')
    p('s_add_u32 s45, s45, s46')
    p('s_and_b32 s44, s44, 1')
    p('s_lshl_b32 s44, s44, 2')
    p('s_lshr_b32 s46, s3, 3')
    p('s_add_u32 s44, s44, s46')
    p('v_and_b32 v1, 63, v0')
    p('v_lshrrev_b32 v2, 6, v0')
    p('v_lshlrev_b32 v3, 4, v1')
    p('v_lshl_add_u32 v%d, v2, 12, v3' % vA)
    p('v_mul_u32_u24 v%d, 5120, v2' % vB)
    p('v_add_u32 v%d, v%d, v3' % (vB, vB))
    p('v_add_u32 v%d, 0x1000, v%d' % (vB2, vB))
    p('s_mul_i32 s47, s45, %d' % HID_RT)
    p('s_mul_i32 s48, s44, %d' % W2P_CT)
    p('s_add_u32 s48, s48, %d' % WS_W2P)
    p.wait(lg='all')
    srd(p, 8, 40, HID_RT, 's47')
    srd(p, 12, 40, W2P_CT, 's48')
    def slot(i): return (i % RING) * 36
    def loads(i):
        b = slot(i); r = []
        r.append('s_mov_b32 s50, %d' % (i * 16384))
        for m in range(4):
            r.append(('buffer_load_dwordx4 a[%d:%d], v%d, s[8:11], s50 offen offset:%d' % (b + 4 * m, b + 4 * m + 3, vA, 1024 * m), 'L%d' % i))
        r.append('s_mov_b32 s51, %d' % (i * 20480))
        for n in range(5):
            if n < 4: r.append(('buffer_load_dwordx4 a[%d:%d], v%d, s[12:15], s51 offen offset:%d' % (b + 16 + 4 * n, b + 19 + 4 * n, vB, 1024 * n), 'L%d' % i))
            else: r.append(('buffer_load_dwordx4 a[%d:%d], v%d, s[12:15], s51 offen' % (b + 32, b + 35, vB2), 'L%d' % i))
        return r
    def put(x):
        if callable(x): x()
        elif isinstance(x, tuple): p(x[0], tag=x[1])
        else: p(x)
    for i in range(RING - 1):
        for x in loads(i): put(x)
    st('issued')
    p('s_lshl_b32 s49, s45, 9')
    p('s_add_u32 s49, s49, %d' % WS_G)
    srd(p, 28, 40, 512, 's49')
    p('s_mul_i32 s49, s44, 160')
    srd(p, 20, 6, 160, 's49')
    srd(p, 24, 36, 160, 's49')
    p('s_mul_i32 s52, s45, %d' % (64 * 1280))
    p('s_add_u32 s52, s52, s49')
    srd(p, 16, 4, 64 * 1280 - 1280 + 160, 's52')
    p('s_lshl_b32 s52, s52, 1')
    srd(p, 32, 38, 64 * 2560 - 2560 + 320, 's52')
    p('v_readfirstlane_b32 s53, v2')
    p('v_lshlrev_b32 v%d, 2, v1' % vT)
    p('s_cmp_eq_u32 s53, 2')
    for k in range(3): p('s_cselect_b32 s%d, s%d, s%d' % (56 + k, 20 + k, 28 + k))
    p('s_cmp_eq_u32 s53, 3')
    for k in range(3): p('s_cselect_b32 s%d, s%d, s%d' % (56 + k, 24 + k, 56 + k))
    p('s_mov_b32 s59, 0x20000')
    p('s_cmp_eq_u32 s53, 1')
    p('s_cselect_b32 s54, 256, 0')
    p('s_lshl_b32 s55, s53, 8')
    p('s_add_u32 m0, s55, %d' % SM)
    p('buffer_load_dword v%d, s[56:59], s54 offen lds' % vT, tag='SM')
    for i in range(5):
        t = vT + 1
        p('v_add_u32 v%d, %d, v0' % (t, 256 * i))
        p('v_mul_u32_u24 v%d, 0xcccd, v%d' % (t + 1, t))
        p('v_lshrrev_b32 v%d, 20, v%d' % (t + 1, t + 1))
        p('v_mul_u32_u24 v%d, 20, v%d' % (t + 2, t + 1))
        p('v_sub_u32 v%d, v%d, v%d' % (t + 2, t, t + 2))
        p('v_mul_u32_u24 v%d, 1280, v%d' % (t + 3, t + 1))
        p('v_lshl_add_u32 v%d, v%d, 3, v%d' % (t + 3, t + 2, t + 3))
        p('buffer_load_dwordx2 v[%d:%d], v%d, s[16:19], 0 offen' % (vX + 2 * i, vX + 2 * i + 1, t + 3), tag='X')
        p('v_lshlrev_b32 v%d, 1, v%d' % (vOut + i, t + 3))
        p('v_mul_u32_u24 v%d, 336, v%d' % (vLR + i, t + 1))
        p('v_add_u32 v%d, 1024, v%d' % (vLR + i, vLR + i))
        p('v_lshl_add_u32 v%d, v%d, 4, v%d' % (vLR + i, t + 2, vLR + i))
        p('v_lshlrev_b32 v%d, 3, v%d' % (vCol + i, t + 2))
        p('v_lshlrev_b32 v%d, 3, v%d' % (vRow + i, t + 1))
    p.check_depth()
    p('v_and_b32 v%d, 15, v1' % vT)
    p('v_mul_u32_u24 v%d, 336, v%d' % (vLW, vT))
    p('v_lshrrev_b32 v%d, 4, v1' % (vT + 1))
    p('v_lshl_add_u32 v%d, v%d, 4, v%d' % (vLW, vT + 1, vLW))
    p('v_mul_u32_u24 v%d, %d, v2' % (vT + 1, 64 * 336))
    p('v_add_u32 v%d, v%d, v%d' % (vLW, vLW, vT + 1))
    p('v_add_u32 v%d, 1024, v%d' % (vLW, vLW))
    p('v_lshlrev_b32 v%d, 3, v%d' % (vLW + 1, vT))
    fill = []
    def f_sync():
        p.wait(vm=['SM', 'X']); p('s_barrier')
    fill.append(f_sync)
    for m in range(4):
        fill.append(('ds_read_b64 v[%d:%d], v%d offset:%d' % (vG + 2 * m, vG + 2 * m + 1, vLW + 1, SM + 128 * m), 'g'))
    for i in range(5):
        t = vT
        fill.append(('ds_read_b64 v[%d:%d], v%d offset:%d' % (t, t + 1, vRow + i, SM), 'c'))
        fill.append(('ds_read_b64 v[%d:%d], v%d offset:%d' % (t + 2, t + 3, vCol + i, SM + 512), 'c'))
        fill.append(('ds_read_b64 v[%d:%d], v%d offset:%d' % (t + 4, t + 5, vCol + i, SM + 768), 'c'))
        for h in range(2):
            fill.append('v_lshlrev_b32 v%d, 16, v%d' % (t + 6 + 2 * h, vX + 2 * i + h))
            fill.append('v_and_b32 v%d, 0xffff0000, v%d' % (t + 7 + 2 * h, vX + 2 * i + h))
        fill.append(lambda: p.wait(lg='c'))
        for h in range(2):
            fill.append('v_lshlrev_b32 v%d, 16, v%d' % (t + 10, t + 2 + h))
            fill.append('v_and_b32 v%d, 0xffff0000, v%d' % (t + 11, t + 2 + h))
            fill.append('v_lshlrev_b32 v%d, 16, v%d' % (t + 12, t + 4 + h))
            fill.append('v_and_b32 v%d, 0xffff0000, v%d' % (t + 13, t + 4 + h))
            for e in range(2):
                d = vBias + 4 * i + 2 * h + e
                fill.append('v_mul_f32 v%d, v%d, v%d' % (t + 10 + e, t + 10 + e, t + 6 + 2 * h + e))
                fill.append('v_mul_f32 v%d, v%d, v%d' % (d, t + 1, t + 12 + e))
                fill.append('v_fmac_f32 v%d, v%d, v%d' % (d, t, t + 10 + e))
    for m in range(4):
        fill.append('v_add_f32 v%d, v%d, v%d' % (vG + 2 * m, vG + 2 * m, vG + 2 * m))
    scale = []
    for m in range(4):
        for n in range(5):
            for r in range(4):
                a = ACCB + 20 * m + 4 * n + r
                scale.append('v_mul_f32 v%d, v%d, v%d' % (a, vG + 2 * m + 1, a))
    NS = 22
    for i in range(NS):
        p.wait(vm='L%d' % i)
        if i == 0: st('first')
        nxt = loads(i + RING - 1) if i + RING - 1 < NS else []
        acc = ACCB if i < 12 else ACCA
        first = i in (0, 12)
        b = slot(i)
        fl = fill if 5 <= i else []
        if i >= 13 and not fill: fl = scale
        k = 0
        for n in range(5):
            for m in range(4):
                a = acc + 20 * m + 4 * n
                p('v_mfma_f32_16x16x32_bf16 v[%d:%d], a[%d:%d], a[%d:%d], %s' % (a, a + 3, b + 16 + 4 * n, b + 19 + 4 * n, b + 4 * m, b + 4 * m + 3,
                                                                              '0' if first else 'v[%d:%d]' % (a, a + 3)))
                k += 1
                if k % 2 == 1 and nxt:
                    x = nxt.pop(0); put(x)
                    if isinstance(x, str): put(nxt.pop(0))
                for _ in range(2):
                    if fl: put(fl.pop(0))
        assert not nxt
        p.check_depth()
    assert not fill and not scale
    st('mainend')
    for n in range(5):
        for m in range(4):
            a = ACCA + 20 * m + 4 * n; bb = ACCB + 20 * m + 4 * n
            for r in range(4): p('v_fmac_f32 v%d, v%d, v%d' % (bb + r, vG + 2 * m, a + r))
            p('ds_write_b128 v%d, v[%d:%d] offset:%d' % (vLW, bb, bb + 3, m * 16 * 336 + n * 64), tag='w')
    p.wait(lg='all'); p('s_barrier')
    st('red')
    R = ACCA
    for i in range(5):
        for w in range(4):
            o = w * 64 * 336
            if o < 65536: p('ds_read_b128 v[%d:%d], v%d offset:%d' % (R + 16 * i + 4 * w, R + 16 * i + 4 * w + 3, vLR + i, o), tag='r%d' % i)
        if i >= 2 or True: pass
    for i in range(5):
        p.wait(lg='r%d' % i)
        for r in range(4):
            p('v_add_f32 v%d, v%d, v%d' % (R + 16 * i + r, R + 16 * i + r, R + 16 * i + 4 + r))
            p('v_add_f32 v%d, v%d, v%d' % (R + 16 * i + 8 + r, R + 16 * i + 8 + r, R + 16 * i + 12 + r))
            p('v_add_f32 v%d, v%d, v%d' % (vBias + 4 * i + r, vBias + 4 * i + r, R + 16 * i + r))
            p('v_add_f32 v%d, v%d, v%d' % (R + 16 * i + r, vBias + 4 * i + r, R + 16 * i + 8 + r))
        p('buffer_store_dwordx4 v[%d:%d], v%d, s[32:35], 0 offen%s' % (R + 16 * i, R + 16 * i + 3, vOut + i, SC), tag='o')
    st('stored')
    if opt.get('stamps'):
        p.wait(vm='all'); st('drained'); st('rt1')
    st.dump(40, 56, vT, 1)
    p.label(name + '_end')
    p('s_endpgm')
    p.finalize(opt.get('verbose'))
    return p, st.names
```

```python
import sys, json
from common import *
import k1, k2
def build(opt):
    hdr = open('cdna_kernels/%s.s.ref' % NAME).read().split('\n')
    out = []
    for l in hdr:
        if l.startswith('; @launch') or l.startswith('; Override') or l.startswith('; grid='): continue
        if not l.startswith(';'): break
        out.append(l)
    out.append('; @launch kernel=k1_kernel grid=(256,1,1) block=(256,1,1) lds=%d' % k1.K1_LDS)
    out.append('; @launch kernel=k2_kernel grid=(256,1,1) block=(256,1,1) lds=%d' % k2.K2_LDS)
    out.append('.amdgcn_target "amdgcn-amd-amdhsa--gfx950"\n.text')
    p1, n1 = k1.gen_k1('k1_kernel', 'k2_kernel_end', opt)
    p2, n2 = k2.gen_k2('k2_kernel', opt)
    for nm, p in (('k1_kernel', p1), ('k2_kernel', p2)):
        out.append('.globl %s\n.p2align 8\n.type %s,@function' % (nm, nm))
        out.append(p.text())
    out.append(kernel_desc('k1_kernel', 512, 256))
    out.append(kernel_desc('k2_kernel', 512, 256))
    return '\n'.join(out), (n1, n2)
if __name__ == '__main__':
    opt = json.loads(sys.argv[2]) if len(sys.argv) > 2 else {}
    s, names = build(opt)
    open(sys.argv[1], 'w').write(s)
    json.dump(names, open(sys.argv[1] + '.stamps', 'w'))
    print('written', len(s), 'bytes')
```

```python
NAME = 'gated_mix__ssm_conv_s5__dense_activation_squared_relu__prompt'
HID_RT = 88 * 4096
WS_HID = 0
WS_W2P = 0xB00000
W2P_CT = 88 * 5120
WS_E   = 0xF00000
WS_G   = 0xF40000
WS_FL  = 0xF50000
WS_FH  = 0xFC0000
WS_TS  = 0xF80000
WS_USED = 0x1000000
KA = dict(x=0, lre=8, lim=16, bre=24, bim=32, cre=40, cim=48, logdt=56, dskip=64, bx=72, w1=80, b1=88, w2=96, b2=104,
          gate=112, out=120, dbg=128, ws=136)

def srd(p, d, base, size, off=None):
    if off is None:
        p('s_mov_b32 s%d, s%d' % (d, base)); p('s_mov_b32 s%d, s%d' % (d + 1, base + 1))
    else:
        p('s_add_u32 s%d, s%d, %s' % (d, base, off)); p('s_addc_u32 s%d, s%d, 0' % (d + 1, base + 1))
    p('s_mov_b32 s%d, %s' % (d + 2, size)); p('s_mov_b32 s%d, 0x20000' % (d + 3))

def vr(k, a, n=1):
    return '%s%d' % (k, a) if n == 1 else '%s[%d:%d]' % (k, a, a + n - 1)

def kernel_desc(name, nvgpr, accum, nsgpr=102):
    return """.section .rodata,"a"
.p2align 6
.amdhsa_kernel %s
  .amdhsa_next_free_vgpr %d
  .amdhsa_next_free_sgpr %d
  .amdhsa_accum_offset %d
  .amdhsa_group_segment_fixed_size 0
  .amdhsa_kernarg_size 144
  .amdhsa_user_sgpr_count 2
  .amdhsa_user_sgpr_kernarg_segment_ptr 1
  .amdhsa_system_sgpr_workgroup_id_x 1
  .amdhsa_float_denorm_mode_32 3
.end_amdhsa_kernel
""" % (name, nvgpr, nsgpr, accum)

def code_prefetch(p, end_label, v, sreg, s_slot):
    l = p.newlabel('L_pc')
    p('s_getpc_b64 s[%d:%d]' % (sreg, sreg + 1))
    p.label(l)
    p('v_lshrrev_b32 v%d, 4, v0' % v)
    p('v_lshl_add_u32 v%d, s%d, 4, v%d' % (v, s_slot, v))
    p('v_lshlrev_b32 v%d, 7, v%d' % (v, v))
    p('v_min_u32 v%d, %s-%s-4, v%d' % (v, end_label, l, v))
    p('v_mov_b32 v%d, s%d' % (v + 1, sreg + 1))
    p('v_add_co_u32 v%d, vcc, s%d, v%d' % (v, sreg, v))
    p('v_addc_co_u32 v%d, vcc, 0, v%d, vcc' % (v + 1, v + 1))
    p('global_load_dword v%d, v[%d:%d], off' % (v + 3, v, v + 1), tag='pf')

class Stamps:
    def __init__(self, p, sr, vr, on):
        self.p, self.sr, self.vr, self.on, self.n = p, sr, vr, on, 0
        self.names = []; self.pending = False
    def commit(self):
        if self.pending:
            if self.p.smem: self.p.wait(lg='all', force=True)
            self.p('v_writelane_b32 v%d, s%d, %d' % (self.vr, self.sr, self.n - 1))
            self.pending = False
    def __call__(self, name):
        if name == getattr(self, 'echo', None):
            self.p('s_memrealtime s[%d:%d]' % (self.sr, self.sr + 1))
        if not self.on: return
        self.commit()
        self.p('%s s[%d:%d]' % ('s_memrealtime' if (name.startswith('rt') or self.on == 2) else 's_memtime', self.sr, self.sr + 1))
        self.names.append(name); self.n += 1; self.pending = True
    def dump(self, s_ws, s_tmp, vt):
        if not self.on: return
        p = self.p
        self.commit()
        srd(p, s_tmp, s_ws, 0x40000, hex(WS_TS))
        p('v_lshrrev_b32 v%d, 6, v0' % vt)
        p('v_lshl_add_u32 v%d, s2, 2, v%d' % (vt, vt))
        p('v_lshlrev_b32 v%d, 8, v%d' % (vt, vt))
        p('v_and_b32 v%d, 63, v0' % (vt + 1))
        p('v_lshl_add_u32 v%d, v%d, 2, v%d' % (vt, vt + 1, vt))
        p('buffer_store_dword v%d, v%d, s[%d:%d], 0 offen' % (self.vr, vt, s_tmp, s_tmp + 3))
```

```python
import re

REG_RE = re.compile(r'^(-|neg\()?(\|)?(abs\()?([vas])(\d+|\[(\d+):(\d+)\])\)?\|?\)?$')

def regs_of(op):
    op = op.strip()
    if op in ('vcc', 'exec', 'm0', 'scc'):
        return [op]
    if op in ('vcc_lo', 'vcc_hi'): return ['vcc']
    if op in ('exec_lo', 'exec_hi'): return ['exec']
    m = REG_RE.match(op)
    if not m:
        return []
    k = m.group(4)
    if m.group(6) is not None:
        return [k + str(i) for i in range(int(m.group(6)), int(m.group(7)) + 1)]
    return [k + m.group(5)]

TRANS = ('v_exp_f32', 'v_log_f32', 'v_rcp_f32', 'v_rsq_f32', 'v_sqrt_f32', 'v_sin_f32', 'v_cos_f32', 'v_rcp_iflag_f32')

class Ins:
    __slots__ = ('text', 'mn', 'kind', 'rd', 'wr', 'srcC', 'srcAB', 'passes', 'dpp', 'nop', 'storedata', 'lds_dma', 'opsel')
    def __init__(self, text):
        self.text = text
        t = text.split(';')[0].split('//')[0].strip()
        self.rd, self.wr, self.srcC, self.srcAB = set(), set(), [], set()
        self.passes = 0; self.dpp = False; self.nop = 1; self.storedata = set(); self.lds_dma = False; self.opsel = False
        if t.endswith(':') or t.startswith('.') or not t:
            self.mn = ''; self.kind = 'label'; self.nop = 0; return
        parts = t.split(None, 1)
        mn = parts[0]; self.mn = mn
        rest = parts[1] if len(parts) > 1 else ''
        ops = []; depth = 0; cur = ''
        for ch in rest:
            if ch in '[(': depth += 1
            if ch in '])': depth -= 1
            if ch == ',' and depth == 0:
                ops.append(cur.strip()); cur = ''
            else: cur += ch
        if cur.strip(): ops.append(cur.strip())
        mods = ''
        if ops:
            last = ops[-1].split()
            ops[-1] = last[0]; mods = ' '.join(last[1:])
        R = lambda o: regs_of(o)
        base = re.sub(r'_(e32|e64|dpp|sdwa)$', '', mn)
        if mn.startswith('v_mfma'):
            self.kind = 'mfma'
            self.wr = set(R(ops[0])); self.srcAB = set(R(ops[1]) + R(ops[2])); self.srcC = R(ops[3])
            self.rd = self.srcAB | set(self.srcC) | {'exec'}
            self.passes = 8 if '32x32x16' in mn else 4
        elif mn.startswith('v_'):
            self.kind = 'trans' if base in TRANS else 'valu'
            self.dpp = ('quad_perm' in mods or 'row_' in mods or 'wave_' in mods or mn.endswith('_dpp'))
            self.opsel = ('op_sel:' in mods and not mn.startswith('v_pk_')) or 'dst_sel' in mods
            if base.startswith('v_cmp'):
                self.wr = set(R(ops[0])); src = ops[1:]
                if base.startswith('v_cmpx'): self.wr.add('exec')
            elif base.startswith('v_permlane') and 'swap' in base:
                self.wr = set(R(ops[0]) + R(ops[1])); src = ops
            elif base in ('v_add_co_u32', 'v_sub_co_u32', 'v_addc_co_u32', 'v_subb_co_u32'):
                self.wr = set(R(ops[0]) + R(ops[1])); src = ops[2:]
            else:
                self.wr = set(R(ops[0])); src = ops[1:]
                if base.startswith('v_fmac') or base.startswith('v_dot2c') or base == 'v_writelane_b32' or self.dpp:
                    src = ops
                if base == 'v_cndmask_b32' and len(ops) == 3: self.rd.add('vcc')
            for o in src: self.rd |= set(R(o))
            self.rd.add('exec')
        elif mn.startswith('ds_'):
            self.kind = 'ds'
            if mn.startswith('ds_read') or mn.startswith('ds_bpermute') or mn.startswith('ds_swizzle'):
                self.wr = set(R(ops[0])); src = ops[1:]
            else: src = ops
            for o in src: self.rd |= set(R(o))
        elif mn.startswith('buffer_') or mn.startswith('global_'):
            self.kind = 'vmem'
            ml = mods.split()
            if mn in ('buffer_wbl2', 'buffer_inv'):
                pass
            elif 'load' in mn and ('lds' in ml or '_lds_' in mn):
                self.lds_dma = True
                for o in ops: self.rd |= set(R(o))
                self.rd.add('m0')
            elif 'load' in mn:
                self.wr = set(R(ops[0]))
                for o in ops[1:]: self.rd |= set(R(o))
            else:
                for o in ops: self.rd |= set(R(o))
                d = ops[0] if mn.startswith('buffer_') else ops[1]
                if 'x3' in mn or 'x4' in mn: self.storedata = set(R(d))
                if 'atomic' in mn and 'sc0' in ml and mn.startswith('buffer_'): self.wr = set(R(ops[0]))
                if 'atomic' in mn and 'sc0' in ml and mn.startswith('global_'):
                    self.wr = set(R(ops[0]))
        elif mn.startswith('s_'):
            self.kind = 'salu'
            if mn == 's_nop': self.nop = int(ops[0], 0) + 1
            elif mn.startswith('s_cmp') or mn in ('s_waitcnt', 's_barrier', 's_endpgm', 's_branch', 's_setprio', 's_sleep') or mn.startswith('s_cbranch'):
                for o in ops: self.rd |= set(R(o))
            else:
                self.wr = set(R(ops[0]))
                for o in ops[1:]: self.rd |= set(R(o))
                if 'saveexec' in mn: self.wr.add('exec'); self.rd.add('exec')
        else:
            raise ValueError('unknown instr: ' + text)

def need(p, c):
    n = 0
    pv = p.kind in ('valu', 'trans')
    cv = c.kind in ('valu', 'trans')
    if pv:
        vw = {r for r in p.wr if r[0] in 'va' and r not in ('vcc',)}
        sw = {r for r in p.wr if r[0] == 's' or r == 'vcc'}
        if c.kind == 'mfma' and vw & c.rd: n = max(n, 2)
        if c.kind == 'mfma' and 'exec' in p.wr: n = max(n, 4)
        if p.kind == 'trans' and cv and c.kind != 'trans' and vw & c.rd: n = max(n, 1)
        if p.kind == 'trans' and c.kind == 'trans' and vw & c.rd: n = max(n, 1)
        if p.opsel and cv and vw & (c.rd | c.wr): n = max(n, 1)
        if cv and c.dpp and vw & c.rd: n = max(n, 2)
        if cv and c.dpp and 'exec' in p.wr: n = max(n, 5)
        if c.mn.startswith('v_permlane') and vw & c.rd: n = max(n, 2)
        if c.mn.startswith('v_permlane') and 'exec' in p.wr: n = max(n, 4)
        if c.mn.startswith('v_readlane') or c.mn.startswith('v_readfirstlane'):
            if vw & c.rd: n = max(n, 1)
            if 'exec' in p.wr: n = max(n, 4)
            if sw & c.rd: n = max(n, 4)
        if cv and sw & c.rd: n = max(n, 2)
        if c.kind == 'vmem' and sw & c.rd: n = max(n, 5)
        if c.kind == 'salu' and sw & c.rd: n = max(n, 1)
    if p.kind == 'salu':
        if 'm0' in p.wr and c.lds_dma: n = max(n, 1)
    if p.kind == 'mfma':
        big = {4: 8, 8: 12}[p.passes]
        if c.kind == 'mfma':
            if p.wr & c.srcAB: n = max(n, big)
            if p.wr & set(c.srcC):
                if not (set(c.srcC) == p.wr and c.passes == p.passes): n = max(n, p.passes + 2)
            elif p.wr & c.wr: n = max(n, big)
        elif c.kind in ('valu', 'trans', 'ds', 'vmem'):
            if p.wr & (c.rd | c.wr): n = max(n, big)
        if cv and set(p.srcC) & c.wr: n = max(n, {4: 3, 8: 7}[p.passes])
    if p.kind == 'vmem' and p.storedata:
        if cv and p.storedata & c.wr: n = max(n, 2)
        elif p.storedata & c.wr: n = max(n, 1)
    return n

class Prog:
    nlabel = 0
    def __init__(self):
        self.ins = []
        self.vm = []
        self.lg = []
        self.smem = False
        self.seen = set()
        self.nvm = 0
    def total_vm(self): return self.nvm
    def raw(self, text):
        self.ins.append(Ins(text))
    def __call__(self, text, tag=None, optional=False):
        for line in text.split('\n'):
            line = line.strip()
            if not line or line.startswith(';'): continue
            i = Ins(line)
            self.ins.append(i)
            if i.kind == 'vmem' and not optional: self.vm.append(tag); self.nvm += 1
            if i.kind == 'ds' and not optional: self.lg.append(tag)
            if tag: self.seen.add(tag)
            if i.mn.startswith('s_load') or i.mn.startswith('s_memtime') or i.mn.startswith('s_memrealtime'): self.smem = True
    def label(self, name): self.raw(name + ':')
    def newlabel(self, base):
        Prog.nlabel += 1
        return '%s_%d' % (base, Prog.nlabel)
    def _cnt(self, q, tags):
        if tags is None: return None
        if tags == 'all': return 0
        if not isinstance(tags, (list, tuple, set)): tags = [tags]
        for t in tags: assert t in self.seen or t[0] == 'B', 'wait on a tag never issued: ' + t
        last = -1
        for k, t in enumerate(q):
            if t in tags: last = k
        if last < 0: return None
        return len(q) - 1 - last
    def wait(self, vm=None, lg=None, force=False):
        a = self._cnt(self.vm, vm); b = self._cnt(self.lg, lg)
        if lg is not None and self.smem: b = 0
        if vm == 'all' and not self.vm and not force: a = None
        if lg == 'all' and not self.lg and not self.smem and not force: b = None
        s = []
        if a is not None:
            assert a <= 63, a
            s.append('vmcnt(%d)' % a); self.vm = self.vm[len(self.vm) - a:] if a else []
        if b is not None:
            b = min(b, 15)
            s.append('lgkmcnt(%d)' % b); self.lg = self.lg[len(self.lg) - b:] if b else []
            if b == 0: self.smem = False
        if s: self.raw('s_waitcnt ' + ' '.join(s))
    def check_depth(self):
        assert len(self.vm) <= 63, len(self.vm)
    def finalize(self, verbose=False):
        out = []; added = 0
        for c in self.ins:
            if c.kind == 'label':
                out.append(c); continue
            req = 0; dist = 0
            for p in reversed(out):
                if dist >= 20: break
                if p.kind == 'label': continue
                n = need(p, c)
                if n - dist > req: req = n - dist
                dist += p.nop
            if req > 0:
                out.append(Ins('s_nop %d' % (req - 1))); added += 1
                if verbose: print('  pad %d before %s' % (req, c.text))
            out.append(c)
        self.ins = out
        return added
    def text(self):
        return '\n'.join((i.text if i.kind == 'label' else '    ' + i.text) for i in self.ins) + '\n'
```

```python
from emit import Prog
from common import *

LDS_BYTES = 163840
SPIN_MAX = 100000
SLOT = 32768
XREG = 4 * SLOT
SMO = XREG + 16384
TRO = 4096
EXO = 6144
SM2 = 2 * 8192 + 6144
PB = 24576
CPL = [SLOT, XREG, 2 * SLOT, 3 * SLOT]
LOG2E = '0x3fb8aa3b'
INV2PI = '0.15915494'
SC = ' sc1'

sX, sLRE, sLIM, sBRE, sBIM, sCRE, sCIM, sLDT = 4, 6, 8, 10, 12, 14, 16, 18
sDSK, sW1, sB1, sW2, sB2, sGATE, sOUT, sDBG, sWS = 20, 24, 26, 28, 30, 32, 34, 36, 38
rX, rP0, rP1, rWS = 44, 48, 52, 56
rE, rHID, rW2P, rSJ, rS2, rC = 44, 48, 8, 92, 92, 92
sSB = 24
sM = 12
SIG = 70
sNON, sHF, sRB, sCG, sG, sQ, sWV, sRT, sCT, sSEL, sFL = 80, 81, 82, 83, 84, 85, 86, 87, 88, 89, 90
sSJO, sSJD, sSJK = 91, 96, 22
sST = 100
vLANE, vWAVE, vHH = 1, 2, 3
vDX, vDS, vD2 = 4, 8, 10
vRX, vRS, vRF = 12, 20, 28
vSTF, vL16, vEXA, vTW, vEO = 32, 33, 34, 36, 40
vDJ = 41
vB, vFP, vA = 41, 43, 44
vZ, vPOLL = 45, 46
vDC, vRC, vMB = 4, 6, 92
vT = 48
vN = 79
vGA = 80
vST = 95
SAC = [176, 96]
TAB = [208, 128]
CON = [240, 160]
FAC = 96
AX = 0
AW = 160
AW2 = 208
AH = 160
PARTS = [(0, 12)]

def order(n, c, delta):
    return sorted(range(n), key=lambda i: (i - (delta if i % 4 == c else 0), 0 if i % 4 == c else 1))
def P2(r): return 'v[%d:%d]' % (r, r + 1)
def S4(r): return 's[%d:%d]' % (r, r + 3)
def S2(r): return 's[%d:%d]' % (r, r + 1)
def cmul(dr, di, ar, ai, br, bi):
    return ['v_mul_f32 v%d, v%d, v%d' % (dr, ar, br), 'v_mul_f32 v%d, v%d, v%d' % (di, ar, bi),
            'v_fma_f32 v%d, -v%d, v%d, v%d' % (dr, ai, bi, dr), 'v_fmac_f32 v%d, v%d, v%d' % (di, ai, br)]
def cm(d, a, b): return cmul(d, d + 1, a, a + 1, b, b + 1)
def cfma(dr, di, a, br, bi):
    return ['v_fmac_f32 v%d, v%d, v%d' % (dr, a, br), 'v_fmac_f32 v%d, v%d, v%d' % (di, a, bi),
            'v_fma_f32 v%d, -v%d, v%d, v%d' % (dr, a + 1, bi, dr), 'v_fmac_f32 v%d, v%d, v%d' % (di, a + 1, br)]
def pcfma(d, a, b):
    return ['v_pk_fma_f32 %s, %s, %s, %s op_sel:[0,0,0] op_sel_hi:[0,1,1]' % (P2(d), P2(a), P2(b), P2(d)),
            'v_pk_fma_f32 %s, %s, %s, %s op_sel:[1,1,0] op_sel_hi:[1,0,1] neg_lo:[1,0,0]' % (P2(d), P2(a), P2(b), P2(d))]
def pcmul(d, a, b):
    return ['v_pk_mul_f32 %s, %s, %s op_sel:[0,0] op_sel_hi:[0,1]' % (P2(d), P2(a), P2(b)),
            'v_pk_fma_f32 %s, %s, %s, %s op_sel:[1,1,0] op_sel_hi:[1,0,1] neg_lo:[1,0,0]' % (P2(d), P2(a), P2(b), P2(d))]
def csq(d, a):
    return ['v_mul_f32 v%d, v%d, v%d' % (d, a, a), 'v_add_f32 v%d, v%d, v%d' % (d + 1, a, a),
            'v_fma_f32 v%d, -v%d, v%d, v%d' % (d, a + 1, a + 1, d), 'v_mul_f32 v%d, v%d, v%d' % (d + 1, d + 1, a + 1)]
def interleave(*ls):
    out = []; ls = [list(l) for l in ls]
    while any(ls):
        for l in ls:
            if l: out.append(l.pop(0))
    return out
def sprinkle(main, extra, every):
    out = []; extra = list(extra)
    for i, x in enumerate(main):
        out.append(x)
        if i % every == every - 1 and extra:
            while isinstance(extra[0], str): out.append(extra.pop(0))
            out.append(extra.pop(0))
    return out + extra
def unpack(dst, src, n):
    r = []
    for k in range(n):
        r.append('v_lshlrev_b32 v%d, 16, v%d' % (dst + 2 * k, src + k))
        r.append('v_and_b32 v%d, 0xffff0000, v%d' % (dst + 2 * k + 1, src + k))
    return r

def dma_stage(s):
    sl = (s % 4) * SLOT; tg = 'st%d' % s; so = SIG + s
    r = ['s_add_u32 m0, s43, %d' % sl, 's_mul_i32 s61, s%d, s63' % so]
    r += [('buffer_load_dwordx4 v%d, %s, s%d offen offset:%d lds' % (vDX + i, S4(rX), so, 1024 * i), tg) for i in range(4)]
    r += ['s_add_u32 m0, s43, %d' % (sl + 4096)]
    r += [('buffer_load_dwordx4 v%d, %s, s61 offen offset:%d lds' % (vD2 + i, S4(rP0), 1024 * i), tg) for i in range(2)]
    r += [('buffer_load_dwordx4 v%d, %s, s61 offen offset:%d lds' % (vD2 + i, S4(rP1), 1024 * i + 2048), tg) for i in range(2)]
    return r

def gen(name, opt):
    p = Prog()
    st = Stamps(p, sST, vST, opt.get('stamps'))
    def put(x):
        if callable(x): x()
        elif isinstance(x, tuple): p(x[0], tag=x[1])
        else: p(x)
    p.put = put
    p.label(name)
    p('s_cmp_ge_u32 s2, 256')
    p('s_cbranch_scc1 L_end')
    p('s_load_dwordx16 s[4:19], s[0:1], 0')
    p('s_load_dwordx8 s[20:27], s[0:1], 64')
    p('s_load_dwordx8 s[28:35], s[0:1], 96')
    p('s_load_dwordx4 s[36:39], s[0:1], 128')
    p('s_memrealtime s[64:65]')
    if opt.get('stamps'): p('s_memrealtime s[66:67]'); p('s_memtime s[68:69]')
    p('s_lshr_b32 s3, s2, 3')
    code_prefetch(p, 'L_end', 44, 40, 3)
    p('v_and_b32 v%d, 63, v0' % vLANE)
    p('v_lshrrev_b32 v%d, 6, v0' % vWAVE)
    p('s_and_b32 s%d, s2, 7' % sHF)
    p('s_lshr_b32 s40, s%d, 1' % sHF)
    p('s_lshl_b32 s%d, s40, 2' % sRB)
    p('s_and_b32 s41, s3, 3')
    p('v_readfirstlane_b32 s%d, v%d' % (sWV, vWAVE))
    p('s_add_u32 s%d, s%d, s41' % (sRB, sRB))
    p('s_and_b32 s%d, s%d, 1' % (sHF, sHF))
    p('s_lshr_b32 s%d, s3, 2' % sCG)
    p('s_add_u32 s41, s41, s%d' % sCG); p('s_and_b32 s41, s41, 3'); p('s_lshl_b32 s41, s41, 3'); p('s_or_b32 s41, s41, 0x80000')
    p('s_mul_i32 s40, s40, 5'); p('s_add_u32 s40, s40, 1'); p('s_lshr_b32 s40, s40, 1')
    p('s_mul_i32 s60, s%d, 5' % sHF); p('s_add_u32 s40, s40, s60')
    if not opt.get('rot', 1): p('s_mov_b32 s40, 0')
    p('s_sub_u32 s60, s40, 10'); p('s_cmp_ge_u32 s40, 10'); p('s_cselect_b32 s40, s60, s40')
    tabs = [order(10, c, opt.get('d1', 3)) for c in range(4)]
    def sigma(i):
        lit = sum(tabs[c][i] << (8 * c) for c in range(4)); s = SIG + i
        return ['s_bfe_u32 s%d, 0x%x, s41' % (s, lit), 's_add_u32 s%d, s%d, s40' % (s, s), 's_sub_u32 s60, s%d, 10' % s,
                's_min_u32 s%d, s60, s%d' % (s, s), 's_lshl_b32 s%d, s%d, 7' % (s, s)]
    for x in sigma(0): p(x)
    p('s_mul_i32 s%d, s%d, 10' % (sG, sHF))
    p('s_lshl_b32 s%d, s%d, 1' % (sQ, sCG))
    p('s_add_u32 s60, s%d, 2' % sCG)
    p('s_cmp_lt_u32 s%d, 2' % sCG)
    p('s_cselect_b32 s60, s%d, s60' % sQ)
    p('s_cselect_b32 s63, 1, 1536')
    p('s_add_u32 s%d, s%d, s60' % (sG, sG))
    p('s_mul_i32 s60, s%d, 12' % sHF)
    p('s_add_u32 s%d, s%d, s60' % (sQ, sQ))
    p('s_sub_u32 s%d, s%d, 4' % (sQ, sQ))
    t = vT
    p('v_lshrrev_b32 v%d, 3, v%d' % (t, vLANE))
    p('v_and_b32 v%d, 7, v%d' % (t + 1, vLANE))
    p('v_lshrrev_b32 v%d, 4, v%d' % (t + 2, vLANE))
    p('v_and_b32 v%d, 3, v%d' % (t + 3, t))
    p('v_lshrrev_b32 v%d, 5, v%d' % (vHH, vLANE))
    p('v_lshl_add_u32 v%d, v%d, 4, v%d' % (t + 3, vHH, t + 3))
    p('v_lshl_add_u32 v%d, v%d, 5, v%d' % (t + 3, vWAVE, t + 3))
    p('v_mul_u32_u24 v%d, 1280, v%d' % (t + 3, t + 3))
    p('v_xor_b32 v%d, v%d, v%d' % (t + 5, t + 1, t + 2))
    p('v_xor_b32 v%d, 4, v%d' % (t + 6, t + 5))
    for i in range(4):
        p('v_lshl_add_u32 v%d, v%d, 4, v%d' % (vDX + i, t + 5 + (i & 1), t + 3))
        if i: p('v_add_u32 v%d, %d, v%d' % (vDX + i, 4096 * i, vDX + i))
    p('v_and_b32 v%d, 1, v%d' % (t + 7, vWAVE))
    p('v_lshl_add_u32 v%d, v%d, 4, v%d' % (t + 7, t + 7, t))
    p('v_mul_u32_u24 v%d, 1280, v%d' % (t + 7, t + 7))
    p('v_lshl_add_u32 v%d, v%d, 4, v%d' % (vDS, t + 5, t + 7))
    p('v_lshl_add_u32 v%d, v%d, 4, v%d' % (vDS + 1, t + 6, t + 7))
    p('v_add_u32 v%d, %d, v%d' % (vDS + 1, 8 * 1280 - 1024, vDS + 1))
    p('v_lshl_add_u32 v%d, v%d, 4, v%d' % (t + 7, vWAVE, t))
    p('v_mul_u32_u24 v%d, 3072, v%d' % (t + 7, t + 7))
    p('v_and_b32 v%d, 1, v%d' % (t + 8, t + 2))
    p('v_lshlrev_b32 v%d, 2, v%d' % (t + 8, t + 8))
    p('v_xor_b32 v%d, v%d, v%d' % (t + 8, t + 8, t + 1))
    p('v_lshl_add_u32 v%d, v%d, 4, v%d' % (vD2, t + 8, t + 7))
    p('s_cmp_lt_u32 s%d, 2' % sCG)
    p('s_cselect_b64 vcc, -1, 0')
    p('v_add_u32 v%d, %d, v%d' % (vD2 + 1, 8 * 3072 - 1024, vD2))
    p('v_cndmask_b32 v%d, v%d, v%d, vcc' % (vD2, vD2, vDS))
    p('v_cndmask_b32 v%d, v%d, v%d, vcc' % (vD2 + 1, vD2 + 1, vDS + 1))
    p('s_mul_i32 s60, s%d, %d' % (sRB, 128 * 1280))
    p('s_mul_i32 s61, s%d, %d' % (sG, 32 * 1280))
    p('s_lshl_b32 s42, s%d, 7' % sQ); p('s_max_i32 s42, s42, 0')
    p('s_lshl_b32 s43, s%d, 13' % sWV)
    p.wait(lg='all')
    if opt.get('stamps'):
        p('v_writelane_b32 v%d, s66, 0' % vST); p('v_writelane_b32 v%d, s68, 1' % vST); st.names += ['rt0', 'start']; st.n = 2
    st('karg')
    srd(p, rX, sX, 128 * 1280, 's60')
    p('s_cmp_lt_u32 s%d, 2' % sWV)
    p('s_cselect_b32 s66, s%d, s%d' % (sBRE, sBIM)); p('s_cselect_b32 s67, s%d, s%d' % (sBRE + 1, sBIM + 1))
    p('s_add_u32 s66, s66, s61'); p('s_addc_u32 s67, s67, 0')
    p('s_add_u32 s%d, s%d, s42' % (rP0, sW1)); p('s_addc_u32 s%d, s%d, 0' % (rP0 + 1, sW1 + 1))
    p('s_sub_u32 s%d, %d, s42' % (rP0 + 2, 640 * 3072))
    p('s_cmp_lt_u32 s%d, 2' % sCG)
    p('s_cselect_b32 s%d, s66, s%d' % (rP0, rP0)); p('s_cselect_b32 s%d, s67, s%d' % (rP0 + 1, rP0 + 1))
    p('s_cselect_b32 s%d, %d, s%d' % (rP0 + 2, 64 * 1280, rP0 + 2)); p('s_mov_b32 s%d, 0x20000' % (rP0 + 3))
    p('s_mov_b32 s60, %d' % (128 - 2048)); p('s_cselect_b32 s60, %d, s60' % (32 * 1280 - 2048)); p('s_ashr_i32 s61, s60, 31')
    p('s_add_u32 s%d, s%d, s60' % (rP1, rP0)); p('s_addc_u32 s%d, s%d, s61' % (rP1 + 1, rP0 + 1)); p('s_sub_u32 s%d, s%d, s60' % (rP1 + 2, rP0 + 2))
    p('s_mov_b32 s%d, 0x20000' % (rP1 + 3))
    p('s_mov_b64 %s, s[66:67]' % S2(sSB))
    for x in dma_stage(0): put(x)
    for x in sigma(1): p(x)
    a = 52
    p('v_lshl_add_u32 v%d, v%d, 5, v%d' % (a, vWAVE, vLANE))
    p('v_min_u32 v%d, 119, v%d' % (a, a))
    p('v_lshlrev_b32 v%d, 4, v%d' % (a + 1, a))
    p('s_lshl_b32 s60, s%d, 6' % sG)
    p('v_and_b32 v%d, 0x70, v%d' % (a + 2, a + 1)); p('v_add_u32 v%d, s60, v%d' % (a + 2, a + 2)); p('v_min_u32 v%d, 1264, v%d' % (a + 2, a + 2))
    p('v_mov_b32 v%d, s%d' % (a + 4, sLRE)); p('v_mov_b32 v%d, s%d' % (a + 5, sLRE + 1))
    for lim, sb, off in ((8, sLIM, None), (16, sLDT, None), (24, sB1, 's42'), (40, sGATE, 0)):
        p('v_cmp_le_u32 vcc, %d, v%d' % (lim, a))
        p('v_mov_b32 v%d, s%d' % (a + 6, sb)); p('v_mov_b32 v%d, s%d' % (a + 7, sb + 1))
        if off is not None:
            p('v_subrev_u32 v%d, %d, v%d' % (a + 3, 16 * lim, a + 1))
            if off: p('v_add_u32 v%d, %s, v%d' % (a + 3, off, a + 3))
            p('v_cndmask_b32 v%d, v%d, v%d, vcc' % (a + 2, a + 2, a + 3))
        p('v_cndmask_b32 v%d, v%d, v%d, vcc' % (a + 4, a + 4, a + 6)); p('v_cndmask_b32 v%d, v%d, v%d, vcc' % (a + 5, a + 5, a + 7))
    p('v_mov_b32 v%d, 0' % (a + 3))
    p('s_lshl_b32 s60, s%d, 9' % sWV); p('s_add_u32 m0, s60, %d' % SMO)
    p('v_lshl_add_u64 v[%d:%d], v[%d:%d], 0, v[%d:%d]' % (a + 4, a + 5, a + 2, a + 3, a + 4, a + 5))
    p('s_mov_b32 exec_hi, 0')
    p('global_load_lds_dwordx4 v[%d:%d], off' % (a + 4, a + 5), tag='st0')
    p('s_mov_b64 exec, -1')
    srd(p, rWS, sWS, WS_USED)
    l = p.newlabel('L_nn')
    p('s_or_b32 s64, s64, 1')
    p('v_mov_b32 v%d, 0' % vZ)
    p('s_or_b32 s60, s2, s%d' % sWV)
    p('s_cmp_lg_u32 s60, 0')
    p('s_cbranch_scc1 ' + l)
    p('v_mov_b32 v%d, s64' % a)
    p('s_mov_b64 exec, 1')
    p('global_store_dword v%d, v%d, %s sc1' % (vZ, a, S2(sDBG)), optional=True)
    p('s_mov_b64 exec, -1')
    p.label(l)
    sig = []
    for i in range(2, 10): sig += sigma(i)
    for x in sprinkle(addr_setup() + sig, dma_stage(1), 12): put(x)
    sidejob_setup(p)
    p('s_cmp_lt_u32 s%d, 2' % sCG)
    st('issued')
    p('s_cbranch_scc1 L_typeA')
    save = (list(p.vm), list(p.lg), p.smem, st.n, st.pending); seen0 = set(p.seen)
    body(p, 'B', opt, st)
    names1 = list(st.names)
    p('s_branch L_end')
    p.label('L_typeA')
    p.vm, p.lg, p.smem, st.n, st.pending = list(save[0]), list(save[1]), save[2], save[3], save[4]
    st.names = st.names[:st.n]; p.seen = seen0
    body(p, 'A', opt, st)
    p.namesA = list(st.names); st.names = names1
    p.label('L_end')
    p('s_endpgm')
    p.finalize(opt.get('verbose'))
    return p, dict(A=p.namesA, B=st.names)

def addr_setup():
    n_, h_ = vN, vHH
    r = ['v_and_b32 v%d, 31, v%d' % (n_, vLANE), 'v_lshrrev_b32 v48, 1, v%d' % n_, 'v_and_b32 v48, 7, v48',
         'v_xor_b32 v48, v48, v%d' % h_, 'v_lshlrev_b32 v49, 7, v%d' % n_, 'v_add_u32 v49, s43, v49',
         'v_lshrrev_b32 v50, 4, v%d' % n_, 'v_lshlrev_b32 v50, 13, v50', 'v_and_b32 v51, 15, v%d' % n_, 'v_lshl_add_u32 v50, v51, 7, v50']
    for s in range(4):
        r += ['v_xor_b32 v51, %d, v48' % (2 * s), 'v_lshl_add_u32 v%d, v51, 4, v49' % (vRX + s), 'v_lshl_add_u32 v%d, v51, 4, v50' % (vRS + s),
              'v_add_u32 v%d, 0x10000, v%d' % (vRX + 4 + s, vRX + s), 'v_add_u32 v%d, 0x10000, v%d' % (vRS + 4 + s, vRS + s)]
    r += ['v_bfe_u32 v48, v%d, 2, 2' % vLANE, 'v_lshl_add_u32 v49, v%d, 3, v48' % h_, 'v_lshlrev_b32 v49, 7, v49',
          'v_lshrrev_b32 v50, 1, v48', 'v_lshl_add_u32 v49, v50, 6, v49', 'v_and_b32 v50, 1, v%d' % vLANE,
          'v_lshl_add_u32 v49, v50, 5, v49', 'v_bfe_u32 v50, v%d, 4, 1' % vLANE, 'v_lshl_add_u32 v49, v50, 4, v49',
          'v_bfe_u32 v50, v%d, 1, 1' % vLANE, 'v_lshl_add_u32 v%d, v50, 3, v49' % vRF, 'v_xor_b32 v%d, 64, v%d' % (vRF + 1, vRF),
          'v_add_u32 v%d, 0x10000, v%d' % (vRF + 2, vRF), 'v_add_u32 v%d, 0x10000, v%d' % (vRF + 3, vRF + 1)]
    r += ['s_lshl_b32 s62, s%d, 3' % sHF, 's_add_u32 s62, s62, s%d' % sCG, 's_lshl_b32 s%d, s62, 3' % sFL, 's_lshl_b32 s62, s62, 2',
          's_and_b32 s65, s%d, 1' % sWV, 's_lshl_b32 s65, s65, 1', 's_add_u32 s62, s62, s65', 's_lshl_b32 s65, s65, 1', 's_add_u32 s%d, s%d, s65' % (sFL, sFL),
          's_lshr_b32 s65, s%d, 1' % sWV, 's_lshl_b32 s66, s65, 6', 's_add_u32 s62, s62, s66',
          's_lshl_b32 s66, s%d, 1' % sRB, 's_add_u32 s65, s65, s66', 's_mul_i32 s64, s65, %d' % HID_RT,
          's_lshl_b32 s65, s65, 10', 's_add_u32 s%d, s%d, s65' % (sFL, sFL), 's_add_u32 s%d, s%d, %d' % (sFL, sFL, WS_FL + 8192),
          's_and_b32 s65, s%d, 1' % sWV, 's_lshl_b32 s65, s65, 11', 's_add_u32 s64, s64, s65',
          'v_add_u32 v48, s62, v%d' % h_, 's_lshl_b32 s62, s%d, 7' % sRB, 'v_add_lshl_u32 v%d, v48, s62, 3' % (vGA + 9),
          'v_bfe_u32 v49, v48, 2, 2', 'v_bfe_u32 v50, v48, 4, 1', 'v_lshl_add_u32 v49, v49, 1, v50',
          'v_and_b32 v50, 3, v48', 'v_lshl_add_u32 v49, v49, 2, v50',
          'v_lshrrev_b32 v48, 5, v48', 'v_lshlrev_b32 v48, 13, v48', 'v_lshl_add_u32 v48, v49, 7, v48',
          'v_bfe_u32 v49, v49, 1, 3', 'v_lshrrev_b32 v50, 2, v%d' % n_, 'v_xor_b32 v49, v49, v50',
          'v_lshl_add_u32 v48, v49, 4, v48', 'v_and_b32 v49, 3, v%d' % n_, 'v_lshl_add_u32 v%d, v49, 2, v48' % vGA,
          'v_add_u32 v%d, 0x10000, v%d' % (vGA + 1, vGA), 'v_lshlrev_b32 v%d, 2, v%d' % (vGA + 2, n_),
          'v_add_u32 v%d, %d, v%d' % (vGA + 2, SMO + 640, vGA + 2), 'v_mov_b32 v%d, 0' % (vGA + 8),
          's_lshr_b32 s62, s43, 1', 'v_lshlrev_b32 v%d, 4, v%d' % (vL16, vLANE)]
    return r

def sidejob_setup(p):
    D = sSJD
    for x in ['s_lshl_b32 s40, s2, 1', 's_add_u32 s40, s40, s%d' % sWV,
              's_cmp_lt_u32 s2, 240', 's_cselect_b32 s%d, 1, 0' % sSJK, 's_cmp_lt_u32 s%d, 2' % sWV, 's_cselect_b32 s%d, s%d, 0' % (sSJK, sSJK),
              's_mul_i32 s41, s40, 6554', 's_lshr_b32 s41, s41, 16',
              's_mul_i32 s65, s41, 10', 's_sub_u32 s65, s40, s65',
              's_mul_i32 s%d, s41, %d' % (sSJO, 32 * 1280), 's_lshl_b32 s60, s65, 7', 's_add_u32 s%d, s%d, s60' % (sSJO, sSJO),
              's_lshl_b32 s65, s65, 2',
              's_bfe_u32 s60, s41, 0x10001', 's_mul_i32 s60, s60, 24', 's_and_b32 s61, s41, 1', 's_add_u32 s60, s60, s61',
              's_lshr_b32 s41, s41, 2', 's_lshl_b32 s41, s41, 1', 's_add_u32 s41, s41, s60', 's_mul_i32 s41, s41, 5120',
              's_add_u32 s41, s41, %d' % WS_W2P,
              's_mov_b32 s%d, s%d' % (rSJ, sW2), 's_mov_b32 s%d, s%d' % (rSJ + 1, sW2 + 1), 's_mov_b32 s%d, %d' % (rSJ + 2, 1536 * 1280),
              's_mov_b32 s%d, 0x20000' % (rSJ + 3)]: p(x)
    for e in range(4):
        p('s_add_u32 s60, s65, %d' % e); p('s_mul_i32 s61, s60, 52'); p('s_lshr_b32 s61, s61, 8')
        p('s_mul_i32 s%d, s61, %d' % (D + e, W2P_CT - 5 * 1024)); p('s_lshl_b32 s60, s60, 10')
        p('s_add_u32 s%d, s%d, s60' % (D + e, D + e)); p('s_add_u32 s%d, s%d, s41' % (D + e, D + e))
    p('v_lshrrev_b32 v48, 3, v%d' % vLANE); p('v_mul_u32_u24 v48, 1280, v48'); p('v_and_b32 v49, 7, v%d' % vLANE)
    p('v_lshl_add_u32 v%d, v49, 4, v48' % vDJ)
    for i in range(1, 4): p('v_add_u32 v%d, %d, v%d' % (vDJ + i, i * (8 * 1280 - 1024), vDJ))

def late_setup():
    n_, h_ = vN, vHH
    return ['v_bfe_u32 v48, v%d, 2, 1' % n_, 'v_lshlrev_b32 v48, 10, v48',
            'v_lshl_add_u32 v48, v%d, 9, v48' % h_, 'v_lshrrev_b32 v49, 3, v%d' % n_, 'v_lshl_add_u32 v48, v49, 6, v48',
            'v_and_b32 v49, 3, v%d' % n_, 'v_lshl_add_u32 v%d, v49, 4, v48' % vSTF,
            'v_lshlrev_b32 v%d, 3, v%d' % (vEXA + 1, n_), 'v_lshl_add_u32 v48, v%d, 1, v%d' % (vWAVE, h_),
            'v_lshl_add_u32 v%d, v48, 8, v%d' % (vEXA, vEXA + 1),
            's_add_u32 s6, s43, %d' % TRO,
            'v_lshlrev_b32 v48, 10, v%d' % h_, 'v_lshl_add_u32 v48, v%d, 4, v48' % n_, 'v_add_u32 v%d, s6, v48' % vTW,
            'v_xor_b32 v%d, 0x240, v%d' % (vTW + 1, vTW),
            'v_lshrrev_b32 v48, 4, v%d' % vLANE, 'v_lshlrev_b32 v48, 7, v48', 'v_bfe_u32 v49, v%d, 2, 2' % vLANE,
            'v_lshl_add_u32 v48, v49, 4, v48', 'v_and_b32 v49, 1, v%d' % vLANE, 'v_lshl_add_u32 v48, v49, 3, v48',
            'v_bfe_u32 v49, v%d, 1, 1' % vLANE, 'v_mul_u32_u24 v49, 0x240, v49', 'v_add_u32 v48, v48, v49',
            'v_add_u32 v%d, s6, v48' % (vTW + 2), 'v_xor_b32 v%d, 64, v%d' % (vTW + 3, vTW + 2),
            's_sub_u32 s6, s%d, 1' % sRB, 'v_sub_u32 v48, s6, v%d' % h_, 'v_lshlrev_b32 v48, 9, v48',
            'v_lshl_add_u32 v%d, v%d, 4, v48' % (vEO, n_),
            's_lshr_b32 s6, s%d, 2' % sRB, 's_lshl_b32 s6, s6, 3', 's_and_b32 s7, s3, 7', 's_add_u32 s%d, s6, s7' % sRT,
            's_lshl_b32 s6, s%d, 2' % sHF, 's_lshr_b32 s7, s3, 3', 's_add_u32 s%d, s6, s7' % sCT,
            's_sub_u32 s6, s%d, s%d' % (sCT, sRT), 's_and_b32 s6, s6, 3', 's_lshl_b32 s6, s6, 3', 's_or_b32 s%d, s6, 0x80000' % sSEL,
            'v_mul_u32_u24 v%d, 5120, v%d' % (vB, vWAVE), 'v_add_u32 v%d, v%d, v%d' % (vB, vB, vL16), 'v_add_u32 v%d, 0x1000, v%d' % (vB + 1, vB),
            'v_lshl_add_u32 v%d, v%d, 12, v%d' % (vA, vWAVE, vL16),
            's_lshl_b32 s6, s%d, 3' % sRT, 's_add_u32 s6, s6, s%d' % sCT, 's_lshl_b32 s6, s6, 7', 's_add_u32 s6, s6, %d' % (WS_FL + 8192),
            'v_lshl_add_u32 v%d, v%d, 2, s6' % (vFP, n_), 'v_lshlrev_b32 v%d, 7, v%d' % (vMB, vLANE)]

def c_setup():
    return ['v_lshrrev_b32 v48, 3, v%d' % vLANE, 'v_mul_u32_u24 v48, 1280, v48', 'v_and_b32 v49, 7, v%d' % vLANE, 'v_lshrrev_b32 v50, 4, v%d' % vLANE,
            'v_xor_b32 v49, v49, v50', 'v_lshl_add_u32 v%d, v49, 4, v48' % vDC, 'v_xor_b32 v%d, 64, v%d' % (vDC + 1, vDC),
            'v_add_u32 v%d, %d, v%d' % (vDC + 1, 8 * 1280 - 1024, vDC + 1),
            'v_and_b32 v48, 15, v%d' % vLANE, 'v_lshrrev_b32 v49, 1, v48', 'v_xor_b32 v49, v49, v50', 'v_lshlrev_b32 v49, 4, v49',
            'v_lshl_add_u32 v48, v48, 7, v49', 's_add_u32 s6, s43, %d' % SLOT, 'v_add_u32 v%d, s6, v48' % vRC, 'v_xor_b32 v%d, 64, v%d' % (vRC + 1, vRC),
            'v_add_u32 v%d, %d, v%d' % (vRC + 2, 2 * SLOT, vRC), 'v_add_u32 v%d, %d, v%d' % (vRC + 3, 2 * SLOT, vRC + 1)]

def body(p, ty, opt, st):
    put = p.put
    B = ty == 'B'
    NG = 1 if B else 2
    WS = S4(rWS)
    vWF = 68 if B else 12
    vPAR = 72
    S2OFF = [2 * SLOT, 3 * SLOT, 0]
    DELTA = opt.get('delta', 2)
    def spin(load, check):
        l1, l2 = p.newlabel('L_sp'), p.newlabel('L_sp')
        p('s_mov_b32 s65, 0')
        p.label(l1)
        check(l2)
        p('s_add_u32 s65, s65, 1'); p('s_cmp_gt_u32 s65, %d' % SPIN_MAX); p('s_cbranch_scc1 ' + l2)
        load(True)
        p('s_waitcnt vmcnt(0)'); p('s_branch ' + l1)
        p.label(l2)
    def dma_s2(c):
        r = []
        for sg in range(4 if c < 2 else 2):
            r.append('s_add_u32 m0, s43, %d' % (S2OFF[c] + 2048 * sg))
            r += [('buffer_load_dwordx4 v%d, %s, s%d offen offset:%d lds' % (vDS + i, S4(rS2), SIG + 4 * c + sg, 1024 * i), 's2c%d' % c) for i in range(2)]
        return r
    def s2_srd(): srd(p, rS2, sSB, 32 * 1280)
    def par_reads():
        r = ['v_lshlrev_b32 v48, 1, v%d' % vN, 'v_add_u32 v48, %d, v48' % SMO]
        for g in range(NG):
            r += [('ds_read_u16 v%d, v48 offset:%d' % (vPAR + 3 * g + k, 128 * k + 64 * g), 'par') for k in range(3)]
        return r
    def bias_reads(dst, T):
        return [('ds_read_b128 v[%d:%d], v49 offset:%d' % (dst + 8 * T + 4 * q, dst + 3 + 8 * T + 4 * q, 64 * T + 16 * q), 'b1%d' % T) for q in range(2)]
    def setup(g):
        c = CON[g]; tr, ti = TAB[g], TAB[g] + 16; pr = vPAR + 3 * g
        a, b = 48, 50
        M = S2(sM)
        r = ['v_lshlrev_b32 v%d, 16, v%d' % (pr + k, pr + k) for k in range(3)]
        r += ['v_mul_f32 v%d, %s, v%d' % (a, LOG2E, pr + 2), 'v_exp_f32 v%d, v%d' % (a, a),
              'v_mul_f32 v%d, v%d, v%d' % (c + 4, pr, pr),
              'v_cvt_pk_bf16_f32 v%d, v%d, v%d' % (a, a, a), 'v_lshlrev_b32 v%d, 16, v%d' % (a, a),
              'v_mul_f32 v%d, v%d, v%d' % (a + 1, a, pr + 1), 'v_mul_f32 v%d, v%d, v%d' % (a, a, pr),
              'v_mul_f32 v%d, %s, v%d' % (a + 1, INV2PI, a + 1), 'v_mul_f32 v%d, %s, v%d' % (a, LOG2E, a),
              'v_fract_f32 v%d, v%d' % (a + 1, a + 1), 'v_exp_f32 v%d, v%d' % (a, a),
              'v_cos_f32 v%d, v%d' % (b, a + 1), 'v_sin_f32 v%d, v%d' % (b + 1, a + 1),
              'v_fmac_f32 v%d, v%d, v%d' % (c + 4, pr + 1, pr + 1),
              'v_mul_f32 v%d, v%d, v%d' % (c, a, b), 'v_mul_f32 v%d, v%d, v%d' % (c + 1, a, b + 1),
              'v_rcp_f32 v%d, v%d' % (a, c + 4), 'v_add_f32 v%d, -1.0, v%d' % (b, c),
              'v_mul_f32 v%d, v%d, v%d' % (c + 2, b, pr), 'v_mul_f32 v%d, v%d, v%d' % (c + 3, c + 1, pr),
              'v_fmac_f32 v%d, v%d, v%d' % (c + 2, c + 1, pr + 1), 'v_fma_f32 v%d, -v%d, v%d, v%d' % (c + 3, b, pr + 1, c + 3),
              'v_mul_f32 v%d, v%d, v%d' % (c + 2, c + 2, a), 'v_mul_f32 v%d, v%d, v%d' % (c + 3, c + 3, a),
              'v_mov_b32 v%d, v%d' % (tr, c), 'v_mov_b32 v%d, v%d' % (ti, c + 1)]
        for k in range(1, 16): r += cmul(tr + k, ti + k, tr + k - 1, ti + k - 1, c, c + 1)
        mu = c + 4
        r += ['v_cmp_eq_u32 %s, 1, v%d' % (M, vHH), 'v_mov_b32 v%d, v%d' % (mu, tr + 15), 'v_mov_b32 v%d, v%d' % (mu + 1, ti + 15)]
        r += ['v_cndmask_b32 v%d, 1.0, v%d, %s' % (b, mu, M), 'v_cndmask_b32 v%d, 0, v%d, %s' % (b + 1, mu + 1, M)]
        r += cm(c + 6, c + 2, b) + csq(a, mu)
        r += ['v_cndmask_b32 v%d, 1.0, v%d, s[66:67]' % (b, a), 'v_cndmask_b32 v%d, 0, v%d, s[66:67]' % (b + 1, a + 1)]
        r += cm(c + 12, c + 6, b) + csq(c + 8, a)
        r += ['v_cndmask_b32 v%d, 1.0, v%d, s[68:69]' % (b, c + 8), 'v_cndmask_b32 v%d, 0, v%d, s[68:69]' % (b + 1, c + 9)]
        r += cm(c + 6, c + 12, b) + csq(a, c + 8)
        r += ['v_cndmask_b32 v%d, 1.0, v%d, %s' % (c + 10, a, M), 'v_cndmask_b32 v%d, 0, v%d, %s' % (c + 11, a + 1, M)]
        r += csq(c + 8, a)
        r += ['v_lshl_add_u32 v%d, v%d, 1, v%d' % (c + 14, vWAVE, vHH), 'v_mov_b32 v%d, 0' % (c + 12), 'v_mov_b32 v%d, 0' % (c + 13)]
        return r
    def masks():
        p('s_bitcmp1_b32 s%d, 0' % sWV); p('s_cselect_b64 s[66:67], -1, 0')
        p('s_bitcmp1_b32 s%d, 1' % sWV); p('s_cselect_b64 s[68:69], -1, 0')
    def gate_reads(s):
        sl = s % 4; d = vGA + 4 + 2 * (s & 1)
        return ['v_add_u32 v%d, s%d, v%d' % (vGA + 3, SIG + s, vGA + 2),
                ('ds_read_b32 v%d, v%d offset:%d' % (d, vGA + (sl >> 1), (sl & 1) * SLOT), 'g%d' % s),
                ('ds_read_b32 v%d, v%d' % (d + 1, vGA + 3), 'g%d' % s)]
    def gate_step(s):
        x = vGA + 4 + 2 * (s & 1); w = x + 1; a = vGA + 10; acc = vGA + 8
        return [lambda: p.wait(lg='g%d' % s),
                'v_lshlrev_b32 v%d, 16, v%d' % (a, x), 'v_lshlrev_b32 v%d, 16, v%d' % (a + 1, w),
                'v_and_b32 v%d, 0xffff0000, v%d' % (x, x), 'v_and_b32 v%d, 0xffff0000, v%d' % (w, w),
                'v_mul_f32 v%d, v%d, v%d' % (a, a, a + 1), 'v_mul_f32 v%d, v%d, v%d' % (x, x, w),
                'v_cvt_pk_bf16_f32 v%d, v%d, v%d' % (a, a, x),
                'v_lshlrev_b32 v%d, 16, v%d' % (a + 1, a), 'v_and_b32 v%d, 0xffff0000, v%d' % (a, a),
                'v_add_f32 v%d, v%d, v%d' % (acc, acc, a + 1), 'v_add_f32 v%d, v%d, v%d' % (acc, acc, a)]
    def gate_fin():
        r = []; s = vGA + 8; a = vGA + 10
        for m in ('quad_perm:[1,0,3,2]', 'quad_perm:[2,3,0,1]', 'row_half_mirror', 'row_mirror'):
            r.append('v_add_f32_dpp v%d, v%d, v%d %s row_mask:0xf bank_mask:0xf' % (s, s, s, m))
        r += ['v_mov_b32 v%d, v%d' % (a, s), 'v_permlane16_swap_b32 v%d, v%d' % (a, s), 'v_add_f32 v%d, v%d, v%d' % (s, s, a),
              'v_cvt_pk_bf16_f32 v%d, v%d, v%d' % (s, s, s), 'v_lshlrev_b32 v%d, 16, v%d' % (s, s),
              'v_mul_f32 v%d, 0xbfb8aa3b, v%d' % (s, s), 'v_exp_f32 v%d, v%d' % (s, s), 'v_add_f32 v%d, 1.0, v%d' % (s, s),
              'v_rcp_f32 v%d, v%d' % (s, s), 'v_cvt_pk_bf16_f32 v%d, v%d, v%d' % (s, s, s), 'v_lshlrev_b32 v%d, 16, v%d' % (a, s),
              'v_sub_f32 v%d, 1.0, v%d' % (a + 1, a), 'v_cvt_pk_bf16_f32 v%d, v%d, v%d' % (a + 1, a + 1, a + 1),
              'v_lshlrev_b32 v%d, 16, v%d' % (a + 1, a + 1)]
        def store():
            p('s_mov_b32 s40, %d' % WS_G)
            p('s_mov_b32 exec_lo, 1'); p('s_mov_b32 exec_hi, 1')
            p('buffer_store_dwordx2 v[%d:%d], v%d, %s, s40 offen%s' % (a, a + 1, vGA + 9, WS, SC), tag='gst')
            p('s_mov_b64 exec, -1')
        r.append(store)
        return r
    def sj_if(fn):
        def go():
            l = p.newlabel('L_sj')
            p('s_cmp_eq_u32 s%d, 0' % sSJK); p('s_cbranch_scc1 ' + l)
            fn()
            p.label(l)
        return go
    def sj_dma():
        p('s_add_u32 m0, s62, %d' % XREG)
        for i in range(4): p('buffer_load_dwordx4 v%d, %s, s%d offen offset:%d lds' % (vDJ + i, S4(rSJ), sSJO, 1024 * i), optional=True)
    def sj_read():
        d = 52
        p('s_add_u32 s40, s62, %d' % XREG)
        p('v_lshrrev_b32 v68, 4, v%d' % vLANE); p('v_bfe_u32 v69, v%d, 2, 2' % vLANE)
        p('v_lshl_add_u32 v68, v68, 3, v69'); p('v_lshlrev_b32 v68, 7, v68')
        p('v_and_b32 v69, 3, v%d' % vLANE); p('v_lshl_add_u32 v68, v69, 3, v68'); p('v_add_u32 v68, s40, v68')
        for e in range(4):
            for j in range(2):
                p('ds_read_b64_tr_b16 v[%d:%d], v68 offset:%d' % (d + 4 * e + 2 * j, d + 4 * e + 2 * j + 1, 32 * e + 512 * j), optional=True)
    def sj_store():
        for e in range(4): p('buffer_store_dwordx4 v[%d:%d], v%d, %s, s%d offen%s' % (52 + 4 * e, 55 + 4 * e, vL16, WS, sSJD + e, SC), optional=True)
    def c_prefetch():
        p('s_bitcmp1_b32 s%d, 0' % sWV)
        p('s_cselect_b32 s40, s%d, s%d' % (sCIM, sCRE)); p('s_cselect_b32 s41, s%d, s%d' % (sCIM + 1, sCRE + 1))
        p('s_lshl_b32 s65, s3, 1'); p('s_lshr_b32 s23, s%d, 1' % sWV); p('s_add_u32 s65, s65, s23'); p('s_lshl_b32 s23, s%d, 6' % sHF); p('s_add_u32 s65, s65, s23')
        p('s_mul_i32 s65, s65, 6400')
        p('v_min_u32 v68, 49, v%d' % vLANE); p('v_lshl_add_u32 v68, v68, 7, s65')
        p('global_load_dword v93, v68, s[40:41]', tag='cpf')
    def c_srd():
        p('s_bitcmp1_b32 s%d, 0' % sWV)
        p('s_cselect_b32 s%d, s%d, s%d' % (rC, sCIM, sCRE)); p('s_cselect_b32 s%d, s%d, s%d' % (rC + 1, sCIM + 1, sCRE + 1))
        p('s_mul_i32 s40, s%d, %d' % (sCT, 80 * 1280)); p('s_add_u32 s%d, s%d, s40' % (rC, rC)); p('s_addc_u32 s%d, s%d, 0' % (rC + 1, rC + 1))
        p('s_mov_b32 s%d, %d' % (rC + 2, 80 * 1280)); p('s_mov_b32 s%d, 0x20000' % (rC + 3))
        p('s_lshr_b32 s%d, s%d, 1' % (sSJO, sWV)); p('s_lshl_b32 s%d, s%d, 7' % (sSJO, sSJO))
    DS = opt.get('deltas', 1)
    def sp_lit(pos): return sum(order(5, c, DS)[pos] << (8 * c) for c in range(4))
    def c_dma(q):
        pos, n = divmod(q, 5); pl = q % 16
        r = [lambda: p.wait(lg='cr%d' % (q - 16))] if q >= 16 else []
        r += ['s_add_u32 m0, s43, %d' % (CPL[pl >> 2] + 2048 * (pl & 3))]
        if n == 0: r += ['s_bfe_u32 s23, 0x%x, s%d' % (sp_lit(pos), sSEL), 's_lshl_b32 s23, s23, 8', 's_add_u32 s23, s23, s%d' % sSJO]
        else: r += ['s_add_u32 s23, s23, %d' % (16 * 1280)]
        ld = [('buffer_load_dwordx4 v%d, %s, s23 offen offset:%d lds' % (vDC + i, S4(rC), 1024 * i), 'cd%d' % q) for i in range(2)]
        return [lambda: [put(x) for x in r + ld[:1]], ld[1]]
    def c_read(q, dst=None):
        pl = q % 16; dst = AX + 8 * q if dst is None else dst
        hi, o = {0: (0, 0), 1: (1, SLOT), 2: (0, SLOT), 3: (1, 0)}[pl >> 2]
        rd = [('ds_read_b128 a[%d:%d], v%d offset:%d' % (dst + 4 * gg, dst + 4 * gg + 3, vRC + 2 * hi + gg, o + 2048 * (pl & 3)), 'cr%d' % q) for gg in range(2)]
        return [lambda: (p.wait(vm='cd%d' % q), put(rd[0])), rd[1]]
    def cD(a, b): return [x for q in range(a, b) for x in c_dma(q)]
    def cR(a, b): return [x for q in range(a, b) for x in c_read(q)]
    def nonce_load(o=False): p('global_load_dword v%d, v%d, %s sc1' % (vPOLL, vZ, S2(sDBG)), tag='nonce', optional=o)
    def get_nonce():
        def chk(l2):
            p('v_readfirstlane_b32 s%d, v%d' % (sNON, vPOLL)); p('s_cmp_lg_u32 s%d, 0' % sNON); p('s_cbranch_scc1 ' + l2)
        p.wait(vm='nonce'); spin(nonce_load, chk)
        p('v_mov_b32 v47, s%d' % sNON)
    def w2_signal():
        l = p.newlabel('L_ws')
        p('s_cmp_lg_u32 s%d, 0' % sWV); p('s_cbranch_scc1 ' + l)
        p('s_lshl_b32 s40, s2, 2'); p('s_add_u32 s40, s40, %d' % WS_FL); p('v_lshlrev_b32 v68, 10, v%d' % vLANE); p('s_mov_b64 exec, 0xff')
        p('buffer_store_dword v47, v68, %s, s40 offen%s' % (WS, SC), optional=True)
        p('s_mov_b64 exec, -1')
        p.label(l)
    def signal(level, tags):
        def go():
            p.wait(vm=tags)
            p('s_add_u32 s65, s%d, %d' % (sFL, 32768 * level)); p('s_mov_b64 exec, 0xff')
            p('buffer_store_dword v47, v%d, %s, s65 offen%s' % (vMB, WS, SC), tag='flag')
            p('s_mov_b64 exec, -1')
        return go
    def fl_load(level):
        if level == 'W':
            p('s_and_b32 s40, s2, 7'); p('s_lshl_b32 s40, s40, 10'); p('s_add_u32 s40, s40, %d' % WS_FL)
            p('buffer_load_dwordx4 v[%d:%d], v%d, %s, s40 offen sc1' % (vWF, vWF + 3, vL16, WS), optional=True)
        else:
            p('s_mov_b32 s40, %d' % (32768 * level))
            p('buffer_load_dword v%d, v%d, %s, s40 offen sc1' % (vPOLL, vFP, WS), optional=True)
    def wave0(fn):
        l = p.newlabel('L_w0')
        p('s_cmp_lg_u32 s%d, 0' % sWV); p('s_cbranch_scc1 ' + l)
        fn()
        p.label(l)
    def fl_issue(level):
        def go():
            wave0(lambda: fl_load(level))
            p.marks[level] = p.total_vm()
        return go
    def fl_check(level, bar=True):
        def chk(l2):
            if level == 'W':
                for k in range(4): p('v_xor_b32 v%d, s%d, v%d' % (vWF + k, sNON, vWF + k))
                p('v_or3_b32 v%d, v%d, v%d, v%d' % (vWF, vWF, vWF + 1, vWF + 2)); p('v_or_b32 v%d, v%d, v%d' % (vWF, vWF, vWF + 3))
                p('v_cmp_ne_u32 vcc, 0, v%d' % vWF); p('s_cbranch_vccz ' + l2)
            else:
                p('v_cmp_ne_u32 vcc, s%d, v%d' % (sNON, vPOLL))
                p('s_and_b32 s40, vcc_lo, %s' % ('0xfff0fff0' if level == 0 else '-1')); p('s_cbranch_scc0 ' + l2)
        def body_():
            p('s_waitcnt vmcnt(%d)' % min(63, p.total_vm() - p.marks[level]))
            spin(lambda o: fl_load(level), chk)
        def go():
            wave0(body_)
            if bar: p('s_barrier')
        return go
    def rnd_lit(i):
        if i >= 12: return sum((12 + 2 * order(5, c, DS)[(i - 12) >> 1] + (i & 1)) << (8 * c) for c in range(4))
        for o, n in PARTS:
            if o <= i < o + n: return sum((o + order(n, c, DELTA)[i - o]) << (8 * c) for c in range(4))
    def b_reg(i, n):
        if i < 12: return ('a', 208 + 20 * (i % 3) + 4 * n) if i % 3 < 2 else ('v', 12 + 4 * n)
        pos, gg = divmod(i - 12, 2)
        return 'a', AX + 8 * (5 * (pos % 4) + n) + 4 * gg
    def b_loads(i):
        r = ['s_bfe_u32 s61, 0x%x, s%d' % (rnd_lit(i), sSEL), 's_mul_i32 s61, s61, 20480']
        for n in range(5):
            k, b = b_reg(i, n)
            r.append(('buffer_load_dwordx4 %s[%d:%d], v%d, %s, s61 offen%s sc1' % (k, b, b + 3, vB + (n >> 2), S4(rW2P), ' offset:%d' % (1024 * n) if n < 4 else ''), 'B%d' % i))
        return r
    def a_loads(i):
        b = AH + 16 * (i % 3)
        r = ['s_bfe_u32 s60, 0x%x, s%d' % (rnd_lit(i), sSEL), 's_lshl_b32 s60, s60, 14']
        r += [('buffer_load_dwordx4 a[%d:%d], v%d, %s, s60 offen offset:%d sc1' % (b + 4 * m, b + 4 * m + 3, vA, S4(rHID), 1024 * m), 'A%d' % i) for m in range(4)]
        return r
    def hid_srd():
        p('s_mul_i32 s40, s%d, %d' % (sRT, HID_RT)); srd(p, rHID, sWS, HID_RT, 's40')
        p('s_mul_i32 s40, s%d, %d' % (sCT, W2P_CT)); p('s_add_u32 s40, s40, %d' % WS_W2P); srd(p, rW2P, sWS, W2P_CT, 's40')
    def reads1(k):
        s, ks = divmod(k, 4); sl = s % 4; hi = 4 * (sl >> 1); o = (sl & 1) * SLOT
        w = AW + 16 * (k % 3); tg = 'k%d' % k
        r = [('ds_read_b128 a[%d:%d], v%d offset:%d' % (AX + 4 * k, AX + 4 * k + 3, vRX + hi + ks, o), tg)]
        for T in range(4):
            if B:
                for j in range(2):
                    r.append(('ds_read_b64_tr_b16 a[%d:%d], v%d offset:%d' % (w + 4 * T + 2 * j, w + 1 + 4 * T + 2 * j, vRF + (hi >> 1) + (T & 1),
                                                                          o + ks * 8192 + 4096 + 2048 * (T >> 1) + 512 * j), tg))
            else:
                r.append(('ds_read_b128 a[%d:%d], v%d offset:%d' % (w + 4 * T, w + 4 * T + 3, vRS + hi + ks, o + 4096 + 2048 * (T >> 1) + 16384 * (T & 1)), tg))
        return r
    L2 = opt.get('lead2', 5); NB2 = L2 + 1
    def reads2(m):
        k, T = divmod(m, 2); s, ks = divmod(k, 4); c, sg = divmod(s, 4)
        w = AW2 + 4 * (m % NB2)
        return [('ds_read_b128 a[%d:%d], v%d offset:%d' % (w, w + 3, vRS + 4 * (S2OFF[c] >> 16) + ks, (S2OFF[c] & 0xffff) + 16384 * T + 2048 * sg), 'm%d' % m)]
    mf = 'v_mfma_f32_32x32x16_bf16 v[%d:%d], a[%d:%d], a[%d:%d], %s'
    def mfma1(k, T):
        x = AX + 4 * k; f = AW + 16 * (k % 3) + 4 * T
        if B: a = FAC + 16 * T; return mf % (a, a + 15, f, f + 3, x, x + 3, 'v[%d:%d]' % (a, a + 15))
        a = SAC[T >> 1] + 16 * (T & 1)
        return mf % (a, a + 15, x, x + 3, f, f + 3, 'v[%d:%d]' % (a, a + 15) if k else '0')
    def mfma2(m):
        k, T = divmod(m, 2); x = AX + 4 * k; a = SAC[0] + 16 * T; f = AW2 + 4 * (m % NB2)
        return mf % (a, a + 15, x, x + 3, f, f + 3, 'v[%d:%d]' % (a, a + 15) if k else '0')
    LOOK = opt.get('look', 3); SJS = opt.get('sjs', 2)
    def sync1(s):
        p.wait(vm='st%d' % s, lg='all' if (LOOK == 3 and s) else None); p('s_barrier')
        r = []
        if s == 0 and LOOK == 3: r += dma_stage(2)
        if s + LOOK < 10: r += dma_stage(s + LOOK)
        elif B: r += dma_s2(s + LOOK - 10)
        return r
    def scanA1(g):
        c = CON[g]; re, im = SAC[g], SAC[g] + 16
        r = []
        for k in range(1, 16): r += cfma(re + k, im + k, c, re + k - 1, im + k - 1)
        r += ['v_mov_b32 v%d, v%d' % (48 + 2 * g, re + 15), 'v_mov_b32 v%d, v%d' % (49 + 2 * g, im + 15),
              ('ds_write_b64 v%d, v[%d:%d] offset:%d' % (vEXA, 48 + 2 * g, 49 + 2 * g, EXO + 8192 * g), 'ex')]
        return r
    def scanA2(g):
        c = CON[g]; re, im = SAC[g], SAC[g] + 16; be = P2(c + 2)
        r = []
        for k in range(0, 16, 2):
            tt = 48 + (k & 2)
            r += ['v_pk_mul_f32 %s, %s, %s op_sel:[1,0] op_sel_hi:[1,1]' % (P2(tt), be, P2(re + k)),
                  'v_pk_mul_f32 %s, %s, %s op_sel:[0,0] op_sel_hi:[0,1]' % (P2(re + k), be, P2(re + k)),
                  'v_pk_fma_f32 %s, %s, %s, %s op_sel:[1,0,0] op_sel_hi:[1,1,1] neg_lo:[1,0,0] neg_hi:[1,0,0]' % (P2(re + k), be, P2(im + k), P2(re + k)),
                  'v_pk_fma_f32 %s, %s, %s, %s op_sel:[0,0,0] op_sel_hi:[0,1,1]' % (P2(im + k), be, P2(im + k), P2(tt))]
        return r
    def ex_reads(g, e):
        return [('ds_read_b64 v[%d:%d], v%d offset:%d' % (e + 2 * k, e + 2 * k + 1, vEXA + 1, EXO + 8192 * g + 256 * k), 'exr%d' % g) for k in range(8)]
    def ex_prefix(g, e, pk):
        c = CON[g]; r = []
        for k in range(1, 8):
            r += pcfma(e + 2 * k, c + 4, e + 2 * k - 2) if pk else cfma(e + 2 * k, e + 2 * k + 1, c + 4, e + 2 * k - 2, e + 2 * k - 1)
        return r
    def ex_pub(g, e):
        def pub():
            p('v_mov_b32 v%d, v47' % (e + 16)); p('v_mov_b32 v%d, v47' % (e + 17))
            p('s_add_u32 s40, s%d, %d' % (sG, g)); p('s_lshl_b32 s40, s40, 4'); p('s_add_u32 s40, s40, s%d' % sRB); p('s_lshl_b32 s40, s40, 9')
            p('s_add_u32 s40, s40, %d' % WS_E)
            p('s_lshl_b32 s41, s%d, 3' % sWV); p('s_lshl_b32 exec_lo, 0xff, s41'); p('s_mov_b32 exec_hi, 0')
            p('buffer_store_dwordx4 v[%d:%d], v%d, %s, s40 offen%s' % (e + 14, e + 17, vL16, WS, SC), tag='pub')
            p('s_mov_b64 exec, -1')
        return [pub]
    def ex_own(g, e):
        c = CON[g]; r = []
        for k in range(1, 8):
            r += ['v_cmp_eq_u32 %s, %d, v%d' % (S2(sM + 2 * (k & 1)), k, c + 14)]
            if k > 1: r += ['v_cndmask_b32 v%d, v%d, v%d, %s' % (c + 12 + z, c + 12 + z, e + 2 * k - 4 + z, S2(sM + 2 - 2 * (k & 1))) for z in range(2)]
        r += ['v_cndmask_b32 v%d, v%d, v%d, %s' % (48 + z, c + 12 + z, e + 12 + z, S2(sM + 2)) for z in range(2)]
        return r + cm(c + 12, c + 2, 48)
    def ffn_epi(T, pk=False):
        a = FAC + 16 * T; r = []
        for k in range(0, 16, 2):
            r += ['v_max_f32 v%d, 0, v%d' % (a + k, a + k), 'v_max_f32 v%d, 0, v%d' % (a + k + 1, a + k + 1)]
            if pk: r += ['v_pk_mul_f32 %s, %s, %s' % (P2(a + k), P2(a + k), P2(a + k))]
            else: r += ['v_mul_f32 v%d, v%d, v%d' % (a + k + z, a + k + z, a + k + z) for z in range(2)]
        for k in range(8): r.append('v_cvt_pk_bf16_f32 v%d, v%d, v%d' % (a + k, a + 2 * k, a + 2 * k + 1))
        def stores():
            p('s_lshl_b32 s40, s%d, 12' % sQ); p('s_add_u32 s40, s40, s64'); p('s_add_u32 s40, s40, %d' % (((T & 1) + (24 if T >= 2 else 0)) * 4096))
            for q in range(2):
                p('buffer_store_dwordx4 v[%d:%d], v%d, %s, s40 offen offset:%d%s' % (a + 4 * q, a + 4 * q + 3, vSTF, WS, 256 * q, SC), tag='hf')
        return r + [stores]
    EXP = 84 if B else 52
    def lb_expect():
        r = []
        for k in range(8):
            r += ['v_subrev_u32 v%d, %d, v%d' % (EXP + k, 1024 * k, vEO), 'v_ashrrev_i32 v%d, 31, v%d' % (EXP + k, EXP + k),
                  'v_bfi_b32 v%d, v%d, 0, v47' % (EXP + k, EXP + k)]
        return r
    def lb_loads(g, e, o=False):
        p('s_add_u32 s40, s%d, %d' % (sG, g)); p('s_lshl_b32 s40, s40, 13'); p('s_add_u32 s40, s40, %d' % WS_E)
        srd(p, rE, sWS, 8192, 's40')
        for k in range(8):
            if k: p('v_subrev_u32 v48, %d, v%d' % (1024 * k, vEO))
            p('buffer_load_dwordx4 v[%d:%d], v%d, %s, 0 offen sc1' % (e[k], e[k] + 3, 48 if k else vEO, S4(rE)), tag='lb%d' % g, optional=o)
    def lb_finish(g, e):
        c = CON[g]
        def chk(l2):
            for k in range(8): p('v_xor_b32 v%d, v%d, v%d' % (e[k] + 2, e[k] + 2, EXP + k))
            p('v_or3_b32 v48, v%d, v%d, v%d' % (e[0] + 2, e[1] + 2, e[2] + 2)); p('v_or3_b32 v49, v%d, v%d, v%d' % (e[3] + 2, e[4] + 2, e[5] + 2))
            p('v_or3_b32 v48, v%d, v%d, v48' % (e[6] + 2, e[7] + 2)); p('v_or_b32 v48, v48, v49')
            p('v_cmp_ne_u32 vcc, 0, v48'); p('s_cbranch_vccz ' + l2)
        p.wait(vm='lb%d' % g); spin(lambda o: lb_loads(g, e, o), chk)
        for k in range(6, -1, -1):
            for x in pcfma(e[k], c + 8, e[k + 1]): put(x)
        for x in pcmul(48, c + 10, e[0]): put(x)
        p('v_mov_b32 v50, v48'); p('v_mov_b32 v51, v49')
        p('v_permlane32_swap_b32 v48, v50'); p('v_permlane32_swap_b32 v49, v51')
        p('v_pk_add_f32 v[48:49], v[48:49], v[50:51]')
        for x in pcfma(c + 12, c + 6, 48): put(x)
    def scanB(g, pk):
        c = CON[g]; tr, ti = TAB[g], TAB[g] + 16; re, im = SAC[g], SAC[g] + 16; cc = P2(c + 12)
        r = []
        for k in range(0, 16, 2):
            if pk:
                r += ['v_pk_fma_f32 %s, %s, %s, %s op_sel:[0,0,0] op_sel_hi:[1,0,1]' % (P2(re + k), P2(tr + k), cc, P2(re + k)),
                      'v_pk_fma_f32 %s, %s, %s, %s op_sel:[0,1,0] op_sel_hi:[1,1,1]' % (P2(im + k), P2(tr + k), cc, P2(im + k)),
                      'v_pk_fma_f32 %s, %s, %s, %s op_sel:[0,1,0] op_sel_hi:[1,1,1] neg_lo:[1,0,0] neg_hi:[1,0,0]' % (P2(re + k), P2(ti + k), cc, P2(re + k)),
                      'v_pk_fma_f32 %s, %s, %s, %s op_sel:[0,0,0] op_sel_hi:[1,0,1]' % (P2(im + k), P2(ti + k), cc, P2(im + k))]
            else:
                for z in (k, k + 1):
                    r += ['v_fmac_f32 v%d, v%d, v%d' % (re + z, tr + z, c + 12), 'v_fmac_f32 v%d, v%d, v%d' % (im + z, tr + z, c + 13),
                          'v_fma_f32 v%d, -v%d, v%d, v%d' % (re + z, ti + z, c + 13, re + z), 'v_fmac_f32 v%d, v%d, v%d' % (im + z, ti + z, c + 12)]
        for part in range(2):
            a = re + 16 * part; ng = '-' if part else ''
            for q in range(2):
                r += ['v_cvt_pk_bf16_f32 v%d, %sv%d, %sv%d' % (a + 8 * q + k, ng, a + 8 * q + 2 * k, ng, a + 8 * q + 2 * k + 1) for k in range(4)]
                r += [('ds_write_b128 v%d, v[%d:%d]' % (vTW + q, a + 8 * q, a + 8 * q + 3), 'tw')]
            r += [('ds_read_b64_tr_b16 v[%d:%d], v%d offset:%d' % (a + 8 * b + 4 + 2 * j, a + 8 * b + 5 + 2 * j, vTW + 2 + j, 1024 * b), 'tr%d' % part) for b in range(2) for j in range(2)]
        def stores(part):
            p('s_add_u32 s41, s%d, %d' % (sG, g)); p('s_lshr_b32 s40, s41, 2'); p('s_lshl_b32 s40, s40, 1'); p('s_and_b32 s65, s41, 1'); p('s_add_u32 s40, s40, s65')
            p('s_lshl_b32 s40, s40, 1'); p('s_bfe_u32 s65, s41, 0x10001'); p('s_add_u32 s40, s40, s65'); p('s_lshl_b32 s40, s40, 13')
            p('s_add_u32 s40, s40, s64'); p('s_add_u32 s40, s40, %d' % ((48 + part) * 4096))
            p.wait(lg='tr%d' % part)
            for b in range(2):
                o = re + 16 * part + 8 * b + 4
                p('buffer_store_dwordx4 v[%d:%d], v%d, %s, s40 offen offset:%d%s' % (o, o + 3, vL16, WS, 1024 * b, SC), tag='hs')
        return r + [lambda: stores(0), lambda: stores(1)]
    if B: p('v_lshlrev_b32 v49, 5, v%d' % vHH); p('v_add_u32 v49, %d, v49' % (SMO + 384))
    pend = sync1(0)
    st('first')
    if B:
        for T in range(4):
            for x in bias_reads(176, T): put(x)
        rd = reads1(0) + reads1(1) + gate_reads(0)
        up = []
        for T in range(4): up += [lambda T=T: p.wait(lg='b1%d' % T)] + unpack(FAC + 16 * T, 176 + 8 * T, 8)
        for x in sprinkle(up, rd, 3): put(x)
    else:
        for x in reads1(0) + reads1(1) + gate_reads(0): put(x)
    for x in par_reads(): put(x)
    fill = [masks, lambda: p.wait(lg='par')]
    for g in range(NG): fill += setup(g)
    fill += late_setup()
    prio = gate_step(0)
    p.marks = {}
    bar = lambda s_: 16 * s_ - 8
    def chk_nopend(): assert not pend
    events = {bar(SJS) - 1: [chk_nopend, sj_if(sj_dma)] + ([s2_srd] if B else []), bar(SJS + LOOK) + 2: [sj_if(sj_read)], bar(SJS + LOOK + 1) + 2: [sj_if(sj_store)],
              28: [nonce_load], bar(9) + 2: [get_nonce, w2_signal]}
    if opt.get('cpf', 0): events[bar(opt.get('cpf')) - 1] = [c_prefetch]
    assert LOOK == 3 and SJS <= 2
    nslots = 240 if B else 160
    GAP = opt.get('gap', 6)
    if B:
        fill2 = ffn_epi(0) + ffn_epi(1) + ffn_epi(2) + ffn_epi(3) + [lambda: st('fst'), hid_srd] + lb_expect()
        events[opt.get('wpoll', 224)] = [fl_issue('W')]
        cq = cD(0, 16); ncq = 0
    rd = []
    for i in range(nslots):
        if i < 160:
            k, T = divmod(i, 4)
            if T == 0:
                if k + 2 < 40:
                    rd = reads1(k + 2)
                    if (k + 2) % 4 == 0:
                        pend += sync1((k + 2) // 4)
                        rd = gate_reads((k + 2) // 4) + rd; prio += gate_step((k + 2) // 4)
                        if k + 2 == 36: prio += gate_fin()
                p.wait(lg='k%d' % k)
            p(mfma1(k, T))
        else:
            if i == 160:
                for x in prio + fill + c_setup(): put(x)
                st('pass1'); prio = []; fill = fill2
                c_srd()
            if i % 2 == 0: p.wait(lg=['m%d' % (i - 160), 'm%d' % (i - 159)])
            p(mfma2(i - 160))
        budget = GAP
        if opt.get('fine') == 1 and i % 16 == 9 and i < 160: st('s%d' % i)
        if opt.get('fine') == 2 and i % 8 == 0 and i > 160: st('s%d' % i)
        m = i + L2 - 160
        if B and 0 <= m < 80:
            if m in (0, 32, 64): p.wait(vm='s2c%d' % (m // 32), lg='all'); p('s_barrier')
            for x in reads2(m): put(x); budget -= 1
        nrd = -(-len(rd) // (4 - i % 4))
        if i % 16 in (4, 5, 6) and i < 160: nrd = -(-len(rd) // (7 - i % 16))
        for _ in range(nrd): put(rd.pop(0)); budget -= 1
        if pend and (i % 2 == 1 or sum(isinstance(x, tuple) for x in pend) > (23 - i % 16 if i % 16 >= 8 else 7 - i % 16) // 2 + 1):
            while isinstance(pend[0], str): put(pend.pop(0)); budget -= 1
            put(pend.pop(0)); budget -= 1
            while pend and isinstance(pend[0], str): put(pend.pop(0)); budget -= 1
        elif B and i > 160 and i % 2 == 1 and cq and (ncq < 16 or (ncq < 24 and m > 32) or m > 64):
            put(cq.pop(0)); ncq += 1; budget -= 2
        for x in events.pop(i, []): put(x); budget -= 1
        if i < 160:
            if i % 16 >= 13 or i % 16 < 8:
                n = 0
                while prio and budget > 0 and n < 2: put(prio.pop(0)); budget -= 1; n += 1
            want = -(-len(fill) // max(1, 154 - i)) if i >= 2 else 0
            for _ in range(min(want, budget)):
                if fill: put(fill.pop(0))
        elif i > 160:
            while fill and budget > 0: put(fill.pop(0)); budget -= 1
        p.check_depth()
    assert not pend and not rd and not events
    bpre = b_loads(0) + b_loads(1) + b_loads(2)
    extra = {}
    if B:
        assert not cq and not fill
        st('pass2')
        signal(0, 'hf')()
        for x in scanA1(0): put(x)
        fl_check('W', False)()
        p.wait(lg='ex'); p('s_barrier')
        for x in ex_reads(0, 52) + bpre[:4]: put(x)
        p.wait(lg='exr0')
        for x in ex_prefix(0, 52, True) + ex_pub(0, 52): put(x)
        st('pub')
        for x in sprinkle(cR(0, 16) + ex_own(0, 52) + scanA2(0), bpre[4:] + cD(16, 25), 3): put(x)
        e0 = [52 + 4 * k for k in range(8)]
        LBR = opt.get('lbr', 2)
        extra = {LBR: [lambda: lb_loads(0, e0)] + cR(16, 20), LBR + 1: [lambda: (st('lbstart'), lb_finish(0, e0), st('lbdone'))] + scanB(0, False)}
        sigS, geo = LBR + 4, LBR + 4
    else:
        for x in prio + fill + c_setup(): put(x)
        st('pass1')
        c_srd()
        for x in interleave(scanA1(0), scanA1(1)): put(x)
        p.wait(lg='all'); p('s_barrier')
        for x in ex_reads(0, 52) + ex_reads(1, 72) + cD(0, 2): put(x)
        p.wait(lg='exr1')
        for x in interleave(ex_prefix(0, 52, True), ex_prefix(1, 72, True)) + ex_pub(0, 52) + ex_pub(1, 72): put(x)
        st('pub')
        hid_srd()
        fl_issue('W')()
        for x in sprinkle(ex_own(0, 52) + ex_own(1, 72) + lb_expect() + scanA2(0) + scanA2(1), cD(2, 16), 4): put(x)
        e0 = [60 + 4 * k for k in range(8)]
        lb_loads(0, e0)
        fl_check('W')()
        for x in cR(0, 16): put(x)
        st('lbstart')
        lb_finish(0, e0)
        lb_loads(1, e0)
        for x in sprinkle(scanB(0, True), cD(16, 25), 3): put(x)
        lb_finish(1, e0)
        st('lbdone')
        for x in sprinkle(scanB(1, True), bpre, 3): put(x)
        extra = {0: cR(16, 20)}
        sigS, geo = 1, 1
    st('end1')
    fl_issue(0)(); fl_check(0)()
    st('fok')
    for x in a_loads(0) + a_loads(1): put(x)
    phase2(p, opt, st, a_loads, b_loads, b_reg, c_read, signal, fl_issue, fl_check, extra, sigS, geo)

def phase2(p, opt, st, a_loads, b_loads, b_reg, c_read, signal, fl_issue, fl_check, extra, sigS, geo):
    put = p.put
    ACCB, ACCA = 96, 176
    vG, vX, vLR, vOut = 32, 52, 62, 67
    vBias, vCol, vRow, vLW, t = 6, 72, 77, 82, 84
    rXT, rO, rSM = 44, 16, 52
    def geom():
        r = []
        def srds():
            p('s_mul_i32 s40, s%d, 160' % sCT); p('s_mul_i32 s41, s%d, %d' % (sRT, 64 * 1280)); p('s_add_u32 s41, s41, s40')
            srd(p, rXT, sX, 64 * 1280 - 1280 + 160, 's41')
            p('s_lshl_b32 s41, s41, 1')
            srd(p, rO, sOUT, 64 * 2560 - 2560 + 320, 's41')
            p('s_lshl_b32 s41, s%d, 9' % sRT); p('s_add_u32 s41, s41, %d' % WS_G)
            p('s_cmp_eq_u32 s%d, 1' % sWV); p('s_cselect_b32 s65, 256, 0'); p('s_add_u32 s41, s41, s65')
            p('s_cmp_eq_u32 s%d, 2' % sWV)
            p('s_cselect_b32 s%d, s%d, s%d' % (rSM, sDSK, sB2)); p('s_cselect_b32 s%d, s%d, s%d' % (rSM + 1, sDSK + 1, sB2 + 1))
            p('s_cmp_lt_u32 s%d, 2' % sWV)
            p('s_cselect_b32 s%d, s%d, s%d' % (rSM, sWS, rSM)); p('s_cselect_b32 s%d, s%d, s%d' % (rSM + 1, sWS + 1, rSM + 1))
            p('s_cselect_b32 s40, s41, s40')
            p('s_mov_b32 s65, 160'); p('s_cselect_b32 s%d, 256, s65' % (rSM + 2))
            p('s_add_u32 s%d, s%d, s40' % (rSM, rSM)); p('s_addc_u32 s%d, s%d, 0' % (rSM + 1, rSM + 1)); p('s_mov_b32 s%d, 0x20000' % (rSM + 3))
        r.append(srds)
        for i in range(5):
            r += ['v_add_u32 v%d, %d, v0' % (t, 256 * i), 'v_mul_u32_u24 v%d, 0xcccd, v%d' % (t + 1, t), 'v_lshrrev_b32 v%d, 20, v%d' % (t + 1, t + 1),
                  'v_mul_u32_u24 v%d, 20, v%d' % (t + 2, t + 1), 'v_sub_u32 v%d, v%d, v%d' % (t + 2, t, t + 2),
                  'v_mul_u32_u24 v%d, 1280, v%d' % (t + 3, t + 1), 'v_lshl_add_u32 v%d, v%d, 3, v%d' % (t + 3, t + 2, t + 3),
                  ('buffer_load_dwordx2 v[%d:%d], v%d, %s, 0 offen' % (vX + 2 * i, vX + 2 * i + 1, t + 3, S4(rXT)), 'X'),
                  'v_lshlrev_b32 v%d, 1, v%d' % (vOut + i, t + 3), 'v_mul_u32_u24 v%d, 336, v%d' % (vLR + i, t + 1),
                  'v_add_u32 v%d, %d, v%d' % (vLR + i, PB, vLR + i), 'v_lshl_add_u32 v%d, v%d, 4, v%d' % (vLR + i, t + 2, vLR + i),
                  'v_lshl_add_u32 v%d, v%d, 3, s66' % (vCol + i, t + 2), 'v_lshl_add_u32 v%d, v%d, 3, s66' % (vRow + i, t + 1)]
        r += ['v_and_b32 v%d, 15, v%d' % (t, vLANE), 'v_mul_u32_u24 v%d, 336, v%d' % (vLW, t), 'v_lshrrev_b32 v%d, 4, v%d' % (t + 1, vLANE),
              'v_lshl_add_u32 v%d, v%d, 4, v%d' % (vLW, t + 1, vLW), 'v_mul_u32_u24 v%d, %d, v%d' % (t + 1, 64 * 336, vWAVE),
              'v_add_u32 v%d, v%d, v%d' % (vLW, vLW, t + 1), 'v_add_u32 v%d, %d, v%d' % (vLW, PB, vLW),
              'v_lshl_add_u32 v%d, v%d, 3, s66' % (vLW + 1, t), 'v_lshlrev_b32 v%d, 2, v%d' % (48, vLANE)]
        return r
    def sm_dma():
        p('s_lshl_b32 s40, s%d, 8' % sWV); p('s_add_u32 m0, s40, %d' % SM2)
        p('buffer_load_dword v48, %s, 0 offen sc1 lds' % S4(rSM), tag='SM')
    def bias():
        def f_sync(): p.wait(vm=['SM', 'X'], lg='all'); p('s_barrier')
        r = [f_sync]
        r += [('ds_read_b64 v[%d:%d], v%d offset:%d' % (vG + 2 * m, vG + 2 * m + 1, vLW + 1, 128 * m), 'g') for m in range(4)]
        for i in range(5):
            r += [('ds_read_b64 v[%d:%d], v%d' % (t, t + 1, vRow + i), 'c'), ('ds_read_b64 v[%d:%d], v%d offset:512' % (t + 2, t + 3, vCol + i), 'c'),
                  ('ds_read_b64 v[%d:%d], v%d offset:768' % (t + 4, t + 5, vCol + i), 'c')]
            for h in range(2):
                r += ['v_lshlrev_b32 v%d, 16, v%d' % (t + 6 + 2 * h, vX + 2 * i + h), 'v_and_b32 v%d, 0xffff0000, v%d' % (t + 7 + 2 * h, vX + 2 * i + h)]
            r.append(lambda: p.wait(lg='c'))
            for h in range(2):
                r += ['v_lshlrev_b32 v48, 16, v%d' % (t + 2 + h), 'v_and_b32 v49, 0xffff0000, v%d' % (t + 2 + h),
                      'v_lshlrev_b32 v50, 16, v%d' % (t + 4 + h), 'v_and_b32 v51, 0xffff0000, v%d' % (t + 4 + h)]
                for e in range(2):
                    d = vBias + 4 * i + 2 * h + e
                    r += ['v_mul_f32 v%d, v%d, v%d' % (48 + e, 48 + e, t + 6 + 2 * h + e), 'v_mul_f32 v%d, v%d, v%d' % (d, t + 1, 50 + e),
                          'v_fmac_f32 v%d, v%d, v%d' % (d, t, 48 + e)]
        r += ['v_add_f32 v%d, v%d, v%d' % (vG + 2 * m, vG + 2 * m, vG + 2 * m) for m in range(4)]
        for m in range(4):
            for n in range(5):
                r += ['v_mul_f32 v%d, v%d, v%d' % (ACCB + 20 * m + 4 * n + z, vG + 2 * m + 1, ACCB + 20 * m + 4 * n + z) for z in range(4)]
        return r
    p('s_mov_b32 s66, %d' % SM2)
    fill = []
    NS = 22; LA = 2
    for i in range(NS):
        pre = []
        fill += extra.get(i, [])
        if i == sigS: fill += [signal(1, ['hs', 'gst'])]
        if i == geo: fill += geom()
        if i == 9: assert not fill; pre += [fl_issue(1)]
        if i == 10: pre += [fl_check(1), sm_dma]
        if i == 14:
            for n in range(5): fill += c_read(20 + n, AX + 8 * n)
        if i == 15: fill += bias()
        p.wait(vm=['A%d' % i, 'B%d' % i])
        if opt.get('fine') == 3 and i not in (0, 6, 12): st('r%d' % i)
        if i == 0: st('p2first')
        if i == 6: st('p2f1')
        if i == 12: st('p2f2')
        nxt = (a_loads(i + LA) if i + LA < NS else []) + (b_loads(i + 2) if 1 <= i and i + 2 < 12 else [])
        acc = ACCB if i < 12 else ACCA
        first = i in (0, 12)
        bh = AH + 16 * (i % 3)
        k = 0
        for n in range(5):
            for m in range(4):
                a = acc + 20 * m + 4 * n
                bk, bw = b_reg(i, n)
                p('v_mfma_f32_16x16x32_bf16 v[%d:%d], %s[%d:%d], a[%d:%d], %s' % (a, a + 3, bk, bw, bw + 3, bh + 4 * m, bh + 4 * m + 3,
                                                                              '0' if first else 'v[%d:%d]' % (a, a + 3)))
                k += 1
                if k == 1:
                    for x in pre: put(x)
                if k % 2 == 1 and nxt:
                    while isinstance(nxt[0], str): put(nxt.pop(0))
                    put(nxt.pop(0))
                for _ in range(opt.get('fill2', 3) if i < 12 else 2):
                    if fill: put(fill.pop(0))
        assert not nxt
        p.check_depth()
    assert not fill
    st('mainend')
    for n in range(5):
        for m in range(4):
            a = ACCA + 20 * m + 4 * n; bb = ACCB + 20 * m + 4 * n
            for r in (0, 2): p('v_pk_fma_f32 %s, %s, %s, %s op_sel:[0,0,0] op_sel_hi:[0,1,1]' % (P2(bb + r), P2(vG + 2 * m), P2(a + r), P2(bb + r)))
            p('ds_write_b128 v%d, v[%d:%d] offset:%d' % (vLW, bb, bb + 3, m * 16 * 336 + n * 64), tag='w')
    p.wait(lg='all'); p('s_barrier')
    st('red')
    R = ACCA
    for i in range(5):
        for w in range(4):
            p('ds_read_b128 v[%d:%d], v%d offset:%d' % (R + 16 * i + 4 * w, R + 16 * i + 4 * w + 3, vLR + i, w * 64 * 336), tag='r%d' % i)
    for i in range(5):
        p.wait(lg='r%d' % i)
        for r in (0, 2):
            p('v_pk_add_f32 %s, %s, %s' % (P2(R + 16 * i + r), P2(R + 16 * i + r), P2(R + 16 * i + 4 + r)))
            p('v_pk_add_f32 %s, %s, %s' % (P2(R + 16 * i + 8 + r), P2(R + 16 * i + 8 + r), P2(R + 16 * i + 12 + r)))
        for r in (0, 2): p('v_pk_add_f32 %s, %s, %s' % (P2(vBias + 4 * i + r), P2(vBias + 4 * i + r), P2(R + 16 * i + r)))
        for r in (0, 2): p('v_pk_add_f32 %s, %s, %s' % (P2(R + 16 * i + r), P2(vBias + 4 * i + r), P2(R + 16 * i + 8 + r)))
        p('buffer_store_dwordx4 v[%d:%d], v%d, %s, 0 offen%s' % (R + 16 * i, R + 16 * i + 3, vOut + i, S4(rO), opt.get('out_sc', SC)), tag='o')
    st('stored')
    if opt.get('stamps'):
        p.wait(vm='all'); st('drained'); st('rt1')
    st.dump(sWS, 60, 48)
```

```python
import sys, json
from common import *
import kp, kr
def build(opt):
    hdr = open('cdna_kernels/%s.s.ref' % NAME).read().split('\n')
    out = []
    for l in hdr:
        if l.startswith('; @launch'): continue
        if not l.startswith(';'): break
        out.append(l)
    out.append('; @launch grid=(256,1,1) block=(256,1,1) lds=%d' % kp.LDS_BYTES)
    out.append('.amdgcn_target "amdgcn-amd-amdhsa--gfx950"\n.text')
    nm = NAME + '_kernel'
    p, n = (kr if opt.get('new') else kp).gen(nm, opt)
    out.append('.globl %s\n.p2align 8\n.type %s,@function' % (nm, nm))
    out.append(p.text())
    out.append(kernel_desc(nm, 512, 256))
    return '\n'.join(out), n
if __name__ == '__main__':
    opt = json.loads(sys.argv[2]) if len(sys.argv) > 2 else {}
    s, names = build(opt)
    open(sys.argv[1], 'w').write(s)
    json.dump(names, open(sys.argv[1] + '.stamps', 'w'))
    print('written', len(s), 'bytes')
```

```python
from emit import Prog
from common import *

LDS_BYTES = 163840
SPIN_MAX = 100000
SLOT = 32768
XREG = 4 * SLOT
SMO = XREG + 16384
TRO = 4096
EXO = 6144
SM2 = 2 * 8192 + 6144
PB = 24576
CPL = [SLOT, XREG, 2 * SLOT, 3 * SLOT]
LOG2E = '0x3fb8aa3b'
INV2PI = '0.15915494'
SC = ' sc1'

sX, sLRE, sLIM, sBRE, sBIM, sCRE, sCIM, sLDT = 4, 6, 8, 10, 12, 14, 16, 18
sDSK, sW1, sB1, sW2, sB2, sGATE, sOUT, sDBG, sWS = 20, 24, 26, 28, 30, 32, 34, 36, 38
rX, rP0, rP1, rWS = 44, 48, 52, 56
rE, rHID, rW2P, rSJ, rS2, rC = 44, 48, 8, 92, 92, 92
sSB = 24
sM = 12
SIG = 70
sNON, sHF, sRB, sCG, sG, sQ, sWV, sRT, sCT, sSEL, sFL = 80, 81, 82, 83, 84, 85, 86, 87, 88, 89, 90
sSJO, sSJD, sSJK = 91, 96, 22
sST = 100
vLANE, vWAVE, vHH = 1, 2, 3
vDX, vDS, vD2 = 4, 8, 10
vRX, vRS, vRF = 12, 20, 28
vSTF, vL16, vEXA, vTW, vEO = 32, 33, 34, 36, 40
vDJ = 41
vB, vFP, vA = 41, 43, 44
vZ, vPOLL = 45, 46
vDC, vRC, vMB = 4, 6, 92
vT = 48
vN = 79
vGA = 80
vST = 95
SAC = [176, 96]
TAB = [208, 128]
CON = [240, 160]
FAC = 96
AX = 0
AW = 160
AW2 = 208
AH = 160
PARTS = [(0, 12)]

def order(n, c, delta):
    return sorted(range(n), key=lambda i: (i - (delta if i % 4 == c else 0), 0 if i % 4 == c else 1))
def P2(r): return 'v[%d:%d]' % (r, r + 1)
def S4(r): return 's[%d:%d]' % (r, r + 3)
def S2(r): return 's[%d:%d]' % (r, r + 1)
def cmul(dr, di, ar, ai, br, bi):
    return ['v_mul_f32 v%d, v%d, v%d' % (dr, ar, br), 'v_mul_f32 v%d, v%d, v%d' % (di, ar, bi),
            'v_fma_f32 v%d, -v%d, v%d, v%d' % (dr, ai, bi, dr), 'v_fmac_f32 v%d, v%d, v%d' % (di, ai, br)]
def cm(d, a, b): return cmul(d, d + 1, a, a + 1, b, b + 1)
def cfma(dr, di, a, br, bi):
    return ['v_fmac_f32 v%d, v%d, v%d' % (dr, a, br), 'v_fmac_f32 v%d, v%d, v%d' % (di, a, bi),
            'v_fma_f32 v%d, -v%d, v%d, v%d' % (dr, a + 1, bi, dr), 'v_fmac_f32 v%d, v%d, v%d' % (di, a + 1, br)]
def pcfma(d, a, b):
    return ['v_pk_fma_f32 %s, %s, %s, %s op_sel:[0,0,0] op_sel_hi:[0,1,1]' % (P2(d), P2(a), P2(b), P2(d)),
            'v_pk_fma_f32 %s, %s, %s, %s op_sel:[1,1,0] op_sel_hi:[1,0,1] neg_lo:[1,0,0]' % (P2(d), P2(a), P2(b), P2(d))]
def pcmul(d, a, b):
    return ['v_pk_mul_f32 %s, %s, %s op_sel:[0,0] op_sel_hi:[0,1]' % (P2(d), P2(a), P2(b)),
            'v_pk_fma_f32 %s, %s, %s, %s op_sel:[1,1,0] op_sel_hi:[1,0,1] neg_lo:[1,0,0]' % (P2(d), P2(a), P2(b), P2(d))]
def csq(d, a):
    return ['v_mul_f32 v%d, v%d, v%d' % (d, a, a), 'v_add_f32 v%d, v%d, v%d' % (d + 1, a, a),
            'v_fma_f32 v%d, -v%d, v%d, v%d' % (d, a + 1, a + 1, d), 'v_mul_f32 v%d, v%d, v%d' % (d + 1, d + 1, a + 1)]
def interleave(*ls):
    out = []; ls = [list(l) for l in ls]
    while any(ls):
        for l in ls:
            if l: out.append(l.pop(0))
    return out
def sprinkle(main, extra, every):
    out = []; extra = list(extra)
    for i, x in enumerate(main):
        out.append(x)
        if i % every == every - 1 and extra:
            while isinstance(extra[0], str): out.append(extra.pop(0))
            out.append(extra.pop(0))
    return out + extra
def unpack(dst, src, n):
    r = []
    for k in range(n):
        r.append('v_lshlrev_b32 v%d, 16, v%d' % (dst + 2 * k, src + k))
        r.append('v_and_b32 v%d, 0xffff0000, v%d' % (dst + 2 * k + 1, src + k))
    return r

def dma_stage(s):
    sl = (s % 4) * SLOT; tg = 'st%d' % s; so = SIG + s
    r = ['s_add_u32 m0, s43, %d' % sl, 's_mul_i32 s61, s%d, s63' % so]
    r += [('buffer_load_dwordx4 v%d, %s, s%d offen offset:%d lds' % (vDX + i, S4(rX), so, 1024 * i), tg) for i in range(4)]
    r += ['s_add_u32 m0, s43, %d' % (sl + 4096)]
    r += [('buffer_load_dwordx4 v%d, %s, s61 offen offset:%d lds' % (vD2 + i, S4(rP0), 1024 * i), tg) for i in range(2)]
    r += [('buffer_load_dwordx4 v%d, %s, s61 offen offset:%d lds' % (vD2 + i, S4(rP1), 1024 * i + 2048), tg) for i in range(2)]
    return r

def gen(name, opt):
    p = Prog()
    st = Stamps(p, sST, vST, opt.get('stamps'))
    st.echo = opt.get('echo')
    def put(x):
        if callable(x): x()
        elif isinstance(x, tuple): p(x[0], tag=x[1])
        else: p(x)
    p.put = put
    p.label(name)
    p('s_cmp_ge_u32 s2, 256')
    p('s_cbranch_scc1 L_end')
    p('s_load_dwordx16 s[4:19], s[0:1], 0')
    p('s_load_dwordx8 s[20:27], s[0:1], 64')
    p('s_load_dwordx8 s[28:35], s[0:1], 96')
    p('s_load_dwordx4 s[36:39], s[0:1], 128')
    p('s_memrealtime s[64:65]')
    if opt.get('stamps'): p('s_memrealtime s[66:67]'); p('s_memtime s[68:69]')
    p('s_lshr_b32 s3, s2, 3')
    code_prefetch(p, 'L_end', 44, 40, 3)
    p('v_and_b32 v%d, 63, v0' % vLANE)
    p('v_lshrrev_b32 v%d, 6, v0' % vWAVE)
    p('s_and_b32 s%d, s2, 7' % sHF)
    p('s_lshr_b32 s40, s%d, 1' % sHF)
    p('s_lshl_b32 s%d, s40, 2' % sRB)
    p('s_and_b32 s41, s3, 3')
    p('v_readfirstlane_b32 s%d, v%d' % (sWV, vWAVE))
    p('s_add_u32 s%d, s%d, s41' % (sRB, sRB))
    p('s_and_b32 s%d, s%d, 1' % (sHF, sHF))
    p('s_lshr_b32 s%d, s3, 2' % sCG)
    p('s_add_u32 s41, s41, s%d' % sCG); p('s_and_b32 s41, s41, 3'); p('s_lshl_b32 s41, s41, 3'); p('s_or_b32 s41, s41, 0x80000')
    p('s_mul_i32 s40, s40, 5'); p('s_add_u32 s40, s40, 1'); p('s_lshr_b32 s40, s40, 1')
    p('s_mul_i32 s60, s%d, 5' % sHF); p('s_add_u32 s40, s40, s60')
    if not opt.get('rot', 1): p('s_mov_b32 s40, 0')
    p('s_sub_u32 s60, s40, 10'); p('s_cmp_ge_u32 s40, 10'); p('s_cselect_b32 s40, s60, s40')
    tabs = [order(10, c, opt.get('d1', 3)) for c in range(4)]
    def sigma(i):
        lit = sum(tabs[c][i] << (8 * c) for c in range(4)); s = SIG + i
        return ['s_bfe_u32 s%d, 0x%x, s41' % (s, lit), 's_add_u32 s%d, s%d, s40' % (s, s), 's_sub_u32 s60, s%d, 10' % s,
                's_min_u32 s%d, s60, s%d' % (s, s), 's_lshl_b32 s%d, s%d, 7' % (s, s)]
    for x in sigma(0): p(x)
    p('s_mul_i32 s%d, s%d, 10' % (sG, sHF))
    p('s_lshl_b32 s%d, s%d, 1' % (sQ, sCG))
    p('s_add_u32 s60, s%d, 2' % sCG)
    p('s_cmp_lt_u32 s%d, 2' % sCG)
    p('s_cselect_b32 s60, s%d, s60' % sQ)
    p('s_cselect_b32 s63, 1, 1536')
    p('s_add_u32 s%d, s%d, s60' % (sG, sG))
    p('s_mul_i32 s60, s%d, 12' % sHF)
    p('s_add_u32 s%d, s%d, s60' % (sQ, sQ))
    p('s_sub_u32 s%d, s%d, 4' % (sQ, sQ))
    t = vT
    p('v_lshrrev_b32 v%d, 3, v%d' % (t, vLANE))
    p('v_and_b32 v%d, 7, v%d' % (t + 1, vLANE))
    p('v_lshrrev_b32 v%d, 4, v%d' % (t + 2, vLANE))
    p('v_and_b32 v%d, 3, v%d' % (t + 3, t))
    p('v_lshrrev_b32 v%d, 5, v%d' % (vHH, vLANE))
    p('v_lshl_add_u32 v%d, v%d, 4, v%d' % (t + 3, vHH, t + 3))
    p('v_lshl_add_u32 v%d, v%d, 5, v%d' % (t + 3, vWAVE, t + 3))
    p('v_mul_u32_u24 v%d, 1280, v%d' % (t + 3, t + 3))
    p('v_xor_b32 v%d, v%d, v%d' % (t + 5, t + 1, t + 2))
    p('v_xor_b32 v%d, 4, v%d' % (t + 6, t + 5))
    for i in range(4):
        p('v_lshl_add_u32 v%d, v%d, 4, v%d' % (vDX + i, t + 5 + (i & 1), t + 3))
        if i: p('v_add_u32 v%d, %d, v%d' % (vDX + i, 4096 * i, vDX + i))
    p('v_and_b32 v%d, 1, v%d' % (t + 7, vWAVE))
    p('v_lshl_add_u32 v%d, v%d, 4, v%d' % (t + 7, t + 7, t))
    p('v_mul_u32_u24 v%d, 1280, v%d' % (t + 7, t + 7))
    p('v_lshl_add_u32 v%d, v%d, 4, v%d' % (vDS, t + 5, t + 7))
    p('v_lshl_add_u32 v%d, v%d, 4, v%d' % (vDS + 1, t + 6, t + 7))
    p('v_add_u32 v%d, %d, v%d' % (vDS + 1, 8 * 1280 - 1024, vDS + 1))
    p('v_lshl_add_u32 v%d, v%d, 4, v%d' % (t + 7, vWAVE, t))
    p('v_mul_u32_u24 v%d, 3072, v%d' % (t + 7, t + 7))
    p('v_and_b32 v%d, 1, v%d' % (t + 8, t + 2))
    p('v_lshlrev_b32 v%d, 2, v%d' % (t + 8, t + 8))
    p('v_xor_b32 v%d, v%d, v%d' % (t + 8, t + 8, t + 1))
    p('v_lshl_add_u32 v%d, v%d, 4, v%d' % (vD2, t + 8, t + 7))
    p('s_cmp_lt_u32 s%d, 2' % sCG)
    p('s_cselect_b64 vcc, -1, 0')
    p('v_add_u32 v%d, %d, v%d' % (vD2 + 1, 8 * 3072 - 1024, vD2))
    p('v_cndmask_b32 v%d, v%d, v%d, vcc' % (vD2, vD2, vDS))
    p('v_cndmask_b32 v%d, v%d, v%d, vcc' % (vD2 + 1, vD2 + 1, vDS + 1))
    p('s_mul_i32 s60, s%d, %d' % (sRB, 128 * 1280))
    p('s_mul_i32 s61, s%d, %d' % (sG, 32 * 1280))
    p('s_lshl_b32 s42, s%d, 7' % sQ); p('s_max_i32 s42, s42, 0')
    p('s_lshl_b32 s43, s%d, 13' % sWV)
    p.wait(lg='all')
    if opt.get('echo'): p('s_mov_b32 s0, s64')
    if opt.get('stamps'):
        p('v_writelane_b32 v%d, s66, 0' % vST); p('v_writelane_b32 v%d, s68, 1' % vST); st.names += ['rt0', 'start']; st.n = 2
    st('karg')
    srd(p, rX, sX, 128 * 1280, 's60')
    p('s_cmp_lt_u32 s%d, 2' % sWV)
    p('s_cselect_b32 s66, s%d, s%d' % (sBRE, sBIM)); p('s_cselect_b32 s67, s%d, s%d' % (sBRE + 1, sBIM + 1))
    p('s_add_u32 s66, s66, s61'); p('s_addc_u32 s67, s67, 0')
    p('s_add_u32 s%d, s%d, s42' % (rP0, sW1)); p('s_addc_u32 s%d, s%d, 0' % (rP0 + 1, sW1 + 1))
    p('s_sub_u32 s%d, %d, s42' % (rP0 + 2, 640 * 3072))
    p('s_cmp_lt_u32 s%d, 2' % sCG)
    p('s_cselect_b32 s%d, s66, s%d' % (rP0, rP0)); p('s_cselect_b32 s%d, s67, s%d' % (rP0 + 1, rP0 + 1))
    p('s_cselect_b32 s%d, %d, s%d' % (rP0 + 2, 64 * 1280, rP0 + 2)); p('s_mov_b32 s%d, 0x20000' % (rP0 + 3))
    p('s_mov_b32 s60, %d' % (128 - 2048)); p('s_cselect_b32 s60, %d, s60' % (32 * 1280 - 2048)); p('s_ashr_i32 s61, s60, 31')
    p('s_add_u32 s%d, s%d, s60' % (rP1, rP0)); p('s_addc_u32 s%d, s%d, s61' % (rP1 + 1, rP0 + 1)); p('s_sub_u32 s%d, s%d, s60' % (rP1 + 2, rP0 + 2))
    p('s_mov_b32 s%d, 0x20000' % (rP1 + 3))
    p('s_mov_b64 %s, s[66:67]' % S2(sSB))
    for x in dma_stage(0): put(x)
    for x in sigma(1): p(x)
    a = 52
    p('v_lshl_add_u32 v%d, v%d, 5, v%d' % (a, vWAVE, vLANE))
    p('v_min_u32 v%d, 119, v%d' % (a, a))
    p('v_lshlrev_b32 v%d, 4, v%d' % (a + 1, a))
    p('s_lshl_b32 s60, s%d, 6' % sG)
    p('v_and_b32 v%d, 0x70, v%d' % (a + 2, a + 1)); p('v_add_u32 v%d, s60, v%d' % (a + 2, a + 2)); p('v_min_u32 v%d, 1264, v%d' % (a + 2, a + 2))
    p('v_mov_b32 v%d, s%d' % (a + 4, sLRE)); p('v_mov_b32 v%d, s%d' % (a + 5, sLRE + 1))
    for lim, sb, off in ((8, sLIM, None), (16, sLDT, None), (24, sB1, 's42'), (40, sGATE, 0)):
        p('v_cmp_le_u32 vcc, %d, v%d' % (lim, a))
        p('v_mov_b32 v%d, s%d' % (a + 6, sb)); p('v_mov_b32 v%d, s%d' % (a + 7, sb + 1))
        if off is not None:
            p('v_subrev_u32 v%d, %d, v%d' % (a + 3, 16 * lim, a + 1))
            if off: p('v_add_u32 v%d, %s, v%d' % (a + 3, off, a + 3))
            p('v_cndmask_b32 v%d, v%d, v%d, vcc' % (a + 2, a + 2, a + 3))
        p('v_cndmask_b32 v%d, v%d, v%d, vcc' % (a + 4, a + 4, a + 6)); p('v_cndmask_b32 v%d, v%d, v%d, vcc' % (a + 5, a + 5, a + 7))
    p('v_mov_b32 v%d, 0' % (a + 3))
    p('s_lshl_b32 s60, s%d, 9' % sWV); p('s_add_u32 m0, s60, %d' % SMO)
    p('v_lshl_add_u64 v[%d:%d], v[%d:%d], 0, v[%d:%d]' % (a + 4, a + 5, a + 2, a + 3, a + 4, a + 5))
    p('s_mov_b32 exec_hi, 0')
    p('global_load_lds_dwordx4 v[%d:%d], off' % (a + 4, a + 5), tag='st0')
    p('s_mov_b64 exec, -1')
    srd(p, rWS, sWS, WS_USED)
    l = p.newlabel('L_nn')
    p('s_or_b32 s64, s64, 1')
    p('v_mov_b32 v%d, 0' % vZ)
    p('s_or_b32 s60, s2, s%d' % sWV)
    p('s_cmp_lg_u32 s60, 0')
    p('s_cbranch_scc1 ' + l)
    p('v_mov_b32 v%d, s64' % a)
    p('s_mov_b64 exec, 1')
    p('global_store_dword v%d, v%d, %s sc1' % (vZ, a, S2(sDBG)), optional=True)
    p('s_mov_b64 exec, -1')
    p.label(l)
    sig = []
    for i in range(2, 10): sig += sigma(i)
    for x in sprinkle(addr_setup() + sig, dma_stage(1), 12): put(x)
    sidejob_setup(p)
    p('s_cmp_lt_u32 s%d, 2' % sCG)
    st('issued')
    p('s_cbranch_scc1 L_typeA')
    save = (list(p.vm), list(p.lg), p.smem, st.n, st.pending); seen0 = set(p.seen)
    body(p, 'B', opt, st)
    names1 = list(st.names)
    p('s_branch L_end')
    p.label('L_typeA')
    p.vm, p.lg, p.smem, st.n, st.pending = list(save[0]), list(save[1]), save[2], save[3], save[4]
    st.names = st.names[:st.n]; p.seen = seen0
    body(p, 'A', opt, st)
    p.namesA = list(st.names); st.names = names1
    p.label('L_end')
    p('s_endpgm')
    p.finalize(opt.get('verbose'))
    return p, dict(A=p.namesA, B=st.names)

def addr_setup():
    n_, h_ = vN, vHH
    r = ['v_and_b32 v%d, 31, v%d' % (n_, vLANE), 'v_lshrrev_b32 v48, 1, v%d' % n_, 'v_and_b32 v48, 7, v48',
         'v_xor_b32 v48, v48, v%d' % h_, 'v_lshlrev_b32 v49, 7, v%d' % n_, 'v_add_u32 v49, s43, v49',
         'v_lshrrev_b32 v50, 4, v%d' % n_, 'v_lshlrev_b32 v50, 13, v50', 'v_and_b32 v51, 15, v%d' % n_, 'v_lshl_add_u32 v50, v51, 7, v50']
    for s in range(4):
        r += ['v_xor_b32 v51, %d, v48' % (2 * s), 'v_lshl_add_u32 v%d, v51, 4, v49' % (vRX + s), 'v_lshl_add_u32 v%d, v51, 4, v50' % (vRS + s),
              'v_add_u32 v%d, 0x10000, v%d' % (vRX + 4 + s, vRX + s), 'v_add_u32 v%d, 0x10000, v%d' % (vRS + 4 + s, vRS + s)]
    r += ['v_bfe_u32 v48, v%d, 2, 2' % vLANE, 'v_lshl_add_u32 v49, v%d, 3, v48' % h_, 'v_lshlrev_b32 v49, 7, v49',
          'v_lshrrev_b32 v50, 1, v48', 'v_lshl_add_u32 v49, v50, 6, v49', 'v_and_b32 v50, 1, v%d' % vLANE,
          'v_lshl_add_u32 v49, v50, 5, v49', 'v_bfe_u32 v50, v%d, 4, 1' % vLANE, 'v_lshl_add_u32 v49, v50, 4, v49',
          'v_bfe_u32 v50, v%d, 1, 1' % vLANE, 'v_lshl_add_u32 v%d, v50, 3, v49' % vRF, 'v_xor_b32 v%d, 64, v%d' % (vRF + 1, vRF),
          'v_add_u32 v%d, 0x10000, v%d' % (vRF + 2, vRF), 'v_add_u32 v%d, 0x10000, v%d' % (vRF + 3, vRF + 1)]
    r += ['s_lshl_b32 s62, s%d, 3' % sHF, 's_add_u32 s62, s62, s%d' % sCG, 's_lshl_b32 s%d, s62, 3' % sFL, 's_lshl_b32 s62, s62, 2',
          's_and_b32 s65, s%d, 1' % sWV, 's_lshl_b32 s65, s65, 1', 's_add_u32 s62, s62, s65', 's_lshl_b32 s65, s65, 1', 's_add_u32 s%d, s%d, s65' % (sFL, sFL),
          's_lshr_b32 s65, s%d, 1' % sWV, 's_lshl_b32 s66, s65, 6', 's_add_u32 s62, s62, s66',
          's_lshl_b32 s66, s%d, 1' % sRB, 's_add_u32 s65, s65, s66', 's_mul_i32 s64, s65, %d' % HID_RT,
          's_lshl_b32 s65, s65, 10', 's_add_u32 s%d, s%d, s65' % (sFL, sFL), 's_add_u32 s%d, s%d, %d' % (sFL, sFL, WS_FL + 8192),
          's_and_b32 s65, s%d, 1' % sWV, 's_lshl_b32 s65, s65, 11', 's_add_u32 s64, s64, s65',
          'v_add_u32 v48, s62, v%d' % h_, 's_lshl_b32 s62, s%d, 7' % sRB, 'v_add_lshl_u32 v%d, v48, s62, 3' % (vGA + 9),
          'v_bfe_u32 v49, v48, 2, 2', 'v_bfe_u32 v50, v48, 4, 1', 'v_lshl_add_u32 v49, v49, 1, v50',
          'v_and_b32 v50, 3, v48', 'v_lshl_add_u32 v49, v49, 2, v50',
          'v_lshrrev_b32 v48, 5, v48', 'v_lshlrev_b32 v48, 13, v48', 'v_lshl_add_u32 v48, v49, 7, v48',
          'v_bfe_u32 v49, v49, 1, 3', 'v_lshrrev_b32 v50, 2, v%d' % n_, 'v_xor_b32 v49, v49, v50',
          'v_lshl_add_u32 v48, v49, 4, v48', 'v_and_b32 v49, 3, v%d' % n_, 'v_lshl_add_u32 v%d, v49, 2, v48' % vGA,
          'v_add_u32 v%d, 0x10000, v%d' % (vGA + 1, vGA), 'v_lshlrev_b32 v%d, 2, v%d' % (vGA + 2, n_),
          'v_add_u32 v%d, %d, v%d' % (vGA + 2, SMO + 640, vGA + 2), 'v_mov_b32 v%d, 0' % (vGA + 8),
          's_lshr_b32 s62, s43, 1', 'v_lshlrev_b32 v%d, 4, v%d' % (vL16, vLANE)]
    return r

def sidejob_setup(p):
    D = sSJD
    for x in ['s_lshl_b32 s40, s2, 1', 's_add_u32 s40, s40, s%d' % sWV,
              's_cmp_lt_u32 s2, 240', 's_cselect_b32 s%d, 1, 0' % sSJK, 's_cmp_lt_u32 s%d, 2' % sWV, 's_cselect_b32 s%d, s%d, 0' % (sSJK, sSJK),
              's_mul_i32 s41, s40, 6554', 's_lshr_b32 s41, s41, 16',
              's_mul_i32 s65, s41, 10', 's_sub_u32 s65, s40, s65',
              's_mul_i32 s%d, s41, %d' % (sSJO, 32 * 1280), 's_lshl_b32 s60, s65, 7', 's_add_u32 s%d, s%d, s60' % (sSJO, sSJO),
              's_lshl_b32 s65, s65, 2',
              's_bfe_u32 s60, s41, 0x10001', 's_mul_i32 s60, s60, 24', 's_and_b32 s61, s41, 1', 's_add_u32 s60, s60, s61',
              's_lshr_b32 s41, s41, 2', 's_lshl_b32 s41, s41, 1', 's_add_u32 s41, s41, s60', 's_mul_i32 s41, s41, 5120',
              's_add_u32 s41, s41, %d' % WS_W2P,
              's_mov_b32 s%d, s%d' % (rSJ, sW2), 's_mov_b32 s%d, s%d' % (rSJ + 1, sW2 + 1), 's_mov_b32 s%d, %d' % (rSJ + 2, 1536 * 1280),
              's_mov_b32 s%d, 0x20000' % (rSJ + 3)]: p(x)
    for e in range(4):
        p('s_add_u32 s60, s65, %d' % e); p('s_mul_i32 s61, s60, 52'); p('s_lshr_b32 s61, s61, 8')
        p('s_mul_i32 s%d, s61, %d' % (D + e, W2P_CT - 5 * 1024)); p('s_lshl_b32 s60, s60, 10')
        p('s_add_u32 s%d, s%d, s60' % (D + e, D + e)); p('s_add_u32 s%d, s%d, s41' % (D + e, D + e))
    p('v_lshrrev_b32 v48, 3, v%d' % vLANE); p('v_mul_u32_u24 v48, 1280, v48'); p('v_and_b32 v49, 7, v%d' % vLANE)
    p('v_lshl_add_u32 v%d, v49, 4, v48' % vDJ)
    for i in range(1, 4): p('v_add_u32 v%d, %d, v%d' % (vDJ + i, i * (8 * 1280 - 1024), vDJ))

def late_setup():
    n_, h_ = vN, vHH
    return ['v_bfe_u32 v48, v%d, 2, 1' % n_, 'v_lshlrev_b32 v48, 10, v48',
            'v_lshl_add_u32 v48, v%d, 9, v48' % h_, 'v_lshrrev_b32 v49, 3, v%d' % n_, 'v_lshl_add_u32 v48, v49, 6, v48',
            'v_and_b32 v49, 3, v%d' % n_, 'v_lshl_add_u32 v%d, v49, 4, v48' % vSTF,
            'v_lshlrev_b32 v%d, 3, v%d' % (vEXA + 1, n_), 'v_lshl_add_u32 v48, v%d, 1, v%d' % (vWAVE, h_),
            'v_lshl_add_u32 v%d, v48, 8, v%d' % (vEXA, vEXA + 1),
            's_add_u32 s6, s43, %d' % TRO,
            'v_lshlrev_b32 v48, 10, v%d' % h_, 'v_lshl_add_u32 v48, v%d, 4, v48' % n_, 'v_add_u32 v%d, s6, v48' % vTW,
            'v_xor_b32 v%d, 0x240, v%d' % (vTW + 1, vTW),
            'v_lshrrev_b32 v48, 4, v%d' % vLANE, 'v_lshlrev_b32 v48, 7, v48', 'v_bfe_u32 v49, v%d, 2, 2' % vLANE,
            'v_lshl_add_u32 v48, v49, 4, v48', 'v_and_b32 v49, 1, v%d' % vLANE, 'v_lshl_add_u32 v48, v49, 3, v48',
            'v_bfe_u32 v49, v%d, 1, 1' % vLANE, 'v_mul_u32_u24 v49, 0x240, v49', 'v_add_u32 v48, v48, v49',
            'v_add_u32 v%d, s6, v48' % (vTW + 2), 'v_xor_b32 v%d, 64, v%d' % (vTW + 3, vTW + 2),
            's_sub_u32 s6, s%d, 1' % sRB, 'v_sub_u32 v48, s6, v%d' % h_, 'v_lshlrev_b32 v48, 9, v48',
            'v_lshl_add_u32 v%d, v%d, 4, v48' % (vEO, n_),
            's_lshr_b32 s6, s%d, 2' % sRB, 's_lshl_b32 s6, s6, 3', 's_and_b32 s7, s3, 7', 's_add_u32 s%d, s6, s7' % sRT,
            's_lshl_b32 s6, s%d, 2' % sHF, 's_lshr_b32 s7, s3, 3', 's_add_u32 s%d, s6, s7' % sCT,
            's_sub_u32 s6, s%d, s%d' % (sCT, sRT), 's_and_b32 s6, s6, 3', 's_lshl_b32 s6, s6, 3', 's_or_b32 s%d, s6, 0x80000' % sSEL,
            'v_mul_u32_u24 v%d, 5120, v%d' % (vB, vWAVE), 'v_add_u32 v%d, v%d, v%d' % (vB, vB, vL16), 'v_add_u32 v%d, 0x1000, v%d' % (vB + 1, vB),
            'v_lshl_add_u32 v%d, v%d, 12, v%d' % (vA, vWAVE, vL16),
            's_lshl_b32 s6, s%d, 3' % sRT, 's_add_u32 s6, s6, s%d' % sCT, 's_lshl_b32 s6, s6, 7', 's_add_u32 s6, s6, %d' % (WS_FL + 8192),
            'v_lshl_add_u32 v%d, v%d, 2, s6' % (vFP, n_), 'v_lshlrev_b32 v%d, 7, v%d' % (vMB, vLANE)]

def c_setup():
    return ['v_lshrrev_b32 v48, 3, v%d' % vLANE, 'v_mul_u32_u24 v48, 1280, v48', 'v_and_b32 v49, 7, v%d' % vLANE, 'v_lshrrev_b32 v50, 4, v%d' % vLANE,
            'v_xor_b32 v49, v49, v50', 'v_lshl_add_u32 v%d, v49, 4, v48' % vDC, 'v_xor_b32 v%d, 64, v%d' % (vDC + 1, vDC),
            'v_add_u32 v%d, %d, v%d' % (vDC + 1, 8 * 1280 - 1024, vDC + 1),
            'v_and_b32 v48, 15, v%d' % vLANE, 'v_lshrrev_b32 v49, 1, v48', 'v_xor_b32 v49, v49, v50', 'v_lshlrev_b32 v49, 4, v49',
            'v_lshl_add_u32 v48, v48, 7, v49', 's_add_u32 s6, s43, %d' % SLOT, 'v_add_u32 v%d, s6, v48' % vRC, 'v_xor_b32 v%d, 64, v%d' % (vRC + 1, vRC),
            'v_add_u32 v%d, %d, v%d' % (vRC + 2, 2 * SLOT, vRC), 'v_add_u32 v%d, %d, v%d' % (vRC + 3, 2 * SLOT, vRC + 1)]

def body(p, ty, opt, st):
    put = p.put
    B = ty == 'B'
    NG = 1 if B else 2
    WS = S4(rWS)
    vWF = 68 if B else 12
    vPAR = 72
    S2OFF = [2 * SLOT, 3 * SLOT, 0]
    DELTA = opt.get('delta', 2)
    def spin(load, check):
        l1, l2 = p.newlabel('L_sp'), p.newlabel('L_sp')
        p('s_mov_b32 s65, 0')
        p.label(l1)
        check(l2)
        p('s_add_u32 s65, s65, 1'); p('s_cmp_gt_u32 s65, %d' % SPIN_MAX); p('s_cbranch_scc1 ' + l2)
        load(True)
        p('s_waitcnt vmcnt(0)'); p('s_branch ' + l1)
        p.label(l2)
    def dma_s2(c):
        r = []
        for sg in range(4 if c < 2 else 2):
            r.append('s_add_u32 m0, s43, %d' % (S2OFF[c] + 2048 * sg))
            r += [('buffer_load_dwordx4 v%d, %s, s%d offen offset:%d lds' % (vDS + i, S4(rS2), SIG + 4 * c + sg, 1024 * i), 's2c%d' % c) for i in range(2)]
        return r
    def s2_srd(): srd(p, rS2, sSB, 32 * 1280)
    def par_reads():
        r = ['v_lshlrev_b32 v48, 1, v%d' % vN, 'v_add_u32 v48, %d, v48' % SMO]
        for g in range(NG):
            r += [('ds_read_u16 v%d, v48 offset:%d' % (vPAR + 3 * g + k, 128 * k + 64 * g), 'par') for k in range(3)]
        return r
    def bias_reads(dst, T):
        return [('ds_read_b128 v[%d:%d], v49 offset:%d' % (dst + 8 * T + 4 * q, dst + 3 + 8 * T + 4 * q, 64 * T + 16 * q), 'b1%d' % T) for q in range(2)]
    def setup(g):
        c = CON[g]; tr, ti = TAB[g], TAB[g] + 16; pr = vPAR + 3 * g
        a, b = 48, 50
        M = S2(sM)
        r = ['v_lshlrev_b32 v%d, 16, v%d' % (pr + k, pr + k) for k in range(3)]
        r += ['v_mul_f32 v%d, %s, v%d' % (a, LOG2E, pr + 2), 'v_exp_f32 v%d, v%d' % (a, a),
              'v_mul_f32 v%d, v%d, v%d' % (c + 4, pr, pr),
              'v_cvt_pk_bf16_f32 v%d, v%d, v%d' % (a, a, a), 'v_lshlrev_b32 v%d, 16, v%d' % (a, a),
              'v_mul_f32 v%d, v%d, v%d' % (a + 1, a, pr + 1), 'v_mul_f32 v%d, v%d, v%d' % (a, a, pr),
              'v_mul_f32 v%d, %s, v%d' % (a + 1, INV2PI, a + 1), 'v_mul_f32 v%d, %s, v%d' % (a, LOG2E, a),
              'v_fract_f32 v%d, v%d' % (a + 1, a + 1), 'v_exp_f32 v%d, v%d' % (a, a),
              'v_cos_f32 v%d, v%d' % (b, a + 1), 'v_sin_f32 v%d, v%d' % (b + 1, a + 1),
              'v_fmac_f32 v%d, v%d, v%d' % (c + 4, pr + 1, pr + 1),
              'v_mul_f32 v%d, v%d, v%d' % (c, a, b), 'v_mul_f32 v%d, v%d, v%d' % (c + 1, a, b + 1),
              'v_rcp_f32 v%d, v%d' % (a, c + 4), 'v_add_f32 v%d, -1.0, v%d' % (b, c),
              'v_mul_f32 v%d, v%d, v%d' % (c + 2, b, pr), 'v_mul_f32 v%d, v%d, v%d' % (c + 3, c + 1, pr),
              'v_fmac_f32 v%d, v%d, v%d' % (c + 2, c + 1, pr + 1), 'v_fma_f32 v%d, -v%d, v%d, v%d' % (c + 3, b, pr + 1, c + 3),
              'v_mul_f32 v%d, v%d, v%d' % (c + 2, c + 2, a), 'v_mul_f32 v%d, v%d, v%d' % (c + 3, c + 3, a),
              'v_mov_b32 v%d, v%d' % (tr, c), 'v_mov_b32 v%d, v%d' % (ti, c + 1)]
        for k in range(1, 16): r += cmul(tr + k, ti + k, tr + k - 1, ti + k - 1, c, c + 1)
        mu = c + 4
        r += ['v_cmp_eq_u32 %s, 1, v%d' % (M, vHH), 'v_mov_b32 v%d, v%d' % (mu, tr + 15), 'v_mov_b32 v%d, v%d' % (mu + 1, ti + 15)]
        r += ['v_cndmask_b32 v%d, 1.0, v%d, %s' % (b, mu, M), 'v_cndmask_b32 v%d, 0, v%d, %s' % (b + 1, mu + 1, M)]
        r += cm(c + 6, c + 2, b) + csq(a, mu)
        r += ['v_cndmask_b32 v%d, 1.0, v%d, s[66:67]' % (b, a), 'v_cndmask_b32 v%d, 0, v%d, s[66:67]' % (b + 1, a + 1)]
        r += cm(c + 12, c + 6, b) + csq(c + 8, a)
        r += ['v_cndmask_b32 v%d, 1.0, v%d, s[68:69]' % (b, c + 8), 'v_cndmask_b32 v%d, 0, v%d, s[68:69]' % (b + 1, c + 9)]
        r += cm(c + 6, c + 12, b) + csq(a, c + 8)
        r += ['v_cndmask_b32 v%d, 1.0, v%d, %s' % (c + 10, a, M), 'v_cndmask_b32 v%d, 0, v%d, %s' % (c + 11, a + 1, M)]
        r += csq(c + 8, a)
        r += ['v_lshl_add_u32 v%d, v%d, 1, v%d' % (c + 14, vWAVE, vHH), 'v_mov_b32 v%d, 0' % (c + 12), 'v_mov_b32 v%d, 0' % (c + 13)]
        return r
    def masks():
        p('s_bitcmp1_b32 s%d, 0' % sWV); p('s_cselect_b64 s[66:67], -1, 0')
        p('s_bitcmp1_b32 s%d, 1' % sWV); p('s_cselect_b64 s[68:69], -1, 0')
    def gate_reads(s):
        sl = s % 4; d = vGA + 4 + 2 * (s & 1)
        return ['v_add_u32 v%d, s%d, v%d' % (vGA + 3, SIG + s, vGA + 2),
                ('ds_read_b32 v%d, v%d offset:%d' % (d, vGA + (sl >> 1), (sl & 1) * SLOT), 'g%d' % s),
                ('ds_read_b32 v%d, v%d' % (d + 1, vGA + 3), 'g%d' % s)]
    def gate_step(s):
        x = vGA + 4 + 2 * (s & 1); w = x + 1; a = vGA + 10; acc = vGA + 8
        return [lambda: p.wait(lg='g%d' % s),
                'v_lshlrev_b32 v%d, 16, v%d' % (a, x), 'v_lshlrev_b32 v%d, 16, v%d' % (a + 1, w),
                'v_and_b32 v%d, 0xffff0000, v%d' % (x, x), 'v_and_b32 v%d, 0xffff0000, v%d' % (w, w),
                'v_mul_f32 v%d, v%d, v%d' % (a, a, a + 1), 'v_mul_f32 v%d, v%d, v%d' % (x, x, w),
                'v_cvt_pk_bf16_f32 v%d, v%d, v%d' % (a, a, x),
                'v_lshlrev_b32 v%d, 16, v%d' % (a + 1, a), 'v_and_b32 v%d, 0xffff0000, v%d' % (a, a),
                'v_add_f32 v%d, v%d, v%d' % (acc, acc, a + 1), 'v_add_f32 v%d, v%d, v%d' % (acc, acc, a)]
    def gate_fin():
        r = []; s = vGA + 8; a = vGA + 10
        for m in ('quad_perm:[1,0,3,2]', 'quad_perm:[2,3,0,1]', 'row_half_mirror', 'row_mirror'):
            r.append('v_add_f32_dpp v%d, v%d, v%d %s row_mask:0xf bank_mask:0xf' % (s, s, s, m))
        r += ['v_mov_b32 v%d, v%d' % (a, s), 'v_permlane16_swap_b32 v%d, v%d' % (a, s), 'v_add_f32 v%d, v%d, v%d' % (s, s, a),
              'v_cvt_pk_bf16_f32 v%d, v%d, v%d' % (s, s, s), 'v_lshlrev_b32 v%d, 16, v%d' % (s, s),
              'v_mul_f32 v%d, 0xbfb8aa3b, v%d' % (s, s), 'v_exp_f32 v%d, v%d' % (s, s), 'v_add_f32 v%d, 1.0, v%d' % (s, s),
              'v_rcp_f32 v%d, v%d' % (s, s), 'v_cvt_pk_bf16_f32 v%d, v%d, v%d' % (s, s, s), 'v_lshlrev_b32 v%d, 16, v%d' % (a, s),
              'v_sub_f32 v%d, 1.0, v%d' % (a + 1, a), 'v_cvt_pk_bf16_f32 v%d, v%d, v%d' % (a + 1, a + 1, a + 1),
              'v_lshlrev_b32 v%d, 16, v%d' % (a + 1, a + 1)]
        def store():
            p('s_mov_b32 s40, %d' % WS_G)
            p('s_mov_b32 exec_lo, 1'); p('s_mov_b32 exec_hi, 1')
            p('buffer_store_dwordx2 v[%d:%d], v%d, %s, s40 offen%s' % (a, a + 1, vGA + 9, WS, SC), tag='gst')
            p('s_mov_b64 exec, -1')
        r.append(store)
        return r
    def sj_if(fn):
        def go():
            l = p.newlabel('L_sj')
            p('s_cmp_eq_u32 s%d, 0' % sSJK); p('s_cbranch_scc1 ' + l)
            fn()
            p.label(l)
        return go
    def sj_dma():
        p('s_add_u32 m0, s62, %d' % XREG)
        for i in range(4): p('buffer_load_dwordx4 v%d, %s, s%d offen offset:%d lds' % (vDJ + i, S4(rSJ), sSJO, 1024 * i), optional=True)
    def sj_read():
        d = 52
        p('s_add_u32 s40, s62, %d' % XREG)
        p('v_lshrrev_b32 v68, 4, v%d' % vLANE); p('v_bfe_u32 v69, v%d, 2, 2' % vLANE)
        p('v_lshl_add_u32 v68, v68, 3, v69'); p('v_lshlrev_b32 v68, 7, v68')
        p('v_and_b32 v69, 3, v%d' % vLANE); p('v_lshl_add_u32 v68, v69, 3, v68'); p('v_add_u32 v68, s40, v68')
        for e in range(4):
            for j in range(2):
                p('ds_read_b64_tr_b16 v[%d:%d], v68 offset:%d' % (d + 4 * e + 2 * j, d + 4 * e + 2 * j + 1, 32 * e + 512 * j), optional=True)
    def sj_store():
        for e in range(4): p('buffer_store_dwordx4 v[%d:%d], v%d, %s, s%d offen%s' % (52 + 4 * e, 55 + 4 * e, vL16, WS, sSJD + e, SC), optional=True)
    def c_prefetch():
        p('s_bitcmp1_b32 s%d, 0' % sWV)
        p('s_cselect_b32 s40, s%d, s%d' % (sCIM, sCRE)); p('s_cselect_b32 s41, s%d, s%d' % (sCIM + 1, sCRE + 1))
        p('s_lshl_b32 s65, s3, 1'); p('s_lshr_b32 s23, s%d, 1' % sWV); p('s_add_u32 s65, s65, s23'); p('s_lshl_b32 s23, s%d, 6' % sHF); p('s_add_u32 s65, s65, s23')
        p('s_mul_i32 s65, s65, 6400')
        p('v_min_u32 v68, 49, v%d' % vLANE); p('v_lshl_add_u32 v68, v68, 7, s65')
        p('global_load_dword v93, v68, s[40:41]', tag='cpf')
    def c_srd():
        p('s_bitcmp1_b32 s%d, 0' % sWV)
        p('s_cselect_b32 s%d, s%d, s%d' % (rC, sCIM, sCRE)); p('s_cselect_b32 s%d, s%d, s%d' % (rC + 1, sCIM + 1, sCRE + 1))
        p('s_mul_i32 s40, s%d, %d' % (sCT, 80 * 1280)); p('s_add_u32 s%d, s%d, s40' % (rC, rC)); p('s_addc_u32 s%d, s%d, 0' % (rC + 1, rC + 1))
        p('s_mov_b32 s%d, %d' % (rC + 2, 80 * 1280)); p('s_mov_b32 s%d, 0x20000' % (rC + 3))
        p('s_lshr_b32 s%d, s%d, 1' % (sSJO, sWV)); p('s_lshl_b32 s%d, s%d, 7' % (sSJO, sSJO))
    DS = opt.get('deltas', 1)
    def sp_lit(pos): return sum(order(5, c, DS)[pos] << (8 * c) for c in range(4))
    def c_dma(q):
        pos, n = divmod(q, 5); pl = q % 16
        r = [lambda: p.wait(lg='cr%d' % (q - 16))] if q >= 16 else []
        r += ['s_add_u32 m0, s43, %d' % (CPL[pl >> 2] + 2048 * (pl & 3))]
        if n == 0: r += ['s_bfe_u32 s23, 0x%x, s%d' % (sp_lit(pos), sSEL), 's_lshl_b32 s23, s23, 8', 's_add_u32 s23, s23, s%d' % sSJO]
        else: r += ['s_add_u32 s23, s23, %d' % (16 * 1280)]
        ld = [('buffer_load_dwordx4 v%d, %s, s23 offen offset:%d lds' % (vDC + i, S4(rC), 1024 * i), 'cd%d' % q) for i in range(2)]
        return [lambda: [put(x) for x in r + ld[:1]], ld[1]]
    def c_read(q, dst=None):
        pl = q % 16; dst = AX + 8 * q if dst is None else dst
        hi, o = {0: (0, 0), 1: (1, SLOT), 2: (0, SLOT), 3: (1, 0)}[pl >> 2]
        rd = [('ds_read_b128 a[%d:%d], v%d offset:%d' % (dst + 4 * gg, dst + 4 * gg + 3, vRC + 2 * hi + gg, o + 2048 * (pl & 3)), 'cr%d' % q) for gg in range(2)]
        return [lambda: (p.wait(vm='cd%d' % q), put(rd[0])), rd[1]]
    def cD(a, b): return [x for q in range(a, b) for x in c_dma(q)]
    def cR(a, b): return [x for q in range(a, b) for x in c_read(q)]
    def nonce_load(o=False): p('global_load_dword v%d, v%d, %s sc1' % (vPOLL, vZ, S2(sDBG)), tag='nonce', optional=o)
    def get_nonce():
        def chk(l2):
            p('v_readfirstlane_b32 s%d, v%d' % (sNON, vPOLL)); p('s_cmp_lg_u32 s%d, 0' % sNON); p('s_cbranch_scc1 ' + l2)
        p.wait(vm='nonce'); spin(nonce_load, chk)
        p('v_mov_b32 v47, s%d' % sNON)
    def w2_signal():
        l = p.newlabel('L_ws')
        p('s_cmp_lg_u32 s%d, 0' % sWV); p('s_cbranch_scc1 ' + l)
        p('s_lshl_b32 s40, s2, 2'); p('s_add_u32 s40, s40, %d' % WS_FL); p('v_lshlrev_b32 v68, 10, v%d' % vLANE); p('s_mov_b64 exec, 0xff')
        p('buffer_store_dword v47, v68, %s, s40 offen%s' % (WS, SC), optional=True)
        p('s_mov_b64 exec, -1')
        p.label(l)
    def signal(level, tags):
        def go():
            p.wait(vm=tags)
            p('s_add_u32 s65, s%d, %d' % (sFL, 32768 * level)); p('s_mov_b64 exec, 0xff')
            p('buffer_store_dword v47, v%d, %s, s65 offen%s' % (vMB, WS, SC), tag='flag')
            p('s_mov_b64 exec, -1')
        return go
    def fl_load(level):
        if level == 'W':
            p('s_and_b32 s40, s2, 7'); p('s_lshl_b32 s40, s40, 10'); p('s_add_u32 s40, s40, %d' % WS_FL)
            p('buffer_load_dwordx4 v[%d:%d], v%d, %s, s40 offen sc1' % (vWF, vWF + 3, vL16, WS), optional=True)
        else:
            p('s_mov_b32 s40, %d' % (32768 * level))
            p('buffer_load_dword v%d, v%d, %s, s40 offen sc1' % (vPOLL, vFP, WS), optional=True)
    def wave0(fn):
        l = p.newlabel('L_w0')
        p('s_cmp_lg_u32 s%d, 0' % sWV); p('s_cbranch_scc1 ' + l)
        fn()
        p.label(l)
    def fl_issue(level):
        def go():
            wave0(lambda: fl_load(level))
            p.marks[level] = p.total_vm()
        return go
    def fl_check(level, bar=True):
        def chk(l2):
            if level == 'W':
                for k in range(4): p('v_xor_b32 v%d, s%d, v%d' % (vWF + k, sNON, vWF + k))
                p('v_or3_b32 v%d, v%d, v%d, v%d' % (vWF, vWF, vWF + 1, vWF + 2)); p('v_or_b32 v%d, v%d, v%d' % (vWF, vWF, vWF + 3))
                p('v_cmp_ne_u32 vcc, 0, v%d' % vWF); p('s_cbranch_vccz ' + l2)
            else:
                p('v_cmp_ne_u32 vcc, s%d, v%d' % (sNON, vPOLL))
                p('s_and_b32 s40, vcc_lo, %s' % ('0xfff0fff0' if level == 0 else '-1')); p('s_cbranch_scc0 ' + l2)
        def body_():
            p('s_waitcnt vmcnt(%d)' % min(63, p.total_vm() - p.marks[level]))
            spin(lambda o: fl_load(level), chk)
        def go():
            wave0(body_)
            if bar: p('s_barrier')
        return go
    def rnd_lit(i):
        if i >= 12: return sum((12 + 2 * order(5, c, DS)[(i - 12) >> 1] + (i & 1)) << (8 * c) for c in range(4))
        for o, n in PARTS:
            if o <= i < o + n: return sum((o + order(n, c, DELTA)[i - o]) << (8 * c) for c in range(4))
    def b_reg(i, n):
        if i < 12: return ('a', 208 + 20 * (i % 3) + 4 * n) if i % 3 < 2 else ('v', 12 + 4 * n)
        pos, gg = divmod(i - 12, 2)
        return 'a', AX + 8 * (5 * (pos % 4) + n) + 4 * gg
    def b_loads(i):
        r = ['s_bfe_u32 s61, 0x%x, s%d' % (rnd_lit(i), sSEL), 's_mul_i32 s61, s61, 20480']
        for n in range(5):
            k, b = b_reg(i, n)
            r.append(('buffer_load_dwordx4 %s[%d:%d], v%d, %s, s61 offen%s sc1' % (k, b, b + 3, vB + (n >> 2), S4(rW2P), ' offset:%d' % (1024 * n) if n < 4 else ''), 'B%d' % i))
        return r
    def a_loads(i):
        b = AH + 16 * (i % 3)
        r = ['s_bfe_u32 s60, 0x%x, s%d' % (rnd_lit(i), sSEL), 's_lshl_b32 s60, s60, 14']
        r += [('buffer_load_dwordx4 a[%d:%d], v%d, %s, s60 offen offset:%d sc1' % (b + 4 * m, b + 4 * m + 3, vA, S4(rHID), 1024 * m), 'A%d' % i) for m in range(4)]
        return r
    def hid_srd():
        p('s_mul_i32 s40, s%d, %d' % (sRT, HID_RT)); srd(p, rHID, sWS, HID_RT, 's40')
        p('s_mul_i32 s40, s%d, %d' % (sCT, W2P_CT)); p('s_add_u32 s40, s40, %d' % WS_W2P); srd(p, rW2P, sWS, W2P_CT, 's40')
    def reads1(k):
        s, ks = divmod(k, 4); sl = s % 4; hi = 4 * (sl >> 1); o = (sl & 1) * SLOT
        w = AW + 16 * (k % 3); tg = 'k%d' % k
        r = [('ds_read_b128 a[%d:%d], v%d offset:%d' % (AX + 4 * k, AX + 4 * k + 3, vRX + hi + ks, o), tg)]
        for T in range(4):
            if B:
                for j in range(2):
                    r.append(('ds_read_b64_tr_b16 a[%d:%d], v%d offset:%d' % (w + 4 * T + 2 * j, w + 1 + 4 * T + 2 * j, vRF + (hi >> 1) + (T & 1),
                                                                          o + ks * 8192 + 4096 + 2048 * (T >> 1) + 512 * j), tg))
            else:
                r.append(('ds_read_b128 a[%d:%d], v%d offset:%d' % (w + 4 * T, w + 4 * T + 3, vRS + hi + ks, o + 4096 + 2048 * (T >> 1) + 16384 * (T & 1)), tg))
        return r
    L2 = opt.get('lead2', 5); NB2 = L2 + 1
    def reads2(m):
        k, T = divmod(m, 2); s, ks = divmod(k, 4); c, sg = divmod(s, 4)
        w = AW2 + 4 * (m % NB2)
        return [('ds_read_b128 a[%d:%d], v%d offset:%d' % (w, w + 3, vRS + 4 * (S2OFF[c] >> 16) + ks, (S2OFF[c] & 0xffff) + 16384 * T + 2048 * sg), 'm%d' % m)]
    mf = 'v_mfma_f32_32x32x16_bf16 v[%d:%d], a[%d:%d], a[%d:%d], %s'
    def mfma1(k, T):
        x = AX + 4 * k; f = AW + 16 * (k % 3) + 4 * T
        if B: a = FAC + 16 * T; return mf % (a, a + 15, f, f + 3, x, x + 3, 'v[%d:%d]' % (a, a + 15))
        a = SAC[T >> 1] + 16 * (T & 1)
        return mf % (a, a + 15, x, x + 3, f, f + 3, 'v[%d:%d]' % (a, a + 15) if k else '0')
    def mfma2(m):
        k, T = divmod(m, 2); x = AX + 4 * k; a = SAC[0] + 16 * T; f = AW2 + 4 * (m % NB2)
        return mf % (a, a + 15, x, x + 3, f, f + 3, 'v[%d:%d]' % (a, a + 15) if k else '0')
    LOOK = opt.get('look', 3); SJS = opt.get('sjs', 2)
    def sync1(s):
        p.wait(vm='st%d' % s, lg='all' if (LOOK == 3 and s) else None); p('s_barrier')
        r = []
        if s == 0 and LOOK == 3: r += dma_stage(2)
        if s + LOOK < 10: r += dma_stage(s + LOOK)
        elif B: r += dma_s2(s + LOOK - 10)
        return r
    def scanA1(g):
        c = CON[g]; re, im = SAC[g], SAC[g] + 16
        r = []
        for k in range(1, 16): r += cfma(re + k, im + k, c, re + k - 1, im + k - 1)
        r += ['v_mov_b32 v%d, v%d' % (48 + 2 * g, re + 15), 'v_mov_b32 v%d, v%d' % (49 + 2 * g, im + 15),
              ('ds_write_b64 v%d, v[%d:%d] offset:%d' % (vEXA, 48 + 2 * g, 49 + 2 * g, EXO + 8192 * g), 'ex')]
        return r
    def scanA2(g):
        c = CON[g]; re, im = SAC[g], SAC[g] + 16; be = P2(c + 2)
        r = []
        for k in range(0, 16, 2):
            tt = 48 + (k & 2)
            r += ['v_pk_mul_f32 %s, %s, %s op_sel:[1,0] op_sel_hi:[1,1]' % (P2(tt), be, P2(re + k)),
                  'v_pk_mul_f32 %s, %s, %s op_sel:[0,0] op_sel_hi:[0,1]' % (P2(re + k), be, P2(re + k)),
                  'v_pk_fma_f32 %s, %s, %s, %s op_sel:[1,0,0] op_sel_hi:[1,1,1] neg_lo:[1,0,0] neg_hi:[1,0,0]' % (P2(re + k), be, P2(im + k), P2(re + k)),
                  'v_pk_fma_f32 %s, %s, %s, %s op_sel:[0,0,0] op_sel_hi:[0,1,1]' % (P2(im + k), be, P2(im + k), P2(tt))]
        return r
    def ex_reads(g, e):
        return [('ds_read_b64 v[%d:%d], v%d offset:%d' % (e + 2 * k, e + 2 * k + 1, vEXA + 1, EXO + 8192 * g + 256 * k), 'exr%d' % g) for k in range(8)]
    def ex_prefix(g, e, pk):
        c = CON[g]; r = []
        for k in range(1, 8):
            r += pcfma(e + 2 * k, c + 4, e + 2 * k - 2) if pk else cfma(e + 2 * k, e + 2 * k + 1, c + 4, e + 2 * k - 2, e + 2 * k - 1)
        return r
    def ex_pub(g, e):
        def pub():
            p('v_mov_b32 v%d, v47' % (e + 16)); p('v_mov_b32 v%d, v47' % (e + 17))
            p('s_add_u32 s40, s%d, %d' % (sG, g)); p('s_lshl_b32 s40, s40, 4'); p('s_add_u32 s40, s40, s%d' % sRB); p('s_lshl_b32 s40, s40, 9')
            p('s_add_u32 s40, s40, %d' % WS_E)
            p('s_lshl_b32 s41, s%d, 3' % sWV); p('s_lshl_b32 exec_lo, 0xff, s41'); p('s_mov_b32 exec_hi, 0')
            p('buffer_store_dwordx4 v[%d:%d], v%d, %s, s40 offen%s' % (e + 14, e + 17, vL16, WS, SC), tag='pub')
            p('s_mov_b64 exec, -1')
        return [pub]
    def ex_own(g, e):
        c = CON[g]; r = []
        for k in range(1, 8):
            r += ['v_cmp_eq_u32 %s, %d, v%d' % (S2(sM + 2 * (k & 1)), k, c + 14)]
            if k > 1: r += ['v_cndmask_b32 v%d, v%d, v%d, %s' % (c + 12 + z, c + 12 + z, e + 2 * k - 4 + z, S2(sM + 2 - 2 * (k & 1))) for z in range(2)]
        r += ['v_cndmask_b32 v%d, v%d, v%d, %s' % (48 + z, c + 12 + z, e + 12 + z, S2(sM + 2)) for z in range(2)]
        return r + cm(c + 12, c + 2, 48)
    def ffn_epi(T, pk=False):
        a = FAC + 16 * T; r = []
        for k in range(0, 16, 2):
            r += ['v_max_f32 v%d, 0, v%d' % (a + k, a + k), 'v_max_f32 v%d, 0, v%d' % (a + k + 1, a + k + 1)]
            if pk: r += ['v_pk_mul_f32 %s, %s, %s' % (P2(a + k), P2(a + k), P2(a + k))]
            else: r += ['v_mul_f32 v%d, v%d, v%d' % (a + k + z, a + k + z, a + k + z) for z in range(2)]
        for k in range(8): r.append('v_cvt_pk_bf16_f32 v%d, v%d, v%d' % (a + k, a + 2 * k, a + 2 * k + 1))
        def stores():
            p('s_lshl_b32 s40, s%d, 12' % sQ); p('s_add_u32 s40, s40, s64'); p('s_add_u32 s40, s40, %d' % (((T & 1) + (24 if T >= 2 else 0)) * 4096))
            for q in range(2):
                p('buffer_store_dwordx4 v[%d:%d], v%d, %s, s40 offen offset:%d%s' % (a + 4 * q, a + 4 * q + 3, vSTF, WS, 256 * q, SC), tag='hf')
        return r + [stores]
    EXP = 84 if B else 52
    def lb_expect():
        r = []
        for k in range(8):
            r += ['v_subrev_u32 v%d, %d, v%d' % (EXP + k, 1024 * k, vEO), 'v_ashrrev_i32 v%d, 31, v%d' % (EXP + k, EXP + k),
                  'v_bfi_b32 v%d, v%d, 0, v47' % (EXP + k, EXP + k)]
        return r
    def lb_loads(g, e, o=False):
        p('s_add_u32 s40, s%d, %d' % (sG, g)); p('s_lshl_b32 s40, s40, 13'); p('s_add_u32 s40, s40, %d' % WS_E)
        srd(p, rE, sWS, 8192, 's40')
        for k in range(8):
            if k: p('v_subrev_u32 v48, %d, v%d' % (1024 * k, vEO))
            p('buffer_load_dwordx4 v[%d:%d], v%d, %s, 0 offen sc1' % (e[k], e[k] + 3, 48 if k else vEO, S4(rE)), tag='lb%d' % g, optional=o)
    def lb_finish(g, e):
        c = CON[g]
        def chk(l2):
            for k in range(8): p('v_xor_b32 v%d, v%d, v%d' % (e[k] + 2, e[k] + 2, EXP + k))
            p('v_or3_b32 v48, v%d, v%d, v%d' % (e[0] + 2, e[1] + 2, e[2] + 2)); p('v_or3_b32 v49, v%d, v%d, v%d' % (e[3] + 2, e[4] + 2, e[5] + 2))
            p('v_or3_b32 v48, v%d, v%d, v48' % (e[6] + 2, e[7] + 2)); p('v_or_b32 v48, v48, v49')
            p('v_cmp_ne_u32 vcc, 0, v48'); p('s_cbranch_vccz ' + l2)
        p.wait(vm='lb%d' % g); spin(lambda o: lb_loads(g, e, o), chk)
        for k in range(6, -1, -1):
            for x in pcfma(e[k], c + 8, e[k + 1]): put(x)
        for x in pcmul(48, c + 10, e[0]): put(x)
        p('v_mov_b32 v50, v48'); p('v_mov_b32 v51, v49')
        p('v_permlane32_swap_b32 v48, v50'); p('v_permlane32_swap_b32 v49, v51')
        p('v_pk_add_f32 v[48:49], v[48:49], v[50:51]')
        for x in pcfma(c + 12, c + 6, 48): put(x)
    def scanB(g, pk):
        c = CON[g]; tr, ti = TAB[g], TAB[g] + 16; re, im = SAC[g], SAC[g] + 16; cc = P2(c + 12)
        r = []
        for k in range(0, 16, 2):
            if pk:
                r += ['v_pk_fma_f32 %s, %s, %s, %s op_sel:[0,0,0] op_sel_hi:[1,0,1]' % (P2(re + k), P2(tr + k), cc, P2(re + k)),
                      'v_pk_fma_f32 %s, %s, %s, %s op_sel:[0,1,0] op_sel_hi:[1,1,1]' % (P2(im + k), P2(tr + k), cc, P2(im + k)),
                      'v_pk_fma_f32 %s, %s, %s, %s op_sel:[0,1,0] op_sel_hi:[1,1,1] neg_lo:[1,0,0] neg_hi:[1,0,0]' % (P2(re + k), P2(ti + k), cc, P2(re + k)),
                      'v_pk_fma_f32 %s, %s, %s, %s op_sel:[0,0,0] op_sel_hi:[1,0,1]' % (P2(im + k), P2(ti + k), cc, P2(im + k))]
            else:
                for z in (k, k + 1):
                    r += ['v_fmac_f32 v%d, v%d, v%d' % (re + z, tr + z, c + 12), 'v_fmac_f32 v%d, v%d, v%d' % (im + z, tr + z, c + 13),
                          'v_fma_f32 v%d, -v%d, v%d, v%d' % (re + z, ti + z, c + 13, re + z), 'v_fmac_f32 v%d, v%d, v%d' % (im + z, ti + z, c + 12)]
        for part in range(2):
            a = re + 16 * part; ng = '-' if part else ''
            for q in range(2):
                r += ['v_cvt_pk_bf16_f32 v%d, %sv%d, %sv%d' % (a + 8 * q + k, ng, a + 8 * q + 2 * k, ng, a + 8 * q + 2 * k + 1) for k in range(4)]
                r += [('ds_write_b128 v%d, v[%d:%d]' % (vTW + q, a + 8 * q, a + 8 * q + 3), 'tw')]
            r += [('ds_read_b64_tr_b16 v[%d:%d], v%d offset:%d' % (a + 8 * b + 4 + 2 * j, a + 8 * b + 5 + 2 * j, vTW + 2 + j, 1024 * b), 'tr%d' % part) for b in range(2) for j in range(2)]
        def stores(part):
            p('s_add_u32 s41, s%d, %d' % (sG, g)); p('s_lshr_b32 s40, s41, 2'); p('s_lshl_b32 s40, s40, 1'); p('s_and_b32 s65, s41, 1'); p('s_add_u32 s40, s40, s65')
            p('s_lshl_b32 s40, s40, 1'); p('s_bfe_u32 s65, s41, 0x10001'); p('s_add_u32 s40, s40, s65'); p('s_lshl_b32 s40, s40, 13')
            p('s_add_u32 s40, s40, s64'); p('s_add_u32 s40, s40, %d' % ((48 + part) * 4096))
            p.wait(lg='tr%d' % part)
            for b in range(2):
                o = re + 16 * part + 8 * b + 4
                p('buffer_store_dwordx4 v[%d:%d], v%d, %s, s40 offen offset:%d%s' % (o, o + 3, vL16, WS, 1024 * b, SC), tag='hs')
        return r + [lambda: stores(0), lambda: stores(1)]
    if B: p('v_lshlrev_b32 v49, 5, v%d' % vHH); p('v_add_u32 v49, %d, v49' % (SMO + 384))
    pend = sync1(0)
    st('first')
    if B:
        for T in range(4):
            for x in bias_reads(176, T): put(x)
        rd = reads1(0) + reads1(1) + gate_reads(0)
        up = []
        for T in range(4): up += [lambda T=T: p.wait(lg='b1%d' % T)] + unpack(FAC + 16 * T, 176 + 8 * T, 8)
        for x in sprinkle(up, rd, 3): put(x)
    else:
        for x in reads1(0) + reads1(1) + gate_reads(0): put(x)
    for x in par_reads(): put(x)
    fill = [masks, lambda: p.wait(lg='par')]
    for g in range(NG): fill += setup(g)
    fill += late_setup()
    prio = gate_step(0)
    p.marks = {}
    bar = lambda s_: 16 * s_ - 8
    def chk_nopend(): assert not pend
    events = {bar(SJS) - 1: [chk_nopend, sj_if(sj_dma)] + ([s2_srd] if B else []), bar(SJS + LOOK) + 2: [sj_if(sj_read)], bar(SJS + LOOK + 1) + 2: [sj_if(sj_store)],
              28: [nonce_load], bar(9) + 2: [get_nonce, w2_signal]}
    if opt.get('cpf', 0): events[bar(opt.get('cpf')) - 1] = [c_prefetch]
    assert LOOK == 3 and SJS <= 2
    nslots = 240 if B else 160
    GAP = opt.get('gap', 6)
    if B:
        fill2 = ffn_epi(0) + ffn_epi(1) + ffn_epi(2) + ffn_epi(3) + [lambda: st('fst'), hid_srd] + lb_expect()
        events[opt.get('wpoll', 224)] = [fl_issue('W')]
        cq = cD(0, 16); ncq = 0
    rd = []
    for i in range(nslots):
        if i < 160:
            k, T = divmod(i, 4)
            if T == 0:
                if k + 2 < 40:
                    rd = reads1(k + 2)
                    if (k + 2) % 4 == 0:
                        pend += sync1((k + 2) // 4)
                        rd = gate_reads((k + 2) // 4) + rd; prio += gate_step((k + 2) // 4)
                        if k + 2 == 36: prio += gate_fin()
                p.wait(lg='k%d' % k)
            p(mfma1(k, T))
        else:
            if i == 160:
                for x in prio + fill + c_setup(): put(x)
                st('pass1'); prio = []; fill = fill2
                c_srd()
            if i % 2 == 0: p.wait(lg=['m%d' % (i - 160), 'm%d' % (i - 159)])
            p(mfma2(i - 160))
        budget = GAP
        if opt.get('fine') == 1 and i % 16 == 9 and i < 160: st('s%d' % i)
        if opt.get('fine') == 2 and i % 8 == 0 and i > 160: st('s%d' % i)
        m = i + L2 - 160
        if B and 0 <= m < 80:
            if m in (0, 32, 64): p.wait(vm='s2c%d' % (m // 32), lg='all'); p('s_barrier')
            for x in reads2(m): put(x); budget -= 1
        nrd = -(-len(rd) // (4 - i % 4))
        if i % 16 in (4, 5, 6) and i < 160: nrd = -(-len(rd) // (7 - i % 16))
        for _ in range(nrd): put(rd.pop(0)); budget -= 1
        if pend and (i % 2 == 1 or sum(isinstance(x, tuple) for x in pend) > (23 - i % 16 if i % 16 >= 8 else 7 - i % 16) // 2 + 1):
            while isinstance(pend[0], str): put(pend.pop(0)); budget -= 1
            put(pend.pop(0)); budget -= 1
            while pend and isinstance(pend[0], str): put(pend.pop(0)); budget -= 1
        elif B and i > 160 and i % 2 == 1 and cq and (ncq < 16 or (ncq < 24 and m > 32) or m > 64):
            put(cq.pop(0)); ncq += 1; budget -= 2
        for x in events.pop(i, []): put(x); budget -= 1
        if i < 160:
            if i % 16 >= 13 or i % 16 < 8:
                n = 0
                while prio and budget > 0 and n < 2: put(prio.pop(0)); budget -= 1; n += 1
            want = -(-len(fill) // max(1, 154 - i)) if i >= 2 else 0
            for _ in range(min(want, budget)):
                if fill: put(fill.pop(0))
        elif i > 160:
            while fill and budget > 0: put(fill.pop(0)); budget -= 1
        p.check_depth()
    assert not pend and not rd and not events
    bpre = b_loads(0) + b_loads(1) + b_loads(2)
    extra = {}
    if B:
        assert not cq and not fill
        st('pass2')
        signal(0, 'hf')()
        for x in scanA1(0): put(x)
        fl_check('W', False)()
        p.wait(lg='ex'); p('s_barrier')
        for x in ex_reads(0, 52) + bpre[:4]: put(x)
        p.wait(lg='exr0')
        for x in ex_prefix(0, 52, True) + ex_pub(0, 52): put(x)
        st('pub')
        for x in sprinkle(cR(0, 16) + ex_own(0, 52) + scanA2(0), bpre[4:] + cD(16, 25), 3): put(x)
        e0 = [52 + 4 * k for k in range(8)]
        LBR = opt.get('lbr', 2)
        extra = {LBR: [lambda: lb_loads(0, e0)] + cR(16, 20), LBR + 1: [lambda: (st('lbstart'), lb_finish(0, e0), st('lbdone'))] + scanB(0, False)}
        sigS, geo = LBR + 4, LBR + 4
    else:
        for x in prio + fill + c_setup(): put(x)
        st('pass1')
        c_srd()
        for x in interleave(scanA1(0), scanA1(1)): put(x)
        p.wait(lg='all'); p('s_barrier')
        for x in ex_reads(0, 52) + ex_reads(1, 72) + cD(0, 2): put(x)
        p.wait(lg='exr1')
        for x in interleave(ex_prefix(0, 52, True), ex_prefix(1, 72, True)) + ex_pub(0, 52) + ex_pub(1, 72): put(x)
        st('pub')
        hid_srd()
        fl_issue('W')()
        for x in sprinkle(ex_own(0, 52) + ex_own(1, 72) + lb_expect() + scanA2(0) + scanA2(1), cD(2, 16), 4): put(x)
        e0 = [60 + 4 * k for k in range(8)]
        lb_loads(0, e0)
        fl_check('W')()
        for x in cR(0, 16): put(x)
        st('lbstart')
        lb_finish(0, e0)
        lb_loads(1, e0)
        for x in sprinkle(scanB(0, True), cD(16, 25), 3): put(x)
        lb_finish(1, e0)
        st('lbdone')
        for x in sprinkle(scanB(1, True), bpre, 3): put(x)
        extra = {0: cR(16, 20)}
        sigS, geo = 1, 1
    st('end1')
    fl_issue(0)(); fl_check(0)()
    st('fok')
    for x in a_loads(0) + a_loads(1): put(x)
    phase2(p, opt, st, a_loads, b_loads, b_reg, c_read, signal, fl_issue, fl_check, extra, sigS, geo)

def phase2(p, opt, st, a_loads, b_loads, b_reg, c_read, signal, fl_issue, fl_check, extra, sigS, geo):
    put = p.put
    ACCB, ACCA = 96, 176
    vG, vX, vLR, vOut = 32, 52, 62, 67
    vBias, vCol, vRow, vLW, t = 6, 72, 77, 82, 84
    rXT, rO, rSM = 44, 16, 52
    def geom():
        r = []
        def srds():
            p('s_mul_i32 s40, s%d, 160' % sCT); p('s_mul_i32 s41, s%d, %d' % (sRT, 64 * 1280)); p('s_add_u32 s41, s41, s40')
            srd(p, rXT, sX, 64 * 1280 - 1280 + 160, 's41')
            p('s_lshl_b32 s41, s41, 1')
            srd(p, rO, sOUT, 64 * 2560 - 2560 + 320, 's41')
            p('s_lshl_b32 s41, s%d, 9' % sRT); p('s_add_u32 s41, s41, %d' % WS_G)
            p('s_cmp_eq_u32 s%d, 1' % sWV); p('s_cselect_b32 s65, 256, 0'); p('s_add_u32 s41, s41, s65')
            p('s_cmp_eq_u32 s%d, 2' % sWV)
            p('s_cselect_b32 s%d, s%d, s%d' % (rSM, sDSK, sB2)); p('s_cselect_b32 s%d, s%d, s%d' % (rSM + 1, sDSK + 1, sB2 + 1))
            p('s_cmp_lt_u32 s%d, 2' % sWV)
            p('s_cselect_b32 s%d, s%d, s%d' % (rSM, sWS, rSM)); p('s_cselect_b32 s%d, s%d, s%d' % (rSM + 1, sWS + 1, rSM + 1))
            p('s_cselect_b32 s40, s41, s40')
            p('s_mov_b32 s65, 160'); p('s_cselect_b32 s%d, 256, s65' % (rSM + 2))
            p('s_add_u32 s%d, s%d, s40' % (rSM, rSM)); p('s_addc_u32 s%d, s%d, 0' % (rSM + 1, rSM + 1)); p('s_mov_b32 s%d, 0x20000' % (rSM + 3))
        r.append(srds)
        for i in range(5):
            r += ['v_add_u32 v%d, %d, v0' % (t, 256 * i), 'v_mul_u32_u24 v%d, 0xcccd, v%d' % (t + 1, t), 'v_lshrrev_b32 v%d, 20, v%d' % (t + 1, t + 1),
                  'v_mul_u32_u24 v%d, 20, v%d' % (t + 2, t + 1), 'v_sub_u32 v%d, v%d, v%d' % (t + 2, t, t + 2),
                  'v_mul_u32_u24 v%d, 1280, v%d' % (t + 3, t + 1), 'v_lshl_add_u32 v%d, v%d, 3, v%d' % (t + 3, t + 2, t + 3),
                  ('buffer_load_dwordx2 v[%d:%d], v%d, %s, 0 offen' % (vX + 2 * i, vX + 2 * i + 1, t + 3, S4(rXT)), 'X'),
                  'v_lshlrev_b32 v%d, 1, v%d' % (vOut + i, t + 3), 'v_mul_u32_u24 v%d, 336, v%d' % (vLR + i, t + 1),
                  'v_add_u32 v%d, %d, v%d' % (vLR + i, PB, vLR + i), 'v_lshl_add_u32 v%d, v%d, 4, v%d' % (vLR + i, t + 2, vLR + i),
                  'v_lshl_add_u32 v%d, v%d, 3, s66' % (vCol + i, t + 2), 'v_lshl_add_u32 v%d, v%d, 3, s66' % (vRow + i, t + 1)]
        r += ['v_and_b32 v%d, 15, v%d' % (t, vLANE), 'v_mul_u32_u24 v%d, 336, v%d' % (vLW, t), 'v_lshrrev_b32 v%d, 4, v%d' % (t + 1, vLANE),
              'v_lshl_add_u32 v%d, v%d, 4, v%d' % (vLW, t + 1, vLW), 'v_mul_u32_u24 v%d, %d, v%d' % (t + 1, 64 * 336, vWAVE),
              'v_add_u32 v%d, v%d, v%d' % (vLW, vLW, t + 1), 'v_add_u32 v%d, %d, v%d' % (vLW, PB, vLW),
              'v_lshl_add_u32 v%d, v%d, 3, s66' % (vLW + 1, t), 'v_lshlrev_b32 v%d, 2, v%d' % (48, vLANE)]
        return r
    def sm_dma():
        p('s_lshl_b32 s40, s%d, 8' % sWV); p('s_add_u32 m0, s40, %d' % SM2)
        p('buffer_load_dword v48, %s, 0 offen sc1 lds' % S4(rSM), tag='SM')
    def bias():
        def f_sync(): p.wait(vm=['SM', 'X'], lg='all'); p('s_barrier')
        r = [f_sync]
        r += [('ds_read_b64 v[%d:%d], v%d offset:%d' % (vG + 2 * m, vG + 2 * m + 1, vLW + 1, 128 * m), 'g') for m in range(4)]
        for i in range(5):
            r += [('ds_read_b64 v[%d:%d], v%d' % (t, t + 1, vRow + i), 'c'), ('ds_read_b64 v[%d:%d], v%d offset:512' % (t + 2, t + 3, vCol + i), 'c'),
                  ('ds_read_b64 v[%d:%d], v%d offset:768' % (t + 4, t + 5, vCol + i), 'c')]
            for h in range(2):
                r += ['v_lshlrev_b32 v%d, 16, v%d' % (t + 6 + 2 * h, vX + 2 * i + h), 'v_and_b32 v%d, 0xffff0000, v%d' % (t + 7 + 2 * h, vX + 2 * i + h)]
            r.append(lambda: p.wait(lg='c'))
            for h in range(2):
                r += ['v_lshlrev_b32 v48, 16, v%d' % (t + 2 + h), 'v_and_b32 v49, 0xffff0000, v%d' % (t + 2 + h),
                      'v_lshlrev_b32 v50, 16, v%d' % (t + 4 + h), 'v_and_b32 v51, 0xffff0000, v%d' % (t + 4 + h)]
                for e in range(2):
                    d = vBias + 4 * i + 2 * h + e
                    r += ['v_mul_f32 v%d, v%d, v%d' % (48 + e, 48 + e, t + 6 + 2 * h + e), 'v_mul_f32 v%d, v%d, v%d' % (d, t + 1, 50 + e),
                          'v_fmac_f32 v%d, v%d, v%d' % (d, t, 48 + e)]
        r += ['v_add_f32 v%d, v%d, v%d' % (vG + 2 * m, vG + 2 * m, vG + 2 * m) for m in range(4)]
        for m in range(4):
            for n in range(5):
                r += ['v_mul_f32 v%d, v%d, v%d' % (ACCB + 20 * m + 4 * n + z, vG + 2 * m + 1, ACCB + 20 * m + 4 * n + z) for z in range(4)]
        return r
    p('s_mov_b32 s66, %d' % SM2)
    fill = []
    NS = 22; LA = 2
    for i in range(NS):
        pre = []
        fill += extra.get(i, [])
        if i == sigS: fill += [signal(1, ['hs', 'gst'])]
        if i == geo: fill += geom()
        if i == 9: assert not fill; pre += [fl_issue(1)]
        if i == 10: pre += [fl_check(1), sm_dma]
        if i == 14:
            for n in range(5): fill += c_read(20 + n, AX + 8 * n)
        if i == 15: fill += bias()
        p.wait(vm=['A%d' % i, 'B%d' % i])
        if opt.get('fine') == 3 and i not in (0, 6, 12): st('r%d' % i)
        if i == 0: st('p2first')
        if i == 6: st('p2f1')
        if i == 12: st('p2f2')
        nxt = (a_loads(i + LA) if i + LA < NS else []) + (b_loads(i + 2) if 1 <= i and i + 2 < 12 else [])
        acc = ACCB if i < 12 else ACCA
        first = i in (0, 12)
        bh = AH + 16 * (i % 3)
        k = 0
        for n in range(5):
            for m in range(4):
                a = acc + 20 * m + 4 * n
                bk, bw = b_reg(i, n)
                p('v_mfma_f32_16x16x32_bf16 v[%d:%d], %s[%d:%d], a[%d:%d], %s' % (a, a + 3, bk, bw, bw + 3, bh + 4 * m, bh + 4 * m + 3,
                                                                              '0' if first else 'v[%d:%d]' % (a, a + 3)))
                k += 1
                if k == 1:
                    for x in pre: put(x)
                if k % 2 == 1 and nxt:
                    while isinstance(nxt[0], str): put(nxt.pop(0))
                    put(nxt.pop(0))
                for _ in range(opt.get('fill2', 3) if i < 12 else 2):
                    if fill: put(fill.pop(0))
        assert not nxt
        p.check_depth()
    assert not fill
    st('mainend')
    for n in range(5):
        for m in range(4):
            a = ACCA + 20 * m + 4 * n; bb = ACCB + 20 * m + 4 * n
            for r in (0, 2): p('v_pk_fma_f32 %s, %s, %s, %s op_sel:[0,0,0] op_sel_hi:[0,1,1]' % (P2(bb + r), P2(vG + 2 * m), P2(a + r), P2(bb + r)))
            p('ds_write_b128 v%d, v[%d:%d] offset:%d' % (vLW, bb, bb + 3, m * 16 * 336 + n * 64), tag='w')
    p.wait(lg='all'); p('s_barrier')
    st('red')
    R = ACCA
    for i in range(5):
        for w in range(4):
            p('ds_read_b128 v[%d:%d], v%d offset:%d' % (R + 16 * i + 4 * w, R + 16 * i + 4 * w + 3, vLR + i, w * 64 * 336), tag='r%d' % i)
    for i in range(5):
        p.wait(lg='r%d' % i)
        for r in (0, 2):
            p('v_pk_add_f32 %s, %s, %s' % (P2(R + 16 * i + r), P2(R + 16 * i + r), P2(R + 16 * i + 4 + r)))
            p('v_pk_add_f32 %s, %s, %s' % (P2(R + 16 * i + 8 + r), P2(R + 16 * i + 8 + r), P2(R + 16 * i + 12 + r)))
        for r in (0, 2): p('v_pk_add_f32 %s, %s, %s' % (P2(vBias + 4 * i + r), P2(vBias + 4 * i + r), P2(R + 16 * i + r)))
        for r in (0, 2): p('v_pk_add_f32 %s, %s, %s' % (P2(R + 16 * i + r), P2(vBias + 4 * i + r), P2(R + 16 * i + 8 + r)))
        p('buffer_store_dwordx4 v[%d:%d], v%d, %s, 0 offen%s' % (R + 16 * i, R + 16 * i + 3, vOut + i, S4(rO), opt.get('out_sc', SC)), tag='o')
    st('stored')
    if opt.get('echo'):
        p.wait(vm='all'); st('drained'); p.wait(lg='all', force=True)
        l = p.newlabel('L_echo'); ins = 's_memtime' if opt['echo'] == 'cyc' else 's_memrealtime'
        if opt['echo'] == 'cyc': p('s_mov_b32 s1, 20000')
        else: p('s_sub_u32 s1, s%d, s0' % sST)
        p(ins + ' s[4:5]'); p.wait(lg='all', force=True)
        p.label(l)
        p(ins + ' s[6:7]'); p.wait(lg='all', force=True)
        p('s_sub_u32 s6, s6, s4'); p('s_cmp_lt_u32 s6, s1'); p('s_cbranch_scc1 ' + l)
    if opt.get('stamps'):
        p.wait(vm='all'); st('drained'); st('rt1')
    st.dump(sWS, 60, 48)
```

```python
from emit import Prog
from common import *

LDS_BYTES = 163840
SPIN_MAX = 100000
SLOT = 32768
XREG = 4 * SLOT
SMO = XREG + 28672 + 2048
TRO = 4096
EXO = 6144
SM2 = 2 * 8192 + 6144
PB = 24576
CPL = [SLOT, XREG, 2 * SLOT, 3 * SLOT]
LOG2E = '0x3fb8aa3b'
INV2PI = '0.15915494'
SC = ' sc1'

sX, sLRE, sLIM, sBRE, sBIM, sCRE, sCIM, sLDT = 4, 6, 8, 10, 12, 14, 16, 18
sDSK, sW1, sB1, sW2, sB2, sGATE, sOUT, sDBG, sWS = 20, 24, 26, 28, 30, 32, 34, 36, 38
rX, rP0, rP1, rWS = 44, 48, 52, 56
rE, rHID, rW2P, rSJ, rS2, rC = 44, 48, 8, 8, 92, 92
sSB = 24
sM = 12
SIG = 70
sNON, sHF, sRB, sCG, sG, sQ, sWV, sRT, sCT, sSEL, sFL = 80, 81, 82, 83, 84, 85, 86, 87, 88, 89, 90
sSEL5 = sSEL
sSJO, sSJD, sSJK = 91, 96, 22
sST = 100
vLANE, vWAVE, vHH = 1, 2, 3
vDX, vDS, vD2 = 4, 8, 10
vRX, vRS, vRF = 12, 20, 28
vSTF, vL16, vEXA, vTW, vEO = 32, 33, 34, 36, 40
vDJ = 62
vB, vFP, vA = 41, 43, 44
vZ, vPOLL = 45, 46
vDC, vRC, vWP = 4, 6, 92
vT = 48
vN = 79
vGA = 80
vGW = 52
vST = 95
SAC = [176, 96]
TAB = [208, 128]
CON = [240, 160]
FAC = 96
AX = 0
AW = 160
AW2 = 208
AH = 160
PARTS = [(0, 12)]

def order(n, c, delta):
    return sorted(range(n), key=lambda i: (i - (delta if i % 4 == c else 0), 0 if i % 4 == c else 1))
def P2(r): return 'v[%d:%d]' % (r, r + 1)
def S4(r): return 's[%d:%d]' % (r, r + 3)
def S2(r): return 's[%d:%d]' % (r, r + 1)
def cmul(dr, di, ar, ai, br, bi):
    return ['v_mul_f32 v%d, v%d, v%d' % (dr, ar, br), 'v_mul_f32 v%d, v%d, v%d' % (di, ar, bi),
            'v_fma_f32 v%d, -v%d, v%d, v%d' % (dr, ai, bi, dr), 'v_fmac_f32 v%d, v%d, v%d' % (di, ai, br)]
def cm(d, a, b): return cmul(d, d + 1, a, a + 1, b, b + 1)
def cfma(dr, di, a, br, bi):
    return ['v_fmac_f32 v%d, v%d, v%d' % (dr, a, br), 'v_fmac_f32 v%d, v%d, v%d' % (di, a, bi),
            'v_fma_f32 v%d, -v%d, v%d, v%d' % (dr, a + 1, bi, dr), 'v_fmac_f32 v%d, v%d, v%d' % (di, a + 1, br)]
def pcfma(d, a, b):
    return ['v_pk_fma_f32 %s, %s, %s, %s op_sel:[0,0,0] op_sel_hi:[0,1,1]' % (P2(d), P2(a), P2(b), P2(d)),
            'v_pk_fma_f32 %s, %s, %s, %s op_sel:[1,1,0] op_sel_hi:[1,0,1] neg_lo:[1,0,0]' % (P2(d), P2(a), P2(b), P2(d))]
def pcmul(d, a, b):
    return ['v_pk_mul_f32 %s, %s, %s op_sel:[0,0] op_sel_hi:[0,1]' % (P2(d), P2(a), P2(b)),
            'v_pk_fma_f32 %s, %s, %s, %s op_sel:[1,1,0] op_sel_hi:[1,0,1] neg_lo:[1,0,0]' % (P2(d), P2(a), P2(b), P2(d))]
def csq(d, a):
    return ['v_mul_f32 v%d, v%d, v%d' % (d, a, a), 'v_add_f32 v%d, v%d, v%d' % (d + 1, a, a),
            'v_fma_f32 v%d, -v%d, v%d, v%d' % (d, a + 1, a + 1, d), 'v_mul_f32 v%d, v%d, v%d' % (d + 1, d + 1, a + 1)]
def interleave(*ls):
    out = []; ls = [list(l) for l in ls]
    while any(ls):
        for l in ls:
            if l: out.append(l.pop(0))
    return out
def sprinkle(main, extra, every):
    out = []; extra = list(extra)
    for i, x in enumerate(main):
        out.append(x)
        if i % every == every - 1 and extra:
            while isinstance(extra[0], str): out.append(extra.pop(0))
            out.append(extra.pop(0))
    return out + extra
def unpack(dst, src, n):
    r = []
    for k in range(n):
        r.append('v_lshlrev_b32 v%d, 16, v%d' % (dst + 2 * k, src + k))
        r.append('v_and_b32 v%d, 0xffff0000, v%d' % (dst + 2 * k + 1, src + k))
    return r

def dma_stage(s):
    sl = (s % 4) * SLOT; tg = 'st%d' % s; so = SIG + s
    r = ['s_add_u32 m0, s43, %d' % sl, 's_mul_i32 s61, s%d, s63' % so]
    r += [('buffer_load_dwordx4 v%d, %s, s%d offen offset:%d lds' % (vDX + i, S4(rX), so, 1024 * i), tg) for i in range(4)]
    r += ['s_add_u32 m0, s43, %d' % (sl + 4096)]
    r += [('buffer_load_dwordx4 v%d, %s, s61 offen offset:%d lds' % (vD2 + i, S4(rP0), 1024 * i), tg) for i in range(2)]
    r += [('buffer_load_dwordx4 v%d, %s, s61 offen offset:%d lds' % (vD2 + i, S4(rP1), 1024 * i + 2048), tg) for i in range(2)]
    return r

def gen(name, opt):
    p = Prog()
    st = Stamps(p, sST, vST, opt.get('stamps'))
    st.echo = opt.get('echo')
    def put(x):
        if callable(x): x()
        elif isinstance(x, tuple): p(x[0], tag=x[1])
        else: p(x)
    p.put = put
    p.label(name)
    p('s_cmp_ge_u32 s2, 256')
    p('s_cbranch_scc1 L_end')
    p('s_load_dwordx16 s[4:19], s[0:1], 0')
    p('s_load_dwordx8 s[20:27], s[0:1], 64')
    p('s_load_dwordx8 s[28:35], s[0:1], 96')
    p('s_load_dwordx4 s[36:39], s[0:1], 128')
    p('s_memrealtime s[64:65]')
    if opt.get('stamps'): p('s_memrealtime s[66:67]'); p('s_memtime s[68:69]')
    p('s_lshr_b32 s3, s2, 3')
    code_prefetch(p, 'L_end', 44, 40, 3)
    p('v_and_b32 v%d, 63, v0' % vLANE)
    p('v_lshrrev_b32 v%d, 6, v0' % vWAVE)
    p('s_and_b32 s%d, s2, 7' % sHF)
    p('s_lshr_b32 s40, s%d, 1' % sHF)
    p('s_lshl_b32 s%d, s40, 2' % sRB)
    p('s_and_b32 s41, s3, 3')
    p('v_readfirstlane_b32 s%d, v%d' % (sWV, vWAVE))
    p('s_add_u32 s%d, s%d, s41' % (sRB, sRB))
    p('s_and_b32 s%d, s%d, 1' % (sHF, sHF))
    p('s_lshr_b32 s%d, s3, 2' % sCG)
    p('s_add_u32 s41, s41, s%d' % sCG); p('s_and_b32 s41, s41, 3'); p('s_lshl_b32 s41, s41, 3'); p('s_or_b32 s41, s41, 0x80000')
    p('s_mul_i32 s40, s40, 5'); p('s_add_u32 s40, s40, 1'); p('s_lshr_b32 s40, s40, 1')
    p('s_mul_i32 s60, s%d, 5' % sHF); p('s_add_u32 s40, s40, s60')
    if not opt.get('rot', 1): p('s_mov_b32 s40, 0')
    p('s_sub_u32 s60, s40, 10'); p('s_cmp_ge_u32 s40, 10'); p('s_cselect_b32 s40, s60, s40')
    tabs = [order(10, c, opt.get('d1', 3)) for c in range(4)]
    if opt.get('hyb'): tabs = [[0] + [1 + x for x in order(9, c, opt.get('d1', 3))] for c in range(4)]
    def sigma(i):
        lit = sum(tabs[c][i] << (8 * c) for c in range(4)); s = SIG + i
        return ['s_bfe_u32 s%d, 0x%x, s41' % (s, lit), 's_add_u32 s%d, s%d, s40' % (s, s), 's_sub_u32 s60, s%d, 10' % s,
                's_min_u32 s%d, s60, s%d' % (s, s), 's_lshl_b32 s%d, s%d, 7' % (s, s)]
    for x in sigma(0): p(x)
    p('s_mul_i32 s%d, s%d, 10' % (sG, sHF))
    p('s_lshl_b32 s%d, s%d, 1' % (sQ, sCG))
    p('s_add_u32 s60, s%d, 2' % sCG)
    p('s_cmp_lt_u32 s%d, 2' % sCG)
    p('s_cselect_b32 s60, s%d, s60' % sQ)
    p('s_cselect_b32 s63, 1, 1536')
    p('s_add_u32 s%d, s%d, s60' % (sG, sG))
    p('s_mul_i32 s60, s%d, 12' % sHF)
    p('s_add_u32 s%d, s%d, s60' % (sQ, sQ))
    p('s_sub_u32 s%d, s%d, 4' % (sQ, sQ))
    t = vT
    p('v_lshrrev_b32 v%d, 3, v%d' % (t, vLANE))
    p('v_and_b32 v%d, 7, v%d' % (t + 1, vLANE))
    p('v_lshrrev_b32 v%d, 4, v%d' % (t + 2, vLANE))
    p('v_and_b32 v%d, 3, v%d' % (t + 3, t))
    p('v_lshrrev_b32 v%d, 5, v%d' % (vHH, vLANE))
    p('v_lshl_add_u32 v%d, v%d, 4, v%d' % (t + 3, vHH, t + 3))
    p('v_lshl_add_u32 v%d, v%d, 5, v%d' % (t + 3, vWAVE, t + 3))
    p('v_mul_u32_u24 v%d, 1280, v%d' % (t + 3, t + 3))
    p('v_xor_b32 v%d, v%d, v%d' % (t + 5, t + 1, t + 2))
    p('v_xor_b32 v%d, 4, v%d' % (t + 6, t + 5))
    for i in range(4):
        p('v_lshl_add_u32 v%d, v%d, 4, v%d' % (vDX + i, t + 5 + (i & 1), t + 3))
        if i: p('v_add_u32 v%d, %d, v%d' % (vDX + i, 4096 * i, vDX + i))
    p('v_and_b32 v%d, 1, v%d' % (t + 7, vWAVE))
    p('v_lshl_add_u32 v%d, v%d, 4, v%d' % (t + 7, t + 7, t))
    p('v_mul_u32_u24 v%d, 1280, v%d' % (t + 7, t + 7))
    p('v_lshl_add_u32 v%d, v%d, 4, v%d' % (vDS, t + 5, t + 7))
    p('v_lshl_add_u32 v%d, v%d, 4, v%d' % (vDS + 1, t + 6, t + 7))
    p('v_add_u32 v%d, %d, v%d' % (vDS + 1, 8 * 1280 - 1024, vDS + 1))
    p('v_lshl_add_u32 v%d, v%d, 4, v%d' % (t + 7, vWAVE, t))
    p('v_mul_u32_u24 v%d, 3072, v%d' % (t + 7, t + 7))
    p('v_and_b32 v%d, 1, v%d' % (t + 8, t + 2))
    p('v_lshlrev_b32 v%d, 2, v%d' % (t + 8, t + 8))
    p('v_xor_b32 v%d, v%d, v%d' % (t + 8, t + 8, t + 1))
    p('v_lshl_add_u32 v%d, v%d, 4, v%d' % (vD2, t + 8, t + 7))
    p('s_cmp_lt_u32 s%d, 2' % sCG)
    p('s_cselect_b64 vcc, -1, 0')
    p('v_add_u32 v%d, %d, v%d' % (vD2 + 1, 8 * 3072 - 1024, vD2))
    p('v_cndmask_b32 v%d, v%d, v%d, vcc' % (vD2, vD2, vDS))
    p('v_cndmask_b32 v%d, v%d, v%d, vcc' % (vD2 + 1, vD2 + 1, vDS + 1))
    p('s_lshl_b32 s42, s%d, 7' % sQ); p('s_max_i32 s42, s42, 0')
    p('s_lshl_b32 s43, s%d, 13' % sWV)
    a = 58
    p('v_lshl_add_u32 v%d, v%d, 5, v%d' % (a, vWAVE, vLANE))
    p('v_min_u32 v%d, 119, v%d' % (a, a))
    p('v_lshlrev_b32 v%d, 4, v%d' % (a + 1, a))
    p('s_lshl_b32 s60, s%d, 6' % sG)
    p('v_cmp_le_u32 s[92:93], 8, v%d' % a); p('v_cmp_le_u32 s[94:95], 16, v%d' % a); p('v_cmp_le_u32 s[96:97], 24, v%d' % a); p('v_cmp_le_u32 s[98:99], 40, v%d' % a)
    p('v_and_b32 v%d, 0x70, v%d' % (a + 2, a + 1)); p('v_add_u32 v%d, s60, v%d' % (a + 2, a + 2)); p('v_min_u32 v%d, 1264, v%d' % (a + 2, a + 2))
    p('v_subrev_u32 v%d, %d, v%d' % (a + 3, 16 * 24, a + 1)); p('v_add_u32 v%d, s42, v%d' % (a + 3, a + 3))
    p('v_cndmask_b32 v%d, v%d, v%d, s[96:97]' % (a + 2, a + 2, a + 3))
    p('v_subrev_u32 v%d, %d, v%d' % (a + 3, 16 * 40, a + 1))
    p('v_cndmask_b32 v%d, v%d, v%d, s[98:99]' % (a + 2, a + 2, a + 3))
    p('v_mov_b32 v%d, 0' % (a + 3))
    p('s_mul_i32 s60, s%d, %d' % (sRB, 128 * 1280))
    p('s_mul_i32 s61, s%d, %d' % (sG, 32 * 1280))
    p.wait(lg='all')
    if opt.get('echo'): p('s_mov_b32 s0, s64')
    if opt.get('stamps'):
        p('v_writelane_b32 v%d, s66, 0' % vST); p('v_writelane_b32 v%d, s68, 1' % vST); st.names += ['rt0', 'start']; st.n = 2
    st('karg')
    srd(p, rX, sX, 128 * 1280, 's60')
    p('s_mov_b32 s65, s61')
    d0 = dma_stage(0)
    XF = opt.get('xfirst', 0)
    def small():
        p('s_lshl_b32 s60, s%d, 9' % sWV); p('s_add_u32 m0, s60, %d' % SMO)
        p('v_mov_b32 v%d, s%d' % (a + 4, sLRE)); p('v_mov_b32 v%d, s%d' % (a + 5, sLRE + 1))
        for m, sb in ((92, sLIM), (94, sLDT), (96, sB1), (98, sGATE)):
            p('v_mov_b32 v%d, s%d' % (a + 6, sb)); p('v_mov_b32 v%d, s%d' % (a + 7, sb + 1))
            p('v_cndmask_b32 v%d, v%d, v%d, %s' % (a + 4, a + 4, a + 6, S2(m))); p('v_cndmask_b32 v%d, v%d, v%d, %s' % (a + 5, a + 5, a + 7, S2(m)))
        p('v_lshl_add_u64 v[%d:%d], v[%d:%d], 0, v[%d:%d]' % (a + 4, a + 5, a + 2, a + 3, a + 4, a + 5))
        p('s_mov_b32 exec_hi, 0')
        p('global_load_lds_dwordx4 v[%d:%d], off' % (a + 4, a + 5), tag='sm')
        p('s_mov_b64 exec, -1')
    if not XF: small()
    for x in d0[:6]: put(x)
    if XF: small()
    p('s_cmp_lt_u32 s%d, 2' % sWV)
    p('s_cselect_b32 s66, s%d, s%d' % (sBRE, sBIM)); p('s_cselect_b32 s67, s%d, s%d' % (sBRE + 1, sBIM + 1))
    p('s_add_u32 s66, s66, s65'); p('s_addc_u32 s67, s67, 0')
    p('s_add_u32 s%d, s%d, s42' % (rP0, sW1)); p('s_addc_u32 s%d, s%d, 0' % (rP0 + 1, sW1 + 1))
    p('s_sub_u32 s%d, %d, s42' % (rP0 + 2, 640 * 3072))
    p('s_cmp_lt_u32 s%d, 2' % sCG)
    p('s_cselect_b32 s%d, s66, s%d' % (rP0, rP0)); p('s_cselect_b32 s%d, s67, s%d' % (rP0 + 1, rP0 + 1))
    p('s_cselect_b32 s%d, %d, s%d' % (rP0 + 2, 64 * 1280, rP0 + 2)); p('s_mov_b32 s%d, 0x20000' % (rP0 + 3))
    p('s_mov_b32 s60, %d' % (128 - 2048)); p('s_cselect_b32 s60, %d, s60' % (32 * 1280 - 2048)); p('s_ashr_i32 s65, s60, 31')
    p('s_add_u32 s%d, s%d, s60' % (rP1, rP0)); p('s_addc_u32 s%d, s%d, s65' % (rP1 + 1, rP0 + 1)); p('s_sub_u32 s%d, s%d, s60' % (rP1 + 2, rP0 + 2))
    put(d0[6])
    p('s_mov_b32 s%d, 0x20000' % (rP1 + 3))
    for x in d0[7:]: put(x)
    st('dma0')
    p('s_mov_b64 %s, s[66:67]' % S2(sSB))
    srd(p, rWS, sWS, WS_USED)
    l = p.newlabel('L_nn')
    p('s_or_b32 s64, s64, 1')
    p('v_mov_b32 v%d, 0' % vZ)
    p('s_or_b32 s60, s2, s%d' % sWV)
    p('s_cmp_lg_u32 s60, 0')
    p('s_cbranch_scc1 ' + l)
    p('v_mov_b32 v52, s64')
    p('s_mov_b64 exec, 1')
    p('global_store_dword v%d, v52, %s sc1' % (vZ, S2(sDBG)), optional=True)
    p('s_mov_b64 exec, -1')
    p.label(l)
    for i in range(1, 10):
        for x in sigma(i): p(x)
    for x in addr_setup() + late_setup(opt.get('cls', 1)): put(x)
    p('s_cmp_lt_u32 s%d, 2' % sCG)
    p('s_cbranch_scc1 L_typeA')
    save = (list(p.vm), list(p.lg), p.smem, st.n, st.pending); seen0 = set(p.seen)
    body(p, 'B', opt, st)
    names1 = list(st.names)
    p('s_branch L_end')
    p.label('L_typeA')
    p.vm, p.lg, p.smem, st.n, st.pending = list(save[0]), list(save[1]), save[2], save[3], save[4]
    st.names = st.names[:st.n]; p.seen = seen0
    body(p, 'A', opt, st)
    p.namesA = list(st.names); st.names = names1
    p.label('L_end')
    p('s_endpgm')
    p.finalize(opt.get('verbose'))
    return p, dict(A=p.namesA, B=st.names)

def addr_setup():
    n_, h_ = vN, vHH
    r = ['v_and_b32 v%d, 31, v%d' % (n_, vLANE), 'v_lshrrev_b32 v48, 1, v%d' % n_, 'v_and_b32 v48, 7, v48',
         'v_xor_b32 v48, v48, v%d' % h_, 'v_lshlrev_b32 v49, 7, v%d' % n_, 'v_add_u32 v49, s43, v49',
         'v_lshrrev_b32 v50, 4, v%d' % n_, 'v_lshlrev_b32 v50, 13, v50', 'v_and_b32 v51, 15, v%d' % n_, 'v_lshl_add_u32 v50, v51, 7, v50']
    for s in range(4):
        r += ['v_xor_b32 v51, %d, v48' % (2 * s), 'v_lshl_add_u32 v%d, v51, 4, v49' % (vRX + s), 'v_lshl_add_u32 v%d, v51, 4, v50' % (vRS + s),
              'v_add_u32 v%d, 0x10000, v%d' % (vRX + 4 + s, vRX + s), 'v_add_u32 v%d, 0x10000, v%d' % (vRS + 4 + s, vRS + s)]
    r += ['v_bfe_u32 v48, v%d, 2, 2' % vLANE, 'v_lshl_add_u32 v49, v%d, 3, v48' % h_, 'v_lshlrev_b32 v49, 7, v49',
          'v_lshrrev_b32 v50, 1, v48', 'v_lshl_add_u32 v49, v50, 6, v49', 'v_and_b32 v50, 1, v%d' % vLANE,
          'v_lshl_add_u32 v49, v50, 5, v49', 'v_bfe_u32 v50, v%d, 4, 1' % vLANE, 'v_lshl_add_u32 v49, v50, 4, v49',
          'v_bfe_u32 v50, v%d, 1, 1' % vLANE, 'v_lshl_add_u32 v%d, v50, 3, v49' % vRF, 'v_xor_b32 v%d, 64, v%d' % (vRF + 1, vRF),
          'v_add_u32 v%d, 0x10000, v%d' % (vRF + 2, vRF), 'v_add_u32 v%d, 0x10000, v%d' % (vRF + 3, vRF + 1)]
    r += ['s_lshl_b32 s62, s%d, 3' % sHF, 's_add_u32 s62, s62, s%d' % sCG, 's_lshl_b32 s%d, s62, 8' % sFL, 's_lshl_b32 s62, s62, 2',
          's_and_b32 s65, s%d, 1' % sWV, 's_lshl_b32 s65, s65, 1', 's_add_u32 s62, s62, s65', 's_lshl_b32 s65, s65, 6', 's_add_u32 s%d, s%d, s65' % (sFL, sFL),
          's_lshr_b32 s65, s%d, 1' % sWV, 's_lshl_b32 s66, s65, 6', 's_add_u32 s62, s62, s66',
          's_lshl_b32 s66, s%d, 1' % sRB, 's_add_u32 s65, s65, s66', 's_mul_i32 s64, s65, %d' % HID_RT,
          's_lshl_b32 s65, s65, 12', 's_add_u32 s%d, s%d, s65' % (sFL, sFL), 's_add_u32 s%d, s%d, %d' % (sFL, sFL, WS_FH),
          's_and_b32 s65, s%d, 1' % sWV, 's_lshl_b32 s65, s65, 11', 's_add_u32 s64, s64, s65',
          'v_add_u32 v48, s62, v%d' % h_, 's_lshl_b32 s62, s%d, 7' % sRB, 'v_add_lshl_u32 v%d, v48, s62, 3' % (vGA + 9),
          'v_bfe_u32 v49, v48, 2, 2', 'v_bfe_u32 v50, v48, 4, 1', 'v_lshl_add_u32 v49, v49, 1, v50',
          'v_and_b32 v50, 3, v48', 'v_lshl_add_u32 v49, v49, 2, v50',
          'v_lshrrev_b32 v48, 5, v48', 'v_lshlrev_b32 v48, 13, v48', 'v_lshl_add_u32 v48, v49, 7, v48',
          'v_bfe_u32 v49, v49, 1, 3', 'v_lshrrev_b32 v50, 2, v%d' % n_, 'v_xor_b32 v49, v49, v50',
          'v_lshl_add_u32 v48, v49, 4, v48', 'v_and_b32 v49, 3, v%d' % n_, 'v_lshl_add_u32 v%d, v49, 2, v48' % vGA,
          'v_add_u32 v%d, 0x10000, v%d' % (vGA + 1, vGA), 'v_lshlrev_b32 v%d, 2, v%d' % (vGA + 2, n_),
          'v_add_u32 v%d, %d, v%d' % (vGA + 2, SMO + 640, vGA + 2), 'v_mov_b32 v%d, 0' % (vGA + 8),
          's_lshr_b32 s62, s43, 1', 'v_lshlrev_b32 v%d, 4, v%d' % (vL16, vLANE)]
    return r

def sidejob_setup(p):
    D = sSJD
    for x in ['s_cmp_lt_u32 s2, 224', 's_cselect_b32 s%d, 1, 0' % sSJK, 's_cmp_lt_u32 s%d, 3' % sWV, 's_cselect_b32 s%d, s%d, 0' % (sSJK, sSJK),
              's_sub_u32 s41, s2, 64', 's_lshr_b32 s65, s41, 4',
              's_and_b32 s41, s41, 15', 's_mul_i32 s41, s41, 3', 's_add_u32 s41, s41, s%d' % sWV,
              's_mul_i32 s%d, s41, %d' % (sSJO, 32 * 1280), 's_lshl_b32 s60, s65, 7', 's_add_u32 s%d, s%d, s60' % (sSJO, sSJO),
              's_lshl_b32 s65, s65, 2',
              's_bfe_u32 s60, s41, 0x10001', 's_mul_i32 s60, s60, 24', 's_and_b32 s40, s41, 1', 's_add_u32 s60, s60, s40',
              's_lshr_b32 s41, s41, 2', 's_lshl_b32 s41, s41, 1', 's_add_u32 s41, s41, s60', 's_mul_i32 s41, s41, 5120',
              's_add_u32 s41, s41, %d' % WS_W2P,
              's_mov_b32 s%d, s%d' % (rSJ, sW2), 's_mov_b32 s%d, s%d' % (rSJ + 1, sW2 + 1), 's_mov_b32 s%d, %d' % (rSJ + 2, 1536 * 1280),
              's_mov_b32 s%d, 0x20000' % (rSJ + 3)]: p(x)
    for e in range(4):
        p('s_add_u32 s60, s65, %d' % e); p('s_mul_i32 s40, s60, 52'); p('s_lshr_b32 s40, s40, 8')
        p('s_mul_i32 s%d, s40, %d' % (D + e, W2P_CT - 5 * 1024)); p('s_lshl_b32 s60, s60, 10')
        p('s_add_u32 s%d, s%d, s60' % (D + e, D + e)); p('s_add_u32 s%d, s%d, s41' % (D + e, D + e))
    for x in ['v_lshrrev_b32 v48, 3, v%d' % vLANE, 'v_mul_u32_u24 v48, 1280, v48', 'v_and_b32 v49, 7, v%d' % vLANE, 'v_lshl_add_u32 v%d, v49, 4, v48' % vDJ,
              'v_lshrrev_b32 v48, 4, v%d' % vLANE, 'v_bfe_u32 v49, v%d, 2, 2' % vLANE, 'v_lshl_add_u32 v48, v48, 3, v49', 'v_lshlrev_b32 v48, 7, v48',
              'v_and_b32 v49, 3, v%d' % vLANE, 'v_lshl_add_u32 v48, v49, 3, v48', 's_add_u32 s60, s43, %d' % XREG, 'v_add_u32 v%d, s60, v48' % (vDJ + 4)]: p(x)
    for i in range(1, 4): p('v_add_u32 v%d, %d, v%d' % (vDJ + i, i * (8 * 1280 - 1024), vDJ))

def late_setup(CLS):
    n_, h_ = vN, vHH
    return ['v_bfe_u32 v48, v%d, 2, 1' % n_, 'v_lshlrev_b32 v48, 10, v48',
            'v_lshl_add_u32 v48, v%d, 9, v48' % h_, 'v_lshrrev_b32 v49, 3, v%d' % n_, 'v_lshl_add_u32 v48, v49, 6, v48',
            'v_and_b32 v49, 3, v%d' % n_, 'v_lshl_add_u32 v%d, v49, 4, v48' % vSTF,
            'v_lshlrev_b32 v%d, 3, v%d' % (vEXA + 1, n_), 'v_lshl_add_u32 v48, v%d, 1, v%d' % (vWAVE, h_),
            'v_lshl_add_u32 v%d, v48, 8, v%d' % (vEXA, vEXA + 1),
            's_add_u32 s6, s43, %d' % TRO,
            'v_lshlrev_b32 v48, 10, v%d' % h_, 'v_lshl_add_u32 v48, v%d, 4, v48' % n_, 'v_add_u32 v%d, s6, v48' % vTW,
            'v_xor_b32 v%d, 0x240, v%d' % (vTW + 1, vTW),
            'v_lshrrev_b32 v48, 4, v%d' % vLANE, 'v_lshlrev_b32 v48, 7, v48', 'v_bfe_u32 v49, v%d, 2, 2' % vLANE,
            'v_lshl_add_u32 v48, v49, 4, v48', 'v_and_b32 v49, 1, v%d' % vLANE, 'v_lshl_add_u32 v48, v49, 3, v48',
            'v_bfe_u32 v49, v%d, 1, 1' % vLANE, 'v_mul_u32_u24 v49, 0x240, v49', 'v_add_u32 v48, v48, v49',
            'v_add_u32 v%d, s6, v48' % (vTW + 2), 'v_xor_b32 v%d, 64, v%d' % (vTW + 3, vTW + 2),
            's_sub_u32 s6, s%d, 1' % sRB, 'v_sub_u32 v48, s6, v%d' % h_, 'v_lshlrev_b32 v48, 9, v48',
            'v_lshl_add_u32 v%d, v%d, 4, v48' % (vEO, n_),
            's_lshr_b32 s6, s%d, 2' % sRB, 's_lshl_b32 s6, s6, 3', 's_lshr_b32 s7, s3, 2', 's_add_u32 s%d, s6, s7' % sRT,
            's_lshl_b32 s6, s%d, 2' % sHF, 's_and_b32 s7, s3, 3', 's_add_u32 s%d, s6, s7' % sCT,
            's_sub_u32 s6, s%d, s%d' % (sCT, sRT) if CLS else 's_mov_b32 s6, s%d' % sCT, 's_and_b32 s6, s6, 3', 's_lshl_b32 s6, s6, 3', 's_or_b32 s%d, s6, 0x80000' % sSEL,
            'v_mul_u32_u24 v%d, 5120, v%d' % (vB, vWAVE), 'v_add_u32 v%d, v%d, v%d' % (vB, vB, vL16), 'v_add_u32 v%d, 0x1000, v%d' % (vB + 1, vB),
            'v_lshl_add_u32 v%d, v%d, 12, v%d' % (vA, vWAVE, vL16),
            's_lshl_b32 s6, s%d, 12' % sRT, 's_add_u32 s6, s6, %d' % WS_FH, 'v_lshl_add_u32 v%d, v%d, 7, s6' % (vFP, n_),
            's_mul_i32 s6, s%d, 5' % sCT, 's_lshr_b32 s6, s6, 2', 's_lshl_b32 s6, s6, 11', 's_add_u32 s6, s6, %d' % (WS_FL + 64 * 128),
            'v_lshl_add_u32 v%d, v%d, 7, s6' % (vWP, n_)]

def c_setup(vDC=vDC):
    return ['v_lshrrev_b32 v48, 3, v%d' % vLANE, 'v_mul_u32_u24 v48, 1280, v48', 'v_and_b32 v49, 7, v%d' % vLANE, 'v_lshrrev_b32 v50, 4, v%d' % vLANE,
            'v_xor_b32 v49, v49, v50', 'v_lshl_add_u32 v%d, v49, 4, v48' % vDC, 'v_xor_b32 v%d, 64, v%d' % (vDC + 1, vDC),
            'v_add_u32 v%d, %d, v%d' % (vDC + 1, 8 * 1280 - 1024, vDC + 1),
            'v_and_b32 v48, 15, v%d' % vLANE, 'v_lshrrev_b32 v49, 1, v48', 'v_xor_b32 v49, v49, v50', 'v_lshlrev_b32 v49, 4, v49',
            'v_lshl_add_u32 v48, v48, 7, v49', 's_add_u32 s6, s43, %d' % SLOT, 'v_add_u32 v%d, s6, v48' % vRC, 'v_xor_b32 v%d, 64, v%d' % (vRC + 1, vRC),
            'v_add_u32 v%d, %d, v%d' % (vRC + 2, 2 * SLOT, vRC), 'v_add_u32 v%d, %d, v%d' % (vRC + 3, 2 * SLOT, vRC + 1)]

def body(p, ty, opt, st):
    put = p.put
    B = ty == 'B'
    NG = 1 if B else 2
    WS = S4(rWS)
    vPAR = 72
    S2OFF = [2 * SLOT, 3 * SLOT, 0]
    DELTA = opt.get('delta', 2)
    def spin(load, check):
        l1, l2 = p.newlabel('L_sp'), p.newlabel('L_sp')
        p('s_mov_b32 s65, 0')
        p.label(l1)
        check(l2)
        p('s_add_u32 s65, s65, 1'); p('s_cmp_gt_u32 s65, %d' % SPIN_MAX); p('s_cbranch_scc1 ' + l2)
        load(True)
        p('s_waitcnt vmcnt(0)'); p('s_branch ' + l1)
        p.label(l2)
    def dma_s2(c):
        r = []
        for sg in range(4 if c < 2 else 2):
            r.append('s_add_u32 m0, s43, %d' % (S2OFF[c] + 2048 * sg))
            r += [('buffer_load_dwordx4 v%d, %s, s%d offen offset:%d lds' % (vDS + i, S4(rS2), SIG + 4 * c + sg, 1024 * i), 's2c%d' % c) for i in range(2)]
        return r
    def s2_srd(): srd(p, rS2, sSB, 32 * 1280)
    def par_reads():
        r = ['v_lshlrev_b32 v48, 1, v%d' % vN, 'v_add_u32 v48, %d, v48' % SMO]
        for g in range(NG):
            r += [('ds_read_u16 v%d, v48 offset:%d' % (vPAR + 3 * g + k, 128 * k + 64 * g), 'par') for k in range(3)]
        return r
    def bias_reads(dst, T):
        return [('ds_read_b128 v[%d:%d], v49 offset:%d' % (dst + 8 * T + 4 * q, dst + 3 + 8 * T + 4 * q, 64 * T + 16 * q), 'b1%d' % T) for q in range(2)]
    def setup(g):
        c = CON[g]; tr, ti = TAB[g], TAB[g] + 16; pr = vPAR + 3 * g
        a, b = 48, 50
        M = S2(sM)
        r = ['v_lshlrev_b32 v%d, 16, v%d' % (pr + k, pr + k) for k in range(3)]
        r += ['v_mul_f32 v%d, %s, v%d' % (a, LOG2E, pr + 2), 'v_exp_f32 v%d, v%d' % (a, a),
              'v_mul_f32 v%d, v%d, v%d' % (c + 4, pr, pr),
              'v_cvt_pk_bf16_f32 v%d, v%d, v%d' % (a, a, a), 'v_lshlrev_b32 v%d, 16, v%d' % (a, a),
              'v_mul_f32 v%d, v%d, v%d' % (a + 1, a, pr + 1), 'v_mul_f32 v%d, v%d, v%d' % (a, a, pr),
              'v_mul_f32 v%d, %s, v%d' % (a + 1, INV2PI, a + 1), 'v_mul_f32 v%d, %s, v%d' % (a, LOG2E, a),
              'v_fract_f32 v%d, v%d' % (a + 1, a + 1), 'v_exp_f32 v%d, v%d' % (a, a),
              'v_cos_f32 v%d, v%d' % (b, a + 1), 'v_sin_f32 v%d, v%d' % (b + 1, a + 1),
              'v_fmac_f32 v%d, v%d, v%d' % (c + 4, pr + 1, pr + 1),
              'v_mul_f32 v%d, v%d, v%d' % (c, a, b), 'v_mul_f32 v%d, v%d, v%d' % (c + 1, a, b + 1),
              'v_rcp_f32 v%d, v%d' % (a, c + 4), 'v_add_f32 v%d, -1.0, v%d' % (b, c),
              'v_mul_f32 v%d, v%d, v%d' % (c + 2, b, pr), 'v_mul_f32 v%d, v%d, v%d' % (c + 3, c + 1, pr),
              'v_fmac_f32 v%d, v%d, v%d' % (c + 2, c + 1, pr + 1), 'v_fma_f32 v%d, -v%d, v%d, v%d' % (c + 3, b, pr + 1, c + 3),
              'v_mul_f32 v%d, v%d, v%d' % (c + 2, c + 2, a), 'v_mul_f32 v%d, v%d, v%d' % (c + 3, c + 3, a),
              'v_mov_b32 v%d, v%d' % (tr, c), 'v_mov_b32 v%d, v%d' % (ti, c + 1)]
        for k in range(1, 16): r += cmul(tr + k, ti + k, tr + k - 1, ti + k - 1, c, c + 1)
        mu = c + 4
        r += ['v_cmp_eq_u32 %s, 1, v%d' % (M, vHH), 'v_mov_b32 v%d, v%d' % (mu, tr + 15), 'v_mov_b32 v%d, v%d' % (mu + 1, ti + 15)]
        r += ['v_cndmask_b32 v%d, 1.0, v%d, %s' % (b, mu, M), 'v_cndmask_b32 v%d, 0, v%d, %s' % (b + 1, mu + 1, M)]
        r += cm(c + 6, c + 2, b) + csq(a, mu)
        r += ['v_cndmask_b32 v%d, 1.0, v%d, s[66:67]' % (b, a), 'v_cndmask_b32 v%d, 0, v%d, s[66:67]' % (b + 1, a + 1)]
        r += cm(c + 12, c + 6, b) + csq(c + 8, a)
        r += ['v_cndmask_b32 v%d, 1.0, v%d, s[68:69]' % (b, c + 8), 'v_cndmask_b32 v%d, 0, v%d, s[68:69]' % (b + 1, c + 9)]
        r += cm(c + 6, c + 12, b) + csq(a, c + 8)
        r += ['v_cndmask_b32 v%d, 1.0, v%d, %s' % (c + 10, a, M), 'v_cndmask_b32 v%d, 0, v%d, %s' % (c + 11, a + 1, M)]
        r += csq(c + 8, a)
        r += ['v_lshl_add_u32 v%d, v%d, 1, v%d' % (c + 14, vWAVE, vHH), 'v_mov_b32 v%d, 0' % (c + 12), 'v_mov_b32 v%d, 0' % (c + 13)]
        return r
    def masks():
        p('s_bitcmp1_b32 s%d, 0' % sWV); p('s_cselect_b64 s[66:67], -1, 0')
        p('s_bitcmp1_b32 s%d, 1' % sWV); p('s_cselect_b64 s[68:69], -1, 0')
    def gate_reads(s):
        sl = s % 4; d = vGA + 4 + 2 * (s & 1)
        return [('ds_read_b32 v%d, v%d offset:%d' % (d, vGA + (sl >> 1), (sl & 1) * SLOT), 'g%d' % s)]
    def gw_reads():
        r = []
        for s in range(10): r += ['v_add_u32 v%d, s%d, v%d' % (vGA + 3, SIG + s, vGA + 2), ('ds_read_b32 v%d, v%d' % (vGW + s, vGA + 3), 'gw')]
        return r
    def gate_step(s):
        x = vGA + 4 + 2 * (s & 1); w = vGW + s; a = vGA + 10; acc = vGA + 8
        return [lambda: p.wait(lg='g%d' % s),
                'v_lshlrev_b32 v%d, 16, v%d' % (a, x), 'v_lshlrev_b32 v%d, 16, v%d' % (a + 1, w),
                'v_and_b32 v%d, 0xffff0000, v%d' % (x, x), 'v_and_b32 v%d, 0xffff0000, v%d' % (w, w),
                'v_mul_f32 v%d, v%d, v%d' % (a, a, a + 1), 'v_mul_f32 v%d, v%d, v%d' % (x, x, w),
                'v_cvt_pk_bf16_f32 v%d, v%d, v%d' % (a, a, x),
                'v_lshlrev_b32 v%d, 16, v%d' % (a + 1, a), 'v_and_b32 v%d, 0xffff0000, v%d' % (a, a),
                'v_add_f32 v%d, v%d, v%d' % (acc, acc, a + 1), 'v_add_f32 v%d, v%d, v%d' % (acc, acc, a)]
    def gate_fin():
        r = []; s = vGA + 8; a = vGA + 10
        for m in ('quad_perm:[1,0,3,2]', 'quad_perm:[2,3,0,1]', 'row_half_mirror', 'row_mirror'):
            r.append('v_add_f32_dpp v%d, v%d, v%d %s row_mask:0xf bank_mask:0xf' % (s, s, s, m))
        r += ['v_mov_b32 v%d, v%d' % (a, s), 'v_permlane16_swap_b32 v%d, v%d' % (a, s), 'v_add_f32 v%d, v%d, v%d' % (s, s, a),
              'v_cvt_pk_bf16_f32 v%d, v%d, v%d' % (s, s, s), 'v_lshlrev_b32 v%d, 16, v%d' % (s, s),
              'v_mul_f32 v%d, 0xbfb8aa3b, v%d' % (s, s), 'v_exp_f32 v%d, v%d' % (s, s), 'v_add_f32 v%d, 1.0, v%d' % (s, s),
              'v_rcp_f32 v%d, v%d' % (s, s), 'v_cvt_pk_bf16_f32 v%d, v%d, v%d' % (s, s, s), 'v_lshlrev_b32 v%d, 16, v%d' % (a, s),
              'v_sub_f32 v%d, 1.0, v%d' % (a + 1, a), 'v_cvt_pk_bf16_f32 v%d, v%d, v%d' % (a + 1, a + 1, a + 1),
              'v_lshlrev_b32 v%d, 16, v%d' % (a + 1, a + 1)]
        def store():
            p('s_mov_b32 s40, %d' % WS_G)
            p('s_mov_b32 exec_lo, 1'); p('s_mov_b32 exec_hi, 1')
            p('buffer_store_dwordx2 v[%d:%d], v%d, %s, s40 offen%s' % (a, a + 1, vGA + 9, WS, SC), tag='gst')
            p('s_mov_b64 exec, -1')
        r.append(store)
        return r
    def sj_if(fn):
        def go():
            l = p.newlabel('L_sj')
            p('s_cmp_eq_u32 s%d, 0' % sSJK); p('s_cbranch_scc1 ' + l)
            fn()
            p.label(l)
        return go
    def sj_dma():
        p('s_add_u32 m0, s43, %d' % XREG)
        for i in range(4): p('buffer_load_dwordx4 v%d, %s, s%d offen offset:%d lds' % (vDJ + i, S4(rSJ), sSJO, 1024 * i), optional=True)
    def sj_read():
        for e in range(4):
            for j in range(2): p('ds_read_b64_tr_b16 a[%d:%d], v%d offset:%d' % (232 + 4 * e + 2 * j, 233 + 4 * e + 2 * j, vDJ + 4, 32 * e + 512 * j), optional=True)
    def sj_store():
        for e in range(4): p('buffer_store_dwordx4 a[%d:%d], v%d, %s, s%d offen%s' % (232 + 4 * e, 235 + 4 * e, vL16, WS, sSJD + e, SC), optional=True)
    def c_prefetch():
        p('s_bitcmp1_b32 s%d, 0' % sWV)
        p('s_cselect_b32 s40, s%d, s%d' % (sCIM, sCRE)); p('s_cselect_b32 s41, s%d, s%d' % (sCIM + 1, sCRE + 1))
        p('s_lshl_b32 s65, s2, 1'); p('s_lshr_b32 s23, s%d, 1' % sWV); p('s_add_u32 s65, s65, s23'); p('s_mul_i32 s65, s65, 1600')
        p('v_lshl_add_u32 v68, v%d, 7, s65' % vLANE); p('v_min_u32 v68, %d, v68' % (640 * 1280 - 4))
        p('s_mov_b64 exec, 0x1fff')
        p('global_load_dword v93, v68, s[40:41]', tag='cpf')
        p('s_mov_b64 exec, -1')
    def c_srd():
        p.seen.add('csrd')
        p('s_bitcmp1_b32 s%d, 0' % sWV)
        p('s_cselect_b32 s%d, s%d, s%d' % (rC, sCIM, sCRE)); p('s_cselect_b32 s%d, s%d, s%d' % (rC + 1, sCIM + 1, sCRE + 1))
        p('s_mul_i32 s40, s%d, %d' % (sCT, 80 * 1280)); p('s_add_u32 s%d, s%d, s40' % (rC, rC)); p('s_addc_u32 s%d, s%d, 0' % (rC + 1, rC + 1))
        p('s_mov_b32 s%d, %d' % (rC + 2, 80 * 1280)); p('s_mov_b32 s%d, 0x20000' % (rC + 3))
        p('s_lshr_b32 s%d, s%d, 1' % (sSJO, sWV)); p('s_lshl_b32 s%d, s%d, 7' % (sSJO, sSJO))
    CORD = [0, 2, 1, 3] if B else [2, 3, 1, 0]
    DS = opt.get('deltas', 0)
    def sp_lit(pos): return sum(order(5, c, DS)[pos] << (8 * c) for c in range(4))
    def c_dma(q):
        pos, n = divmod(q, 5); pl = q % 16
        r = [lambda: p.wait(lg='cr%d' % (q - 16))] if q >= 16 else []
        r += ['s_add_u32 m0, s43, %d' % (CPL[CORD[pl >> 2]] + 2048 * (pl & 3))]
        if n == 0: r += ['s_bfe_u32 s23, 0x%x, s%d' % (sp_lit(pos), sSEL5), 's_lshl_b32 s23, s23, 8', 's_add_u32 s23, s23, s%d' % sSJO]
        else: r += ['s_add_u32 s23, s23, %d' % (16 * 1280)]
        ld = [('buffer_load_dwordx4 v%d, %s, s23 offen offset:%d lds' % ((70 if (q < 8 and not B) else vDC) + i, S4(rC), 1024 * i), 'cd%d' % q) for i in range(2)]
        def first():
            assert 'csrd' in p.seen
            for x in r + ld[:1]: put(x)
        return [first, ld[1]]
    def c_read(q, dst=None):
        pl = q % 16; dst = AX + 8 * q if dst is None else dst
        hi, o = {0: (0, 0), 1: (1, SLOT), 2: (0, SLOT), 3: (1, 0)}[CORD[pl >> 2]]
        rd = [('ds_read_b128 a[%d:%d], v%d offset:%d' % (dst + 4 * gg, dst + 4 * gg + 3, vRC + 2 * hi + gg, o + 2048 * (pl & 3)), 'cr%d' % q) for gg in range(2)]
        return [lambda: (p.wait(vm='cd%d' % q), put(rd[0])), rd[1]]
    def cD(a, b): return [x for q in range(a, b) for x in c_dma(q)]
    def cR(a, b): return [x for q in range(a, b) for x in c_read(q)]
    def nonce_load(o=False): p('global_load_dword v%d, v%d, %s sc1' % (vPOLL, vZ, S2(sDBG)), tag='nonce', optional=o)
    def get_nonce():
        def chk(l2):
            p('v_readfirstlane_b32 s%d, v%d' % (sNON, vPOLL)); p('s_cmp_lg_u32 s%d, 0' % sNON); p('s_cbranch_scc1 ' + l2)
        p.wait(vm='nonce'); spin(nonce_load, chk)
        p('v_mov_b32 v47, s%d' % sNON)
    def w2_signal():
        def go():
            p('s_lshl_b32 s40, s2, 7'); p('s_add_u32 s40, s40, %d' % WS_FL); p('s_mov_b64 exec, 1')
            p('buffer_store_dword v47, v%d, %s, s40 offen%s' % (vZ, WS, SC), optional=True)
            p('s_mov_b64 exec, -1')
        wave0(go)
    def signal(level, tags):
        def go():
            p.wait(vm=tags)
            p('s_add_u32 s65, s%d, %d' % (sFL, 131072 * level)); p('s_mov_b64 exec, 1')
            p('buffer_store_dword v47, v%d, %s, s65 offen%s' % (vZ, WS, SC), tag='flag')
            p('s_mov_b64 exec, -1')
        return go
    def fl_load(level):
        p('s_mov_b32 s40, %d' % (0 if level == 'W' else 131072 * level)); p('s_mov_b32 exec_hi, 0')
        p('buffer_load_dword v%d, v%d, %s, s40 offen sc1' % (vPOLL, vWP if level == 'W' else vFP, WS), optional=True)
        p('s_mov_b32 exec_hi, -1')
    def wave0(fn):
        l = p.newlabel('L_w0')
        p('s_cmp_lg_u32 s%d, 0' % sWV); p('s_cbranch_scc1 ' + l)
        fn()
        p.label(l)
    def fl_issue(level):
        def go():
            wave0(lambda: fl_load(level))
            p.marks[level] = p.total_vm()
        return go
    def fl_check(level, bar=True):
        def chk(l2):
            p('v_cmp_ne_u32 vcc, s%d, v%d' % (sNON, vPOLL))
            p('s_cmp_eq_u32 vcc_lo, 0'); p('s_cbranch_scc1 ' + l2)
        def body_():
            p('s_waitcnt vmcnt(%d)' % min(63, p.total_vm() - p.marks[level]))
            spin(lambda o: fl_load(level), chk)
        def go():
            wave0(body_)
            if bar: p('s_barrier')
        return go
    def rnd_lit(i):
        for o, n in PARTS:
            if o <= i < o + n: return sum((o + order(n, c, DELTA)[i - o]) << (8 * c) for c in range(4))
    def b_reg(i, n):
        if i < 12: return ('a', 208 + 20 * (i % 3) + 4 * n) if i % 3 < 2 else ('v', 12 + 4 * n)
        pos, gg = divmod(i - 12, 2)
        return 'a', AX + 8 * (5 * (pos % 4) + n) + 4 * gg
    def b_loads(i):
        r = ['s_bfe_u32 s61, 0x%x, s%d' % (rnd_lit(i), sSEL), 's_mul_i32 s61, s61, 20480']
        for n in range(5):
            k, b = b_reg(i, n)
            r.append(('buffer_load_dwordx4 %s[%d:%d], v%d, %s, s61 offen%s sc1' % (k, b, b + 3, vB + (n >> 2), S4(rW2P), ' offset:%d' % (1024 * n) if n < 4 else ''), 'B%d' % i))
        return r
    def a_loads(i, pos=None):
        b = AH + 16 * ((i if pos is None else pos) % 3)
        if i < 12: r = ['s_bfe_u32 s60, 0x%x, s%d' % (rnd_lit(i), sSEL), 's_lshl_b32 s60, s60, 14']
        else: r = ['s_bfe_u32 s60, 0x%x, s%d' % (sp_lit((i - 12) >> 1), sSEL5), 's_lshl_b32 s60, s60, 15', 's_add_u32 s60, s60, %d' % ((12 + (i & 1)) << 14)]
        r += [('buffer_load_dwordx4 a[%d:%d], v%d, %s, s60 offen offset:%d sc1' % (b + 4 * m, b + 4 * m + 3, vA, S4(rHID), 1024 * m), 'A%d' % i) for m in range(4)]
        return r
    def w2_prefetch():
        if not opt.get('wpf', 0): return
        p('s_and_b32 s40, s%d, 7' % sRT); p('s_lshl_b32 s40, s40, 2'); p('s_add_u32 s40, s40, s%d' % sWV); p('s_mul_i32 s40, s40, 7680')
        p('v_min_u32 v94, 59, v%d' % vLANE); p('v_lshlrev_b32 v94, 7, v94')
        p('buffer_load_dword v93, v94, %s, s40 offen sc1' % S4(rW2P), tag='wpf')
    def hid_srd():
        p('s_mul_i32 s40, s%d, %d' % (sRT, HID_RT)); srd(p, rHID, sWS, HID_RT, 's40')
        p('s_mul_i32 s40, s%d, %d' % (sCT, W2P_CT)); p('s_add_u32 s40, s40, %d' % WS_W2P); srd(p, rW2P, sWS, W2P_CT, 's40')
        if opt.get('fake'):
            p('s_lshr_b32 s40, s%d, 2' % sRB); p('s_mul_i32 s40, s40, %d' % (512 * 1280)); p('s_lshl_b32 s41, s3, 13'); p('s_add_u32 s40, s40, s41')
            if opt['fake'] & 1: srd(p, rHID, sX, HID_RT, 's40')
            if opt['fake'] & 2: srd(p, rW2P, sX, HID_RT, 's40')
    def reads1(k):
        s, ks = divmod(k, 4); sl = s % 4; hi = 4 * (sl >> 1); o = (sl & 1) * SLOT
        w = AW + 16 * (k % 3); tg = 'k%d' % k
        r = [('ds_read_b128 a[%d:%d], v%d offset:%d' % (AX + 4 * k, AX + 4 * k + 3, vRX + hi + ks, o), tg)]
        for T in range(4):
            if B:
                for j in range(2):
                    r.append(('ds_read_b64_tr_b16 a[%d:%d], v%d offset:%d' % (w + 4 * T + 2 * j, w + 1 + 4 * T + 2 * j, vRF + (hi >> 1) + (T & 1),
                                                                          o + ks * 8192 + 4096 + 2048 * (T >> 1) + 512 * j), tg))
            else:
                r.append(('ds_read_b128 a[%d:%d], v%d offset:%d' % (w + 4 * T, w + 4 * T + 3, vRS + hi + ks, o + 4096 + 2048 * (T >> 1) + 16384 * (T & 1)), tg))
        return r
    L2 = opt.get('lead2', 5); NB2 = L2 + 1
    def reads2(m):
        k, T = divmod(m, 2); s, ks = divmod(k, 4); c, sg = divmod(s, 4)
        w = AW2 + 4 * (m % NB2)
        return [('ds_read_b128 a[%d:%d], v%d offset:%d' % (w, w + 3, vRS + 4 * (S2OFF[c] >> 16) + ks, (S2OFF[c] & 0xffff) + 16384 * T + 2048 * sg), 'm%d' % m)]
    mf = 'v_mfma_f32_32x32x16_bf16 v[%d:%d], a[%d:%d], a[%d:%d], %s'
    def mfma1(k, T):
        x = AX + 4 * k; f = AW + 16 * (k % 3) + 4 * T
        if B: a = FAC + 16 * T; return mf % (a, a + 15, f, f + 3, x, x + 3, 'v[%d:%d]' % (a, a + 15))
        a = SAC[T >> 1] + 16 * (T & 1)
        return mf % (a, a + 15, x, x + 3, f, f + 3, 'v[%d:%d]' % (a, a + 15) if k else '0')
    def mfma2(m):
        k, T = divmod(m, 2); x = AX + 4 * k; a = SAC[0] + 16 * T; f = AW2 + 4 * (m % NB2)
        return mf % (a, a + 15, x, x + 3, f, f + 3, 'v[%d:%d]' % (a, a + 15) if k else '0')
    LOOK = opt.get('look', 3); SJS = opt.get('sjs', 2); AE = opt.get('aearly', 1); SJL = opt.get('sjlate', 0)
    def sync1(s):
        p.wait(vm='st%d' % s, lg='all'); p('s_barrier')
        r = []
        if s == 0: r += dma_stage(2)
        if s + LOOK < 10: r += dma_stage(s + LOOK)
        elif B: r += dma_s2(s + LOOK - 10)
        elif AE and s < 9: r += cD(4 * (s - 7), 4 * (s - 6))
        if s == 7 and opt.get('cpf', 1): r = [c_prefetch] + r
        if s == 9 and B and SJL: r += [sj_if(sj_dma)]
        return r
    def scanA1(g):
        c = CON[g]; re, im = SAC[g], SAC[g] + 16
        r = []
        for k in range(1, 16): r += cfma(re + k, im + k, c, re + k - 1, im + k - 1)
        r += ['v_mov_b32 v%d, v%d' % (48 + 2 * g, re + 15), 'v_mov_b32 v%d, v%d' % (49 + 2 * g, im + 15),
              ('ds_write_b64 v%d, v[%d:%d] offset:%d' % (vEXA, 48 + 2 * g, 49 + 2 * g, EXO + 8192 * g), 'ex')]
        return r
    def scanA2(g):
        c = CON[g]; re, im = SAC[g], SAC[g] + 16; be = P2(c + 2)
        r = []
        for k in range(0, 16, 2):
            tt = 48 + (k & 2)
            r += ['v_pk_mul_f32 %s, %s, %s op_sel:[1,0] op_sel_hi:[1,1]' % (P2(tt), be, P2(re + k)),
                  'v_pk_mul_f32 %s, %s, %s op_sel:[0,0] op_sel_hi:[0,1]' % (P2(re + k), be, P2(re + k)),
                  'v_pk_fma_f32 %s, %s, %s, %s op_sel:[1,0,0] op_sel_hi:[1,1,1] neg_lo:[1,0,0] neg_hi:[1,0,0]' % (P2(re + k), be, P2(im + k), P2(re + k)),
                  'v_pk_fma_f32 %s, %s, %s, %s op_sel:[0,0,0] op_sel_hi:[0,1,1]' % (P2(im + k), be, P2(im + k), P2(tt))]
        return r
    def ex_reads(g, e):
        return [('ds_read_b64 v[%d:%d], v%d offset:%d' % (e + 2 * k, e + 2 * k + 1, vEXA + 1, EXO + 8192 * g + 256 * k), 'exr%d' % g) for k in range(8)]
    def ex_prefix(g, e, pk):
        c = CON[g]; r = []
        for k in range(1, 8):
            r += pcfma(e + 2 * k, c + 4, e + 2 * k - 2) if pk else cfma(e + 2 * k, e + 2 * k + 1, c + 4, e + 2 * k - 2, e + 2 * k - 1)
        return r
    def ex_pub(g, e):
        def pub():
            p('v_mov_b32 v%d, v47' % (e + 16)); p('v_mov_b32 v%d, v47' % (e + 17))
            p('s_add_u32 s40, s%d, %d' % (sG, g)); p('s_lshl_b32 s40, s40, 4'); p('s_add_u32 s40, s40, s%d' % sRB); p('s_lshl_b32 s40, s40, 9')
            p('s_add_u32 s40, s40, %d' % WS_E)
            p('s_lshl_b32 s41, s%d, 3' % sWV); p('s_lshl_b32 exec_lo, 0xff, s41'); p('s_mov_b32 exec_hi, 0')
            p('buffer_store_dwordx4 v[%d:%d], v%d, %s, s40 offen%s' % (e + 14, e + 17, vL16, WS, SC), tag='pub')
            p('s_mov_b64 exec, -1')
        return [pub]
    def ex_own(g, e):
        c = CON[g]; r = []
        for k in range(1, 8):
            r += ['v_cmp_eq_u32 %s, %d, v%d' % (S2(sM + 2 * (k & 1)), k, c + 14)]
            if k > 1: r += ['v_cndmask_b32 v%d, v%d, v%d, %s' % (c + 12 + z, c + 12 + z, e + 2 * k - 4 + z, S2(sM + 2 - 2 * (k & 1))) for z in range(2)]
        r += ['v_cndmask_b32 v%d, v%d, v%d, %s' % (48 + z, c + 12 + z, e + 12 + z, S2(sM + 2)) for z in range(2)]
        return r + cm(c + 12, c + 2, 48)
    def ffn_epi(T, pk=False):
        a = FAC + 16 * T; r = []
        for k in range(0, 16, 2):
            r += ['v_max_f32 v%d, 0, v%d' % (a + k, a + k), 'v_max_f32 v%d, 0, v%d' % (a + k + 1, a + k + 1)]
            if pk: r += ['v_pk_mul_f32 %s, %s, %s' % (P2(a + k), P2(a + k), P2(a + k))]
            else: r += ['v_mul_f32 v%d, v%d, v%d' % (a + k + z, a + k + z, a + k + z) for z in range(2)]
        for k in range(8): r.append('v_cvt_pk_bf16_f32 v%d, v%d, v%d' % (a + k, a + 2 * k, a + 2 * k + 1))
        def stores():
            p('s_lshl_b32 s40, s%d, 12' % sQ); p('s_add_u32 s40, s40, s64'); p('s_add_u32 s40, s40, %d' % (((T & 1) + (24 if T >= 2 else 0)) * 4096))
            for q in range(2):
                p('buffer_store_dwordx4 v[%d:%d], v%d, %s, s40 offen offset:%d%s' % (a + 4 * q, a + 4 * q + 3, vSTF, WS, 256 * q, SC), tag='hf')
        return r + [stores]
    EXP = 84 if B else 52
    def lb_expect():
        r = []
        for k in range(8):
            r += ['v_subrev_u32 v%d, %d, v%d' % (EXP + k, 1024 * k, vEO), 'v_ashrrev_i32 v%d, 31, v%d' % (EXP + k, EXP + k),
                  'v_bfi_b32 v%d, v%d, 0, v47' % (EXP + k, EXP + k)]
        return r
    def lb_loads(g, e, o=False):
        p('s_add_u32 s40, s%d, %d' % (sG, g)); p('s_lshl_b32 s40, s40, 13'); p('s_add_u32 s40, s40, %d' % WS_E)
        srd(p, rE, sWS, 8192, 's40')
        for k in range(8):
            if k: p('v_subrev_u32 v48, %d, v%d' % (1024 * k, vEO))
            p('buffer_load_dwordx4 v[%d:%d], v%d, %s, 0 offen sc1' % (e[k], e[k] + 3, 48 if k else vEO, S4(rE)), tag='lb%d' % g, optional=o)
    def lb_finish(g, e):
        c = CON[g]
        def chk(l2):
            for k in range(8): p('v_xor_b32 v%d, v%d, v%d' % (e[k] + 2, e[k] + 2, EXP + k))
            p('v_or3_b32 v48, v%d, v%d, v%d' % (e[0] + 2, e[1] + 2, e[2] + 2)); p('v_or3_b32 v49, v%d, v%d, v%d' % (e[3] + 2, e[4] + 2, e[5] + 2))
            p('v_or3_b32 v48, v%d, v%d, v48' % (e[6] + 2, e[7] + 2)); p('v_or_b32 v48, v48, v49')
            p('v_cmp_ne_u32 vcc, 0, v48'); p('s_cbranch_vccz ' + l2)
        p.wait(vm='lb%d' % g); spin(lambda o: lb_loads(g, e, o), chk)
        for k in range(6, -1, -1):
            for x in pcfma(e[k], c + 8, e[k + 1]): put(x)
        for x in pcmul(48, c + 10, e[0]): put(x)
        p('v_mov_b32 v50, v48'); p('v_mov_b32 v51, v49')
        p('v_permlane32_swap_b32 v48, v50'); p('v_permlane32_swap_b32 v49, v51')
        p('v_pk_add_f32 v[48:49], v[48:49], v[50:51]')
        for x in pcfma(c + 12, c + 6, 48): put(x)
    def scanB(g, pk):
        c = CON[g]; tr, ti = TAB[g], TAB[g] + 16; re, im = SAC[g], SAC[g] + 16; cc = P2(c + 12)
        r = []
        for k in range(0, 16, 2):
            if pk:
                r += ['v_pk_fma_f32 %s, %s, %s, %s op_sel:[0,0,0] op_sel_hi:[1,0,1]' % (P2(re + k), P2(tr + k), cc, P2(re + k)),
                      'v_pk_fma_f32 %s, %s, %s, %s op_sel:[0,1,0] op_sel_hi:[1,1,1]' % (P2(im + k), P2(tr + k), cc, P2(im + k)),
                      'v_pk_fma_f32 %s, %s, %s, %s op_sel:[0,1,0] op_sel_hi:[1,1,1] neg_lo:[1,0,0] neg_hi:[1,0,0]' % (P2(re + k), P2(ti + k), cc, P2(re + k)),
                      'v_pk_fma_f32 %s, %s, %s, %s op_sel:[0,0,0] op_sel_hi:[1,0,1]' % (P2(im + k), P2(ti + k), cc, P2(im + k))]
            else:
                for z in (k, k + 1):
                    r += ['v_fmac_f32 v%d, v%d, v%d' % (re + z, tr + z, c + 12), 'v_fmac_f32 v%d, v%d, v%d' % (im + z, tr + z, c + 13),
                          'v_fma_f32 v%d, -v%d, v%d, v%d' % (re + z, ti + z, c + 13, re + z), 'v_fmac_f32 v%d, v%d, v%d' % (im + z, ti + z, c + 12)]
        for part in range(2):
            a = re + 16 * part; ng = '-' if part else ''
            for q in range(2):
                r += ['v_cvt_pk_bf16_f32 v%d, %sv%d, %sv%d' % (a + 8 * q + k, ng, a + 8 * q + 2 * k, ng, a + 8 * q + 2 * k + 1) for k in range(4)]
                r += [('ds_write_b128 v%d, v[%d:%d]' % (vTW + q, a + 8 * q, a + 8 * q + 3), 'tw')]
            r += [('ds_read_b64_tr_b16 v[%d:%d], v%d offset:%d' % (a + 8 * b + 4 + 2 * j, a + 8 * b + 5 + 2 * j, vTW + 2 + j, 1024 * b), 'tr%d' % part) for b in range(2) for j in range(2)]
        def stores(part):
            p('s_add_u32 s41, s%d, %d' % (sG, g)); p('s_lshr_b32 s40, s41, 2'); p('s_lshl_b32 s40, s40, 1'); p('s_and_b32 s65, s41, 1'); p('s_add_u32 s40, s40, s65')
            p('s_lshl_b32 s40, s40, 1'); p('s_bfe_u32 s65, s41, 0x10001'); p('s_add_u32 s40, s40, s65'); p('s_lshl_b32 s40, s40, 13')
            p('s_add_u32 s40, s40, s64'); p('s_add_u32 s40, s40, %d' % ((48 + part) * 4096))
            p.wait(lg='tr%d' % part)
            for b in range(2):
                o = re + 16 * part + 8 * b + 4
                p('buffer_store_dwordx4 v[%d:%d], v%d, %s, s40 offen offset:%d%s' % (o, o + 3, vL16, WS, 1024 * b, SC), tag='hs')
        return r + [lambda: stores(0), lambda: stores(1)]
    masks()
    if B:
        sidejob_setup(p); s2_srd()
        if not SJL: sj_if(sj_dma)()
    else: c_srd()
    if B: p('v_lshlrev_b32 v49, 5, v%d' % vHH); p('v_add_u32 v49, %d, v49' % (SMO + 384))
    p.wait(vm='sm'); p('s_barrier')
    st('sm')
    for x in par_reads() + gw_reads(): put(x)
    pre = []
    if B:
        for T in range(4):
            for x in bias_reads(176, T): put(x)
    pre += [lambda: p.wait(lg='par')]
    for g in range(NG): pre += setup(g)
    if B:
        for T in range(4): pre += [lambda T=T: p.wait(lg='b1%d' % T)] + unpack(FAC + 16 * T, 176 + 8 * T, 8)
    nearly = max(0, len(pre) - opt.get('sp1', 12) * 8)
    for x in pre[:nearly] + sprinkle(pre[nearly:], dma_stage(1), opt.get('sp1', 12)): put(x)
    st('issued')
    pend = sync1(0)
    st('first')
    for x in reads1(0) + reads1(1) + gate_reads(0): put(x)
    fill = []
    prio = gate_step(0)
    p.marks = {}
    bar = lambda s_: 16 * s_ - 8
    events = {28: [nonce_load], bar(9) + 2: [get_nonce]}
    if B and not SJL:
        events[bar(1) + 2] = [sj_if(sj_read)]; events[bar(2) + 2] = [sj_if(sj_store)]
        events[bar(6) + 2] = [get_nonce, w2_signal]; del events[bar(9) + 2]
    if B and SJL:
        events[176] = [lambda: p.wait(vm='cd0'), sj_if(sj_read)]
        events[188] = [sj_if(sj_store)]
    if not B: fill += c_setup(70)[:8]
    assert LOOK == 3
    nslots = 240 if B else 160
    GAP = opt.get('gap', 6)
    if B:
        fill2 = ffn_epi(0) + ffn_epi(1) + ffn_epi(2) + ffn_epi(3) + [lambda: st('fst')] + lb_expect()
        cq = cD(0, 16); ncq = 0
        events[224] = [fl_issue('W')]
    rd = []
    for i in range(nslots):
        if i < 160:
            k, T = divmod(i, 4)
            if T == 0:
                if k + 2 < 40:
                    rd = reads1(k + 2)
                    if (k + 2) % 4 == 0:
                        pend += sync1((k + 2) // 4)
                        rd = gate_reads((k + 2) // 4) + rd; prio += gate_step((k + 2) // 4)
                        if k + 2 == 36: prio += gate_fin()
                p.wait(lg='k%d' % k)
            p(mfma1(k, T))
        else:
            if i == 160:
                for x in prio + fill: put(x)
                st('pass1'); prio = []; fill = fill2
                c_srd()
            if i % 2 == 0: p.wait(lg=['m%d' % (i - 160), 'm%d' % (i - 159)])
            p(mfma2(i - 160))
        budget = GAP
        if opt.get('fine') == 1 and i % 16 == 9 and i < 160: st('s%d' % i)
        if opt.get('fine') == 2 and i % 8 == 0 and i > 160: st('s%d' % i)
        m = i + L2 - 160
        if B and 0 <= m < 80:
            if m in (0, 32, 64): p.wait(vm='s2c%d' % (m // 32), lg='all'); p('s_barrier')
            for x in reads2(m): put(x); budget -= 1
        nrd = -(-len(rd) // (4 - i % 4))
        if i % 16 in (4, 5, 6) and i < 160: nrd = -(-len(rd) // (7 - i % 16))
        for _ in range(nrd): put(rd.pop(0)); budget -= 1
        if pend and (i % 2 == 1 or sum(not isinstance(x, str) for x in pend) > (23 - i % 16 if i % 16 >= 8 else 7 - i % 16) // 2 + 1):
            while isinstance(pend[0], str): put(pend.pop(0)); budget -= 1
            budget -= 3 if callable(pend[0]) else 1
            put(pend.pop(0))
            while pend and isinstance(pend[0], str): put(pend.pop(0)); budget -= 1
        elif B and i > 160 and i % 2 == 1 and cq and i >= opt.get('cstart', 165) and (ncq < 8 or (ncq < 24 and m > 32) or m > 64):
            put(cq.pop(0)); ncq += 1; budget -= 2
        for x in events.pop(i, []): put(x); budget -= 1
        if i == 146: assert not (B and pend); fill += c_setup()
        if i < 160:
            if i % 16 >= 13 or i % 16 < 8:
                n = 0
                while prio and budget > 0 and n < 2: put(prio.pop(0)); budget -= 1; n += 1
            want = -(-len(fill) // max(1, 158 - i)) if i >= 2 else 0
            for _ in range(min(want, budget)):
                if fill: put(fill.pop(0))
        elif i > 160:
            while fill and budget > 0: put(fill.pop(0)); budget -= 1
        p.check_depth()
    assert not pend and not rd and not events
    bpre = b_loads(0) + b_loads(1) + b_loads(2)
    assert not SJL
    if B:
        assert not fill
        for x in cq: put(x)
        st('pass2')
        signal(0, 'hf')()
        for x in scanA1(0): put(x)
        fl_check('W', False)()
        p.wait(lg='ex'); p('s_barrier')
        for x in ex_reads(0, 52): put(x)
        hid_srd(); w2_prefetch()
        p.wait(lg='exr0')
        for x in ex_prefix(0, 52, True) + ex_pub(0, 52): put(x)
        st('pub')
        NX = opt.get('nx', 19); NP = opt.get('np', 16)
        for x in cR(0, 6) + sprinkle(cR(6, 16) + ex_own(0, 52) + scanA2(0), (cD(16, NP) + bpre + [fl_issue(0)] + cD(NP, NX) if opt.get('cfirst', 0) else bpre + cD(16, NP) + [fl_issue(0)] + cD(NP, NX)), 3): put(x)
        e0 = [52 + 4 * k for k in range(8)]
        LBR = opt.get('lbr', -1)
        if LBR < 0: lb_loads(0, e0)
        st('end1')
        fl_check(0)()
        st('fok')
        NY = min(25, NX + opt.get('ny', 3))
        for x in a_loads(0) + a_loads(1) + cD(NX, NY): put(x)
        NX = NY
        if LBR < 0:
            st('lbstart'); lb_finish(0, e0); st('lbdone')
            for x in scanB(0, True): put(x)
            extra = {8: cR(16, 20)}
            sigS, geo = 2, 1
        else:
            extra = {LBR: [lambda: lb_loads(0, e0)], LBR + 1: [lambda: (st('lbstart'), lb_finish(0, e0), st('lbdone'))] + scanB(0, False), 8: cR(16, 20)}
            sigS, geo = LBR + 4, LBR + 4
    else:
        for x in prio + fill: put(x)
        st('pass1')
        c0 = 8 if AE else 0
        for x in interleave(scanA1(0), scanA1(1)): put(x)
        p.wait(lg='all'); p('s_barrier')
        for x in ex_reads(0, 52) + ex_reads(1, 72): put(x)
        hid_srd()
        p.wait(lg='exr1')
        for x in interleave(ex_prefix(0, 52, True), ex_prefix(1, 72, True)) + ex_pub(0, 52) + ex_pub(1, 72): put(x)
        st('pub')
        signal(0, 'gst')()
        fl_issue('W')()
        NA = opt.get('na', 20)
        for x in sprinkle(ex_own(0, 52) + ex_own(1, 72) + lb_expect() + scanA2(0) + scanA2(1), cD(c0, 16), 8) + cR(0, NA - 16) + cD(16, NA): put(x)
        e0 = [60 + 4 * k for k in range(8)]
        lb_loads(0, e0)
        fl_check('W')()
        w2_prefetch()
        for x in cR(NA - 16, 16): put(x)
        st('lbstart')
        lb_finish(0, e0)
        lb_loads(1, e0)
        fl_issue(0)()
        for x in sprinkle(scanB(0, True), bpre, 4): put(x)
        lb_finish(1, e0)
        st('lbdone'); st('end1')
        fl_check(0)()
        st('fok')
        for x in sprinkle(scanB(1, True), a_loads(0) + a_loads(1), 3): put(x)
        extra = {8: cR(16, 20)}
        sigS, geo = 2, 1
    NL = NX if B else NA
    xload = {i: c_dma(NL + i) for i in range(25 - NL)}
    phase2(p, opt, st, a_loads, b_loads, b_reg, c_read, signal, fl_issue, fl_check, extra, xload, sigS, geo)

def phase2(p, opt, st, a_loads, b_loads, b_reg, c_read, signal, fl_issue, fl_check, extra, xload, sigS, geo):
    put = p.put
    ACCB, ACCA = 96, 176
    vG, vX, vLR, vOut = 32, 52, 62, 67
    vCR, vLW, t = 72, 82, 84
    rXT, rO, rSM = 44, 16, 52
    def geom():
        r = []
        def srds():
            p('s_mul_i32 s40, s%d, 160' % sCT); p('s_mul_i32 s41, s%d, %d' % (sRT, 64 * 1280)); p('s_add_u32 s41, s41, s40')
            srd(p, rXT, sX, 64 * 1280 - 1280 + 160, 's41')
            p('s_lshl_b32 s41, s41, 1')
            srd(p, rO, sOUT, 64 * 2560 - 2560 + 320, 's41')
            p('s_lshl_b32 s41, s%d, 9' % sRT); p('s_add_u32 s41, s41, %d' % WS_G)
            p('s_cmp_eq_u32 s%d, 1' % sWV); p('s_cselect_b32 s65, 256, 0'); p('s_add_u32 s41, s41, s65')
            p('s_cmp_eq_u32 s%d, 2' % sWV)
            p('s_cselect_b32 s%d, s%d, s%d' % (rSM, sDSK, sB2)); p('s_cselect_b32 s%d, s%d, s%d' % (rSM + 1, sDSK + 1, sB2 + 1))
            p('s_cmp_lt_u32 s%d, 2' % sWV)
            p('s_cselect_b32 s%d, s%d, s%d' % (rSM, sWS, rSM)); p('s_cselect_b32 s%d, s%d, s%d' % (rSM + 1, sWS + 1, rSM + 1))
            p('s_cselect_b32 s40, s41, s40')
            p('s_mov_b32 s65, 160'); p('s_cselect_b32 s%d, 256, s65' % (rSM + 2))
            p('s_add_u32 s%d, s%d, s40' % (rSM, rSM)); p('s_addc_u32 s%d, s%d, 0' % (rSM + 1, rSM + 1)); p('s_mov_b32 s%d, 0x20000' % (rSM + 3))
        r.append(srds)
        for i in range(5):
            r += ['v_add_u32 v%d, %d, v0' % (t, 256 * i), 'v_mul_u32_u24 v%d, 0xcccd, v%d' % (t + 1, t), 'v_lshrrev_b32 v%d, 20, v%d' % (t + 1, t + 1),
                  'v_mul_u32_u24 v%d, 20, v%d' % (t + 2, t + 1), 'v_sub_u32 v%d, v%d, v%d' % (t + 2, t, t + 2),
                  'v_mul_u32_u24 v%d, 1280, v%d' % (t + 3, t + 1), 'v_lshl_add_u32 v%d, v%d, 3, v%d' % (t + 3, t + 2, t + 3),
                  ('buffer_load_dwordx2 v[%d:%d], v%d, %s, 0 offen' % (vX + 2 * i, vX + 2 * i + 1, t + 3, S4(rXT)), 'X'),
                  'v_lshlrev_b32 v%d, 1, v%d' % (vOut + i, t + 3), 'v_bfe_u32 v%d, v%d, 1, 2' % (t + 3, t + 1), 'v_xor_b32 v%d, v%d, v%d' % (t + 3, t + 3, t + 2), 'v_mul_u32_u24 v%d, 320, v%d' % (vLR + i, t + 1),
                  'v_add_u32 v%d, %d, v%d' % (vLR + i, PB, vLR + i), 'v_lshl_add_u32 v%d, v%d, 4, v%d' % (vLR + i, t + 3, vLR + i),
                  'v_lshl_add_u32 v%d, v%d, 3, s66' % (vCR + 2 * i, t + 2), 'v_lshl_add_u32 v%d, v%d, 3, s66' % (vCR + 2 * i + 1, t + 1)]
        r += ['v_and_b32 v%d, 15, v%d' % (t, vLANE), 'v_mul_u32_u24 v%d, 320, v%d' % (vLW, t), 'v_lshrrev_b32 v%d, 4, v%d' % (t + 1, vLANE),
              'v_bfe_u32 v%d, v%d, 1, 2' % (t + 2, t), 'v_xor_b32 v%d, v%d, v%d' % (t + 1, t + 1, t + 2),
              'v_lshl_add_u32 v%d, v%d, 4, v%d' % (vLW, t + 1, vLW), 'v_mul_u32_u24 v%d, %d, v%d' % (t + 1, 64 * 320, vWAVE),
              'v_add_u32 v%d, v%d, v%d' % (vLW, vLW, t + 1), 'v_add_u32 v%d, %d, v%d' % (vLW, PB, vLW),
              'v_lshl_add_u32 v%d, v%d, 3, s66' % (vLW + 1, t), 'v_lshlrev_b32 v%d, 2, v%d' % (48, vLANE)]
        return r
    def sm_dma():
        p('s_lshl_b32 s40, s%d, 8' % sWV); p('s_add_u32 m0, s40, %d' % SM2)
        p('buffer_load_dword v48, %s, 0 offen sc1 lds' % S4(rSM), tag='SM')
    def bias():
        def f_sync(): p.wait(vm=['SM', 'X']); p('s_barrier')
        r = [f_sync]
        r += [('ds_read_b64 v[%d:%d], v%d offset:%d' % (vG + 2 * m, vG + 2 * m + 1, vLW + 1, 128 * m), 'g') for m in range(4)]
        for i in range(5):
            r += [('ds_read_b64 v[%d:%d], v%d' % (t, t + 1, vCR + 2 * i + 1), 'c'), ('ds_read_b64 v[%d:%d], v%d offset:512' % (t + 2, t + 3, vCR + 2 * i), 'c'),
                  ('ds_read_b64 v[%d:%d], v%d offset:768' % (t + 4, t + 5, vCR + 2 * i), 'c')]
            for h in range(2):
                r += ['v_lshlrev_b32 v%d, 16, v%d' % (t + 6 + 2 * h, vX + 2 * i + h), 'v_and_b32 v%d, 0xffff0000, v%d' % (t + 7 + 2 * h, vX + 2 * i + h)]
            r.append(lambda: p.wait(lg='c'))
            for h in range(2):
                r += ['v_lshlrev_b32 v48, 16, v%d' % (t + 2 + h), 'v_and_b32 v49, 0xffff0000, v%d' % (t + 2 + h),
                      'v_lshlrev_b32 v50, 16, v%d' % (t + 4 + h), 'v_and_b32 v51, 0xffff0000, v%d' % (t + 4 + h)]
                for e in range(2):
                    d = (vCR if h else vX) + 2 * i + e
                    r += ['v_mul_f32 v%d, v%d, v%d' % (48 + e, 48 + e, t + 6 + 2 * h + e), 'v_mul_f32 v%d, v%d, v%d' % (d, t + 1, 50 + e),
                          'v_fmac_f32 v%d, v%d, v%d' % (d, t, 48 + e)]
        r += ['v_add_f32 v%d, v%d, v%d' % (vG + 2 * m, vG + 2 * m, vG + 2 * m) for m in range(4)]
        return r
    def scale():
        r = []
        for m in range(4):
            for n in range(5):
                r += ['v_mul_f32 v%d, v%d, v%d' % (ACCB + 20 * m + 4 * n + z, vG + 2 * m + 1, ACCB + 20 * m + 4 * n + z) for z in range(4)]
        return r
    def comb(k, pk):
        n, m = divmod(k, 4); a = ACCA + 20 * m + 4 * n; bb = ACCB + 20 * m + 4 * n
        if pk:
            for r in (0, 2): p('v_pk_fma_f32 %s, %s, %s, %s op_sel:[0,0,0] op_sel_hi:[0,1,1]' % (P2(bb + r), P2(vG + 2 * m), P2(a + r), P2(bb + r)))
        else:
            for r in range(4): p('v_fmac_f32 v%d, v%d, v%d' % (bb + r, vG + 2 * m, a + r))
        p('ds_write_b128 v%d, v[%d:%d] offset:%d' % (vLW, bb, bb + 3, m * 16 * 320 + n * 64), tag='w')
    p('s_mov_b32 s66, %d' % SM2)
    fill = []
    NS = 22; LA = 2
    NF0 = opt.get('nf0', 10)
    seq = list(range(NF0)); rest = list(range(NF0, 12)); sr = list(range(12, 22))
    for j in range(len(rest)):
        n = -(-(len(sr) - 3) // (len(rest) - j))
        seq += sr[:n] + [rest[j]]; sr = sr[n:]
    seq += sr
    pos = {r: i for i, r in enumerate(seq)}
    bq = []; nb = 3
    for i in range(NS):
        r = seq[i]; pre = []
        fill += extra.get(i, [])
        if i == sigS: fill += [signal(1, ['hs', 'gst'])]
        if i == geo: fill += geom() + [sm_dma]
        if i == geo + 3: fill += bias()
        if i == pos[12] - LA - 1: pre += [fl_issue(1)]
        if i == pos[12] - LA: pre += [fl_check(1)]
        if i == pos[11] + 1: fill += scale()
        if i == pos[13] + 1:
            fill = [x for n in range(5) for x in c_read(20 + n, AX + 8 * n)] + fill
        if i == pos[13] + 3: pre += [lambda: (p.wait(lg='cr24'), p('s_barrier'))]
        p.wait(vm=['A%d' % r, 'B%d' % r])
        if opt.get('fine') == 3 and i not in (0, 6, 12): st('r%d' % i)
        if i == 0: st('p2first')
        if i == 6: st('p2_6')
        if i == 12: st('p2_12')
        while nb < 12 and pos[nb - 3] < i: bq.append([nb, b_loads(nb)]); nb += 1
        nxt = a_loads(seq[i + LA], i + LA) if i + LA < NS else []
        if bq:
            f, it = bq[0]; left = sum(not isinstance(x, str) for x in it)
            n = -(-left // max(1, pos[f] - LA - i + 1))
            while n:
                x = it.pop(0); nxt.append(x)
                if not isinstance(x, str): n -= 1
            if not it: bq.pop(0)
        nxt += xload.get(i, [])
        acc = ACCB if r < 12 else ACCA
        first = r in (0, 12)
        bh = AH + 16 * (i % 3)
        k = 0
        for n in range(5):
            for m in range(4):
                a = acc + 20 * m + 4 * n
                bk, bw = b_reg(r, n)
                p('v_mfma_f32_16x16x32_bf16 v[%d:%d], %s[%d:%d], a[%d:%d], %s' % (a, a + 3, bk, bw, bw + 3, bh + 4 * m, bh + 4 * m + 3,
                                                                              '0' if first else 'v[%d:%d]' % (a, a + 3)))
                k += 1
                if k == 1:
                    for x in pre: put(x)
                if nxt and (k % 2 == 1 or sum(not isinstance(x, str) for x in nxt) > (21 - k) // 2):
                    while isinstance(nxt[0], str): put(nxt.pop(0))
                    put(nxt.pop(0))
                for _ in range(opt.get('fill2', 3) if i < 12 else 2):
                    if fill: put(fill.pop(0))
                if i == NS - 1 and k > 3: comb(k - 4, False)
        assert not nxt and not (i == NS - 2 and fill)
        p.check_depth()
    assert not bq and nb == 12
    assert not fill
    st('mainend')
    for k in range(17, 20): comb(k, True)
    p.wait(lg='all'); p('s_barrier')
    st('red')
    R = ACCA
    for i in range(5):
        for w in range(4):
            p('ds_read_b128 v[%d:%d], v%d offset:%d' % (R + 16 * i + 4 * w, R + 16 * i + 4 * w + 3, vLR + i, w * 64 * 320), tag='r%d' % i)
    for i in range(5):
        p.wait(lg='r%d' % i)
        for r in (0, 2):
            p('v_pk_add_f32 %s, %s, %s' % (P2(R + 16 * i + r), P2(R + 16 * i + r), P2(R + 16 * i + 4 + r)))
            p('v_pk_add_f32 %s, %s, %s' % (P2(R + 16 * i + 8 + r), P2(R + 16 * i + 8 + r), P2(R + 16 * i + 12 + r)))
        bb = {0: vX + 2 * i, 2: vCR + 2 * i}
        for r in (0, 2): p('v_pk_add_f32 %s, %s, %s' % (P2(bb[r]), P2(bb[r]), P2(R + 16 * i + r)))
        for r in (0, 2): p('v_pk_add_f32 %s, %s, %s' % (P2(R + 16 * i + r), P2(bb[r]), P2(R + 16 * i + 8 + r)))
        p('buffer_store_dwordx4 v[%d:%d], v%d, %s, 0 offen%s' % (R + 16 * i, R + 16 * i + 3, vOut + i, S4(rO), opt.get('out_sc', SC)), tag='o')
    st('stored')
    if opt.get('echo'):
        p.wait(vm='all'); st('drained'); p.wait(lg='all', force=True)
        l = p.newlabel('L_echo'); ins = 's_memtime' if opt['echo'] == 'cyc' else 's_memrealtime'
        if opt['echo'] == 'cyc': p('s_mov_b32 s1, 20000')
        else: p('s_sub_u32 s1, s%d, s0' % sST)
        p(ins + ' s[4:5]'); p.wait(lg='all', force=True)
        p.label(l)
        p(ins + ' s[6:7]'); p.wait(lg='all', force=True)
        p('s_sub_u32 s6, s6, s4'); p('s_cmp_lt_u32 s6, s1'); p('s_cbranch_scc1 ' + l)
    if opt.get('stamps'):
        p.wait(vm='all'); st('drained'); st('rt1')
    st.dump(sWS, 60, 48)
```

```python
from emit import Prog
from common import *

LDS_BYTES = 163840
SPIN_MAX = 100000
SLOT = 32768
XREG = 4 * SLOT
SMO = XREG + 28672 + 2048
TRO = 4096
EXO = 6144
SM2 = 2 * 8192 + 6144
PB = 24576
CPL = [SLOT, XREG, 2 * SLOT, 3 * SLOT]
LOG2E = '0x3fb8aa3b'
INV2PI = '0.15915494'
SC = ' sc1'

sX, sLRE, sLIM, sBRE, sBIM, sCRE, sCIM, sLDT = 4, 6, 8, 10, 12, 14, 16, 18
sDSK, sW1, sB1, sW2, sB2, sGATE, sOUT, sDBG, sWS = 20, 24, 26, 28, 30, 32, 34, 36, 38
rX, rP0, rP1, rWS = 44, 48, 52, 56
rE, rHID, rW2P, rSJ, rS2, rC = 44, 48, 8, 8, 92, 92
sSB = 24
sM = 12
SIG = 70
sNON, sHF, sRB, sCG, sG, sQ, sWV, sRT, sCT, sSEL, sFL = 80, 81, 82, 83, 84, 85, 86, 87, 88, 89, 90
sSEL5 = sSEL
sSJO2 = 26
sSJO, sSJD, sSJK = 91, 96, 22
sST = 100
vLANE, vWAVE, vHH = 1, 2, 3
vDX, vDS, vD2 = 4, 8, 10
vRX, vRS, vRF = 12, 20, 28
vSTF, vL16, vEXA, vTW, vEO = 32, 33, 34, 36, 40
vDJ = 62
vB, vFP, vA = 41, 43, 44
vZ, vPOLL = 45, 46
vDC, vRC, vWP = 4, 6, 92
vT = 48
vN = 79
vGA = 80
vGW = 52
vST = 95
SAC = [176, 96]
TAB = [208, 128]
CON = [240, 160]
FAC = 96
AX = 0
AW = 160
AW2 = 208
AH = 160
PARTS = [(0, 12)]

def order(n, c, delta):
    return sorted(range(n), key=lambda i: (i - (delta if i % 4 == c else 0), 0 if i % 4 == c else 1))
def P2(r): return 'v[%d:%d]' % (r, r + 1)
def S4(r): return 's[%d:%d]' % (r, r + 3)
def S2(r): return 's[%d:%d]' % (r, r + 1)
def cmul(dr, di, ar, ai, br, bi):
    return ['v_mul_f32 v%d, v%d, v%d' % (dr, ar, br), 'v_mul_f32 v%d, v%d, v%d' % (di, ar, bi),
            'v_fma_f32 v%d, -v%d, v%d, v%d' % (dr, ai, bi, dr), 'v_fmac_f32 v%d, v%d, v%d' % (di, ai, br)]
def cm(d, a, b): return cmul(d, d + 1, a, a + 1, b, b + 1)
def cfma(dr, di, a, br, bi):
    return ['v_fmac_f32 v%d, v%d, v%d' % (dr, a, br), 'v_fmac_f32 v%d, v%d, v%d' % (di, a, bi),
            'v_fma_f32 v%d, -v%d, v%d, v%d' % (dr, a + 1, bi, dr), 'v_fmac_f32 v%d, v%d, v%d' % (di, a + 1, br)]
def pcfma(d, a, b):
    return ['v_pk_fma_f32 %s, %s, %s, %s op_sel:[0,0,0] op_sel_hi:[0,1,1]' % (P2(d), P2(a), P2(b), P2(d)),
            'v_pk_fma_f32 %s, %s, %s, %s op_sel:[1,1,0] op_sel_hi:[1,0,1] neg_lo:[1,0,0]' % (P2(d), P2(a), P2(b), P2(d))]
def pcmul(d, a, b):
    return ['v_pk_mul_f32 %s, %s, %s op_sel:[0,0] op_sel_hi:[0,1]' % (P2(d), P2(a), P2(b)),
            'v_pk_fma_f32 %s, %s, %s, %s op_sel:[1,1,0] op_sel_hi:[1,0,1] neg_lo:[1,0,0]' % (P2(d), P2(a), P2(b), P2(d))]
def csq(d, a):
    return ['v_mul_f32 v%d, v%d, v%d' % (d, a, a), 'v_add_f32 v%d, v%d, v%d' % (d + 1, a, a),
            'v_fma_f32 v%d, -v%d, v%d, v%d' % (d, a + 1, a + 1, d), 'v_mul_f32 v%d, v%d, v%d' % (d + 1, d + 1, a + 1)]
def interleave(*ls):
    out = []; ls = [list(l) for l in ls]
    while any(ls):
        for l in ls:
            if l: out.append(l.pop(0))
    return out
def sprinkle(main, extra, every):
    out = []; extra = list(extra)
    for i, x in enumerate(main):
        out.append(x)
        if i % every == every - 1 and extra:
            while isinstance(extra[0], str): out.append(extra.pop(0))
            out.append(extra.pop(0))
    return out + extra
def unpack(dst, src, n):
    r = []
    for k in range(n):
        r.append('v_lshlrev_b32 v%d, 16, v%d' % (dst + 2 * k, src + k))
        r.append('v_and_b32 v%d, 0xffff0000, v%d' % (dst + 2 * k + 1, src + k))
    return r

def dma_stage(s):
    sl = (s % 4) * SLOT; tg = 'st%d' % s; so = SIG + s
    r = ['s_add_u32 m0, s43, %d' % sl, 's_mul_i32 s61, s%d, s63' % so]
    r += [('buffer_load_dwordx4 v%d, %s, s%d offen offset:%d lds' % (vDX + i, S4(rX), so, 1024 * i), tg) for i in range(4)]
    r += ['s_add_u32 m0, s43, %d' % (sl + 4096)]
    r += [('buffer_load_dwordx4 v%d, %s, s61 offen offset:%d lds' % (vD2 + i, S4(rP0), 1024 * i), tg) for i in range(2)]
    r += [('buffer_load_dwordx4 v%d, %s, s61 offen offset:%d lds' % (vD2 + i, S4(rP1), 1024 * i + 2048), tg) for i in range(2)]
    return r

def gen(name, opt):
    p = Prog()
    st = Stamps(p, sST, vST, opt.get('stamps'))
    st.echo = opt.get('echo')
    def put(x):
        if callable(x): x()
        elif isinstance(x, tuple): p(x[0], tag=x[1])
        else: p(x)
    p.put = put
    p.label(name)
    p('s_cmp_ge_u32 s2, 256')
    p('s_cbranch_scc1 L_end')
    p('s_load_dwordx16 s[4:19], s[0:1], 0')
    p('s_load_dwordx8 s[20:27], s[0:1], 64')
    p('s_load_dwordx8 s[28:35], s[0:1], 96')
    p('s_load_dwordx4 s[36:39], s[0:1], 128')
    p('s_memrealtime s[64:65]')
    if opt.get('stamps'): p('s_memrealtime s[66:67]'); p('%s s[68:69]' % ('s_memrealtime' if opt['stamps'] == 2 else 's_memtime'))
    p('s_lshr_b32 s3, s2, 3')
    code_prefetch(p, 'L_end', 44, 40, 3)
    p('v_and_b32 v%d, 63, v0' % vLANE)
    p('v_lshrrev_b32 v%d, 6, v0' % vWAVE)
    p('s_and_b32 s%d, s2, 7' % sHF)
    p('s_lshr_b32 s40, s%d, 1' % sHF)
    p('s_lshl_b32 s%d, s40, 2' % sRB)
    p('s_and_b32 s41, s3, 3')
    p('v_readfirstlane_b32 s%d, v%d' % (sWV, vWAVE))
    p('s_add_u32 s%d, s%d, s41' % (sRB, sRB))
    p('s_and_b32 s%d, s%d, 1' % (sHF, sHF))
    p('s_lshr_b32 s%d, s3, 2' % sCG)
    p('s_add_u32 s41, s41, s%d' % sCG); p('s_and_b32 s41, s41, 3'); p('s_lshl_b32 s41, s41, 3'); p('s_or_b32 s41, s41, 0x80000')
    p('s_mul_i32 s40, s40, 5'); p('s_add_u32 s40, s40, 1'); p('s_lshr_b32 s40, s40, 1')
    p('s_mul_i32 s60, s%d, 5' % sHF); p('s_add_u32 s40, s40, s60')
    if not opt.get('rot', 1): p('s_mov_b32 s40, 0')
    p('s_sub_u32 s60, s40, 10'); p('s_cmp_ge_u32 s40, 10'); p('s_cselect_b32 s40, s60, s40')
    tabs = [order(10, c, opt.get('d1', 3)) for c in range(4)]
    if opt.get('hyb'): tabs = [[0] + [1 + x for x in order(9, c, opt.get('d1', 3))] for c in range(4)]
    def sigma(i):
        lit = sum(tabs[c][i] << (8 * c) for c in range(4)); s = SIG + i
        return ['s_bfe_u32 s%d, 0x%x, s41' % (s, lit), 's_add_u32 s%d, s%d, s40' % (s, s), 's_sub_u32 s60, s%d, 10' % s,
                's_min_u32 s%d, s60, s%d' % (s, s), 's_lshl_b32 s%d, s%d, 7' % (s, s)]
    for x in sigma(0): p(x)
    p('s_mul_i32 s%d, s%d, 10' % (sG, sHF))
    p('s_lshl_b32 s%d, s%d, 1' % (sQ, sCG))
    p('s_add_u32 s60, s%d, 2' % sCG)
    p('s_cmp_lt_u32 s%d, 2' % sCG)
    p('s_cselect_b32 s60, s%d, s60' % sQ)
    p('s_cselect_b32 s63, 1, 1536')
    p('s_add_u32 s%d, s%d, s60' % (sG, sG))
    p('s_mul_i32 s60, s%d, 12' % sHF)
    p('s_add_u32 s%d, s%d, s60' % (sQ, sQ))
    p('s_sub_u32 s%d, s%d, 4' % (sQ, sQ))
    t = vT
    p('v_lshrrev_b32 v%d, 3, v%d' % (t, vLANE))
    p('v_and_b32 v%d, 7, v%d' % (t + 1, vLANE))
    p('v_lshrrev_b32 v%d, 4, v%d' % (t + 2, vLANE))
    p('v_and_b32 v%d, 3, v%d' % (t + 3, t))
    p('v_lshrrev_b32 v%d, 5, v%d' % (vHH, vLANE))
    p('v_lshl_add_u32 v%d, v%d, 4, v%d' % (t + 3, vHH, t + 3))
    p('v_lshl_add_u32 v%d, v%d, 5, v%d' % (t + 3, vWAVE, t + 3))
    p('v_mul_u32_u24 v%d, 1280, v%d' % (t + 3, t + 3))
    p('v_xor_b32 v%d, v%d, v%d' % (t + 5, t + 1, t + 2))
    p('v_xor_b32 v%d, 4, v%d' % (t + 6, t + 5))
    for i in range(4):
        p('v_lshl_add_u32 v%d, v%d, 4, v%d' % (vDX + i, t + 5 + (i & 1), t + 3))
        if i: p('v_add_u32 v%d, %d, v%d' % (vDX + i, 4096 * i, vDX + i))
    p('v_and_b32 v%d, 1, v%d' % (t + 7, vWAVE))
    p('v_lshl_add_u32 v%d, v%d, 4, v%d' % (t + 7, t + 7, t))
    p('v_mul_u32_u24 v%d, 1280, v%d' % (t + 7, t + 7))
    p('v_lshl_add_u32 v%d, v%d, 4, v%d' % (vDS, t + 5, t + 7))
    p('v_lshl_add_u32 v%d, v%d, 4, v%d' % (vDS + 1, t + 6, t + 7))
    p('v_add_u32 v%d, %d, v%d' % (vDS + 1, 8 * 1280 - 1024, vDS + 1))
    p('v_lshl_add_u32 v%d, v%d, 4, v%d' % (t + 7, vWAVE, t))
    p('v_mul_u32_u24 v%d, 3072, v%d' % (t + 7, t + 7))
    p('v_and_b32 v%d, 1, v%d' % (t + 8, t + 2))
    p('v_lshlrev_b32 v%d, 2, v%d' % (t + 8, t + 8))
    p('v_xor_b32 v%d, v%d, v%d' % (t + 8, t + 8, t + 1))
    p('v_lshl_add_u32 v%d, v%d, 4, v%d' % (vD2, t + 8, t + 7))
    p('s_cmp_lt_u32 s%d, 2' % sCG)
    p('s_cselect_b64 vcc, -1, 0')
    p('v_add_u32 v%d, %d, v%d' % (vD2 + 1, 8 * 3072 - 1024, vD2))
    p('v_cndmask_b32 v%d, v%d, v%d, vcc' % (vD2, vD2, vDS))
    p('v_cndmask_b32 v%d, v%d, v%d, vcc' % (vD2 + 1, vD2 + 1, vDS + 1))
    p('s_lshl_b32 s42, s%d, 7' % sQ); p('s_max_i32 s42, s42, 0')
    p('s_lshl_b32 s43, s%d, 13' % sWV)
    a = 58
    p('v_lshl_add_u32 v%d, v%d, 5, v%d' % (a, vWAVE, vLANE))
    p('v_min_u32 v%d, 119, v%d' % (a, a))
    p('v_lshlrev_b32 v%d, 4, v%d' % (a + 1, a))
    p('s_lshl_b32 s60, s%d, 6' % sG)
    p('v_cmp_le_u32 s[92:93], 8, v%d' % a); p('v_cmp_le_u32 s[94:95], 16, v%d' % a); p('v_cmp_le_u32 s[96:97], 24, v%d' % a); p('v_cmp_le_u32 s[98:99], 40, v%d' % a)
    p('v_and_b32 v%d, 0x70, v%d' % (a + 2, a + 1)); p('v_add_u32 v%d, s60, v%d' % (a + 2, a + 2)); p('v_min_u32 v%d, 1264, v%d' % (a + 2, a + 2))
    p('v_subrev_u32 v%d, %d, v%d' % (a + 3, 16 * 24, a + 1)); p('v_add_u32 v%d, s42, v%d' % (a + 3, a + 3))
    p('v_cndmask_b32 v%d, v%d, v%d, s[96:97]' % (a + 2, a + 2, a + 3))
    p('v_subrev_u32 v%d, %d, v%d' % (a + 3, 16 * 40, a + 1))
    p('v_cndmask_b32 v%d, v%d, v%d, s[98:99]' % (a + 2, a + 2, a + 3))
    p('v_mov_b32 v%d, 0' % (a + 3))
    p('s_mul_i32 s60, s%d, %d' % (sRB, 128 * 1280))
    p('s_mul_i32 s61, s%d, %d' % (sG, 32 * 1280))
    p.wait(lg='all')
    if opt.get('echo'): p('s_mov_b32 s0, s64')
    if opt.get('stamps'):
        p('v_writelane_b32 v%d, s66, 0' % vST); p('v_writelane_b32 v%d, s68, 1' % vST); st.names += ['rt0', 'start']; st.n = 2
    st('karg')
    if opt.get('wsoff'): p('s_add_u32 s%d, s%d, %d' % (sWS, sWS, opt['wsoff'] << 20)); p('s_addc_u32 s%d, s%d, 0' % (sWS + 1, sWS + 1))
    srd(p, rX, sX, 128 * 1280, 's60')
    p('s_mov_b32 s65, s61')
    d0 = dma_stage(0)
    XF = opt.get('xfirst', 0)
    def small():
        p('s_lshl_b32 s60, s%d, 9' % sWV); p('s_add_u32 m0, s60, %d' % SMO)
        p('v_mov_b32 v%d, s%d' % (a + 4, sLRE)); p('v_mov_b32 v%d, s%d' % (a + 5, sLRE + 1))
        for m, sb in ((92, sLIM), (94, sLDT), (96, sB1), (98, sGATE)):
            p('v_mov_b32 v%d, s%d' % (a + 6, sb)); p('v_mov_b32 v%d, s%d' % (a + 7, sb + 1))
            p('v_cndmask_b32 v%d, v%d, v%d, %s' % (a + 4, a + 4, a + 6, S2(m))); p('v_cndmask_b32 v%d, v%d, v%d, %s' % (a + 5, a + 5, a + 7, S2(m)))
        p('v_lshl_add_u64 v[%d:%d], v[%d:%d], 0, v[%d:%d]' % (a + 4, a + 5, a + 2, a + 3, a + 4, a + 5))
        p('s_mov_b32 exec_hi, 0')
        p('global_load_lds_dwordx4 v[%d:%d], off' % (a + 4, a + 5), tag='sm')
        p('s_mov_b64 exec, -1')
    if not XF: small()
    for x in d0[:6]: put(x)
    if XF: small()
    p('s_cmp_lt_u32 s%d, 2' % sWV)
    p('s_cselect_b32 s66, s%d, s%d' % (sBRE, sBIM)); p('s_cselect_b32 s67, s%d, s%d' % (sBRE + 1, sBIM + 1))
    p('s_add_u32 s66, s66, s65'); p('s_addc_u32 s67, s67, 0')
    p('s_add_u32 s%d, s%d, s42' % (rP0, sW1)); p('s_addc_u32 s%d, s%d, 0' % (rP0 + 1, sW1 + 1))
    p('s_sub_u32 s%d, %d, s42' % (rP0 + 2, 640 * 3072))
    p('s_cmp_lt_u32 s%d, 2' % sCG)
    p('s_cselect_b32 s%d, s66, s%d' % (rP0, rP0)); p('s_cselect_b32 s%d, s67, s%d' % (rP0 + 1, rP0 + 1))
    p('s_cselect_b32 s%d, %d, s%d' % (rP0 + 2, 64 * 1280, rP0 + 2)); p('s_mov_b32 s%d, 0x20000' % (rP0 + 3))
    p('s_mov_b32 s60, %d' % (128 - 2048)); p('s_cselect_b32 s60, %d, s60' % (32 * 1280 - 2048)); p('s_ashr_i32 s65, s60, 31')
    p('s_add_u32 s%d, s%d, s60' % (rP1, rP0)); p('s_addc_u32 s%d, s%d, s65' % (rP1 + 1, rP0 + 1)); p('s_sub_u32 s%d, s%d, s60' % (rP1 + 2, rP0 + 2))
    put(d0[6])
    p('s_mov_b32 s%d, 0x20000' % (rP1 + 3))
    for x in d0[7:]: put(x)
    st('dma0')
    p('s_mov_b64 %s, s[66:67]' % S2(sSB))
    srd(p, rWS, sWS, WS_USED)
    l = p.newlabel('L_nn')
    p('s_or_b32 s64, s64, 1')
    p('v_mov_b32 v%d, 0' % vZ)
    p('s_or_b32 s60, s2, s%d' % sWV)
    p('s_cmp_lg_u32 s60, 0')
    p('s_cbranch_scc1 ' + l)
    p('v_mov_b32 v52, s64')
    p('s_mov_b64 exec, 1')
    p('global_store_dword v%d, v52, %s sc1' % (vZ, S2(sDBG)), optional=True)
    p('s_mov_b64 exec, -1')
    p.label(l)
    for i in range(1, 10):
        for x in sigma(i): p(x)
    for x in addr_setup() + late_setup(opt.get('cls', 1)): put(x)
    p('s_cmp_lt_u32 s%d, 2' % sCG)
    p('s_cbranch_scc1 L_typeA')
    save = (list(p.vm), list(p.lg), p.smem, st.n, st.pending); seen0 = set(p.seen)
    body(p, 'B', opt, st)
    names1 = list(st.names)
    p('s_branch L_end')
    p.label('L_typeA')
    p.vm, p.lg, p.smem, st.n, st.pending = list(save[0]), list(save[1]), save[2], save[3], save[4]
    st.names = st.names[:st.n]; p.seen = seen0
    body(p, 'A', opt, st)
    p.namesA = list(st.names); st.names = names1
    p.label('L_end')
    p('s_endpgm')
    p.finalize(opt.get('verbose'))
    return p, dict(A=p.namesA, B=st.names)

def addr_setup():
    n_, h_ = vN, vHH
    r = ['v_and_b32 v%d, 31, v%d' % (n_, vLANE), 'v_lshrrev_b32 v48, 1, v%d' % n_, 'v_and_b32 v48, 7, v48',
         'v_xor_b32 v48, v48, v%d' % h_, 'v_lshlrev_b32 v49, 7, v%d' % n_, 'v_add_u32 v49, s43, v49',
         'v_lshrrev_b32 v50, 4, v%d' % n_, 'v_lshlrev_b32 v50, 13, v50', 'v_and_b32 v51, 15, v%d' % n_, 'v_lshl_add_u32 v50, v51, 7, v50']
    for s in range(4):
        r += ['v_xor_b32 v51, %d, v48' % (2 * s), 'v_lshl_add_u32 v%d, v51, 4, v49' % (vRX + s), 'v_lshl_add_u32 v%d, v51, 4, v50' % (vRS + s),
              'v_add_u32 v%d, 0x10000, v%d' % (vRX + 4 + s, vRX + s), 'v_add_u32 v%d, 0x10000, v%d' % (vRS + 4 + s, vRS + s)]
    r += ['v_bfe_u32 v48, v%d, 2, 2' % vLANE, 'v_lshl_add_u32 v49, v%d, 3, v48' % h_, 'v_lshlrev_b32 v49, 7, v49',
          'v_lshrrev_b32 v50, 1, v48', 'v_lshl_add_u32 v49, v50, 6, v49', 'v_and_b32 v50, 1, v%d' % vLANE,
          'v_lshl_add_u32 v49, v50, 5, v49', 'v_bfe_u32 v50, v%d, 4, 1' % vLANE, 'v_lshl_add_u32 v49, v50, 4, v49',
          'v_bfe_u32 v50, v%d, 1, 1' % vLANE, 'v_lshl_add_u32 v%d, v50, 3, v49' % vRF, 'v_xor_b32 v%d, 64, v%d' % (vRF + 1, vRF),
          'v_add_u32 v%d, 0x10000, v%d' % (vRF + 2, vRF), 'v_add_u32 v%d, 0x10000, v%d' % (vRF + 3, vRF + 1)]
    r += ['s_lshl_b32 s62, s%d, 3' % sHF, 's_add_u32 s62, s62, s%d' % sCG, 's_lshl_b32 s%d, s62, 8' % sFL, 's_lshl_b32 s62, s62, 2',
          's_and_b32 s65, s%d, 1' % sWV, 's_lshl_b32 s65, s65, 1', 's_add_u32 s62, s62, s65', 's_lshl_b32 s65, s65, 6', 's_add_u32 s%d, s%d, s65' % (sFL, sFL),
          's_lshr_b32 s65, s%d, 1' % sWV, 's_lshl_b32 s66, s65, 6', 's_add_u32 s62, s62, s66',
          's_lshl_b32 s66, s%d, 1' % sRB, 's_add_u32 s65, s65, s66', 's_mul_i32 s64, s65, %d' % HID_RT,
          's_lshl_b32 s65, s65, 12', 's_add_u32 s%d, s%d, s65' % (sFL, sFL), 's_add_u32 s%d, s%d, %d' % (sFL, sFL, WS_FH),
          's_and_b32 s65, s%d, 1' % sWV, 's_lshl_b32 s65, s65, 11', 's_add_u32 s64, s64, s65',
          'v_add_u32 v48, s62, v%d' % h_, 's_lshl_b32 s62, s%d, 7' % sRB, 'v_add_lshl_u32 v%d, v48, s62, 3' % (vGA + 9),
          'v_bfe_u32 v49, v48, 2, 2', 'v_bfe_u32 v50, v48, 4, 1', 'v_lshl_add_u32 v49, v49, 1, v50',
          'v_and_b32 v50, 3, v48', 'v_lshl_add_u32 v49, v49, 2, v50',
          'v_lshrrev_b32 v48, 5, v48', 'v_lshlrev_b32 v48, 13, v48', 'v_lshl_add_u32 v48, v49, 7, v48',
          'v_bfe_u32 v49, v49, 1, 3', 'v_lshrrev_b32 v50, 2, v%d' % n_, 'v_xor_b32 v49, v49, v50',
          'v_lshl_add_u32 v48, v49, 4, v48', 'v_and_b32 v49, 3, v%d' % n_, 'v_lshl_add_u32 v%d, v49, 2, v48' % vGA,
          'v_add_u32 v%d, 0x10000, v%d' % (vGA + 1, vGA), 'v_lshlrev_b32 v%d, 2, v%d' % (vGA + 2, n_),
          'v_add_u32 v%d, %d, v%d' % (vGA + 2, SMO + 640, vGA + 2), 'v_mov_b32 v%d, 0' % (vGA + 8),
          's_lshr_b32 s62, s43, 1', 'v_lshlrev_b32 v%d, 4, v%d' % (vL16, vLANE)]
    return r

def sidejob_setup(p, SJO):
    D = sSJD
    for x in ['s_cmp_lt_u32 s2, 224', 's_cselect_b32 s%d, 1, 0' % sSJK, 's_cmp_lt_u32 s%d, 3' % sWV, 's_cselect_b32 s%d, s%d, 0' % (sSJK, sSJK),
              's_sub_u32 s41, s2, 64', 's_lshr_b32 s65, s41, 4',
              's_and_b32 s41, s41, 15', 's_mul_i32 s41, s41, 3', 's_add_u32 s41, s41, s%d' % sWV,
              's_mul_i32 s%d, s41, %d' % (sSJO2, 32 * 1280), 's_lshl_b32 s60, s65, 7', 's_add_u32 s%d, s%d, s60' % (sSJO2, sSJO2),
              's_lshl_b32 s65, s65, 2',
              's_bfe_u32 s60, s41, 0x10001', 's_mul_i32 s60, s60, 24', 's_and_b32 s40, s41, 1', 's_add_u32 s60, s60, s40',
              's_lshr_b32 s41, s41, 2', 's_lshl_b32 s41, s41, 1', 's_add_u32 s41, s41, s60', 's_mul_i32 s41, s41, 5120',
              's_add_u32 s41, s41, %d' % WS_W2P,
              's_mov_b32 s%d, s%d' % (rSJ, sW2), 's_mov_b32 s%d, s%d' % (rSJ + 1, sW2 + 1), 's_mov_b32 s%d, %d' % (rSJ + 2, 1536 * 1280),
              's_mov_b32 s%d, 0x20000' % (rSJ + 3),
              's_cmp_lg_u32 s%d, 0' % sSJK, 's_cselect_b32 s%d, s%d, 0' % (rSJ + 2, rSJ + 2), 's_cselect_b32 s40, 0, 0x7ff00000',
              'v_add_u32 v%d, s40, v%d' % (vDJ + 5, vL16)]: p(x)
    for e in range(4):
        p('s_add_u32 s60, s65, %d' % e); p('s_mul_i32 s40, s60, 52'); p('s_lshr_b32 s40, s40, 8')
        p('s_mul_i32 s%d, s40, %d' % (D + e, W2P_CT - 5 * 1024)); p('s_lshl_b32 s60, s60, 10')
        p('s_add_u32 s%d, s%d, s60' % (D + e, D + e)); p('s_add_u32 s%d, s%d, s41' % (D + e, D + e))
    for x in ['v_lshrrev_b32 v48, 3, v%d' % vLANE, 'v_mul_u32_u24 v48, 1280, v48', 'v_and_b32 v49, 7, v%d' % vLANE, 'v_lshl_add_u32 v%d, v49, 4, v48' % vDJ,
              'v_lshrrev_b32 v48, 4, v%d' % vLANE, 'v_bfe_u32 v49, v%d, 2, 2' % vLANE, 'v_lshl_add_u32 v48, v48, 3, v49', 'v_lshlrev_b32 v48, 7, v48',
              'v_and_b32 v49, 3, v%d' % vLANE, 'v_lshl_add_u32 v48, v49, 3, v48', 's_add_u32 s60, s43, %d' % SJO, 'v_add_u32 v%d, s60, v48' % (vDJ + 4)]: p(x)
    for i in range(1, 4): p('v_add_u32 v%d, %d, v%d' % (vDJ + i, i * (8 * 1280 - 1024), vDJ))

def late_setup(CLS):
    n_, h_ = vN, vHH
    return ['v_bfe_u32 v48, v%d, 2, 1' % n_, 'v_lshlrev_b32 v48, 10, v48',
            'v_lshl_add_u32 v48, v%d, 9, v48' % h_, 'v_lshrrev_b32 v49, 3, v%d' % n_, 'v_lshl_add_u32 v48, v49, 6, v48',
            'v_and_b32 v49, 3, v%d' % n_, 'v_lshl_add_u32 v%d, v49, 4, v48' % vSTF,
            'v_lshlrev_b32 v%d, 3, v%d' % (vEXA + 1, n_), 'v_lshl_add_u32 v48, v%d, 1, v%d' % (vWAVE, h_),
            'v_lshl_add_u32 v%d, v48, 8, v%d' % (vEXA, vEXA + 1),
            's_add_u32 s6, s43, %d' % TRO,
            'v_lshlrev_b32 v48, 10, v%d' % h_, 'v_lshl_add_u32 v48, v%d, 4, v48' % n_, 'v_add_u32 v%d, s6, v48' % vTW,
            'v_xor_b32 v%d, 0x240, v%d' % (vTW + 1, vTW),
            'v_lshrrev_b32 v48, 4, v%d' % vLANE, 'v_lshlrev_b32 v48, 7, v48', 'v_bfe_u32 v49, v%d, 2, 2' % vLANE,
            'v_lshl_add_u32 v48, v49, 4, v48', 'v_and_b32 v49, 1, v%d' % vLANE, 'v_lshl_add_u32 v48, v49, 3, v48',
            'v_bfe_u32 v49, v%d, 1, 1' % vLANE, 'v_mul_u32_u24 v49, 0x240, v49', 'v_add_u32 v48, v48, v49',
            'v_add_u32 v%d, s6, v48' % (vTW + 2), 'v_xor_b32 v%d, 64, v%d' % (vTW + 3, vTW + 2),
            's_sub_u32 s6, s%d, 1' % sRB, 'v_sub_u32 v48, s6, v%d' % h_, 'v_lshlrev_b32 v48, 9, v48',
            'v_lshl_add_u32 v%d, v%d, 4, v48' % (vEO, n_),
            's_lshr_b32 s6, s%d, 2' % sRB, 's_lshl_b32 s6, s6, 3', 's_lshr_b32 s7, s3, 2', 's_add_u32 s%d, s6, s7' % sRT,
            's_lshl_b32 s6, s%d, 2' % sHF, 's_and_b32 s7, s3, 3', 's_add_u32 s%d, s6, s7' % sCT,
            's_sub_u32 s6, s%d, s%d' % (sCT, sRT) if CLS else 's_mov_b32 s6, s%d' % sCT, 's_and_b32 s6, s6, 3', 's_lshl_b32 s6, s6, 3', 's_or_b32 s%d, s6, 0x80000' % sSEL,
            'v_mul_u32_u24 v%d, 5120, v%d' % (vB, vWAVE), 'v_add_u32 v%d, v%d, v%d' % (vB, vB, vL16), 'v_add_u32 v%d, 0x1000, v%d' % (vB + 1, vB),
            'v_lshl_add_u32 v%d, v%d, 12, v%d' % (vA, vWAVE, vL16),
            's_lshl_b32 s6, s%d, 12' % sRT, 's_add_u32 s6, s6, %d' % WS_FH, 'v_lshl_add_u32 v%d, v%d, 7, s6' % (vFP, n_),
            's_mul_i32 s6, s%d, 5' % sCT, 's_lshr_b32 s6, s6, 2', 's_lshl_b32 s6, s6, 11', 's_add_u32 s6, s6, %d' % (WS_FL + 64 * 128),
            'v_lshl_add_u32 v%d, v%d, 7, s6' % (vWP, n_)]

def c_setup(vDC=vDC):
    return ['v_lshrrev_b32 v48, 3, v%d' % vLANE, 'v_mul_u32_u24 v48, 1280, v48', 'v_and_b32 v49, 7, v%d' % vLANE, 'v_lshrrev_b32 v50, 4, v%d' % vLANE,
            'v_xor_b32 v49, v49, v50', 'v_lshl_add_u32 v%d, v49, 4, v48' % vDC, 'v_xor_b32 v%d, 64, v%d' % (vDC + 1, vDC),
            'v_add_u32 v%d, %d, v%d' % (vDC + 1, 8 * 1280 - 1024, vDC + 1),
            'v_and_b32 v48, 15, v%d' % vLANE, 'v_lshrrev_b32 v49, 1, v48', 'v_xor_b32 v49, v49, v50', 'v_lshlrev_b32 v49, 4, v49',
            'v_lshl_add_u32 v48, v48, 7, v49', 's_add_u32 s6, s43, %d' % SLOT, 'v_add_u32 v%d, s6, v48' % vRC, 'v_xor_b32 v%d, 64, v%d' % (vRC + 1, vRC),
            'v_add_u32 v%d, %d, v%d' % (vRC + 2, 2 * SLOT, vRC), 'v_add_u32 v%d, %d, v%d' % (vRC + 3, 2 * SLOT, vRC + 1)]

def body(p, ty, opt, st):
    put = p.put
    B = ty == 'B'
    NG = 1 if B else 2
    WS = S4(rWS)
    vPAR = 72
    S2OFF = [2 * SLOT, 3 * SLOT, 0]
    DELTA = opt.get('delta', 2)
    def spin(load, check):
        l1, l2 = p.newlabel('L_sp'), p.newlabel('L_sp')
        p('s_mov_b32 s65, 0')
        p.label(l1)
        check(l2)
        p('s_add_u32 s65, s65, 1'); p('s_cmp_gt_u32 s65, %d' % SPIN_MAX); p('s_cbranch_scc1 ' + l2)
        load(True)
        p('s_waitcnt vmcnt(0)'); p('s_branch ' + l1)
        p.label(l2)
    def dma_s2(c):
        r = []
        for sg in range(4 if c < 2 else 2):
            r.append('s_add_u32 m0, s43, %d' % (S2OFF[c] + 2048 * sg))
            r += [('buffer_load_dwordx4 v%d, %s, s%d offen offset:%d lds' % (vDS + i, S4(rS2), SIG + 4 * c + sg, 1024 * i), 's2c%d' % c) for i in range(2)]
        return r
    def s2_srd(): srd(p, rS2, sSB, 32 * 1280)
    def par_reads():
        r = ['v_lshlrev_b32 v48, 1, v%d' % vN, 'v_add_u32 v48, %d, v48' % SMO]
        for g in range(NG):
            r += [('ds_read_u16 v%d, v48 offset:%d' % (vPAR + 3 * g + k, 128 * k + 64 * g), 'par') for k in range(3)]
        return r
    def bias_reads(dst, T):
        return [('ds_read_b128 v[%d:%d], v49 offset:%d' % (dst + 8 * T + 4 * q, dst + 3 + 8 * T + 4 * q, 64 * T + 16 * q), 'b1%d' % T) for q in range(2)]
    def setup(g):
        c = CON[g]; tr, ti = TAB[g], TAB[g] + 16; pr = vPAR + 3 * g
        a, b = 48, 50
        M = S2(sM)
        r = ['v_lshlrev_b32 v%d, 16, v%d' % (pr + k, pr + k) for k in range(3)]
        r += ['v_mul_f32 v%d, %s, v%d' % (a, LOG2E, pr + 2), 'v_exp_f32 v%d, v%d' % (a, a),
              'v_mul_f32 v%d, v%d, v%d' % (c + 4, pr, pr),
              'v_cvt_pk_bf16_f32 v%d, v%d, v%d' % (a, a, a), 'v_lshlrev_b32 v%d, 16, v%d' % (a, a),
              'v_mul_f32 v%d, v%d, v%d' % (a + 1, a, pr + 1), 'v_mul_f32 v%d, v%d, v%d' % (a, a, pr),
              'v_mul_f32 v%d, %s, v%d' % (a + 1, INV2PI, a + 1), 'v_mul_f32 v%d, %s, v%d' % (a, LOG2E, a),
              'v_fract_f32 v%d, v%d' % (a + 1, a + 1), 'v_exp_f32 v%d, v%d' % (a, a),
              'v_cos_f32 v%d, v%d' % (b, a + 1), 'v_sin_f32 v%d, v%d' % (b + 1, a + 1),
              'v_fmac_f32 v%d, v%d, v%d' % (c + 4, pr + 1, pr + 1),
              'v_mul_f32 v%d, v%d, v%d' % (c, a, b), 'v_mul_f32 v%d, v%d, v%d' % (c + 1, a, b + 1),
              'v_rcp_f32 v%d, v%d' % (a, c + 4), 'v_add_f32 v%d, -1.0, v%d' % (b, c),
              'v_mul_f32 v%d, v%d, v%d' % (c + 2, b, pr), 'v_mul_f32 v%d, v%d, v%d' % (c + 3, c + 1, pr),
              'v_fmac_f32 v%d, v%d, v%d' % (c + 2, c + 1, pr + 1), 'v_fma_f32 v%d, -v%d, v%d, v%d' % (c + 3, b, pr + 1, c + 3),
              'v_mul_f32 v%d, v%d, v%d' % (c + 2, c + 2, a), 'v_mul_f32 v%d, v%d, v%d' % (c + 3, c + 3, a),
              'v_mov_b32 v%d, v%d' % (tr, c), 'v_mov_b32 v%d, v%d' % (ti, c + 1)]
        for k in range(1, 16): r += cmul(tr + k, ti + k, tr + k - 1, ti + k - 1, c, c + 1)
        mu = c + 4
        r += ['v_cmp_eq_u32 %s, 1, v%d' % (M, vHH), 'v_mov_b32 v%d, v%d' % (mu, tr + 15), 'v_mov_b32 v%d, v%d' % (mu + 1, ti + 15)]
        r += ['v_cndmask_b32 v%d, 1.0, v%d, %s' % (b, mu, M), 'v_cndmask_b32 v%d, 0, v%d, %s' % (b + 1, mu + 1, M)]
        r += cm(c + 6, c + 2, b) + csq(a, mu)
        r += ['v_cndmask_b32 v%d, 1.0, v%d, s[66:67]' % (b, a), 'v_cndmask_b32 v%d, 0, v%d, s[66:67]' % (b + 1, a + 1)]
        r += cm(c + 12, c + 6, b) + csq(c + 8, a)
        r += ['v_cndmask_b32 v%d, 1.0, v%d, s[68:69]' % (b, c + 8), 'v_cndmask_b32 v%d, 0, v%d, s[68:69]' % (b + 1, c + 9)]
        r += cm(c + 6, c + 12, b) + csq(a, c + 8)
        r += ['v_cndmask_b32 v%d, 1.0, v%d, %s' % (c + 10, a, M), 'v_cndmask_b32 v%d, 0, v%d, %s' % (c + 11, a + 1, M)]
        r += csq(c + 8, a)
        r += ['v_lshl_add_u32 v%d, v%d, 1, v%d' % (c + 14, vWAVE, vHH), 'v_mov_b32 v%d, 0' % (c + 12), 'v_mov_b32 v%d, 0' % (c + 13)]
        return r
    def masks():
        p('s_bitcmp1_b32 s%d, 0' % sWV); p('s_cselect_b64 s[66:67], -1, 0')
        p('s_bitcmp1_b32 s%d, 1' % sWV); p('s_cselect_b64 s[68:69], -1, 0')
    def gate_reads(s):
        sl = s % 4; d = vGA + 4 + 2 * (s & 1)
        return [('ds_read_b32 v%d, v%d offset:%d' % (d, vGA + (sl >> 1), (sl & 1) * SLOT), 'g%d' % s)]
    def gw_reads():
        r = []
        for s in range(10): r += ['v_add_u32 v%d, s%d, v%d' % (vGA + 3, SIG + s, vGA + 2), ('ds_read_b32 v%d, v%d' % (vGW + s, vGA + 3), 'gw')]
        return r
    def gate_step(s):
        x = vGA + 4 + 2 * (s & 1); w = vGW + s; a = vGA + 10; acc = vGA + 8
        return [lambda: p.wait(lg='g%d' % s),
                'v_lshlrev_b32 v%d, 16, v%d' % (a, x), 'v_lshlrev_b32 v%d, 16, v%d' % (a + 1, w),
                'v_and_b32 v%d, 0xffff0000, v%d' % (x, x), 'v_and_b32 v%d, 0xffff0000, v%d' % (w, w),
                'v_mul_f32 v%d, v%d, v%d' % (a, a, a + 1), 'v_mul_f32 v%d, v%d, v%d' % (x, x, w),
                'v_cvt_pk_bf16_f32 v%d, v%d, v%d' % (a, a, x),
                'v_lshlrev_b32 v%d, 16, v%d' % (a + 1, a), 'v_and_b32 v%d, 0xffff0000, v%d' % (a, a),
                'v_add_f32 v%d, v%d, v%d' % (acc, acc, a + 1), 'v_add_f32 v%d, v%d, v%d' % (acc, acc, a)]
    def gate_fin():
        r = []; s = vGA + 8; a = vGA + 10
        for m in ('quad_perm:[1,0,3,2]', 'quad_perm:[2,3,0,1]', 'row_half_mirror', 'row_mirror'):
            r.append('v_add_f32_dpp v%d, v%d, v%d %s row_mask:0xf bank_mask:0xf' % (s, s, s, m))
        r += ['v_mov_b32 v%d, v%d' % (a, s), 'v_permlane16_swap_b32 v%d, v%d' % (a, s), 'v_add_f32 v%d, v%d, v%d' % (s, s, a),
              'v_cvt_pk_bf16_f32 v%d, v%d, v%d' % (s, s, s), 'v_lshlrev_b32 v%d, 16, v%d' % (s, s),
              'v_mul_f32 v%d, 0xbfb8aa3b, v%d' % (s, s), 'v_exp_f32 v%d, v%d' % (s, s), 'v_add_f32 v%d, 1.0, v%d' % (s, s),
              'v_rcp_f32 v%d, v%d' % (s, s), 'v_cvt_pk_bf16_f32 v%d, v%d, v%d' % (s, s, s), 'v_lshlrev_b32 v%d, 16, v%d' % (a, s),
              'v_sub_f32 v%d, 1.0, v%d' % (a + 1, a), 'v_cvt_pk_bf16_f32 v%d, v%d, v%d' % (a + 1, a + 1, a + 1),
              'v_lshlrev_b32 v%d, 16, v%d' % (a + 1, a + 1)]
        def store():
            p('s_mov_b32 s40, %d' % WS_G)
            p('s_mov_b32 exec_lo, 1'); p('s_mov_b32 exec_hi, 1')
            p('buffer_store_dwordx2 v[%d:%d], v%d, %s, s40 offen%s' % (a, a + 1, vGA + 9, WS, SC), tag='gst')
            p('s_mov_b64 exec, -1')
        r.append(store)
        return r
    SJL = opt.get('sjlate', 1); SJO = 4096 if SJL else XREG
    def sj_dma():
        p('s_add_u32 m0, s43, %d' % SJO)
        for i in range(4): p('buffer_load_dwordx4 v%d, %s, s%d offen offset:%d lds' % (vDJ + i, S4(rSJ), sSJO2, 1024 * i), tag='sj')
    def sj_read():
        p.wait(vm='sj')
        for e in range(4):
            for j in range(2): p('ds_read_b64_tr_b16 a[%d:%d], v%d offset:%d' % (232 + 4 * e + 2 * j, 233 + 4 * e + 2 * j, vDJ + 4, 32 * e + 512 * j), tag='sjr')
    def sj_store():
        p.wait(lg='sjr')
        for e in range(4): p('buffer_store_dwordx4 a[%d:%d], v%d, %s, s%d offen%s' % (232 + 4 * e, 235 + 4 * e, vDJ + 5, WS, sSJD + e, SC), tag='sjs')
    def a_prefetch(which):
        p('s_and_b32 s65, s2, 7'); p('s_lshl_b32 s65, s65, 3'); p('s_add_u32 s65, s65, s3'); p('s_lshl_b32 s65, s65, 2'); p('s_add_u32 s65, s65, s%d' % sWV)
        if which == 'C':
            p('s_bitcmp1_b32 s%d, 0' % sWV)
            p('s_cselect_b32 s40, s%d, s%d' % (sCIM, sCRE)); p('s_cselect_b32 s41, s%d, s%d' % (sCIM + 1, sCRE + 1))
            p('s_lshr_b32 s65, s65, 1'); p('s_mul_i32 s65, s65, 6400'); p('v_min_u32 v68, 49, v%d' % vLANE)
        else:
            p('s_mov_b64 s[40:41], %s' % S2(sW2)); p('s_mul_i32 s65, s65, 7680'); p('v_min_u32 v68, 59, v%d' % vLANE)
        p('v_lshl_add_u32 v68, v68, 7, s65')
        p('global_load_dword v93, v68, s[40:41]', tag='cpf')
    def c_prefetch():
        p('s_bitcmp1_b32 s%d, 0' % sWV)
        p('s_cselect_b32 s40, s%d, s%d' % (sCIM, sCRE)); p('s_cselect_b32 s41, s%d, s%d' % (sCIM + 1, sCRE + 1))
        p('s_lshl_b32 s65, s2, 1'); p('s_lshr_b32 s23, s%d, 1' % sWV); p('s_add_u32 s65, s65, s23'); p('s_mul_i32 s65, s65, 1600')
        p('v_lshl_add_u32 v68, v%d, 7, s65' % vLANE); p('v_min_u32 v68, %d, v68' % (640 * 1280 - 4))
        p('s_mov_b64 exec, 0x1fff')
        p('global_load_dword v93, v68, s[40:41]', tag='cpf')
        p('s_mov_b64 exec, -1')
    def c_srd():
        p.seen.add('csrd')
        p('s_bitcmp1_b32 s%d, 0' % sWV)
        p('s_cselect_b32 s%d, s%d, s%d' % (rC, sCIM, sCRE)); p('s_cselect_b32 s%d, s%d, s%d' % (rC + 1, sCIM + 1, sCRE + 1))
        p('s_mul_i32 s40, s%d, %d' % (sCT, 80 * 1280)); p('s_add_u32 s%d, s%d, s40' % (rC, rC)); p('s_addc_u32 s%d, s%d, 0' % (rC + 1, rC + 1))
        p('s_mov_b32 s%d, %d' % (rC + 2, 80 * 1280)); p('s_mov_b32 s%d, 0x20000' % (rC + 3))
        p('s_lshr_b32 s%d, s%d, 1' % (sSJO, sWV)); p('s_lshl_b32 s%d, s%d, 7' % (sSJO, sSJO))
    CORD = [0, 2, 1, 3] if B else [2, 3, 1, 0]
    DS = opt.get('deltas', 0)
    def sp_lit(pos): return sum(order(5, c, DS)[pos] << (8 * c) for c in range(4))
    def c_dma(q):
        pos, n = divmod(q, 5); pl = q % 16
        r = [lambda: p.wait(lg='cr%d' % (q - 16))] if q >= 16 else []
        r += ['s_add_u32 m0, s43, %d' % (CPL[CORD[pl >> 2]] + 2048 * (pl & 3))]
        if n == 0: r += ['s_bfe_u32 s23, 0x%x, s%d' % (sp_lit(pos), sSEL5), 's_lshl_b32 s23, s23, 8', 's_add_u32 s23, s23, s%d' % sSJO]
        else: r += ['s_add_u32 s23, s23, %d' % (16 * 1280)]
        ld = [('buffer_load_dwordx4 v%d, %s, s23 offen offset:%d lds' % ((70 if (q < 8 and not B) else vDC) + i, S4(rC), 1024 * i), 'cd%d' % q) for i in range(2)]
        def first():
            assert 'csrd' in p.seen
            for x in r + ld[:1]: put(x)
        return [first, ld[1]]
    def c_read(q, dst=None):
        pl = q % 16; dst = AX + 8 * q if dst is None else dst
        hi, o = {0: (0, 0), 1: (1, SLOT), 2: (0, SLOT), 3: (1, 0)}[CORD[pl >> 2]]
        rd = [('ds_read_b128 a[%d:%d], v%d offset:%d' % (dst + 4 * gg, dst + 4 * gg + 3, vRC + 2 * hi + gg, o + 2048 * (pl & 3)), 'cr%d' % q) for gg in range(2)]
        return [lambda: (p.wait(vm='cd%d' % q), put(rd[0])), rd[1]]
    def cD(a, b): return [x for q in range(a, b) for x in c_dma(q)]
    def cR(a, b): return [x for q in range(a, b) for x in c_read(q)]
    def nonce_load(o=False): p('global_load_dword v%d, v%d, %s sc1' % (vPOLL, vZ, S2(sDBG)), tag='nonce', optional=o)
    def get_nonce():
        def chk(l2):
            p('v_readfirstlane_b32 s%d, v%d' % (sNON, vPOLL)); p('s_cmp_lg_u32 s%d, 0' % sNON); p('s_cbranch_scc1 ' + l2)
        p.wait(vm='nonce'); spin(nonce_load, chk)
        p('v_mov_b32 v47, s%d' % sNON)
    def w2_signal():
        def go():
            p('s_lshl_b32 s40, s2, 7'); p('s_add_u32 s40, s40, %d' % WS_FL); p('s_mov_b64 exec, 1')
            p('buffer_store_dword v47, v%d, %s, s40 offen%s' % (vZ, WS, SC), optional=True)
            p('s_mov_b64 exec, -1')
        wave0(go)
    def signal(level, tags):
        def go():
            p.wait(vm=tags)
            p('s_add_u32 s65, s%d, %d' % (sFL, 131072 * level)); p('s_mov_b64 exec, 1')
            p('buffer_store_dword v47, v%d, %s, s65 offen%s' % (vZ, WS, SC), tag='flag')
            p('s_mov_b64 exec, -1')
        return go
    def fl_load(level):
        if level == 'FW':
            p('v_cmp_eq_u32 vcc, 1, v%d' % vHH); p('v_cndmask_b32 v94, v%d, v%d, vcc' % (vFP, vWP))
            p('buffer_load_dword v%d, v94, %s, 0 offen sc1' % (vPOLL, WS), optional=True)
            return
        p('s_mov_b32 s40, %d' % (0 if level == 'W' else 131072 * level)); p('s_mov_b32 exec_hi, 0')
        p('buffer_load_dword v%d, v%d, %s, s40 offen sc1' % (vPOLL, vWP if level == 'W' else vFP, WS), optional=True)
        p('s_mov_b32 exec_hi, -1')
    def wave0(fn):
        l = p.newlabel('L_w0')
        p('s_cmp_lg_u32 s%d, 0' % sWV); p('s_cbranch_scc1 ' + l)
        fn()
        p.label(l)
    def fl_issue(level):
        def go():
            wave0(lambda: fl_load(level))
            p.marks[level] = p.total_vm()
        return go
    def fl_check(level, bar=True):
        def chk(l2):
            p('v_cmp_ne_u32 vcc, s%d, v%d' % (sNON, vPOLL))
            if level == 'FW': p('s_cbranch_vccz ' + l2)
            else: p('s_cmp_eq_u32 vcc_lo, 0'); p('s_cbranch_scc1 ' + l2)
        def body_():
            p('s_waitcnt vmcnt(%d)' % min(63, p.total_vm() - p.marks[level]))
            spin(lambda o: fl_load(level), chk)
        def go():
            wave0(body_)
            if bar: p('s_barrier')
        return go
    def rnd_lit(i):
        for o, n in PARTS:
            if o <= i < o + n: return sum((o + order(n, c, DELTA)[i - o]) << (8 * c) for c in range(4))
    def b_reg(i, n):
        if i < 12: return ('a', 208 + 20 * (i % 3) + 4 * n) if i % 3 < 2 else ('v', 12 + 4 * n)
        pos, gg = divmod(i - 12, 2)
        return 'a', AX + 8 * (5 * (pos % 4) + n) + 4 * gg
    def b_loads(i):
        r = ['s_bfe_u32 s61, 0x%x, s%d' % (rnd_lit(i), sSEL), 's_mul_i32 s61, s61, 20480']
        for n in range(5):
            k, b = b_reg(i, n)
            r.append(('buffer_load_dwordx4 %s[%d:%d], v%d, %s, s61 offen%s sc1' % (k, b, b + 3, vB + (n >> 2), S4(rW2P), ' offset:%d' % (1024 * n) if n < 4 else ''), 'B%d' % i))
        return r
    def a_loads(i, pos=None):
        b = AH + 16 * ((i if pos is None else pos) % 3)
        if i < 12: r = ['s_bfe_u32 s60, 0x%x, s%d' % (rnd_lit(i), sSEL), 's_lshl_b32 s60, s60, 14']
        else: r = ['s_bfe_u32 s60, 0x%x, s%d' % (sp_lit((i - 12) >> 1), sSEL5), 's_lshl_b32 s60, s60, 15', 's_add_u32 s60, s60, %d' % ((12 + (i & 1)) << 14)]
        r += [('buffer_load_dwordx4 a[%d:%d], v%d, %s, s60 offen offset:%d sc1' % (b + 4 * m, b + 4 * m + 3, vA, S4(rHID), 1024 * m), 'A%d' % i) for m in range(4)]
        return r
    def w2_prefetch():
        if not opt.get('wpf', 0): return
        p('s_and_b32 s40, s%d, 7' % sRT); p('s_lshl_b32 s40, s40, 2'); p('s_add_u32 s40, s40, s%d' % sWV); p('s_mul_i32 s40, s40, 7680')
        p('v_min_u32 v94, 59, v%d' % vLANE); p('v_lshlrev_b32 v94, 7, v94')
        p('buffer_load_dword v93, v94, %s, s40 offen sc1' % S4(rW2P), tag='wpf')
    def hid_srd():
        p('s_mul_i32 s40, s%d, %d' % (sRT, HID_RT)); srd(p, rHID, sWS, HID_RT, 's40')
        p('s_mul_i32 s40, s%d, %d' % (sCT, W2P_CT)); p('s_add_u32 s40, s40, %d' % WS_W2P); srd(p, rW2P, sWS, W2P_CT, 's40')
        if opt.get('fake'):
            p('s_lshr_b32 s40, s%d, 2' % sRB); p('s_mul_i32 s40, s40, %d' % (512 * 1280)); p('s_lshl_b32 s41, s3, 13'); p('s_add_u32 s40, s40, s41')
            if opt['fake'] & 1: srd(p, rHID, sX, HID_RT, 's40')
            if opt['fake'] & 2: srd(p, rW2P, sX, HID_RT, 's40')
    def reads1(k):
        s, ks = divmod(k, 4); sl = s % 4; hi = 4 * (sl >> 1); o = (sl & 1) * SLOT
        w = AW + 16 * (k % 3); tg = 'k%d' % k
        r = [('ds_read_b128 a[%d:%d], v%d offset:%d' % (AX + 4 * k, AX + 4 * k + 3, vRX + hi + ks, o), tg)]
        for T in range(4):
            if B:
                for j in range(2):
                    r.append(('ds_read_b64_tr_b16 a[%d:%d], v%d offset:%d' % (w + 4 * T + 2 * j, w + 1 + 4 * T + 2 * j, vRF + (hi >> 1) + (T & 1),
                                                                          o + ks * 8192 + 4096 + 2048 * (T >> 1) + 512 * j), tg))
            else:
                r.append(('ds_read_b128 a[%d:%d], v%d offset:%d' % (w + 4 * T, w + 4 * T + 3, vRS + hi + ks, o + 4096 + 2048 * (T >> 1) + 16384 * (T & 1)), tg))
        return r
    L2 = opt.get('lead2', 5); NB2 = L2 + 1
    def reads2(m):
        k, T = divmod(m, 2); s, ks = divmod(k, 4); c, sg = divmod(s, 4)
        w = AW2 + 4 * (m % NB2)
        return [('ds_read_b128 a[%d:%d], v%d offset:%d' % (w, w + 3, vRS + 4 * (S2OFF[c] >> 16) + ks, (S2OFF[c] & 0xffff) + 16384 * T + 2048 * sg), 'm%d' % m)]
    mf = 'v_mfma_f32_32x32x16_bf16 v[%d:%d], a[%d:%d], a[%d:%d], %s'
    def mfma1(k, T):
        x = AX + 4 * k; f = AW + 16 * (k % 3) + 4 * T
        if B: a = FAC + 16 * T; return mf % (a, a + 15, f, f + 3, x, x + 3, 'v[%d:%d]' % (a, a + 15))
        a = SAC[T >> 1] + 16 * (T & 1)
        return mf % (a, a + 15, x, x + 3, f, f + 3, 'v[%d:%d]' % (a, a + 15) if k else '0')
    def mfma2(m):
        k, T = divmod(m, 2); x = AX + 4 * k; a = SAC[0] + 16 * T; f = AW2 + 4 * (m % NB2)
        return mf % (a, a + 15, x, x + 3, f, f + 3, 'v[%d:%d]' % (a, a + 15) if k else '0')
    LOOK = opt.get('look', 3); SJS = opt.get('sjs', 2); AE = opt.get('aearly', 0)
    def sync1(s):
        p.wait(vm='st%d' % s, lg='all'); p('s_barrier')
        r = []
        if s == 0: r += dma_stage(2)
        if s + LOOK < 10: r += dma_stage(s + LOOK)
        elif B: r += dma_s2(s + LOOK - 10)
        elif AE and s < 9: r += cD(4 * (s - 7), 4 * (s - 6))
        if s == 7 and opt.get('cpf', 2) == 1: r = [c_prefetch] + r
        if not B and opt.get('cpf', 2) == 2:
            if s == opt.get('pfc', 7): r = r + [lambda: a_prefetch('C')]
            if s == opt.get('pfw', 8) and SJL: r = r + [lambda: a_prefetch('W')]
        return r
    def scanA1(g):
        c = CON[g]; re, im = SAC[g], SAC[g] + 16
        r = []
        for k in range(1, 16): r += cfma(re + k, im + k, c, re + k - 1, im + k - 1)
        r += ['v_mov_b32 v%d, v%d' % (48 + 2 * g, re + 15), 'v_mov_b32 v%d, v%d' % (49 + 2 * g, im + 15),
              ('ds_write_b64 v%d, v[%d:%d] offset:%d' % (vEXA, 48 + 2 * g, 49 + 2 * g, EXO + 8192 * g), 'ex')]
        return r
    def scanA2(g):
        c = CON[g]; re, im = SAC[g], SAC[g] + 16; be = P2(c + 2)
        r = []
        for k in range(0, 16, 2):
            tt = 48 + (k & 2)
            r += ['v_pk_mul_f32 %s, %s, %s op_sel:[1,0] op_sel_hi:[1,1]' % (P2(tt), be, P2(re + k)),
                  'v_pk_mul_f32 %s, %s, %s op_sel:[0,0] op_sel_hi:[0,1]' % (P2(re + k), be, P2(re + k)),
                  'v_pk_fma_f32 %s, %s, %s, %s op_sel:[1,0,0] op_sel_hi:[1,1,1] neg_lo:[1,0,0] neg_hi:[1,0,0]' % (P2(re + k), be, P2(im + k), P2(re + k)),
                  'v_pk_fma_f32 %s, %s, %s, %s op_sel:[0,0,0] op_sel_hi:[0,1,1]' % (P2(im + k), be, P2(im + k), P2(tt))]
        return r
    def ex_reads(g, e):
        return [('ds_read_b64 v[%d:%d], v%d offset:%d' % (e + 2 * k, e + 2 * k + 1, vEXA + 1, EXO + 8192 * g + 256 * k), 'exr%d' % g) for k in range(8)]
    def ex_prefix(g, e, pk):
        c = CON[g]; r = []
        for k in range(1, 8):
            r += pcfma(e + 2 * k, c + 4, e + 2 * k - 2) if pk else cfma(e + 2 * k, e + 2 * k + 1, c + 4, e + 2 * k - 2, e + 2 * k - 1)
        return r
    def ex_pub(g, e):
        def pub():
            p('v_mov_b32 v%d, v47' % (e + 16)); p('v_mov_b32 v%d, v47' % (e + 17))
            p('s_add_u32 s40, s%d, %d' % (sG, g)); p('s_lshl_b32 s40, s40, 4'); p('s_add_u32 s40, s40, s%d' % sRB); p('s_lshl_b32 s40, s40, 9')
            p('s_add_u32 s40, s40, %d' % WS_E)
            p('s_lshl_b32 s41, s%d, 3' % sWV); p('s_lshl_b32 exec_lo, 0xff, s41'); p('s_mov_b32 exec_hi, 0')
            p('buffer_store_dwordx4 v[%d:%d], v%d, %s, s40 offen%s' % (e + 14, e + 17, vL16, WS, SC), tag='pub')
            p('s_mov_b64 exec, -1')
        return [pub]
    def ex_own(g, e):
        c = CON[g]; r = []
        for k in range(1, 8):
            r += ['v_cmp_eq_u32 %s, %d, v%d' % (S2(sM + 2 * (k & 1)), k, c + 14)]
            if k > 1: r += ['v_cndmask_b32 v%d, v%d, v%d, %s' % (c + 12 + z, c + 12 + z, e + 2 * k - 4 + z, S2(sM + 2 - 2 * (k & 1))) for z in range(2)]
        r += ['v_cndmask_b32 v%d, v%d, v%d, %s' % (48 + z, c + 12 + z, e + 12 + z, S2(sM + 2)) for z in range(2)]
        return r + cm(c + 12, c + 2, 48)
    def ffn_epi(T, pk=False):
        a = FAC + 16 * T; r = []
        for k in range(0, 16, 2):
            r += ['v_max_f32 v%d, 0, v%d' % (a + k, a + k), 'v_max_f32 v%d, 0, v%d' % (a + k + 1, a + k + 1)]
            if pk: r += ['v_pk_mul_f32 %s, %s, %s' % (P2(a + k), P2(a + k), P2(a + k))]
            else: r += ['v_mul_f32 v%d, v%d, v%d' % (a + k + z, a + k + z, a + k + z) for z in range(2)]
        for k in range(8): r.append('v_cvt_pk_bf16_f32 v%d, v%d, v%d' % (a + k, a + 2 * k, a + 2 * k + 1))
        def stores():
            p('s_lshl_b32 s40, s%d, 12' % sQ); p('s_add_u32 s40, s40, s64'); p('s_add_u32 s40, s40, %d' % (((T & 1) + (24 if T >= 2 else 0)) * 4096))
            for q in range(2):
                p('buffer_store_dwordx4 v[%d:%d], v%d, %s, s40 offen offset:%d%s' % (a + 4 * q, a + 4 * q + 3, vSTF, WS, 256 * q, SC), tag='hf')
        return r + [stores]
    EXP = 84 if B else 52
    def lb_expect():
        r = []
        for k in range(8):
            r += ['v_subrev_u32 v%d, %d, v%d' % (EXP + k, 1024 * k, vEO), 'v_ashrrev_i32 v%d, 31, v%d' % (EXP + k, EXP + k),
                  'v_bfi_b32 v%d, v%d, 0, v47' % (EXP + k, EXP + k)]
        return r
    def lb_loads(g, e, o=False):
        p('s_add_u32 s40, s%d, %d' % (sG, g)); p('s_lshl_b32 s40, s40, 13'); p('s_add_u32 s40, s40, %d' % WS_E)
        srd(p, rE, sWS, 8192, 's40')
        for k in range(8):
            if k: p('v_subrev_u32 v48, %d, v%d' % (1024 * k, vEO))
            p('buffer_load_dwordx4 v[%d:%d], v%d, %s, 0 offen sc1' % (e[k], e[k] + 3, 48 if k else vEO, S4(rE)), tag='lb%d' % g, optional=o)
    def lb_finish(g, e):
        c = CON[g]
        def chk(l2):
            for k in range(8): p('v_xor_b32 v%d, v%d, v%d' % (e[k] + 2, e[k] + 2, EXP + k))
            p('v_or3_b32 v48, v%d, v%d, v%d' % (e[0] + 2, e[1] + 2, e[2] + 2)); p('v_or3_b32 v49, v%d, v%d, v%d' % (e[3] + 2, e[4] + 2, e[5] + 2))
            p('v_or3_b32 v48, v%d, v%d, v48' % (e[6] + 2, e[7] + 2)); p('v_or_b32 v48, v48, v49')
            p('v_cmp_ne_u32 vcc, 0, v48'); p('s_cbranch_vccz ' + l2)
        p.wait(vm='lb%d' % g); spin(lambda o: lb_loads(g, e, o), chk)
        for k in range(6, -1, -1):
            for x in pcfma(e[k], c + 8, e[k + 1]): put(x)
        for x in pcmul(48, c + 10, e[0]): put(x)
        p('v_mov_b32 v50, v48'); p('v_mov_b32 v51, v49')
        p('v_permlane32_swap_b32 v48, v50'); p('v_permlane32_swap_b32 v49, v51')
        p('v_pk_add_f32 v[48:49], v[48:49], v[50:51]')
        for x in pcfma(c + 12, c + 6, 48): put(x)
    def scanB(g, pk):
        c = CON[g]; tr, ti = TAB[g], TAB[g] + 16; re, im = SAC[g], SAC[g] + 16; cc = P2(c + 12)
        r = []
        for k in range(0, 16, 2):
            if pk:
                r += ['v_pk_fma_f32 %s, %s, %s, %s op_sel:[0,0,0] op_sel_hi:[1,0,1]' % (P2(re + k), P2(tr + k), cc, P2(re + k)),
                      'v_pk_fma_f32 %s, %s, %s, %s op_sel:[0,1,0] op_sel_hi:[1,1,1]' % (P2(im + k), P2(tr + k), cc, P2(im + k)),
                      'v_pk_fma_f32 %s, %s, %s, %s op_sel:[0,1,0] op_sel_hi:[1,1,1] neg_lo:[1,0,0] neg_hi:[1,0,0]' % (P2(re + k), P2(ti + k), cc, P2(re + k)),
                      'v_pk_fma_f32 %s, %s, %s, %s op_sel:[0,0,0] op_sel_hi:[1,0,1]' % (P2(im + k), P2(ti + k), cc, P2(im + k))]
            else:
                for z in (k, k + 1):
                    r += ['v_fmac_f32 v%d, v%d, v%d' % (re + z, tr + z, c + 12), 'v_fmac_f32 v%d, v%d, v%d' % (im + z, tr + z, c + 13),
                          'v_fma_f32 v%d, -v%d, v%d, v%d' % (re + z, ti + z, c + 13, re + z), 'v_fmac_f32 v%d, v%d, v%d' % (im + z, ti + z, c + 12)]
        for part in range(2):
            a = re + 16 * part; ng = '-' if part else ''
            for q in range(2):
                r += ['v_cvt_pk_bf16_f32 v%d, %sv%d, %sv%d' % (a + 8 * q + k, ng, a + 8 * q + 2 * k, ng, a + 8 * q + 2 * k + 1) for k in range(4)]
                r += [('ds_write_b128 v%d, v[%d:%d]' % (vTW + q, a + 8 * q, a + 8 * q + 3), 'tw')]
            r += [('ds_read_b64_tr_b16 v[%d:%d], v%d offset:%d' % (a + 8 * b + 4 + 2 * j, a + 8 * b + 5 + 2 * j, vTW + 2 + j, 1024 * b), 'tr%d' % part) for b in range(2) for j in range(2)]
        def stores(part):
            p('s_add_u32 s41, s%d, %d' % (sG, g)); p('s_lshr_b32 s40, s41, 2'); p('s_lshl_b32 s40, s40, 1'); p('s_and_b32 s65, s41, 1'); p('s_add_u32 s40, s40, s65')
            p('s_lshl_b32 s40, s40, 1'); p('s_bfe_u32 s65, s41, 0x10001'); p('s_add_u32 s40, s40, s65'); p('s_lshl_b32 s40, s40, 13')
            p('s_add_u32 s40, s40, s64'); p('s_add_u32 s40, s40, %d' % ((48 + part) * 4096))
            p.wait(lg='tr%d' % part)
            for b in range(2):
                o = re + 16 * part + 8 * b + 4
                p('buffer_store_dwordx4 v[%d:%d], v%d, %s, s40 offen offset:%d%s' % (o, o + 3, vL16, WS, 1024 * b, SC), tag='hs')
        return r + [lambda: stores(0), lambda: stores(1)]
    masks()
    if B:
        sidejob_setup(p, SJO); s2_srd()
        if not SJL: sj_dma()
    else: c_srd()
    if B: p('v_lshlrev_b32 v49, 5, v%d' % vHH); p('v_add_u32 v49, %d, v49' % (SMO + 384))
    p.wait(vm='sm'); p('s_barrier')
    st('sm')
    for x in par_reads() + gw_reads(): put(x)
    pre = []
    if B:
        for T in range(4):
            for x in bias_reads(176, T): put(x)
    pre += [lambda: p.wait(lg='par')]
    for g in range(NG): pre += setup(g)
    if B:
        for T in range(4): pre += [lambda T=T: p.wait(lg='b1%d' % T)] + unpack(FAC + 16 * T, 176 + 8 * T, 8)
    nearly = max(0, len(pre) - opt.get('sp1', 12) * 8)
    for x in pre[:nearly] + sprinkle(pre[nearly:], dma_stage(1), opt.get('sp1', 12)): put(x)
    st('issued')
    pend = sync1(0)
    st('first')
    for x in reads1(0) + reads1(1) + gate_reads(0): put(x)
    fill = []
    prio = gate_step(0)
    p.marks = {}
    bar = lambda s_: 16 * s_ - 8
    events = {28: [nonce_load], bar(9) + 2: [get_nonce]}
    if B and not SJL:
        events[bar(1) + 2] = [sj_read]; events[bar(2) + 2] = [sj_store]
        events[bar(6) - 1] = [lambda: p.wait(vm='sjs')]; events[bar(6) + 2] = [get_nonce, w2_signal]; del events[bar(9) + 2]
    if B and SJL:
        events[opt.get('sjr', 200)] = [sj_read]; events[opt.get('sjr', 200) + 6] = [sj_store]
    if not B: fill += c_setup(70)[:8]
    assert LOOK == 3
    nslots = 240 if B else 160
    GAP = opt.get('gap', 6)
    if B:
        fill2 = ffn_epi(0) + ffn_epi(1) + ffn_epi(2) + ffn_epi(3) + [lambda: st('fst')] + lb_expect()
        cq = cD(0, 16); ncq = 0
        if SJL: events[opt.get('sjd', 182)] = [sj_dma]
        else: events[224] = [fl_issue('W')]
    rd = []
    for i in range(nslots):
        if i < 160:
            k, T = divmod(i, 4)
            if T == 0:
                if k + 2 < 40:
                    rd = reads1(k + 2)
                    if (k + 2) % 4 == 0:
                        pend += sync1((k + 2) // 4)
                        rd = gate_reads((k + 2) // 4) + rd; prio += gate_step((k + 2) // 4)
                        if k + 2 == 36: prio += gate_fin()
                p.wait(lg='k%d' % k)
            p(mfma1(k, T))
        else:
            if i == 160:
                for x in prio + fill: put(x)
                st('pass1'); prio = []; fill = fill2
                c_srd()
            if i % 2 == 0: p.wait(lg=['m%d' % (i - 160), 'm%d' % (i - 159)])
            p(mfma2(i - 160))
        budget = GAP
        if opt.get('fine') == 1 and i % 16 == 9 and i < 160: st('s%d' % i)
        if opt.get('fine') == 2 and i % 8 == 0 and i > 160: st('s%d' % i)
        m = i + L2 - 160
        if B and 0 <= m < 80:
            if m in (0, 32, 64): p.wait(vm='s2c%d' % (m // 32), lg='all'); p('s_barrier')
            for x in reads2(m): put(x); budget -= 1
        nrd = -(-len(rd) // (4 - i % 4))
        if i % 16 in (4, 5, 6) and i < 160: nrd = -(-len(rd) // (7 - i % 16))
        for _ in range(nrd): put(rd.pop(0)); budget -= 1
        if pend and (i % 2 == 1 or sum(not isinstance(x, str) for x in pend) > (23 - i % 16 if i % 16 >= 8 else 7 - i % 16) // 2 + 1):
            while isinstance(pend[0], str): put(pend.pop(0)); budget -= 1
            budget -= 3 if callable(pend[0]) else 1
            put(pend.pop(0))
            while pend and isinstance(pend[0], str): put(pend.pop(0)); budget -= 1
        elif B and i > 160 and i % 2 == 1 and cq and i >= opt.get('cstart', 165) and (ncq < 8 or (ncq < 24 and m > 32) or m > 64):
            put(cq.pop(0)); ncq += 1; budget -= 2
        for x in events.pop(i, []): put(x); budget -= 1
        if i == 146: assert not (B and pend); fill += c_setup()
        if i < 160:
            if i % 16 >= 13 or i % 16 < 8:
                n = 0
                while prio and budget > 0 and n < 2: put(prio.pop(0)); budget -= 1; n += 1
            want = -(-len(fill) // max(1, 158 - i)) if i >= 2 else 0
            for _ in range(min(want, budget)):
                if fill: put(fill.pop(0))
        elif i > 160:
            while fill and budget > 0: put(fill.pop(0)); budget -= 1
        p.check_depth()
    assert not pend and not rd and not events
    bpre = b_loads(0) + b_loads(1) + b_loads(2)
    if B:
        assert not fill
        for x in cq: put(x)
        st('pass2')
        signal(0, ['hf', 'sjs'])()
        for x in scanA1(0): put(x)
        if not SJL: fl_check('W', False)()
        p.wait(lg='ex'); p('s_barrier')
        for x in ex_reads(0, 52): put(x)
        if SJL: w2_signal()
        hid_srd()
        p.wait(lg='exr0')
        for x in ex_prefix(0, 52, True) + ex_pub(0, 52): put(x)
        st('pub')
        e0 = [52 + 4 * k for k in range(8)]
        LBR = opt.get('lbr', -1)
        if SJL:
            NX = 25; NP = opt.get('np', 21)
            for x in cR(0, 9) + sprinkle(cR(9, 16) + ex_own(0, 52) + scanA2(0), cD(16, NP) + [fl_issue('FW')] + cD(NP, NX), 4): put(x)
            st('end1')
            fl_check('FW')()
            st('fok')
            if LBR < 0: lb_loads(0, e0)
            for x in a_loads(0) + bpre[:7] + a_loads(1) + bpre[7:]: put(x)
        else:
            NX = opt.get('nx', 19); NP = opt.get('np', 16)
            for x in cR(0, 6) + sprinkle(cR(6, 16) + ex_own(0, 52) + scanA2(0), bpre + cD(16, NP) + [fl_issue(0)] + cD(NP, NX), 3): put(x)
            if LBR < 0: lb_loads(0, e0)
            st('end1')
            fl_check(0)()
            st('fok')
            NY = min(25, NX + opt.get('ny', 3))
            for x in a_loads(0) + a_loads(1) + cD(NX, NY): put(x)
            NX = NY
        if LBR < 0:
            st('lbstart'); lb_finish(0, e0); st('lbdone')
            for x in scanB(0, True): put(x)
            extra = {8: cR(16, 20)}
            sigS, geo = 2, 1
        else:
            extra = {LBR: [lambda: lb_loads(0, e0)], LBR + 1: [lambda: (st('lbstart'), lb_finish(0, e0), st('lbdone'))] + scanB(0, False), 8: cR(16, 20)}
            sigS, geo = LBR + 4, LBR + 4
    else:
        for x in prio + fill: put(x)
        st('pass1')
        c0 = 8 if AE else 0
        for x in interleave(scanA1(0), scanA1(1)): put(x)
        p.wait(lg='all'); p('s_barrier')
        for x in ex_reads(0, 52) + ex_reads(1, 72): put(x)
        hid_srd()
        p.wait(lg='exr1')
        for x in interleave(ex_prefix(0, 52, True), ex_prefix(1, 72, True)) + ex_pub(0, 52) + ex_pub(1, 72): put(x)
        st('pub')
        signal(0, 'gst')()
        if not SJL: fl_issue('W')()
        NA = opt.get('na', 20)
        for x in sprinkle(ex_own(0, 52) + ex_own(1, 72) + lb_expect() + scanA2(0) + scanA2(1), cD(c0, 16), 8) + cR(0, NA - 16) + cD(16, NA): put(x)
        e0 = [60 + 4 * k for k in range(8)]
        lb_loads(0, e0)
        if not SJL: fl_check('W')()
        for x in cR(NA - 16, 16): put(x)
        st('lbstart')
        lb_finish(0, e0)
        lb_loads(1, e0)
        if SJL:
            for x in sprinkle(scanB(0, True), cD(NA, 25), 4): put(x)
            NA = 25
            fl_issue('FW')()
        else:
            fl_issue(0)()
            for x in sprinkle(scanB(0, True), bpre, 4): put(x)
        lb_finish(1, e0)
        st('lbdone'); st('end1')
        if SJL:
            for x in scanB(1, True): put(x)
            fl_check('FW')()
            st('fok')
            for x in a_loads(0) + bpre[:7] + a_loads(1) + bpre[7:]: put(x)
        else:
            fl_check(0)()
            st('fok')
            for x in sprinkle(scanB(1, True), a_loads(0) + a_loads(1), 3): put(x)
        extra = {8: cR(16, 20)}
        sigS, geo = 2, 1
    NL = NX if B else NA
    xload = {i: c_dma(NL + i) for i in range(25 - NL)}
    phase2(p, opt, st, a_loads, b_loads, b_reg, c_read, signal, fl_issue, fl_check, extra, xload, sigS, geo)

def phase2(p, opt, st, a_loads, b_loads, b_reg, c_read, signal, fl_issue, fl_check, extra, xload, sigS, geo):
    put = p.put
    ACCB, ACCA = 96, 176
    vG, vX, vLR, vOut = 32, 52, 62, 67
    vCR, vLW, t = 72, 82, 84
    rXT, rO, rSM = 44, 16, 52
    def geom():
        r = []
        def srds():
            p('s_mul_i32 s40, s%d, 160' % sCT); p('s_mul_i32 s41, s%d, %d' % (sRT, 64 * 1280)); p('s_add_u32 s41, s41, s40')
            srd(p, rXT, sX, 64 * 1280 - 1280 + 160, 's41')
            p('s_lshl_b32 s41, s41, 1')
            srd(p, rO, sOUT, 64 * 2560 - 2560 + 320, 's41')
            p('s_lshl_b32 s41, s%d, 9' % sRT); p('s_add_u32 s41, s41, %d' % WS_G)
            p('s_cmp_eq_u32 s%d, 1' % sWV); p('s_cselect_b32 s65, 256, 0'); p('s_add_u32 s41, s41, s65')
            p('s_cmp_eq_u32 s%d, 2' % sWV)
            p('s_cselect_b32 s%d, s%d, s%d' % (rSM, sDSK, sB2)); p('s_cselect_b32 s%d, s%d, s%d' % (rSM + 1, sDSK + 1, sB2 + 1))
            p('s_cmp_lt_u32 s%d, 2' % sWV)
            p('s_cselect_b32 s%d, s%d, s%d' % (rSM, sWS, rSM)); p('s_cselect_b32 s%d, s%d, s%d' % (rSM + 1, sWS + 1, rSM + 1))
            p('s_cselect_b32 s40, s41, s40')
            p('s_mov_b32 s65, 160'); p('s_cselect_b32 s%d, 256, s65' % (rSM + 2))
            p('s_add_u32 s%d, s%d, s40' % (rSM, rSM)); p('s_addc_u32 s%d, s%d, 0' % (rSM + 1, rSM + 1)); p('s_mov_b32 s%d, 0x20000' % (rSM + 3))
        r.append(srds)
        for i in range(5):
            r += ['v_add_u32 v%d, %d, v0' % (t, 256 * i), 'v_mul_u32_u24 v%d, 0xcccd, v%d' % (t + 1, t), 'v_lshrrev_b32 v%d, 20, v%d' % (t + 1, t + 1),
                  'v_mul_u32_u24 v%d, 20, v%d' % (t + 2, t + 1), 'v_sub_u32 v%d, v%d, v%d' % (t + 2, t, t + 2),
                  'v_mul_u32_u24 v%d, 1280, v%d' % (t + 3, t + 1), 'v_lshl_add_u32 v%d, v%d, 3, v%d' % (t + 3, t + 2, t + 3),
                  ('buffer_load_dwordx2 v[%d:%d], v%d, %s, 0 offen' % (vX + 2 * i, vX + 2 * i + 1, t + 3, S4(rXT)), 'X'),
                  'v_lshlrev_b32 v%d, 1, v%d' % (vOut + i, t + 3), 'v_bfe_u32 v%d, v%d, 1, 2' % (t + 3, t + 1), 'v_xor_b32 v%d, v%d, v%d' % (t + 3, t + 3, t + 2), 'v_mul_u32_u24 v%d, 320, v%d' % (vLR + i, t + 1),
                  'v_add_u32 v%d, %d, v%d' % (vLR + i, PB, vLR + i), 'v_lshl_add_u32 v%d, v%d, 4, v%d' % (vLR + i, t + 3, vLR + i),
                  'v_lshl_add_u32 v%d, v%d, 3, s66' % (vCR + 2 * i, t + 2), 'v_lshl_add_u32 v%d, v%d, 3, s66' % (vCR + 2 * i + 1, t + 1)]
        r += ['v_and_b32 v%d, 15, v%d' % (t, vLANE), 'v_mul_u32_u24 v%d, 320, v%d' % (vLW, t), 'v_lshrrev_b32 v%d, 4, v%d' % (t + 1, vLANE),
              'v_bfe_u32 v%d, v%d, 1, 2' % (t + 2, t), 'v_xor_b32 v%d, v%d, v%d' % (t + 1, t + 1, t + 2),
              'v_lshl_add_u32 v%d, v%d, 4, v%d' % (vLW, t + 1, vLW), 'v_mul_u32_u24 v%d, %d, v%d' % (t + 1, 64 * 320, vWAVE),
              'v_add_u32 v%d, v%d, v%d' % (vLW, vLW, t + 1), 'v_add_u32 v%d, %d, v%d' % (vLW, PB, vLW),
              'v_lshl_add_u32 v%d, v%d, 3, s66' % (vLW + 1, t), 'v_lshlrev_b32 v%d, 2, v%d' % (48, vLANE)]
        return r
    def sm_dma():
        p('s_lshl_b32 s40, s%d, 8' % sWV); p('s_add_u32 m0, s40, %d' % SM2)
        p('buffer_load_dword v48, %s, 0 offen sc1 lds' % S4(rSM), tag='SM')
    def bias():
        def f_sync(): p.wait(vm=['SM', 'X']); p('s_barrier')
        r = [f_sync]
        r += [('ds_read_b64 v[%d:%d], v%d offset:%d' % (vG + 2 * m, vG + 2 * m + 1, vLW + 1, 128 * m), 'g') for m in range(4)]
        for i in range(5):
            r += [('ds_read_b64 v[%d:%d], v%d' % (t, t + 1, vCR + 2 * i + 1), 'c'), ('ds_read_b64 v[%d:%d], v%d offset:512' % (t + 2, t + 3, vCR + 2 * i), 'c'),
                  ('ds_read_b64 v[%d:%d], v%d offset:768' % (t + 4, t + 5, vCR + 2 * i), 'c')]
            for h in range(2):
                r += ['v_lshlrev_b32 v%d, 16, v%d' % (t + 6 + 2 * h, vX + 2 * i + h), 'v_and_b32 v%d, 0xffff0000, v%d' % (t + 7 + 2 * h, vX + 2 * i + h)]
            r.append(lambda: p.wait(lg='c'))
            for h in range(2):
                r += ['v_lshlrev_b32 v48, 16, v%d' % (t + 2 + h), 'v_and_b32 v49, 0xffff0000, v%d' % (t + 2 + h),
                      'v_lshlrev_b32 v50, 16, v%d' % (t + 4 + h), 'v_and_b32 v51, 0xffff0000, v%d' % (t + 4 + h)]
                for e in range(2):
                    d = (vCR if h else vX) + 2 * i + e
                    r += ['v_mul_f32 v%d, v%d, v%d' % (48 + e, 48 + e, t + 6 + 2 * h + e), 'v_mul_f32 v%d, v%d, v%d' % (d, t + 1, 50 + e),
                          'v_fmac_f32 v%d, v%d, v%d' % (d, t, 48 + e)]
        r += ['v_add_f32 v%d, v%d, v%d' % (vG + 2 * m, vG + 2 * m, vG + 2 * m) for m in range(4)]
        return r
    def scale():
        r = []
        for m in range(4):
            for n in range(5):
                r += ['v_mul_f32 v%d, v%d, v%d' % (ACCB + 20 * m + 4 * n + z, vG + 2 * m + 1, ACCB + 20 * m + 4 * n + z) for z in range(4)]
        return r
    def comb(k, pk):
        n, m = divmod(k, 4); a = ACCA + 20 * m + 4 * n; bb = ACCB + 20 * m + 4 * n
        if pk:
            for r in (0, 2): p('v_pk_fma_f32 %s, %s, %s, %s op_sel:[0,0,0] op_sel_hi:[0,1,1]' % (P2(bb + r), P2(vG + 2 * m), P2(a + r), P2(bb + r)))
        else:
            for r in range(4): p('v_fmac_f32 v%d, v%d, v%d' % (bb + r, vG + 2 * m, a + r))
        p('ds_write_b128 v%d, v[%d:%d] offset:%d' % (vLW, bb, bb + 3, m * 16 * 320 + n * 64), tag='w')
    p('s_mov_b32 s66, %d' % SM2)
    fill = []
    NS = 22; LA = 2
    NF0 = opt.get('nf0', 8)
    seq = list(range(NF0)); rest = list(range(NF0, 12)); sr = list(range(12, 22))
    for j in range(len(rest)):
        n = -(-(len(sr) - 3) // (len(rest) - j))
        seq += sr[:n] + [rest[j]]; sr = sr[n:]
    seq += sr
    pos = {r: i for i, r in enumerate(seq)}
    bq = []; nb = 3
    for i in range(NS):
        r = seq[i]; pre = []
        fill += extra.get(i, [])
        if i == sigS: fill += [signal(1, ['hs', 'gst'])]
        if i == geo: fill += geom() + [sm_dma]
        if i == geo + 3: fill += bias()
        if i == pos[12] - LA - 1: pre += [fl_issue(1)]
        if i == pos[12] - LA: pre += [fl_check(1)]
        if i == pos[11] + 1: fill += scale()
        if i == pos[13] + 1:
            fill = [x for n in range(5) for x in c_read(20 + n, AX + 8 * n)] + fill
        if i == pos[13] + 3: pre += [lambda: (p.wait(lg='cr24'), p('s_barrier'))]
        p.wait(vm=['A%d' % r, 'B%d' % r])
        if opt.get('fine') == 3 and i not in (0, 6, 12): st('r%d' % i)
        if i == 0: st('p2first')
        if i == 6: st('p2_6')
        if i == 12: st('p2_12')
        while nb < 12 and pos[nb - 3] < i: bq.append([nb, b_loads(nb)]); nb += 1
        nxt = a_loads(seq[i + LA], i + LA) if i + LA < NS else []
        if bq:
            f, it = bq[0]; left = sum(not isinstance(x, str) for x in it)
            n = -(-left // max(1, pos[f] - LA - i + 1))
            while n:
                x = it.pop(0); nxt.append(x)
                if not isinstance(x, str): n -= 1
            if not it: bq.pop(0)
        nxt += xload.get(i, [])
        acc = ACCB if r < 12 else ACCA
        first = r in (0, 12)
        bh = AH + 16 * (i % 3)
        k = 0
        for n in range(5):
            for m in range(4):
                a = acc + 20 * m + 4 * n
                bk, bw = b_reg(r, n)
                p('v_mfma_f32_16x16x32_bf16 v[%d:%d], %s[%d:%d], a[%d:%d], %s' % (a, a + 3, bk, bw, bw + 3, bh + 4 * m, bh + 4 * m + 3,
                                                                              '0' if first else 'v[%d:%d]' % (a, a + 3)))
                k += 1
                if k == 1:
                    for x in pre: put(x)
                if nxt and (k % 2 == 1 or sum(not isinstance(x, str) for x in nxt) > (21 - k) // 2):
                    while isinstance(nxt[0], str): put(nxt.pop(0))
                    put(nxt.pop(0))
                for _ in range(opt.get('fill2', 3) if i < 12 else 2):
                    if fill: put(fill.pop(0))
                if i == NS - 1 and k > 3: comb(k - 4, False)
        assert not nxt and not (i == NS - 2 and fill)
        p.check_depth()
    assert not bq and nb == 12
    assert not fill
    st('mainend')
    for k in range(17, 20): comb(k, True)
    p.wait(lg='all'); p('s_barrier')
    st('red')
    R = ACCA
    for i in range(5):
        for w in range(4):
            p('ds_read_b128 v[%d:%d], v%d offset:%d' % (R + 16 * i + 4 * w, R + 16 * i + 4 * w + 3, vLR + i, w * 64 * 320), tag='r%d' % i)
    for i in range(5):
        p.wait(lg='r%d' % i)
        for r in (0, 2):
            p('v_pk_add_f32 %s, %s, %s' % (P2(R + 16 * i + r), P2(R + 16 * i + r), P2(R + 16 * i + 4 + r)))
            p('v_pk_add_f32 %s, %s, %s' % (P2(R + 16 * i + 8 + r), P2(R + 16 * i + 8 + r), P2(R + 16 * i + 12 + r)))
        bb = {0: vX + 2 * i, 2: vCR + 2 * i}
        for r in (0, 2): p('v_pk_add_f32 %s, %s, %s' % (P2(bb[r]), P2(bb[r]), P2(R + 16 * i + r)))
        for r in (0, 2): p('v_pk_add_f32 %s, %s, %s' % (P2(R + 16 * i + r), P2(bb[r]), P2(R + 16 * i + 8 + r)))
        p('buffer_store_dwordx4 v[%d:%d], v%d, %s, 0 offen%s' % (R + 16 * i, R + 16 * i + 3, vOut + i, S4(rO), opt.get('out_sc', SC)), tag='o')
    st('stored')
    if opt.get('echo'):
        p.wait(vm='all'); st('drained'); p.wait(lg='all', force=True)
        l = p.newlabel('L_echo'); ins = 's_memtime' if opt['echo'] == 'cyc' else 's_memrealtime'
        if opt['echo'] == 'cyc': p('s_mov_b32 s1, 20000')
        else: p('s_sub_u32 s1, s%d, s0' % sST)
        p(ins + ' s[4:5]'); p.wait(lg='all', force=True)
        p.label(l)
        p(ins + ' s[6:7]'); p.wait(lg='all', force=True)
        p('s_sub_u32 s6, s6, s4'); p('s_cmp_lt_u32 s6, s1'); p('s_cbranch_scc1 ' + l)
    if opt.get('stamps'):
        p.wait(vm='all'); st('drained'); st('rt1')
    st.dump(sWS, 60, 48)
```

```python
from emit import Prog
from common import *

LDS_BYTES = 163840
SPIN_MAX = 100000
SLOT = 32768
XREG = 4 * SLOT
SMO = XREG + 28672 + 2048
TRO = 4096
EXO = 6144
SM2 = 2 * 8192 + 6144
PB = 24576
CPL = [SLOT, XREG, 2 * SLOT, 3 * SLOT]
LOG2E = '0x3fb8aa3b'
INV2PI = '0.15915494'
SC = ' sc1'

sX, sLRE, sLIM, sBRE, sBIM, sCRE, sCIM, sLDT = 4, 6, 8, 10, 12, 14, 16, 18
sDSK, sW1, sB1, sW2, sB2, sGATE, sOUT, sDBG, sWS = 20, 24, 26, 28, 30, 32, 34, 36, 38
rX, rP0, rP1, rWS = 44, 48, 52, 56
rE, rHID, rW2P, rSJ, rS2, rC = 44, 48, 8, 8, 92, 92
sSB = 24
sM = 12
SIG = 70
sNON, sHF, sRB, sCG, sG, sQ, sWV, sRT, sCT, sSEL, sFL = 80, 81, 82, 83, 84, 85, 86, 87, 88, 89, 90
sSEL5 = sSEL
sSJO2 = 26
sSJO, sSJD, sSJK = 91, 96, 22
sST = 100
vLANE, vWAVE, vHH = 1, 2, 3
vDX, vDS, vD2 = 4, 8, 10
vRX, vRS, vRF = 12, 20, 28
vSTF, vL16, vEXA, vTW, vEO = 32, 33, 34, 36, 40
vDJ = 62
vB, vFP, vA = 41, 43, 44
vZ, vPOLL = 45, 46
vDC, vRC, vWP = 4, 6, 92
vT = 48
vN = 79
vGA = 80
vGW = 52
vST = 95
SAC = [176, 96]
TAB = [208, 128]
CON = [240, 160]
FAC = 96
AX = 0
AW = 160
AW2 = 208
AH = 160
PARTS = [(0, 12)]

def order(n, c, delta):
    return sorted(range(n), key=lambda i: (i - (delta if i % 4 == c else 0), 0 if i % 4 == c else 1))
def P2(r): return 'v[%d:%d]' % (r, r + 1)
def S4(r): return 's[%d:%d]' % (r, r + 3)
def S2(r): return 's[%d:%d]' % (r, r + 1)
def cmul(dr, di, ar, ai, br, bi):
    return ['v_mul_f32 v%d, v%d, v%d' % (dr, ar, br), 'v_mul_f32 v%d, v%d, v%d' % (di, ar, bi),
            'v_fma_f32 v%d, -v%d, v%d, v%d' % (dr, ai, bi, dr), 'v_fmac_f32 v%d, v%d, v%d' % (di, ai, br)]
def cm(d, a, b): return cmul(d, d + 1, a, a + 1, b, b + 1)
def cfma(dr, di, a, br, bi):
    return ['v_fmac_f32 v%d, v%d, v%d' % (dr, a, br), 'v_fmac_f32 v%d, v%d, v%d' % (di, a, bi),
            'v_fma_f32 v%d, -v%d, v%d, v%d' % (dr, a + 1, bi, dr), 'v_fmac_f32 v%d, v%d, v%d' % (di, a + 1, br)]
def pcfma(d, a, b):
    return ['v_pk_fma_f32 %s, %s, %s, %s op_sel:[0,0,0] op_sel_hi:[0,1,1]' % (P2(d), P2(a), P2(b), P2(d)),
            'v_pk_fma_f32 %s, %s, %s, %s op_sel:[1,1,0] op_sel_hi:[1,0,1] neg_lo:[1,0,0]' % (P2(d), P2(a), P2(b), P2(d))]
def pcmul(d, a, b):
    return ['v_pk_mul_f32 %s, %s, %s op_sel:[0,0] op_sel_hi:[0,1]' % (P2(d), P2(a), P2(b)),
            'v_pk_fma_f32 %s, %s, %s, %s op_sel:[1,1,0] op_sel_hi:[1,0,1] neg_lo:[1,0,0]' % (P2(d), P2(a), P2(b), P2(d))]
def csq(d, a):
    return ['v_mul_f32 v%d, v%d, v%d' % (d, a, a), 'v_add_f32 v%d, v%d, v%d' % (d + 1, a, a),
            'v_fma_f32 v%d, -v%d, v%d, v%d' % (d, a + 1, a + 1, d), 'v_mul_f32 v%d, v%d, v%d' % (d + 1, d + 1, a + 1)]
def interleave(*ls):
    out = []; ls = [list(l) for l in ls]
    while any(ls):
        for l in ls:
            if l: out.append(l.pop(0))
    return out
def sprinkle(main, extra, every):
    out = []; extra = list(extra)
    for i, x in enumerate(main):
        out.append(x)
        if i % every == every - 1 and extra:
            while isinstance(extra[0], str): out.append(extra.pop(0))
            out.append(extra.pop(0))
    return out + extra
def unpack(dst, src, n):
    r = []
    for k in range(n):
        r.append('v_lshlrev_b32 v%d, 16, v%d' % (dst + 2 * k, src + k))
        r.append('v_and_b32 v%d, 0xffff0000, v%d' % (dst + 2 * k + 1, src + k))
    return r

def dma_stage(s):
    sl = (s % 4) * SLOT; tg = 'st%d' % s; so = SIG + s
    r = ['s_add_u32 m0, s43, %d' % sl, 's_mul_i32 s61, s%d, s63' % so]
    r += [('buffer_load_dwordx4 v%d, %s, s%d offen offset:%d lds' % (vDX + i, S4(rX), so, 1024 * i), tg) for i in range(4)]
    r += ['s_add_u32 m0, s43, %d' % (sl + 4096)]
    r += [('buffer_load_dwordx4 v%d, %s, s61 offen offset:%d lds' % (vD2 + i, S4(rP0), 1024 * i), tg) for i in range(2)]
    r += [('buffer_load_dwordx4 v%d, %s, s61 offen offset:%d lds' % (vD2 + i, S4(rP1), 1024 * i + 2048), tg) for i in range(2)]
    return r

def gen(name, opt):
    p = Prog()
    st = Stamps(p, sST, vST, opt.get('stamps'))
    st.echo = opt.get('echo')
    def put(x):
        if callable(x): x()
        elif isinstance(x, tuple): p(x[0], tag=x[1])
        else: p(x)
    p.put = put
    p.label(name)
    p('s_cmp_ge_u32 s2, 256')
    p('s_cbranch_scc1 L_end')
    p('s_load_dwordx16 s[4:19], s[0:1], 0')
    p('s_load_dwordx8 s[20:27], s[0:1], 64')
    p('s_load_dwordx8 s[28:35], s[0:1], 96')
    p('s_load_dwordx4 s[36:39], s[0:1], 128')
    p('s_memrealtime s[64:65]')
    if opt.get('stamps'): p('s_memrealtime s[66:67]'); p('%s s[68:69]' % ('s_memrealtime' if opt['stamps'] == 2 else 's_memtime'))
    p('s_lshr_b32 s3, s2, 3')
    code_prefetch(p, 'L_end', 44, 40, 3)
    p('v_and_b32 v%d, 63, v0' % vLANE)
    p('v_lshrrev_b32 v%d, 6, v0' % vWAVE)
    p('s_and_b32 s%d, s2, 7' % sHF)
    p('s_lshr_b32 s40, s%d, 1' % sHF)
    p('s_lshl_b32 s%d, s40, 2' % sRB)
    p('s_and_b32 s41, s3, 3')
    p('v_readfirstlane_b32 s%d, v%d' % (sWV, vWAVE))
    p('s_add_u32 s%d, s%d, s41' % (sRB, sRB))
    p('s_and_b32 s%d, s%d, 1' % (sHF, sHF))
    p('s_lshr_b32 s%d, s3, 2' % sCG)
    p('s_add_u32 s41, s41, s%d' % sCG); p('s_and_b32 s41, s41, 3'); p('s_lshl_b32 s41, s41, 3'); p('s_or_b32 s41, s41, 0x80000')
    p('s_mul_i32 s40, s40, 5'); p('s_add_u32 s40, s40, 1'); p('s_lshr_b32 s40, s40, 1')
    p('s_mul_i32 s60, s%d, 5' % sHF); p('s_add_u32 s40, s40, s60')
    if not opt.get('rot', 1): p('s_mov_b32 s40, 0')
    p('s_sub_u32 s60, s40, 10'); p('s_cmp_ge_u32 s40, 10'); p('s_cselect_b32 s40, s60, s40')
    tabs = [order(10, c, opt.get('d1', 3)) for c in range(4)]
    if opt.get('hyb'): tabs = [[0] + [1 + x for x in order(9, c, opt.get('d1', 3))] for c in range(4)]
    def sigma(i):
        lit = sum(tabs[c][i] << (8 * c) for c in range(4)); s = SIG + i
        return ['s_bfe_u32 s%d, 0x%x, s41' % (s, lit), 's_add_u32 s%d, s%d, s40' % (s, s), 's_sub_u32 s60, s%d, 10' % s,
                's_min_u32 s%d, s60, s%d' % (s, s), 's_lshl_b32 s%d, s%d, 7' % (s, s)]
    for x in sigma(0): p(x)
    p('s_mul_i32 s%d, s%d, 10' % (sG, sHF))
    p('s_lshl_b32 s%d, s%d, 1' % (sQ, sCG))
    p('s_add_u32 s60, s%d, 2' % sCG)
    p('s_cmp_lt_u32 s%d, 2' % sCG)
    p('s_cselect_b32 s60, s%d, s60' % sQ)
    p('s_cselect_b32 s63, 1, 1536')
    p('s_add_u32 s%d, s%d, s60' % (sG, sG))
    p('s_mul_i32 s60, s%d, 12' % sHF)
    p('s_add_u32 s%d, s%d, s60' % (sQ, sQ))
    p('s_sub_u32 s%d, s%d, 4' % (sQ, sQ))
    t = vT
    p('v_lshrrev_b32 v%d, 3, v%d' % (t, vLANE))
    p('v_and_b32 v%d, 7, v%d' % (t + 1, vLANE))
    p('v_lshrrev_b32 v%d, 4, v%d' % (t + 2, vLANE))
    p('v_and_b32 v%d, 3, v%d' % (t + 3, t))
    p('v_lshrrev_b32 v%d, 5, v%d' % (vHH, vLANE))
    p('v_lshl_add_u32 v%d, v%d, 4, v%d' % (t + 3, vHH, t + 3))
    p('v_lshl_add_u32 v%d, v%d, 5, v%d' % (t + 3, vWAVE, t + 3))
    p('v_mul_u32_u24 v%d, 1280, v%d' % (t + 3, t + 3))
    p('v_xor_b32 v%d, v%d, v%d' % (t + 5, t + 1, t + 2))
    p('v_xor_b32 v%d, 4, v%d' % (t + 6, t + 5))
    for i in range(4):
        p('v_lshl_add_u32 v%d, v%d, 4, v%d' % (vDX + i, t + 5 + (i & 1), t + 3))
        if i: p('v_add_u32 v%d, %d, v%d' % (vDX + i, 4096 * i, vDX + i))
    p('v_and_b32 v%d, 1, v%d' % (t + 7, vWAVE))
    p('v_lshl_add_u32 v%d, v%d, 4, v%d' % (t + 7, t + 7, t))
    p('v_mul_u32_u24 v%d, 1280, v%d' % (t + 7, t + 7))
    p('v_lshl_add_u32 v%d, v%d, 4, v%d' % (vDS, t + 5, t + 7))
    p('v_lshl_add_u32 v%d, v%d, 4, v%d' % (vDS + 1, t + 6, t + 7))
    p('v_add_u32 v%d, %d, v%d' % (vDS + 1, 8 * 1280 - 1024, vDS + 1))
    p('v_lshl_add_u32 v%d, v%d, 4, v%d' % (t + 7, vWAVE, t))
    p('v_mul_u32_u24 v%d, 3072, v%d' % (t + 7, t + 7))
    p('v_and_b32 v%d, 1, v%d' % (t + 8, t + 2))
    p('v_lshlrev_b32 v%d, 2, v%d' % (t + 8, t + 8))
    p('v_xor_b32 v%d, v%d, v%d' % (t + 8, t + 8, t + 1))
    p('v_lshl_add_u32 v%d, v%d, 4, v%d' % (vD2, t + 8, t + 7))
    p('s_cmp_lt_u32 s%d, 2' % sCG)
    p('s_cselect_b64 vcc, -1, 0')
    p('v_add_u32 v%d, %d, v%d' % (vD2 + 1, 8 * 3072 - 1024, vD2))
    p('v_cndmask_b32 v%d, v%d, v%d, vcc' % (vD2, vD2, vDS))
    p('v_cndmask_b32 v%d, v%d, v%d, vcc' % (vD2 + 1, vD2 + 1, vDS + 1))
    p('s_lshl_b32 s42, s%d, 7' % sQ); p('s_max_i32 s42, s42, 0')
    p('s_lshl_b32 s43, s%d, 13' % sWV)
    a = 58
    p('v_lshl_add_u32 v%d, v%d, 5, v%d' % (a, vWAVE, vLANE))
    p('v_min_u32 v%d, 119, v%d' % (a, a))
    p('v_lshlrev_b32 v%d, 4, v%d' % (a + 1, a))
    p('s_lshl_b32 s60, s%d, 6' % sG)
    p('v_cmp_le_u32 s[92:93], 8, v%d' % a); p('v_cmp_le_u32 s[94:95], 16, v%d' % a); p('v_cmp_le_u32 s[96:97], 24, v%d' % a); p('v_cmp_le_u32 s[98:99], 40, v%d' % a)
    p('v_and_b32 v%d, 0x70, v%d' % (a + 2, a + 1)); p('v_add_u32 v%d, s60, v%d' % (a + 2, a + 2)); p('v_min_u32 v%d, 1264, v%d' % (a + 2, a + 2))
    p('v_subrev_u32 v%d, %d, v%d' % (a + 3, 16 * 24, a + 1)); p('v_add_u32 v%d, s42, v%d' % (a + 3, a + 3))
    p('v_cndmask_b32 v%d, v%d, v%d, s[96:97]' % (a + 2, a + 2, a + 3))
    p('v_subrev_u32 v%d, %d, v%d' % (a + 3, 16 * 40, a + 1))
    p('v_cndmask_b32 v%d, v%d, v%d, s[98:99]' % (a + 2, a + 2, a + 3))
    p('v_mov_b32 v%d, 0' % (a + 3))
    p('s_mul_i32 s60, s%d, %d' % (sRB, 128 * 1280))
    p('s_mul_i32 s61, s%d, %d' % (sG, 32 * 1280))
    p.wait(lg='all')
    if opt.get('echo'): p('s_mov_b32 s0, s64')
    if opt.get('stamps'):
        p('v_writelane_b32 v%d, s66, 0' % vST); p('v_writelane_b32 v%d, s68, 1' % vST); st.names += ['rt0', 'start']; st.n = 2
    st('karg')
    if opt.get('wsoff'): p('s_add_u32 s%d, s%d, %d' % (sWS, sWS, opt['wsoff'] << 20)); p('s_addc_u32 s%d, s%d, 0' % (sWS + 1, sWS + 1))
    srd(p, rX, sX, 128 * 1280, 's60')
    p('s_mov_b32 s65, s61')
    d0 = dma_stage(0)
    XF = opt.get('xfirst', 0)
    def small():
        p('s_lshl_b32 s60, s%d, 9' % sWV); p('s_add_u32 m0, s60, %d' % SMO)
        p('v_mov_b32 v%d, s%d' % (a + 4, sLRE)); p('v_mov_b32 v%d, s%d' % (a + 5, sLRE + 1))
        for m, sb in ((92, sLIM), (94, sLDT), (96, sB1), (98, sGATE)):
            p('v_mov_b32 v%d, s%d' % (a + 6, sb)); p('v_mov_b32 v%d, s%d' % (a + 7, sb + 1))
            p('v_cndmask_b32 v%d, v%d, v%d, %s' % (a + 4, a + 4, a + 6, S2(m))); p('v_cndmask_b32 v%d, v%d, v%d, %s' % (a + 5, a + 5, a + 7, S2(m)))
        p('v_lshl_add_u64 v[%d:%d], v[%d:%d], 0, v[%d:%d]' % (a + 4, a + 5, a + 2, a + 3, a + 4, a + 5))
        p('s_mov_b32 exec_hi, 0')
        p('global_load_lds_dwordx4 v[%d:%d], off' % (a + 4, a + 5), tag='sm')
        p('s_mov_b64 exec, -1')
    if not XF: small()
    for x in d0[:6]: put(x)
    if XF: small()
    p('s_cmp_lt_u32 s%d, 2' % sWV)
    p('s_cselect_b32 s66, s%d, s%d' % (sBRE, sBIM)); p('s_cselect_b32 s67, s%d, s%d' % (sBRE + 1, sBIM + 1))
    p('s_add_u32 s66, s66, s65'); p('s_addc_u32 s67, s67, 0')
    p('s_add_u32 s%d, s%d, s42' % (rP0, sW1)); p('s_addc_u32 s%d, s%d, 0' % (rP0 + 1, sW1 + 1))
    p('s_sub_u32 s%d, %d, s42' % (rP0 + 2, 640 * 3072))
    p('s_cmp_lt_u32 s%d, 2' % sCG)
    p('s_cselect_b32 s%d, s66, s%d' % (rP0, rP0)); p('s_cselect_b32 s%d, s67, s%d' % (rP0 + 1, rP0 + 1))
    p('s_cselect_b32 s%d, %d, s%d' % (rP0 + 2, 64 * 1280, rP0 + 2)); p('s_mov_b32 s%d, 0x20000' % (rP0 + 3))
    p('s_mov_b32 s60, %d' % (128 - 2048)); p('s_cselect_b32 s60, %d, s60' % (32 * 1280 - 2048)); p('s_ashr_i32 s65, s60, 31')
    p('s_add_u32 s%d, s%d, s60' % (rP1, rP0)); p('s_addc_u32 s%d, s%d, s65' % (rP1 + 1, rP0 + 1)); p('s_sub_u32 s%d, s%d, s60' % (rP1 + 2, rP0 + 2))
    put(d0[6])
    p('s_mov_b32 s%d, 0x20000' % (rP1 + 3))
    for x in d0[7:]: put(x)
    st('dma0')
    p('s_mov_b64 %s, s[66:67]' % S2(sSB))
    srd(p, rWS, sWS, WS_USED)
    l = p.newlabel('L_nn')
    p('s_or_b32 s64, s64, 1')
    p('v_mov_b32 v%d, 0' % vZ)
    p('s_or_b32 s60, s2, s%d' % sWV)
    p('s_cmp_lg_u32 s60, 0')
    p('s_cbranch_scc1 ' + l)
    p('v_mov_b32 v52, s64')
    p('s_mov_b64 exec, 1')
    p('global_store_dword v%d, v52, %s sc1' % (vZ, S2(sDBG)), optional=True)
    p('s_mov_b64 exec, -1')
    p.label(l)
    for i in range(1, 10):
        for x in sigma(i): p(x)
    for x in addr_setup() + late_setup(opt.get('cls', 1)): put(x)
    p('s_cmp_lt_u32 s%d, 2' % sCG)
    p('s_cbranch_scc1 L_typeA')
    save = (list(p.vm), list(p.lg), p.smem, st.n, st.pending); seen0 = set(p.seen)
    body(p, 'B', opt, st)
    names1 = list(st.names)
    p('s_branch L_end')
    p.label('L_typeA')
    p.vm, p.lg, p.smem, st.n, st.pending = list(save[0]), list(save[1]), save[2], save[3], save[4]
    st.names = st.names[:st.n]; p.seen = seen0
    body(p, 'A', opt, st)
    p.namesA = list(st.names); st.names = names1
    p.label('L_end')
    p('s_endpgm')
    p.finalize(opt.get('verbose'))
    return p, dict(A=p.namesA, B=st.names)

def addr_setup():
    n_, h_ = vN, vHH
    r = ['v_and_b32 v%d, 31, v%d' % (n_, vLANE), 'v_lshrrev_b32 v48, 1, v%d' % n_, 'v_and_b32 v48, 7, v48',
         'v_xor_b32 v48, v48, v%d' % h_, 'v_lshlrev_b32 v49, 7, v%d' % n_, 'v_add_u32 v49, s43, v49',
         'v_lshrrev_b32 v50, 4, v%d' % n_, 'v_lshlrev_b32 v50, 13, v50', 'v_and_b32 v51, 15, v%d' % n_, 'v_lshl_add_u32 v50, v51, 7, v50']
    for s in range(4):
        r += ['v_xor_b32 v51, %d, v48' % (2 * s), 'v_lshl_add_u32 v%d, v51, 4, v49' % (vRX + s), 'v_lshl_add_u32 v%d, v51, 4, v50' % (vRS + s),
              'v_add_u32 v%d, 0x10000, v%d' % (vRX + 4 + s, vRX + s), 'v_add_u32 v%d, 0x10000, v%d' % (vRS + 4 + s, vRS + s)]
    r += ['v_bfe_u32 v48, v%d, 2, 2' % vLANE, 'v_lshl_add_u32 v49, v%d, 3, v48' % h_, 'v_lshlrev_b32 v49, 7, v49',
          'v_lshrrev_b32 v50, 1, v48', 'v_lshl_add_u32 v49, v50, 6, v49', 'v_and_b32 v50, 1, v%d' % vLANE,
          'v_lshl_add_u32 v49, v50, 5, v49', 'v_bfe_u32 v50, v%d, 4, 1' % vLANE, 'v_lshl_add_u32 v49, v50, 4, v49',
          'v_bfe_u32 v50, v%d, 1, 1' % vLANE, 'v_lshl_add_u32 v%d, v50, 3, v49' % vRF, 'v_xor_b32 v%d, 64, v%d' % (vRF + 1, vRF),
          'v_add_u32 v%d, 0x10000, v%d' % (vRF + 2, vRF), 'v_add_u32 v%d, 0x10000, v%d' % (vRF + 3, vRF + 1)]
    r += ['s_lshl_b32 s62, s%d, 3' % sHF, 's_add_u32 s62, s62, s%d' % sCG, 's_lshl_b32 s%d, s62, 8' % sFL, 's_lshl_b32 s62, s62, 2',
          's_and_b32 s65, s%d, 1' % sWV, 's_lshl_b32 s65, s65, 1', 's_add_u32 s62, s62, s65', 's_lshl_b32 s65, s65, 6', 's_add_u32 s%d, s%d, s65' % (sFL, sFL),
          's_lshr_b32 s65, s%d, 1' % sWV, 's_lshl_b32 s66, s65, 6', 's_add_u32 s62, s62, s66',
          's_lshl_b32 s66, s%d, 1' % sRB, 's_add_u32 s65, s65, s66', 's_mul_i32 s64, s65, %d' % HID_RT,
          's_lshl_b32 s65, s65, 12', 's_add_u32 s%d, s%d, s65' % (sFL, sFL), 's_add_u32 s%d, s%d, %d' % (sFL, sFL, WS_FH),
          's_and_b32 s65, s%d, 1' % sWV, 's_lshl_b32 s65, s65, 11', 's_add_u32 s64, s64, s65',
          'v_add_u32 v48, s62, v%d' % h_, 's_lshl_b32 s62, s%d, 7' % sRB, 'v_add_lshl_u32 v%d, v48, s62, 3' % (vGA + 9),
          'v_bfe_u32 v49, v48, 2, 2', 'v_bfe_u32 v50, v48, 4, 1', 'v_lshl_add_u32 v49, v49, 1, v50',
          'v_and_b32 v50, 3, v48', 'v_lshl_add_u32 v49, v49, 2, v50',
          'v_lshrrev_b32 v48, 5, v48', 'v_lshlrev_b32 v48, 13, v48', 'v_lshl_add_u32 v48, v49, 7, v48',
          'v_bfe_u32 v49, v49, 1, 3', 'v_lshrrev_b32 v50, 2, v%d' % n_, 'v_xor_b32 v49, v49, v50',
          'v_lshl_add_u32 v48, v49, 4, v48', 'v_and_b32 v49, 3, v%d' % n_, 'v_lshl_add_u32 v%d, v49, 2, v48' % vGA,
          'v_add_u32 v%d, 0x10000, v%d' % (vGA + 1, vGA), 'v_lshlrev_b32 v%d, 2, v%d' % (vGA + 2, n_),
          'v_add_u32 v%d, %d, v%d' % (vGA + 2, SMO + 640, vGA + 2), 'v_mov_b32 v%d, 0' % (vGA + 8),
          's_lshr_b32 s62, s43, 1', 'v_lshlrev_b32 v%d, 4, v%d' % (vL16, vLANE)]
    return r

def sidejob_setup(p, SJO):
    D = sSJD
    for x in ['s_cmp_lt_u32 s2, 224', 's_cselect_b32 s%d, 1, 0' % sSJK, 's_cmp_lt_u32 s%d, 3' % sWV, 's_cselect_b32 s%d, s%d, 0' % (sSJK, sSJK),
              's_sub_u32 s41, s2, 64', 's_lshr_b32 s65, s41, 4',
              's_and_b32 s41, s41, 15', 's_mul_i32 s41, s41, 3', 's_add_u32 s41, s41, s%d' % sWV,
              's_mul_i32 s%d, s41, %d' % (sSJO2, 32 * 1280), 's_lshl_b32 s60, s65, 7', 's_add_u32 s%d, s%d, s60' % (sSJO2, sSJO2),
              's_lshl_b32 s65, s65, 2',
              's_bfe_u32 s60, s41, 0x10001', 's_mul_i32 s60, s60, 24', 's_and_b32 s40, s41, 1', 's_add_u32 s60, s60, s40',
              's_lshr_b32 s41, s41, 2', 's_lshl_b32 s41, s41, 1', 's_add_u32 s41, s41, s60', 's_mul_i32 s41, s41, 5120',
              's_add_u32 s41, s41, %d' % WS_W2P,
              's_mov_b32 s%d, s%d' % (rSJ, sW2), 's_mov_b32 s%d, s%d' % (rSJ + 1, sW2 + 1), 's_mov_b32 s%d, %d' % (rSJ + 2, 1536 * 1280),
              's_mov_b32 s%d, 0x20000' % (rSJ + 3),
              's_cmp_lg_u32 s%d, 0' % sSJK, 's_cselect_b32 s%d, s%d, 0' % (rSJ + 2, rSJ + 2), 's_cselect_b32 s40, 0, 0x7ff00000',
              'v_add_u32 v%d, s40, v%d' % (vDJ + 5, vL16)]: p(x)
    for e in range(4):
        p('s_add_u32 s60, s65, %d' % e); p('s_mul_i32 s40, s60, 52'); p('s_lshr_b32 s40, s40, 8')
        p('s_mul_i32 s%d, s40, %d' % (D + e, W2P_CT - 5 * 1024)); p('s_lshl_b32 s60, s60, 10')
        p('s_add_u32 s%d, s%d, s60' % (D + e, D + e)); p('s_add_u32 s%d, s%d, s41' % (D + e, D + e))
    for x in ['v_lshrrev_b32 v48, 3, v%d' % vLANE, 'v_mul_u32_u24 v48, 1280, v48', 'v_and_b32 v49, 7, v%d' % vLANE, 'v_lshl_add_u32 v%d, v49, 4, v48' % vDJ,
              'v_lshrrev_b32 v48, 4, v%d' % vLANE, 'v_bfe_u32 v49, v%d, 2, 2' % vLANE, 'v_lshl_add_u32 v48, v48, 3, v49', 'v_lshlrev_b32 v48, 7, v48',
              'v_and_b32 v49, 3, v%d' % vLANE, 'v_lshl_add_u32 v48, v49, 3, v48', 's_add_u32 s60, s43, %d' % SJO, 'v_add_u32 v%d, s60, v48' % (vDJ + 4)]: p(x)
    for i in range(1, 4): p('v_add_u32 v%d, %d, v%d' % (vDJ + i, i * (8 * 1280 - 1024), vDJ))

def late_setup(CLS):
    n_, h_ = vN, vHH
    return ['v_bfe_u32 v48, v%d, 2, 1' % n_, 'v_lshlrev_b32 v48, 10, v48',
            'v_lshl_add_u32 v48, v%d, 9, v48' % h_, 'v_lshrrev_b32 v49, 3, v%d' % n_, 'v_lshl_add_u32 v48, v49, 6, v48',
            'v_and_b32 v49, 3, v%d' % n_, 'v_lshl_add_u32 v%d, v49, 4, v48' % vSTF,
            'v_lshlrev_b32 v%d, 3, v%d' % (vEXA + 1, n_), 'v_lshl_add_u32 v48, v%d, 1, v%d' % (vWAVE, h_),
            'v_lshl_add_u32 v%d, v48, 8, v%d' % (vEXA, vEXA + 1),
            's_add_u32 s6, s43, %d' % TRO,
            'v_lshlrev_b32 v48, 10, v%d' % h_, 'v_lshl_add_u32 v48, v%d, 4, v48' % n_, 'v_add_u32 v%d, s6, v48' % vTW,
            'v_xor_b32 v%d, 0x240, v%d' % (vTW + 1, vTW),
            'v_lshrrev_b32 v48, 4, v%d' % vLANE, 'v_lshlrev_b32 v48, 7, v48', 'v_bfe_u32 v49, v%d, 2, 2' % vLANE,
            'v_lshl_add_u32 v48, v49, 4, v48', 'v_and_b32 v49, 1, v%d' % vLANE, 'v_lshl_add_u32 v48, v49, 3, v48',
            'v_bfe_u32 v49, v%d, 1, 1' % vLANE, 'v_mul_u32_u24 v49, 0x240, v49', 'v_add_u32 v48, v48, v49',
            'v_add_u32 v%d, s6, v48' % (vTW + 2), 'v_xor_b32 v%d, 64, v%d' % (vTW + 3, vTW + 2),
            's_sub_u32 s6, s%d, 1' % sRB, 'v_sub_u32 v48, s6, v%d' % h_, 'v_lshlrev_b32 v48, 9, v48',
            'v_lshl_add_u32 v%d, v%d, 4, v48' % (vEO, n_),
            's_lshr_b32 s6, s%d, 2' % sRB, 's_lshl_b32 s6, s6, 3', 's_lshr_b32 s7, s3, 2', 's_add_u32 s%d, s6, s7' % sRT,
            's_lshl_b32 s6, s%d, 2' % sHF, 's_and_b32 s7, s3, 3', 's_add_u32 s%d, s6, s7' % sCT,
            's_sub_u32 s6, s%d, s%d' % (sCT, sRT) if CLS else 's_mov_b32 s6, s%d' % sCT, 's_and_b32 s6, s6, 3', 's_lshl_b32 s6, s6, 3', 's_or_b32 s%d, s6, 0x80000' % sSEL,
            'v_mul_u32_u24 v%d, 5120, v%d' % (vB, vWAVE), 'v_add_u32 v%d, v%d, v%d' % (vB, vB, vL16), 'v_add_u32 v%d, 0x1000, v%d' % (vB + 1, vB),
            'v_lshl_add_u32 v%d, v%d, 12, v%d' % (vA, vWAVE, vL16),
            's_lshl_b32 s6, s%d, 12' % sRT, 's_add_u32 s6, s6, %d' % WS_FH, 'v_lshl_add_u32 v%d, v%d, 7, s6' % (vFP, n_),
            's_mul_i32 s6, s%d, 5' % sCT, 's_lshr_b32 s6, s6, 2', 's_lshl_b32 s6, s6, 11', 's_add_u32 s6, s6, %d' % (WS_FL + 64 * 128),
            'v_lshl_add_u32 v%d, v%d, 7, s6' % (vWP, n_)]

def c_setup(vDC=vDC):
    return ['v_lshrrev_b32 v48, 3, v%d' % vLANE, 'v_mul_u32_u24 v48, 1280, v48', 'v_and_b32 v49, 7, v%d' % vLANE, 'v_lshrrev_b32 v50, 4, v%d' % vLANE,
            'v_xor_b32 v49, v49, v50', 'v_lshl_add_u32 v%d, v49, 4, v48' % vDC, 'v_xor_b32 v%d, 64, v%d' % (vDC + 1, vDC),
            'v_add_u32 v%d, %d, v%d' % (vDC + 1, 8 * 1280 - 1024, vDC + 1),
            'v_and_b32 v48, 15, v%d' % vLANE, 'v_lshrrev_b32 v49, 1, v48', 'v_xor_b32 v49, v49, v50', 'v_lshlrev_b32 v49, 4, v49',
            'v_lshl_add_u32 v48, v48, 7, v49', 's_add_u32 s6, s43, %d' % SLOT, 'v_add_u32 v%d, s6, v48' % vRC, 'v_xor_b32 v%d, 64, v%d' % (vRC + 1, vRC),
            'v_add_u32 v%d, %d, v%d' % (vRC + 2, 2 * SLOT, vRC), 'v_add_u32 v%d, %d, v%d' % (vRC + 3, 2 * SLOT, vRC + 1)]

def body(p, ty, opt, st):
    put = p.put
    B = ty == 'B'
    NG = 1 if B else 2
    WS = S4(rWS)
    vPAR = 72
    S2OFF = [2 * SLOT, 3 * SLOT, 0]
    DELTA = opt.get('delta', 2)
    def spin(load, check):
        l1, l2 = p.newlabel('L_sp'), p.newlabel('L_sp')
        p('s_mov_b32 s65, 0')
        p.label(l1)
        check(l2)
        p('s_add_u32 s65, s65, 1'); p('s_cmp_gt_u32 s65, %d' % SPIN_MAX); p('s_cbranch_scc1 ' + l2)
        load(True)
        p('s_waitcnt vmcnt(0)'); p('s_branch ' + l1)
        p.label(l2)
    def dma_s2(c):
        r = []
        for sg in range(4 if c < 2 else 2):
            r.append('s_add_u32 m0, s43, %d' % (S2OFF[c] + 2048 * sg))
            r += [('buffer_load_dwordx4 v%d, %s, s%d offen offset:%d lds' % (vDS + i, S4(rS2), SIG + 4 * c + sg, 1024 * i), 's2c%d' % c) for i in range(2)]
        return r
    def s2_srd(): srd(p, rS2, sSB, 32 * 1280)
    def par_reads():
        r = ['v_lshlrev_b32 v48, 1, v%d' % vN, 'v_add_u32 v48, %d, v48' % SMO]
        for g in range(NG):
            r += [('ds_read_u16 v%d, v48 offset:%d' % (vPAR + 3 * g + k, 128 * k + 64 * g), 'par') for k in range(3)]
        return r
    def bias_reads(dst, T):
        return [('ds_read_b128 v[%d:%d], v49 offset:%d' % (dst + 8 * T + 4 * q, dst + 3 + 8 * T + 4 * q, 64 * T + 16 * q), 'b1%d' % T) for q in range(2)]
    def setup(g):
        c = CON[g]; tr, ti = TAB[g], TAB[g] + 16; pr = vPAR + 3 * g
        a, b = 48, 50
        M = S2(sM)
        r = ['v_lshlrev_b32 v%d, 16, v%d' % (pr + k, pr + k) for k in range(3)]
        r += ['v_mul_f32 v%d, %s, v%d' % (a, LOG2E, pr + 2), 'v_exp_f32 v%d, v%d' % (a, a),
              'v_mul_f32 v%d, v%d, v%d' % (c + 4, pr, pr),
              'v_cvt_pk_bf16_f32 v%d, v%d, v%d' % (a, a, a), 'v_lshlrev_b32 v%d, 16, v%d' % (a, a),
              'v_mul_f32 v%d, v%d, v%d' % (a + 1, a, pr + 1), 'v_mul_f32 v%d, v%d, v%d' % (a, a, pr),
              'v_mul_f32 v%d, %s, v%d' % (a + 1, INV2PI, a + 1), 'v_mul_f32 v%d, %s, v%d' % (a, LOG2E, a),
              'v_fract_f32 v%d, v%d' % (a + 1, a + 1), 'v_exp_f32 v%d, v%d' % (a, a),
              'v_cos_f32 v%d, v%d' % (b, a + 1), 'v_sin_f32 v%d, v%d' % (b + 1, a + 1),
              'v_fmac_f32 v%d, v%d, v%d' % (c + 4, pr + 1, pr + 1),
              'v_mul_f32 v%d, v%d, v%d' % (c, a, b), 'v_mul_f32 v%d, v%d, v%d' % (c + 1, a, b + 1),
              'v_rcp_f32 v%d, v%d' % (a, c + 4), 'v_add_f32 v%d, -1.0, v%d' % (b, c),
              'v_mul_f32 v%d, v%d, v%d' % (c + 2, b, pr), 'v_mul_f32 v%d, v%d, v%d' % (c + 3, c + 1, pr),
              'v_fmac_f32 v%d, v%d, v%d' % (c + 2, c + 1, pr + 1), 'v_fma_f32 v%d, -v%d, v%d, v%d' % (c + 3, b, pr + 1, c + 3),
              'v_mul_f32 v%d, v%d, v%d' % (c + 2, c + 2, a), 'v_mul_f32 v%d, v%d, v%d' % (c + 3, c + 3, a),
              'v_mov_b32 v%d, v%d' % (tr, c), 'v_mov_b32 v%d, v%d' % (ti, c + 1)]
        for k in range(1, 16): r += cmul(tr + k, ti + k, tr + k - 1, ti + k - 1, c, c + 1)
        mu = c + 4
        r += ['v_cmp_eq_u32 %s, 1, v%d' % (M, vHH), 'v_mov_b32 v%d, v%d' % (mu, tr + 15), 'v_mov_b32 v%d, v%d' % (mu + 1, ti + 15)]
        r += ['v_cndmask_b32 v%d, 1.0, v%d, %s' % (b, mu, M), 'v_cndmask_b32 v%d, 0, v%d, %s' % (b + 1, mu + 1, M)]
        r += cm(c + 6, c + 2, b) + csq(a, mu)
        r += ['v_cndmask_b32 v%d, 1.0, v%d, s[66:67]' % (b, a), 'v_cndmask_b32 v%d, 0, v%d, s[66:67]' % (b + 1, a + 1)]
        r += cm(c + 12, c + 6, b) + csq(c + 8, a)
        r += ['v_cndmask_b32 v%d, 1.0, v%d, s[68:69]' % (b, c + 8), 'v_cndmask_b32 v%d, 0, v%d, s[68:69]' % (b + 1, c + 9)]
        r += cm(c + 6, c + 12, b) + csq(a, c + 8)
        r += ['v_cndmask_b32 v%d, 1.0, v%d, %s' % (c + 10, a, M), 'v_cndmask_b32 v%d, 0, v%d, %s' % (c + 11, a + 1, M)]
        r += csq(c + 8, a)
        r += ['v_lshl_add_u32 v%d, v%d, 1, v%d' % (c + 14, vWAVE, vHH), 'v_mov_b32 v%d, 0' % (c + 12), 'v_mov_b32 v%d, 0' % (c + 13)]
        return r
    def masks():
        p('s_bitcmp1_b32 s%d, 0' % sWV); p('s_cselect_b64 s[66:67], -1, 0')
        p('s_bitcmp1_b32 s%d, 1' % sWV); p('s_cselect_b64 s[68:69], -1, 0')
    def gate_reads(s):
        sl = s % 4; d = vGA + 4 + 2 * (s & 1)
        return [('ds_read_b32 v%d, v%d offset:%d' % (d, vGA + (sl >> 1), (sl & 1) * SLOT), 'g%d' % s)]
    def gw_reads():
        r = []
        for s in range(10): r += ['v_add_u32 v%d, s%d, v%d' % (vGA + 3, SIG + s, vGA + 2), ('ds_read_b32 v%d, v%d' % (vGW + s, vGA + 3), 'gw')]
        return r
    def gate_step(s):
        if opt.get('nogate'): return []
        x = vGA + 4 + 2 * (s & 1); w = vGW + s; a = vGA + 10; acc = vGA + 8
        return [lambda: p.wait(lg='g%d' % s),
                'v_lshlrev_b32 v%d, 16, v%d' % (a, x), 'v_lshlrev_b32 v%d, 16, v%d' % (a + 1, w),
                'v_and_b32 v%d, 0xffff0000, v%d' % (x, x), 'v_and_b32 v%d, 0xffff0000, v%d' % (w, w),
                'v_mul_f32 v%d, v%d, v%d' % (a, a, a + 1), 'v_mul_f32 v%d, v%d, v%d' % (x, x, w),
                'v_cvt_pk_bf16_f32 v%d, v%d, v%d' % (a, a, x),
                'v_lshlrev_b32 v%d, 16, v%d' % (a + 1, a), 'v_and_b32 v%d, 0xffff0000, v%d' % (a, a),
                'v_add_f32 v%d, v%d, v%d' % (acc, acc, a + 1), 'v_add_f32 v%d, v%d, v%d' % (acc, acc, a)]
    def gate_store():
        a = vGA + 10
        p('s_mov_b32 s40, %d' % WS_G)
        p('s_mov_b32 exec_lo, 1'); p('s_mov_b32 exec_hi, 1')
        p('buffer_store_dwordx2 v[%d:%d], v%d, %s, s40 offen%s' % (a, a + 1, vGA + 9, WS, SC), tag='gst')
        p('s_mov_b64 exec, -1')
    gstore = [gate_store]
    def gate_fin():
        r = []; s = vGA + 8; a = vGA + 10
        for m in ('quad_perm:[1,0,3,2]', 'quad_perm:[2,3,0,1]', 'row_half_mirror', 'row_mirror'):
            r.append('v_add_f32_dpp v%d, v%d, v%d %s row_mask:0xf bank_mask:0xf' % (s, s, s, m))
        r += ['v_mov_b32 v%d, v%d' % (a, s), 'v_permlane16_swap_b32 v%d, v%d' % (a, s), 'v_add_f32 v%d, v%d, v%d' % (s, s, a),
              'v_cvt_pk_bf16_f32 v%d, v%d, v%d' % (s, s, s), 'v_lshlrev_b32 v%d, 16, v%d' % (s, s),
              'v_mul_f32 v%d, 0xbfb8aa3b, v%d' % (s, s), 'v_exp_f32 v%d, v%d' % (s, s), 'v_add_f32 v%d, 1.0, v%d' % (s, s),
              'v_rcp_f32 v%d, v%d' % (s, s), 'v_cvt_pk_bf16_f32 v%d, v%d, v%d' % (s, s, s), 'v_lshlrev_b32 v%d, 16, v%d' % (a, s),
              'v_sub_f32 v%d, 1.0, v%d' % (a + 1, a), 'v_cvt_pk_bf16_f32 v%d, v%d, v%d' % (a + 1, a + 1, a + 1),
              'v_lshlrev_b32 v%d, 16, v%d' % (a + 1, a + 1)]
        store = gstore[0]
        def unused():
            p('s_mov_b32 s40, %d' % WS_G)
            p('s_mov_b32 exec_lo, 1'); p('s_mov_b32 exec_hi, 1')
            p('buffer_store_dwordx2 v[%d:%d], v%d, %s, s40 offen%s' % (a, a + 1, vGA + 9, WS, SC), tag='gst')
            p('s_mov_b64 exec, -1')
        if not (B and opt.get('fburst', 1) and opt.get('gmerge', 0)): r.append(store)
        return r
    SJM = opt.get('sjmid', 0); SJL = opt.get('sjlate', 0); SJO = 4096 if SJL else XREG
    def sj_dma():
        p('s_add_u32 m0, s43, %d' % SJO)
        for i in range(4): p('buffer_load_dwordx4 v%d, %s, s%d offen offset:%d lds' % (vDJ + i, S4(rSJ), sSJO2, 1024 * i), tag='sj')
    def sj_read():
        p.wait(vm='sj')
        for e in range(4):
            for j in range(2): p('ds_read_b64_tr_b16 a[%d:%d], v%d offset:%d' % (232 + 4 * e + 2 * j, 233 + 4 * e + 2 * j, vDJ + 4, 32 * e + 512 * j), tag='sjr')
    def sj_store():
        p.wait(lg='sjr')
        for e in range(4): p('buffer_store_dwordx4 a[%d:%d], v%d, %s, s%d offen%s' % (232 + 4 * e, 235 + 4 * e, vDJ + 5, WS, sSJD + e, SC), tag='sjs')
    def a_prefetch(which):
        p('s_and_b32 s65, s2, 7'); p('s_lshl_b32 s65, s65, 3'); p('s_add_u32 s65, s65, s3'); p('s_lshl_b32 s65, s65, 2'); p('s_add_u32 s65, s65, s%d' % sWV)
        if which == 'C':
            p('s_bitcmp1_b32 s%d, 0' % sWV)
            p('s_cselect_b32 s40, s%d, s%d' % (sCIM, sCRE)); p('s_cselect_b32 s41, s%d, s%d' % (sCIM + 1, sCRE + 1))
            p('s_lshr_b32 s65, s65, 1'); p('s_mul_i32 s65, s65, 6400'); p('v_min_u32 v68, 49, v%d' % vLANE)
        else:
            p('s_mov_b64 s[40:41], %s' % S2(sW2)); p('s_mul_i32 s65, s65, 7680'); p('v_min_u32 v68, 59, v%d' % vLANE)
        p('v_lshl_add_u32 v68, v68, 7, s65')
        p('global_load_dword v93, v68, s[40:41]', tag='cpf')
    def c_prefetch():
        p('s_bitcmp1_b32 s%d, 0' % sWV)
        p('s_cselect_b32 s40, s%d, s%d' % (sCIM, sCRE)); p('s_cselect_b32 s41, s%d, s%d' % (sCIM + 1, sCRE + 1))
        p('s_lshl_b32 s65, s2, 1'); p('s_lshr_b32 s23, s%d, 1' % sWV); p('s_add_u32 s65, s65, s23'); p('s_mul_i32 s65, s65, 1600')
        p('v_lshl_add_u32 v68, v%d, 7, s65' % vLANE); p('v_min_u32 v68, %d, v68' % (640 * 1280 - 4))
        p('s_mov_b64 exec, 0x1fff')
        p('global_load_dword v93, v68, s[40:41]', tag='cpf')
        p('s_mov_b64 exec, -1')
    def c_srd():
        p.seen.add('csrd')
        p('s_bitcmp1_b32 s%d, 0' % sWV)
        p('s_cselect_b32 s%d, s%d, s%d' % (rC, sCIM, sCRE)); p('s_cselect_b32 s%d, s%d, s%d' % (rC + 1, sCIM + 1, sCRE + 1))
        p('s_mul_i32 s40, s%d, %d' % (sCT, 80 * 1280)); p('s_add_u32 s%d, s%d, s40' % (rC, rC)); p('s_addc_u32 s%d, s%d, 0' % (rC + 1, rC + 1))
        p('s_mov_b32 s%d, %d' % (rC + 2, 80 * 1280)); p('s_mov_b32 s%d, 0x20000' % (rC + 3))
        p('s_lshr_b32 s%d, s%d, 1' % (sSJO, sWV)); p('s_lshl_b32 s%d, s%d, 7' % (sSJO, sSJO))
    CORD = [0, 2, 1, 3] if B else [2, 3, 1, 0]
    DS = opt.get('deltas', 1)
    def sp_lit(pos): return sum(order(5, c, DS)[pos] << (8 * c) for c in range(4))
    def c_dma(q):
        pos, n = divmod(q, 5); pl = q % 16
        r = [lambda: p.wait(lg='cr%d' % (q - 16))] if q >= 16 else []
        r += ['s_add_u32 m0, s43, %d' % (CPL[CORD[pl >> 2]] + 2048 * (pl & 3))]
        if n == 0: r += ['s_bfe_u32 s23, 0x%x, s%d' % (sp_lit(pos), sSEL5), 's_lshl_b32 s23, s23, 8', 's_add_u32 s23, s23, s%d' % sSJO]
        else: r += ['s_add_u32 s23, s23, %d' % (16 * 1280)]
        ld = [('buffer_load_dwordx4 v%d, %s, s23 offen offset:%d lds' % ((70 if (q < 8 and not B) else vDC) + i, S4(rC), 1024 * i), 'cd%d' % q) for i in range(2)]
        def first():
            assert 'csrd' in p.seen
            for x in r + ld[:1]: put(x)
        return [first, ld[1]]
    def c_read(q, dst=None):
        pl = q % 16; dst = AX + 8 * q if dst is None else dst
        hi, o = {0: (0, 0), 1: (1, SLOT), 2: (0, SLOT), 3: (1, 0)}[CORD[pl >> 2]]
        rd = [('ds_read_b128 a[%d:%d], v%d offset:%d' % (dst + 4 * gg, dst + 4 * gg + 3, vRC + 2 * hi + gg, o + 2048 * (pl & 3)), 'cr%d' % q) for gg in range(2)]
        return [lambda: (p.wait(vm='cd%d' % q), put(rd[0])), rd[1]]
    def cD(a, b): return [x for q in range(a, b) for x in c_dma(q)]
    def cR(a, b): return [x for q in range(a, b) for x in c_read(q)]
    def nonce_load(o=False): p('global_load_dword v%d, v%d, %s sc1' % (vPOLL, vZ, S2(sDBG)), tag='nonce', optional=o)
    def get_nonce():
        def chk(l2):
            p('v_readfirstlane_b32 s%d, v%d' % (sNON, vPOLL)); p('s_cmp_lg_u32 s%d, 0' % sNON); p('s_cbranch_scc1 ' + l2)
        p.wait(vm='nonce'); spin(nonce_load, chk)
        p('v_mov_b32 v47, s%d' % sNON)
    def w2_signal():
        def go():
            p('s_lshl_b32 s40, s2, 7'); p('s_add_u32 s40, s40, %d' % WS_FL); p('s_mov_b64 exec, 1')
            p('buffer_store_dword v47, v%d, %s, s40 offen%s' % (vZ, WS, SC), optional=True)
            p('s_mov_b64 exec, -1')
        wave0(go)
    def signal(level, tags):
        def go():
            p.wait(vm=tags)
            p('s_add_u32 s65, s%d, %d' % (sFL, 131072 * level)); p('s_mov_b64 exec, 1')
            p('buffer_store_dword v47, v%d, %s, s65 offen%s' % (vZ, WS, SC), tag='flag')
            p('s_mov_b64 exec, -1')
        return go
    def fl_load(level):
        if level == 'FW':
            p('v_cmp_eq_u32 vcc, 1, v%d' % vHH); p('v_cndmask_b32 v94, v%d, v%d, vcc' % (vFP, vWP))
            p('buffer_load_dword v%d, v94, %s, 0 offen sc1' % (vPOLL, WS), optional=True)
            return
        p('s_mov_b32 s40, %d' % (0 if level == 'W' else 131072 * level)); p('s_mov_b32 exec_hi, 0')
        p('buffer_load_dword v%d, v%d, %s, s40 offen sc1' % (vPOLL, vWP if level == 'W' else vFP, WS), optional=True)
        p('s_mov_b32 exec_hi, -1')
    def wave0(fn):
        l = p.newlabel('L_w0')
        p('s_cmp_lg_u32 s%d, 0' % sWV); p('s_cbranch_scc1 ' + l)
        fn()
        p.label(l)
    def fl_issue(level):
        def go():
            wave0(lambda: fl_load(level))
            p.marks[level] = p.total_vm()
        return go
    def fl_check(level, bar=True):
        def chk(l2):
            p('v_cmp_ne_u32 vcc, s%d, v%d' % (sNON, vPOLL))
            if level == 'FW': p('s_cbranch_vccz ' + l2)
            else: p('s_cmp_eq_u32 vcc_lo, 0'); p('s_cbranch_scc1 ' + l2)
        def body_():
            p('s_waitcnt vmcnt(%d)' % min(63, p.total_vm() - p.marks[level]))
            spin(lambda o: fl_load(level), chk)
        def go():
            wave0(body_)
            if bar: p('s_barrier')
        return go
    def rnd_lit(i):
        for o, n in PARTS:
            if o <= i < o + n: return sum((o + order(n, c, DELTA)[i - o]) << (8 * c) for c in range(4))
    def b_reg(i, n):
        if i < 12: return ('a', 208 + 20 * (i % 3) + 4 * n) if i % 3 < 2 else ('v', 12 + 4 * n)
        pos, gg = divmod(i - 12, 2)
        return 'a', AX + 8 * (5 * (pos % 4) + n) + 4 * gg
    def b_loads(i):
        r = ['s_bfe_u32 s61, 0x%x, s%d' % (rnd_lit(i), sSEL), 's_mul_i32 s61, s61, 20480']
        for n in range(5):
            k, b = b_reg(i, n)
            r.append(('buffer_load_dwordx4 %s[%d:%d], v%d, %s, s61 offen%s sc1' % (k, b, b + 3, vB + (n >> 2), S4(rW2P), ' offset:%d' % (1024 * n) if n < 4 else ''), 'B%d' % i))
        return r
    def a_loads(i, pos=None):
        b = AH + 16 * ((i if pos is None else pos) % 3)
        if i < 12: r = ['s_bfe_u32 s60, 0x%x, s%d' % (rnd_lit(i), sSEL), 's_lshl_b32 s60, s60, 14']
        else: r = ['s_bfe_u32 s60, 0x%x, s%d' % (sp_lit((i - 12) >> 1), sSEL5), 's_lshl_b32 s60, s60, 15', 's_add_u32 s60, s60, %d' % ((12 + (i & 1)) << 14)]
        r += [('buffer_load_dwordx4 a[%d:%d], v%d, %s, s60 offen offset:%d sc1' % (b + 4 * m, b + 4 * m + 3, vA, S4(rHID), 1024 * m), 'A%d' % i) for m in range(4)]
        return r
    def w2_prefetch():
        if not opt.get('wpf', 0): return
        p('s_and_b32 s40, s%d, 7' % sRT); p('s_lshl_b32 s40, s40, 2'); p('s_add_u32 s40, s40, s%d' % sWV); p('s_mul_i32 s40, s40, 7680')
        p('v_min_u32 v94, 59, v%d' % vLANE); p('v_lshlrev_b32 v94, 7, v94')
        p('buffer_load_dword v93, v94, %s, s40 offen sc1' % S4(rW2P), tag='wpf')
    def hid_srd():
        p('s_mul_i32 s40, s%d, %d' % (sRT, HID_RT)); srd(p, rHID, sWS, HID_RT, 's40')
        p('s_mul_i32 s40, s%d, %d' % (sCT, W2P_CT)); p('s_add_u32 s40, s40, %d' % WS_W2P); srd(p, rW2P, sWS, W2P_CT, 's40')
        if opt.get('fake'):
            p('s_lshr_b32 s40, s%d, 2' % sRB); p('s_mul_i32 s40, s40, %d' % (512 * 1280)); p('s_lshl_b32 s41, s3, 13'); p('s_add_u32 s40, s40, s41')
            if opt['fake'] & 1: srd(p, rHID, sX, HID_RT, 's40')
            if opt['fake'] & 2: srd(p, rW2P, sX, HID_RT, 's40')
    def reads1(k):
        s, ks = divmod(k, 4); sl = s % 4; hi = 4 * (sl >> 1); o = (sl & 1) * SLOT
        w = AW + 16 * (k % 3); tg = 'k%d' % k
        r = [('ds_read_b128 a[%d:%d], v%d offset:%d' % (AX + 4 * k, AX + 4 * k + 3, vRX + hi + ks, o), tg)]
        for T in range(4):
            if B:
                for j in range(2):
                    r.append(('ds_read_b64_tr_b16 a[%d:%d], v%d offset:%d' % (w + 4 * T + 2 * j, w + 1 + 4 * T + 2 * j, vRF + (hi >> 1) + (T & 1),
                                                                          o + ks * 8192 + 4096 + 2048 * (T >> 1) + 512 * j), tg))
            else:
                r.append(('ds_read_b128 a[%d:%d], v%d offset:%d' % (w + 4 * T, w + 4 * T + 3, vRS + hi + ks, o + 4096 + 2048 * (T >> 1) + 16384 * (T & 1)), tg))
        return r
    L2 = opt.get('lead2', 5); NB2 = L2 + 1
    def reads2(m):
        k, T = divmod(m, 2); s, ks = divmod(k, 4); c, sg = divmod(s, 4)
        w = AW2 + 4 * (m % NB2)
        return [('ds_read_b128 a[%d:%d], v%d offset:%d' % (w, w + 3, vRS + 4 * (S2OFF[c] >> 16) + ks, (S2OFF[c] & 0xffff) + 16384 * T + 2048 * sg), 'm%d' % m)]
    mf = 'v_mfma_f32_32x32x16_bf16 v[%d:%d], a[%d:%d], a[%d:%d], %s'
    def mfma1(k, T):
        x = AX + 4 * k; f = AW + 16 * (k % 3) + 4 * T
        if B: a = FAC + 16 * T; return mf % (a, a + 15, f, f + 3, x, x + 3, 'v[%d:%d]' % (a, a + 15))
        a = SAC[T >> 1] + 16 * (T & 1)
        return mf % (a, a + 15, x, x + 3, f, f + 3, 'v[%d:%d]' % (a, a + 15) if k else '0')
    def mfma2(m):
        k, T = divmod(m, 2); x = AX + 4 * k; a = SAC[0] + 16 * T; f = AW2 + 4 * (m % NB2)
        return mf % (a, a + 15, x, x + 3, f, f + 3, 'v[%d:%d]' % (a, a + 15) if k else '0')
    LOOK = opt.get('look', 3); SJS = opt.get('sjs', 2); AE = opt.get('aearly', 0)
    def sync1(s):
        p.wait(vm='st%d' % s, lg=None if (opt.get('nolg') and s) else 'all'); p('s_barrier')
        r = []
        if s == 0: r += dma_stage(2)
        if s + LOOK < 10: r += dma_stage(s + LOOK)
        elif B: r += dma_s2(s + LOOK - 10)
        elif AE and s < 9: r += cD(4 * (s - 7), 4 * (s - 6))
        if s == 7 and opt.get('cpf', 2) == 1: r = [c_prefetch] + r
        if not B and opt.get('cpf', 2) == 2:
            if s == opt.get('pfc', 7): r = r + [lambda: a_prefetch('C')]
            if s == opt.get('pfw', 4) and (SJL or SJM): r = r + [lambda: a_prefetch('W')]
        if B and s == SJM and SJM: r = r + [sj_dma]
        return r
    def scanA1(g):
        c = CON[g]; re, im = SAC[g], SAC[g] + 16
        r = []
        for k in range(1, 16): r += cfma(re + k, im + k, c, re + k - 1, im + k - 1)
        r += ['v_mov_b32 v%d, v%d' % (48 + 2 * g, re + 15), 'v_mov_b32 v%d, v%d' % (49 + 2 * g, im + 15),
              ('ds_write_b64 v%d, v[%d:%d] offset:%d' % (vEXA, 48 + 2 * g, 49 + 2 * g, EXO + 8192 * g), 'ex')]
        return r
    def scanA2(g):
        c = CON[g]; re, im = SAC[g], SAC[g] + 16; be = P2(c + 2)
        r = []
        for k in range(0, 16, 2):
            tt = 48 + (k & 2)
            r += ['v_pk_mul_f32 %s, %s, %s op_sel:[1,0] op_sel_hi:[1,1]' % (P2(tt), be, P2(re + k)),
                  'v_pk_mul_f32 %s, %s, %s op_sel:[0,0] op_sel_hi:[0,1]' % (P2(re + k), be, P2(re + k)),
                  'v_pk_fma_f32 %s, %s, %s, %s op_sel:[1,0,0] op_sel_hi:[1,1,1] neg_lo:[1,0,0] neg_hi:[1,0,0]' % (P2(re + k), be, P2(im + k), P2(re + k)),
                  'v_pk_fma_f32 %s, %s, %s, %s op_sel:[0,0,0] op_sel_hi:[0,1,1]' % (P2(im + k), be, P2(im + k), P2(tt))]
        return r
    def ex_reads(g, e):
        return [('ds_read_b64 v[%d:%d], v%d offset:%d' % (e + 2 * k, e + 2 * k + 1, vEXA + 1, EXO + 8192 * g + 256 * k), 'exr%d' % g) for k in range(8)]
    def ex_prefix(g, e, pk):
        c = CON[g]; r = []
        for k in range(1, 8):
            r += pcfma(e + 2 * k, c + 4, e + 2 * k - 2) if pk else cfma(e + 2 * k, e + 2 * k + 1, c + 4, e + 2 * k - 2, e + 2 * k - 1)
        return r
    def ex_pub(g, e):
        def pub():
            p('v_mov_b32 v%d, v47' % (e + 16)); p('v_mov_b32 v%d, v47' % (e + 17))
            p('s_add_u32 s40, s%d, %d' % (sG, g)); p('s_lshl_b32 s40, s40, 4'); p('s_add_u32 s40, s40, s%d' % sRB); p('s_lshl_b32 s40, s40, 9')
            p('s_add_u32 s40, s40, %d' % WS_E)
            p('s_lshl_b32 s41, s%d, 3' % sWV); p('s_lshl_b32 exec_lo, 0xff, s41'); p('s_mov_b32 exec_hi, 0')
            p('buffer_store_dwordx4 v[%d:%d], v%d, %s, s40 offen%s' % (e + 14, e + 17, vL16, WS, SC), tag='pub')
            p('s_mov_b64 exec, -1')
        return [pub]
    def ex_own(g, e):
        c = CON[g]; r = []
        for k in range(1, 8):
            r += ['v_cmp_eq_u32 %s, %d, v%d' % (S2(sM + 2 * (k & 1)), k, c + 14)]
            if k > 1: r += ['v_cndmask_b32 v%d, v%d, v%d, %s' % (c + 12 + z, c + 12 + z, e + 2 * k - 4 + z, S2(sM + 2 - 2 * (k & 1))) for z in range(2)]
        r += ['v_cndmask_b32 v%d, v%d, v%d, %s' % (48 + z, c + 12 + z, e + 12 + z, S2(sM + 2)) for z in range(2)]
        return r + cm(c + 12, c + 2, 48)
    def ffn_epi(T, pk=False):
        a = FAC + 16 * T; r = []
        for k in range(0, 16, 2):
            r += ['v_max_f32 v%d, 0, v%d' % (a + k, a + k), 'v_max_f32 v%d, 0, v%d' % (a + k + 1, a + k + 1)]
            if pk: r += ['v_pk_mul_f32 %s, %s, %s' % (P2(a + k), P2(a + k), P2(a + k))]
            else: r += ['v_mul_f32 v%d, v%d, v%d' % (a + k + z, a + k + z, a + k + z) for z in range(2)]
        for k in range(8): r.append('v_cvt_pk_bf16_f32 v%d, v%d, v%d' % (a + k, a + 2 * k, a + 2 * k + 1))
        def stores():
            p('s_lshl_b32 s40, s%d, 12' % sQ); p('s_add_u32 s40, s40, s64'); p('s_add_u32 s40, s40, %d' % (((T & 1) + (24 if T >= 2 else 0)) * 4096))
            for q in range(2):
                p('buffer_store_dwordx4 v[%d:%d], v%d, %s, s40 offen offset:%d%s' % (a + 4 * q, a + 4 * q + 3, vSTF, WS, 256 * q, SC), tag='hf')
        return r + [stores]
    EXP = 84 if B else 52
    def lb_expect():
        r = []
        for k in range(8):
            r += ['v_subrev_u32 v%d, %d, v%d' % (EXP + k, 1024 * k, vEO), 'v_ashrrev_i32 v%d, 31, v%d' % (EXP + k, EXP + k),
                  'v_bfi_b32 v%d, v%d, 0, v47' % (EXP + k, EXP + k)]
        return r
    def lb_loads(g, e, o=False):
        p('s_add_u32 s40, s%d, %d' % (sG, g)); p('s_lshl_b32 s40, s40, 13'); p('s_add_u32 s40, s40, %d' % WS_E)
        srd(p, rE, sWS, 8192, 's40')
        for k in range(8):
            if k: p('v_subrev_u32 v48, %d, v%d' % (1024 * k, vEO))
            p('buffer_load_dwordx4 v[%d:%d], v%d, %s, 0 offen sc1' % (e[k], e[k] + 3, 48 if k else vEO, S4(rE)), tag='lb%d' % g, optional=o)
    def lb_finish(g, e):
        c = CON[g]
        def chk(l2):
            for k in range(8): p('v_xor_b32 v%d, v%d, v%d' % (e[k] + 2, e[k] + 2, EXP + k))
            p('v_or3_b32 v48, v%d, v%d, v%d' % (e[0] + 2, e[1] + 2, e[2] + 2)); p('v_or3_b32 v49, v%d, v%d, v%d' % (e[3] + 2, e[4] + 2, e[5] + 2))
            p('v_or3_b32 v48, v%d, v%d, v48' % (e[6] + 2, e[7] + 2)); p('v_or_b32 v48, v48, v49')
            p('v_cmp_ne_u32 vcc, 0, v48'); p('s_cbranch_vccz ' + l2)
        p.wait(vm='lb%d' % g); spin(lambda o: lb_loads(g, e, o), chk)
        for k in range(6, -1, -1):
            for x in pcfma(e[k], c + 8, e[k + 1]): put(x)
        for x in pcmul(48, c + 10, e[0]): put(x)
        p('v_mov_b32 v50, v48'); p('v_mov_b32 v51, v49')
        p('v_permlane32_swap_b32 v48, v50'); p('v_permlane32_swap_b32 v49, v51')
        p('v_pk_add_f32 v[48:49], v[48:49], v[50:51]')
        for x in pcfma(c + 12, c + 6, 48): put(x)
    def scanB(g, pk):
        c = CON[g]; tr, ti = TAB[g], TAB[g] + 16; re, im = SAC[g], SAC[g] + 16; cc = P2(c + 12)
        r = []
        for k in range(0, 16, 2):
            if pk:
                r += ['v_pk_fma_f32 %s, %s, %s, %s op_sel:[0,0,0] op_sel_hi:[1,0,1]' % (P2(re + k), P2(tr + k), cc, P2(re + k)),
                      'v_pk_fma_f32 %s, %s, %s, %s op_sel:[0,1,0] op_sel_hi:[1,1,1]' % (P2(im + k), P2(tr + k), cc, P2(im + k)),
                      'v_pk_fma_f32 %s, %s, %s, %s op_sel:[0,1,0] op_sel_hi:[1,1,1] neg_lo:[1,0,0] neg_hi:[1,0,0]' % (P2(re + k), P2(ti + k), cc, P2(re + k)),
                      'v_pk_fma_f32 %s, %s, %s, %s op_sel:[0,0,0] op_sel_hi:[1,0,1]' % (P2(im + k), P2(ti + k), cc, P2(im + k))]
            else:
                for z in (k, k + 1):
                    r += ['v_fmac_f32 v%d, v%d, v%d' % (re + z, tr + z, c + 12), 'v_fmac_f32 v%d, v%d, v%d' % (im + z, tr + z, c + 13),
                          'v_fma_f32 v%d, -v%d, v%d, v%d' % (re + z, ti + z, c + 13, re + z), 'v_fmac_f32 v%d, v%d, v%d' % (im + z, ti + z, c + 12)]
        for part in range(2):
            a = re + 16 * part; ng = '-' if part else ''
            for q in range(2):
                r += ['v_cvt_pk_bf16_f32 v%d, %sv%d, %sv%d' % (a + 8 * q + k, ng, a + 8 * q + 2 * k, ng, a + 8 * q + 2 * k + 1) for k in range(4)]
                r += [('ds_write_b128 v%d, v[%d:%d]' % (vTW + q, a + 8 * q, a + 8 * q + 3), 'tw')]
            r += [('ds_read_b64_tr_b16 v[%d:%d], v%d offset:%d' % (a + 8 * b + 4 + 2 * j, a + 8 * b + 5 + 2 * j, vTW + 2 + j, 1024 * b), 'tr%d' % part) for b in range(2) for j in range(2)]
        def stores(part):
            p('s_add_u32 s41, s%d, %d' % (sG, g)); p('s_lshr_b32 s40, s41, 2'); p('s_lshl_b32 s40, s40, 1'); p('s_and_b32 s65, s41, 1'); p('s_add_u32 s40, s40, s65')
            p('s_lshl_b32 s40, s40, 1'); p('s_bfe_u32 s65, s41, 0x10001'); p('s_add_u32 s40, s40, s65'); p('s_lshl_b32 s40, s40, 13')
            p('s_add_u32 s40, s40, s64'); p('s_add_u32 s40, s40, %d' % ((48 + part) * 4096))
            p.wait(lg='tr%d' % part)
            for b in range(2):
                o = re + 16 * part + 8 * b + 4
                p('buffer_store_dwordx4 v[%d:%d], v%d, %s, s40 offen offset:%d%s' % (o, o + 3, vL16, WS, 1024 * b, SC), tag='hs')
        return r + [lambda: stores(0), lambda: stores(1)]
    masks()
    if B:
        sidejob_setup(p, SJO); s2_srd()
        if not SJL and not SJM: sj_dma()
    else: c_srd()
    if B: p('v_lshlrev_b32 v49, 5, v%d' % vHH); p('v_add_u32 v49, %d, v49' % (SMO + 384))
    p.wait(vm='sm'); p('s_barrier')
    st('sm')
    for x in par_reads() + gw_reads(): put(x)
    pre = []
    if B:
        for T in range(4):
            for x in bias_reads(176, T): put(x)
    pre += [lambda: p.wait(lg='par')]
    for g in range(NG): pre += setup(g)
    if B:
        for T in range(4): pre += [lambda T=T: p.wait(lg='b1%d' % T)] + unpack(FAC + 16 * T, 176 + 8 * T, 8)
    nearly = max(0, len(pre) - opt.get('sp1', 12) * 8)
    for x in pre[:nearly] + sprinkle(pre[nearly:], dma_stage(1), opt.get('sp1', 12)): put(x)
    st('issued')
    pend = sync1(0)
    st('first')
    for x in reads1(0) + reads1(1) + gate_reads(0): put(x)
    fill = []
    prio = gate_step(0)
    p.marks = {}
    bar = lambda s_: 16 * s_ - 8
    events = {28: [nonce_load], bar(9) + 2: [get_nonce]}
    if B and SJM:
        events[bar(SJM + 2) + 4] = [sj_read]; events[bar(SJM + 2) + 12] = [sj_store]
        events[186] = [lambda: p.wait(vm='sjs')]; events[188] = [w2_signal]
    elif B and not SJL:
        events[bar(1) + 2] = [sj_read]; events[bar(2) + 2] = [sj_store]
        events[bar(6) - 1] = [lambda: p.wait(vm='sjs')]; events[bar(6) + 2] = [get_nonce, w2_signal]; del events[bar(9) + 2]
    if B and SJL:
        events[opt.get('sjr', 200)] = [sj_read]; events[opt.get('sjr', 200) + 6] = [sj_store]
    if not B: fill += c_setup(70)[:8]
    assert LOOK == 3
    nslots = 240 if B else 160
    GAP = opt.get('gap', 6)
    if B:
        ep = [ffn_epi(T) for T in range(4)]
        if opt.get('fburst', 1):
            fill2 = [x for e in ep for x in e[:-1]] + [lambda: [e[-1]() for e in ep]] + ([gstore[0]] if opt.get('gmerge', 0) else []) + [lambda: st('fst')] + lb_expect()
        else: fill2 = ep[0] + ep[1] + ep[2] + ep[3] + [lambda: st('fst')] + lb_expect()
        cq = cD(0, 16); ncq = 0
        if SJL: events[opt.get('sjd', 182)] = [sj_dma]
        else: events[opt.get('wpoll', 230)] = [fl_issue('W')]
    rd = []
    for i in range(nslots):
        if i < 160:
            k, T = divmod(i, 4)
            if T == 0:
                if k + 2 < 40:
                    rd = reads1(k + 2)
                    if (k + 2) % 4 == 0:
                        pend += sync1((k + 2) // 4)
                        rd = gate_reads((k + 2) // 4) + rd; prio += gate_step((k + 2) // 4)
                        if k + 2 == 36: prio += gate_fin()
                p.wait(lg='k%d' % k)
            p(mfma1(k, T))
        else:
            if i == 160:
                for x in prio + fill: put(x)
                st('pass1'); prio = []; fill = fill2
                c_srd()
            if i % 2 == 0: p.wait(lg=['m%d' % (i - 160), 'm%d' % (i - 159)])
            p(mfma2(i - 160))
        budget = GAP
        if opt.get('fine') == 1 and i % 16 == 9 and i < 160: st('s%d' % i)
        if opt.get('fine') == 2 and i % 8 == 0 and i > 160: st('s%d' % i)
        m = i + L2 - 160
        if B and 0 <= m < 80:
            if m in (0, 32, 64): p.wait(vm='s2c%d' % (m // 32), lg='all'); p('s_barrier')
            for x in reads2(m): put(x); budget -= 1
        nrd = -(-len(rd) // (4 - i % 4))
        if i % 16 in (4, 5, 6) and i < 160: nrd = -(-len(rd) // (7 - i % 16))
        for _ in range(nrd): put(rd.pop(0)); budget -= 1
        if pend and (i % 2 == 1 or sum(not isinstance(x, str) for x in pend) > (23 - i % 16 if i % 16 >= 8 else 7 - i % 16) // 2 + 1):
            while isinstance(pend[0], str): put(pend.pop(0)); budget -= 1
            budget -= 3 if callable(pend[0]) else 1
            put(pend.pop(0))
            while pend and isinstance(pend[0], str): put(pend.pop(0)); budget -= 1
        elif B and i > 160 and i % 2 == 1 and cq and i >= opt.get('cstart', 161) and (ncq < 8 or (ncq < 24 and m > 32) or m > 64):
            put(cq.pop(0)); ncq += 1; budget -= 2
        for x in events.pop(i, []): put(x); budget -= 1
        if i == 146: assert not (B and pend); fill += c_setup()
        if i < 160:
            if i % 16 >= 13 or i % 16 < 8:
                n = 0
                while prio and budget > 0 and n < 2: put(prio.pop(0)); budget -= 1; n += 1
            want = -(-len(fill) // max(1, 158 - i)) if i >= 2 else 0
            for _ in range(min(want, budget)):
                if fill: put(fill.pop(0))
        elif i > 160:
            while fill and budget > 0: put(fill.pop(0)); budget -= 1
        p.check_depth()
    assert not pend and not rd and not events
    bpre = b_loads(0) + b_loads(1) + b_loads(2)
    if B:
        assert not fill
        for x in cq: put(x)
        st('pass2')
        signal(0, ['hf', 'sjs', 'gst'])()
        for x in scanA1(0): put(x)
        if not SJL: fl_check('W', False)()
        p.wait(lg='ex'); p('s_barrier')
        for x in ex_reads(0, 52): put(x)
        if SJL: w2_signal()
        hid_srd()
        p.wait(lg='exr0')
        for x in ex_prefix(0, 52, True) + ex_pub(0, 52): put(x)
        st('pub')
        e0 = [52 + 4 * k for k in range(8)]
        LBR = opt.get('lbr', -1)
        if SJL:
            NX = 25; NP = opt.get('np', 21)
            for x in cR(0, 9) + sprinkle(cR(9, 16) + ex_own(0, 52) + scanA2(0), cD(16, NP) + [fl_issue('FW')] + cD(NP, NX), 4): put(x)
            st('end1')
            fl_check('FW')()
            st('fok')
            if LBR < 0: lb_loads(0, e0)
            for x in a_loads(0) + bpre[:7] + a_loads(1) + bpre[7:]: put(x)
        else:
            NX = opt.get('nx', 19); NP = opt.get('np', 16)
            for x in cR(0, 6) + sprinkle(cR(6, 16) + ex_own(0, 52) + scanA2(0), bpre + cD(16, NP) + [fl_issue(0)] + cD(NP, NX), 3): put(x)
            if LBR < 0: lb_loads(0, e0)
            st('end1')
            fl_check(0)()
            st('fok')
            NY = min(25, NX + opt.get('ny', 3))
            for x in a_loads(0) + a_loads(1) + cD(NX, NY): put(x)
            NX = NY
        if LBR < 0:
            st('lbstart'); lb_finish(0, e0); st('lbdone')
            for x in scanB(0, True): put(x)
            extra = {8: cR(16, 20)}
            sigS, geo = 2, 1
        else:
            extra = {LBR: [lambda: lb_loads(0, e0)], LBR + 1: [lambda: (st('lbstart'), lb_finish(0, e0), st('lbdone'))] + scanB(0, False), 8: cR(16, 20)}
            sigS, geo = LBR + 4, LBR + 4
    else:
        for x in prio + fill: put(x)
        st('pass1')
        c0 = 8 if AE else 0
        for x in interleave(scanA1(0), scanA1(1)): put(x)
        p.wait(lg='all'); p('s_barrier')
        for x in ex_reads(0, 52) + ex_reads(1, 72): put(x)
        hid_srd()
        p.wait(lg='exr1')
        for x in interleave(ex_prefix(0, 52, True), ex_prefix(1, 72, True)) + ex_pub(0, 52) + ex_pub(1, 72): put(x)
        st('pub')
        signal(0, 'gst')()
        if not SJL: fl_issue('W')()
        NA = opt.get('na', 20)
        for x in sprinkle(ex_own(0, 52) + ex_own(1, 72) + lb_expect() + scanA2(0) + scanA2(1), cD(c0, 16), 8) + cR(0, NA - 16) + cD(16, NA): put(x)
        e0 = [60 + 4 * k for k in range(8)]
        lb_loads(0, e0)
        if not SJL: fl_check('W')()
        for x in cR(NA - 16, 16): put(x)
        st('lbstart')
        lb_finish(0, e0)
        lb_loads(1, e0)
        if SJL:
            for x in sprinkle(scanB(0, True), cD(NA, 25), 4): put(x)
            NA = 25
            fl_issue('FW')()
        else:
            fl_issue(0)()
            for x in sprinkle(scanB(0, True), bpre, 4): put(x)
        lb_finish(1, e0)
        st('lbdone'); st('end1')
        if SJL:
            for x in scanB(1, True): put(x)
            fl_check('FW')()
            st('fok')
            for x in a_loads(0) + bpre[:7] + a_loads(1) + bpre[7:]: put(x)
        else:
            fl_check(0)()
            st('fok')
            for x in sprinkle(scanB(1, True), a_loads(0) + a_loads(1), 3): put(x)
        extra = {8: cR(16, 20)}
        sigS, geo = 2, 1
    NL = NX if B else NA
    xload = {i: c_dma(NL + i) for i in range(25 - NL)}
    phase2(p, opt, st, a_loads, b_loads, b_reg, c_read, signal, fl_issue, fl_check, extra, xload, sigS, geo)

def phase2(p, opt, st, a_loads, b_loads, b_reg, c_read, signal, fl_issue, fl_check, extra, xload, sigS, geo):
    put = p.put
    ACCB, ACCA = 96, 176
    vG, vX, vLR, vOut = 32, 52, 62, 67
    vCR, vLW, t = 72, 82, 84
    rXT, rO, rSM = 44, 16, 52
    def geom():
        r = []
        def srds():
            p('s_mul_i32 s40, s%d, 160' % sCT); p('s_mul_i32 s41, s%d, %d' % (sRT, 64 * 1280)); p('s_add_u32 s41, s41, s40')
            srd(p, rXT, sX, 64 * 1280 - 1280 + 160, 's41')
            p('s_lshl_b32 s41, s41, 1')
            srd(p, rO, sOUT, 64 * 2560 - 2560 + 320, 's41')
            p('s_lshl_b32 s41, s%d, 9' % sRT); p('s_add_u32 s41, s41, %d' % WS_G)
            p('s_cmp_eq_u32 s%d, 1' % sWV); p('s_cselect_b32 s65, 256, 0'); p('s_add_u32 s41, s41, s65')
            p('s_cmp_eq_u32 s%d, 2' % sWV)
            p('s_cselect_b32 s%d, s%d, s%d' % (rSM, sDSK, sB2)); p('s_cselect_b32 s%d, s%d, s%d' % (rSM + 1, sDSK + 1, sB2 + 1))
            p('s_cmp_lt_u32 s%d, 2' % sWV)
            p('s_cselect_b32 s%d, s%d, s%d' % (rSM, sWS, rSM)); p('s_cselect_b32 s%d, s%d, s%d' % (rSM + 1, sWS + 1, rSM + 1))
            p('s_cselect_b32 s40, s41, s40')
            p('s_mov_b32 s65, 160'); p('s_cselect_b32 s%d, 256, s65' % (rSM + 2))
            p('s_add_u32 s%d, s%d, s40' % (rSM, rSM)); p('s_addc_u32 s%d, s%d, 0' % (rSM + 1, rSM + 1)); p('s_mov_b32 s%d, 0x20000' % (rSM + 3))
        r.append(srds)
        for i in range(5):
            r += ['v_add_u32 v%d, %d, v0' % (t, 256 * i), 'v_mul_u32_u24 v%d, 0xcccd, v%d' % (t + 1, t), 'v_lshrrev_b32 v%d, 20, v%d' % (t + 1, t + 1),
                  'v_mul_u32_u24 v%d, 20, v%d' % (t + 2, t + 1), 'v_sub_u32 v%d, v%d, v%d' % (t + 2, t, t + 2),
                  'v_mul_u32_u24 v%d, 1280, v%d' % (t + 3, t + 1), 'v_lshl_add_u32 v%d, v%d, 3, v%d' % (t + 3, t + 2, t + 3),
                  ('buffer_load_dwordx2 v[%d:%d], v%d, %s, 0 offen' % (vX + 2 * i, vX + 2 * i + 1, t + 3, S4(rXT)), 'X'),
                  'v_lshlrev_b32 v%d, 1, v%d' % (vOut + i, t + 3), 'v_bfe_u32 v%d, v%d, 1, 2' % (t + 3, t + 1), 'v_xor_b32 v%d, v%d, v%d' % (t + 3, t + 3, t + 2), 'v_mul_u32_u24 v%d, 320, v%d' % (vLR + i, t + 1),
                  'v_add_u32 v%d, %d, v%d' % (vLR + i, PB, vLR + i), 'v_lshl_add_u32 v%d, v%d, 4, v%d' % (vLR + i, t + 3, vLR + i),
                  'v_lshl_add_u32 v%d, v%d, 3, s66' % (vCR + 2 * i, t + 2), 'v_lshl_add_u32 v%d, v%d, 3, s66' % (vCR + 2 * i + 1, t + 1)]
        r += ['v_and_b32 v%d, 15, v%d' % (t, vLANE), 'v_mul_u32_u24 v%d, 320, v%d' % (vLW, t), 'v_lshrrev_b32 v%d, 4, v%d' % (t + 1, vLANE),
              'v_bfe_u32 v%d, v%d, 1, 2' % (t + 2, t), 'v_xor_b32 v%d, v%d, v%d' % (t + 1, t + 1, t + 2),
              'v_lshl_add_u32 v%d, v%d, 4, v%d' % (vLW, t + 1, vLW), 'v_mul_u32_u24 v%d, %d, v%d' % (t + 1, 64 * 320, vWAVE),
              'v_add_u32 v%d, v%d, v%d' % (vLW, vLW, t + 1), 'v_add_u32 v%d, %d, v%d' % (vLW, PB, vLW),
              'v_lshl_add_u32 v%d, v%d, 3, s66' % (vLW + 1, t), 'v_lshlrev_b32 v%d, 2, v%d' % (48, vLANE)]
        return r
    def sm_dma():
        p('s_lshl_b32 s40, s%d, 8' % sWV); p('s_add_u32 m0, s40, %d' % SM2)
        p('buffer_load_dword v48, %s, 0 offen sc1 lds' % S4(rSM), tag='SM')
    def bias():
        def f_sync(): p.wait(vm=['SM', 'X']); p('s_barrier')
        r = [f_sync]
        r += [('ds_read_b64 v[%d:%d], v%d offset:%d' % (vG + 2 * m, vG + 2 * m + 1, vLW + 1, 128 * m), 'g') for m in range(4)]
        for i in range(5):
            r += [('ds_read_b64 v[%d:%d], v%d' % (t, t + 1, vCR + 2 * i + 1), 'c'), ('ds_read_b64 v[%d:%d], v%d offset:512' % (t + 2, t + 3, vCR + 2 * i), 'c'),
                  ('ds_read_b64 v[%d:%d], v%d offset:768' % (t + 4, t + 5, vCR + 2 * i), 'c')]
            for h in range(2):
                r += ['v_lshlrev_b32 v%d, 16, v%d' % (t + 6 + 2 * h, vX + 2 * i + h), 'v_and_b32 v%d, 0xffff0000, v%d' % (t + 7 + 2 * h, vX + 2 * i + h)]
            r.append(lambda: p.wait(lg='c'))
            for h in range(2):
                r += ['v_lshlrev_b32 v48, 16, v%d' % (t + 2 + h), 'v_and_b32 v49, 0xffff0000, v%d' % (t + 2 + h),
                      'v_lshlrev_b32 v50, 16, v%d' % (t + 4 + h), 'v_and_b32 v51, 0xffff0000, v%d' % (t + 4 + h)]
                for e in range(2):
                    d = (vCR if h else vX) + 2 * i + e
                    r += ['v_mul_f32 v%d, v%d, v%d' % (48 + e, 48 + e, t + 6 + 2 * h + e), 'v_mul_f32 v%d, v%d, v%d' % (d, t + 1, 50 + e),
                          'v_fmac_f32 v%d, v%d, v%d' % (d, t, 48 + e)]
        r += ['v_add_f32 v%d, v%d, v%d' % (vG + 2 * m, vG + 2 * m, vG + 2 * m) for m in range(4)]
        return r
    def scale():
        r = []
        for m in range(4):
            for n in range(5):
                r += ['v_mul_f32 v%d, v%d, v%d' % (ACCB + 20 * m + 4 * n + z, vG + 2 * m + 1, ACCB + 20 * m + 4 * n + z) for z in range(4)]
        return r
    def comb(k, pk):
        n, m = divmod(k, 4); a = ACCA + 20 * m + 4 * n; bb = ACCB + 20 * m + 4 * n
        if pk:
            for r in (0, 2): p('v_pk_fma_f32 %s, %s, %s, %s op_sel:[0,0,0] op_sel_hi:[0,1,1]' % (P2(bb + r), P2(vG + 2 * m), P2(a + r), P2(bb + r)))
        else:
            for r in range(4): p('v_fmac_f32 v%d, v%d, v%d' % (bb + r, vG + 2 * m, a + r))
        p('ds_write_b128 v%d, v[%d:%d] offset:%d' % (vLW, bb, bb + 3, m * 16 * 320 + n * 64), tag='w')
    p('s_mov_b32 s66, %d' % SM2)
    fill = []
    NS = 22; LA = 2
    NF0 = opt.get('nf0', 8)
    seq = list(range(NF0)); rest = list(range(NF0, 12)); sr = list(range(12, 22))
    for j in range(len(rest)):
        n = -(-(len(sr) - 3) // (len(rest) - j))
        seq += sr[:n] + [rest[j]]; sr = sr[n:]
    seq += sr
    pos = {r: i for i, r in enumerate(seq)}
    bq = []; nb = 3
    for i in range(NS):
        r = seq[i]; pre = []
        fill += extra.get(i, [])
        if i == sigS: fill += [signal(1, ['hs', 'gst'])]
        if i == geo: fill += geom() + [sm_dma]
        if i == geo + 3: fill += bias()
        if i == pos[12] - LA - 1: pre += [fl_issue(1)]
        if i == pos[12] - LA: pre += [fl_check(1)]
        if i == pos[11] + 1: fill += scale()
        if i == pos[13] + 1:
            fill = [x for n in range(5) for x in c_read(20 + n, AX + 8 * n)] + fill
        if i == pos[13] + 3: pre += [lambda: (p.wait(lg='cr24'), p('s_barrier'))]
        p.wait(vm=['A%d' % r, 'B%d' % r])
        if opt.get('fine') == 3 and i not in (0, 6, 12): st('r%d' % i)
        if i == 0: st('p2first')
        if i == 6: st('p2_6')
        if i == 12: st('p2_12')
        while nb < 12 and pos[nb - 3] < i: bq.append([nb, b_loads(nb)]); nb += 1
        nxt = a_loads(seq[i + LA], i + LA) if i + LA < NS else []
        if bq:
            f, it = bq[0]; left = sum(not isinstance(x, str) for x in it)
            n = -(-left // max(1, pos[f] - LA - i + 1))
            while n:
                x = it.pop(0); nxt.append(x)
                if not isinstance(x, str): n -= 1
            if not it: bq.pop(0)
        nxt += xload.get(i, [])
        acc = ACCB if r < 12 else ACCA
        first = r in (0, 12)
        bh = AH + 16 * (i % 3)
        k = 0
        for n in range(5):
            for m in range(4):
                a = acc + 20 * m + 4 * n
                bk, bw = b_reg(r, n)
                p('v_mfma_f32_16x16x32_bf16 v[%d:%d], %s[%d:%d], a[%d:%d], %s' % (a, a + 3, bk, bw, bw + 3, bh + 4 * m, bh + 4 * m + 3,
                                                                              '0' if first else 'v[%d:%d]' % (a, a + 3)))
                k += 1
                if k == 1:
                    for x in pre: put(x)
                if nxt and (k % 2 == 1 or sum(not isinstance(x, str) for x in nxt) > (21 - k) // 2):
                    while isinstance(nxt[0], str): put(nxt.pop(0))
                    put(nxt.pop(0))
                for _ in range(opt.get('fill2', 3) if i < 12 else 2):
                    if fill: put(fill.pop(0))
                if i == NS - 1 and k > 3: comb(k - 4, False)
        assert not nxt and not (i == NS - 2 and fill)
        p.check_depth()
    assert not bq and nb == 12
    assert not fill
    st('mainend')
    for k in range(17, 20): comb(k, True)
    p.wait(lg='all'); p('s_barrier')
    st('red')
    R = ACCA
    for i in range(5):
        for w in range(4):
            p('ds_read_b128 v[%d:%d], v%d offset:%d' % (R + 16 * i + 4 * w, R + 16 * i + 4 * w + 3, vLR + i, w * 64 * 320), tag='r%d' % i)
    for i in range(5):
        p.wait(lg='r%d' % i)
        for r in (0, 2):
            p('v_pk_add_f32 %s, %s, %s' % (P2(R + 16 * i + r), P2(R + 16 * i + r), P2(R + 16 * i + 4 + r)))
            p('v_pk_add_f32 %s, %s, %s' % (P2(R + 16 * i + 8 + r), P2(R + 16 * i + 8 + r), P2(R + 16 * i + 12 + r)))
        bb = {0: vX + 2 * i, 2: vCR + 2 * i}
        for r in (0, 2): p('v_pk_add_f32 %s, %s, %s' % (P2(bb[r]), P2(bb[r]), P2(R + 16 * i + r)))
        for r in (0, 2): p('v_pk_add_f32 %s, %s, %s' % (P2(R + 16 * i + r), P2(bb[r]), P2(R + 16 * i + 8 + r)))
        p('buffer_store_dwordx4 v[%d:%d], v%d, %s, 0 offen%s' % (R + 16 * i, R + 16 * i + 3, vOut + i, S4(rO), opt.get('out_sc', SC)), tag='o')
    st('stored')
    if opt.get('echo'):
        p.wait(vm='all'); st('drained'); p.wait(lg='all', force=True)
        l = p.newlabel('L_echo'); ins = 's_memtime' if opt['echo'] == 'cyc' else 's_memrealtime'
        if opt['echo'] == 'cyc': p('s_mov_b32 s1, 20000')
        else: p('s_sub_u32 s1, s%d, s0' % sST)
        p(ins + ' s[4:5]'); p.wait(lg='all', force=True)
        p.label(l)
        p(ins + ' s[6:7]'); p.wait(lg='all', force=True)
        p('s_sub_u32 s6, s6, s4'); p('s_cmp_lt_u32 s6, s1'); p('s_cbranch_scc1 ' + l)
    if opt.get('stamps'):
        p.wait(vm='all'); st('drained'); st('rt1')
    st.dump(sWS, 60, 48)
```

```python
from emit import Prog
from common import *

LDS_BYTES = 163840
SPIN_MAX = 100000
SLOT = 32768
XREG = 4 * SLOT
SMO = XREG + 28672 + 2048
TRO = 2 * SLOT + 4096
EXO = 2 * SLOT + 6144
SM2 = 2 * SLOT + 2 * 8192 + 6144
PB = 0
CPL = [3 * SLOT, 4 * SLOT, 0, SLOT]
vRX3, vW3, vGA3 = 72, 68, 78
LOG2E = '0x3fb8aa3b'
INV2PI = '0.15915494'
SC = ' sc1'

sX, sLRE, sLIM, sBRE, sBIM, sCRE, sCIM, sLDT = 4, 6, 8, 10, 12, 14, 16, 18
sDSK, sW1, sB1, sW2, sB2, sGATE, sOUT, sDBG, sWS = 20, 24, 26, 28, 30, 32, 34, 36, 38
rX, rP0, rP1, rWS = 44, 48, 52, 56
rE, rHID, rW2P, rSJ, rS2, rC = 44, 48, 8, 8, 92, 92
sSB = 24
sM = 12
SIG = 70
sNON, sHF, sRB, sCG, sG, sQ, sWV, sRT, sCT, sSEL, sFL = 80, 81, 82, 83, 84, 85, 86, 87, 88, 89, 90
sSEL5 = sSEL
sSJO2 = 26
sSJO, sSJD, sSJK = 91, 96, 22
sST = 100
vLANE, vWAVE, vHH = 1, 2, 3
vDX, vDS, vD2 = 4, 8, 10
vRX, vRS, vRF = 12, 20, 28
vSTF, vL16, vEXA, vTW, vEO = 32, 33, 34, 36, 40
vDJ = 62
vB, vFP, vA = 41, 43, 44
vZ, vPOLL = 45, 46
vDC, vRC, vWP = 4, 6, 92
vT = 48
vN = 79
vGA = 80
vGW = 52
vST = 95
SAC = [176, 96]
TAB = [208, 128]
CON = [240, 160]
FAC = 96
AX = 0
AW = 160
AW2 = 208
AH = 160
PARTS = [(0, 12)]

def order(n, c, delta):
    return sorted(range(n), key=lambda i: (i - (delta if i % 4 == c else 0), 0 if i % 4 == c else 1))
def P2(r): return 'v[%d:%d]' % (r, r + 1)
def S4(r): return 's[%d:%d]' % (r, r + 3)
def S2(r): return 's[%d:%d]' % (r, r + 1)
def cmul(dr, di, ar, ai, br, bi):
    return ['v_mul_f32 v%d, v%d, v%d' % (dr, ar, br), 'v_mul_f32 v%d, v%d, v%d' % (di, ar, bi),
            'v_fma_f32 v%d, -v%d, v%d, v%d' % (dr, ai, bi, dr), 'v_fmac_f32 v%d, v%d, v%d' % (di, ai, br)]
def cm(d, a, b): return cmul(d, d + 1, a, a + 1, b, b + 1)
def cfma(dr, di, a, br, bi):
    return ['v_fmac_f32 v%d, v%d, v%d' % (dr, a, br), 'v_fmac_f32 v%d, v%d, v%d' % (di, a, bi),
            'v_fma_f32 v%d, -v%d, v%d, v%d' % (dr, a + 1, bi, dr), 'v_fmac_f32 v%d, v%d, v%d' % (di, a + 1, br)]
def pcfma(d, a, b):
    return ['v_pk_fma_f32 %s, %s, %s, %s op_sel:[0,0,0] op_sel_hi:[0,1,1]' % (P2(d), P2(a), P2(b), P2(d)),
            'v_pk_fma_f32 %s, %s, %s, %s op_sel:[1,1,0] op_sel_hi:[1,0,1] neg_lo:[1,0,0]' % (P2(d), P2(a), P2(b), P2(d))]
def pcmul(d, a, b):
    return ['v_pk_mul_f32 %s, %s, %s op_sel:[0,0] op_sel_hi:[0,1]' % (P2(d), P2(a), P2(b)),
            'v_pk_fma_f32 %s, %s, %s, %s op_sel:[1,1,0] op_sel_hi:[1,0,1] neg_lo:[1,0,0]' % (P2(d), P2(a), P2(b), P2(d))]
def csq(d, a):
    return ['v_mul_f32 v%d, v%d, v%d' % (d, a, a), 'v_add_f32 v%d, v%d, v%d' % (d + 1, a, a),
            'v_fma_f32 v%d, -v%d, v%d, v%d' % (d, a + 1, a + 1, d), 'v_mul_f32 v%d, v%d, v%d' % (d + 1, d + 1, a + 1)]
def interleave(*ls):
    out = []; ls = [list(l) for l in ls]
    while any(ls):
        for l in ls:
            if l: out.append(l.pop(0))
    return out
def sprinkle(main, extra, every):
    out = []; extra = list(extra)
    for i, x in enumerate(main):
        out.append(x)
        if i % every == every - 1 and extra:
            while isinstance(extra[0], str): out.append(extra.pop(0))
            out.append(extra.pop(0))
    return out + extra
def unpack(dst, src, n):
    r = []
    for k in range(n):
        r.append('v_lshlrev_b32 v%d, 16, v%d' % (dst + 2 * k, src + k))
        r.append('v_and_b32 v%d, 0xffff0000, v%d' % (dst + 2 * k + 1, src + k))
    return r

def dma_stage(s):
    sl = (s % 5) * SLOT; tg = 'st%d' % s; so = SIG + s
    r = ['s_add_u32 m0, s43, %d' % sl, 's_mul_i32 s61, s%d, s63' % so]
    r += [('buffer_load_dwordx4 v%d, %s, s%d offen offset:%d lds' % (vDX + i, S4(rX), so, 1024 * i), tg) for i in range(4)]
    r += ['s_add_u32 m0, s43, %d' % (sl + 4096)]
    r += [('buffer_load_dwordx4 v%d, %s, s61 offen offset:%d lds' % (vD2 + i, S4(rP0), 1024 * i), tg) for i in range(2)]
    r += [('buffer_load_dwordx4 v%d, %s, s61 offen offset:%d lds' % (vD2 + i, S4(rP1), 1024 * i + 2048), tg) for i in range(2)]
    return r

def gen(name, opt):
    p = Prog()
    st = Stamps(p, sST, vST, opt.get('stamps'))
    st.echo = opt.get('echo')
    def put(x):
        if callable(x): x()
        elif isinstance(x, tuple): p(x[0], tag=x[1])
        else: p(x)
    p.put = put
    p.label(name)
    p('s_cmp_ge_u32 s2, 256')
    p('s_cbranch_scc1 L_end')
    p('s_load_dwordx16 s[4:19], s[0:1], 0')
    p('s_load_dwordx8 s[20:27], s[0:1], 64')
    p('s_load_dwordx8 s[28:35], s[0:1], 96')
    p('s_load_dwordx4 s[36:39], s[0:1], 128')
    p('s_memrealtime s[64:65]')
    if opt.get('stamps'): p('s_memrealtime s[66:67]'); p('%s s[68:69]' % ('s_memrealtime' if opt['stamps'] == 2 else 's_memtime'))
    p('s_lshr_b32 s3, s2, 3')
    code_prefetch(p, 'L_end', 44, 40, 3)
    p('v_and_b32 v%d, 63, v0' % vLANE)
    p('v_lshrrev_b32 v%d, 6, v0' % vWAVE)
    p('s_and_b32 s%d, s2, 7' % sHF)
    p('s_lshr_b32 s40, s%d, 1' % sHF)
    p('s_lshl_b32 s%d, s40, 2' % sRB)
    p('s_and_b32 s41, s3, 3')
    p('v_readfirstlane_b32 s%d, v%d' % (sWV, vWAVE))
    p('s_add_u32 s%d, s%d, s41' % (sRB, sRB))
    p('s_and_b32 s%d, s%d, 1' % (sHF, sHF))
    p('s_lshr_b32 s%d, s3, 2' % sCG)
    p('s_add_u32 s41, s41, s%d' % sCG); p('s_and_b32 s41, s41, 3'); p('s_lshl_b32 s41, s41, 3'); p('s_or_b32 s41, s41, 0x80000')
    p('s_mul_i32 s40, s40, 5'); p('s_add_u32 s40, s40, 1'); p('s_lshr_b32 s40, s40, 1')
    p('s_mul_i32 s60, s%d, 5' % sHF); p('s_add_u32 s40, s40, s60')
    if not opt.get('rot', 1): p('s_mov_b32 s40, 0')
    p('s_sub_u32 s60, s40, 10'); p('s_cmp_ge_u32 s40, 10'); p('s_cselect_b32 s40, s60, s40')
    tabs = [order(10, c, opt.get('d1', 3)) for c in range(4)]
    if opt.get('hyb'): tabs = [[0] + [1 + x for x in order(9, c, opt.get('d1', 3))] for c in range(4)]
    def sigma(i):
        lit = sum(tabs[c][i] << (8 * c) for c in range(4)); s = SIG + i
        return ['s_bfe_u32 s%d, 0x%x, s41' % (s, lit), 's_add_u32 s%d, s%d, s40' % (s, s), 's_sub_u32 s60, s%d, 10' % s,
                's_min_u32 s%d, s60, s%d' % (s, s), 's_lshl_b32 s%d, s%d, 7' % (s, s)]
    for x in sigma(0): p(x)
    p('s_mul_i32 s%d, s%d, 10' % (sG, sHF))
    p('s_lshl_b32 s%d, s%d, 1' % (sQ, sCG))
    p('s_add_u32 s60, s%d, 2' % sCG)
    p('s_cmp_lt_u32 s%d, 2' % sCG)
    p('s_cselect_b32 s60, s%d, s60' % sQ)
    p('s_cselect_b32 s63, 1, 1536')
    p('s_add_u32 s%d, s%d, s60' % (sG, sG))
    p('s_mul_i32 s60, s%d, 12' % sHF)
    p('s_add_u32 s%d, s%d, s60' % (sQ, sQ))
    p('s_sub_u32 s%d, s%d, 4' % (sQ, sQ))
    t = vT
    p('v_lshrrev_b32 v%d, 3, v%d' % (t, vLANE))
    p('v_and_b32 v%d, 7, v%d' % (t + 1, vLANE))
    p('v_lshrrev_b32 v%d, 4, v%d' % (t + 2, vLANE))
    p('v_and_b32 v%d, 3, v%d' % (t + 3, t))
    p('v_lshrrev_b32 v%d, 5, v%d' % (vHH, vLANE))
    p('v_lshl_add_u32 v%d, v%d, 4, v%d' % (t + 3, vHH, t + 3))
    p('v_lshl_add_u32 v%d, v%d, 5, v%d' % (t + 3, vWAVE, t + 3))
    p('v_mul_u32_u24 v%d, 1280, v%d' % (t + 3, t + 3))
    p('v_xor_b32 v%d, v%d, v%d' % (t + 5, t + 1, t + 2))
    p('v_xor_b32 v%d, 4, v%d' % (t + 6, t + 5))
    for i in range(4):
        p('v_lshl_add_u32 v%d, v%d, 4, v%d' % (vDX + i, t + 5 + (i & 1), t + 3))
        if i: p('v_add_u32 v%d, %d, v%d' % (vDX + i, 4096 * i, vDX + i))
    p('v_and_b32 v%d, 1, v%d' % (t + 7, vWAVE))
    p('v_lshl_add_u32 v%d, v%d, 4, v%d' % (t + 7, t + 7, t))
    p('v_mul_u32_u24 v%d, 1280, v%d' % (t + 7, t + 7))
    p('v_lshl_add_u32 v%d, v%d, 4, v%d' % (vDS, t + 5, t + 7))
    p('v_lshl_add_u32 v%d, v%d, 4, v%d' % (vDS + 1, t + 6, t + 7))
    p('v_add_u32 v%d, %d, v%d' % (vDS + 1, 8 * 1280 - 1024, vDS + 1))
    p('v_lshl_add_u32 v%d, v%d, 4, v%d' % (t + 7, vWAVE, t))
    p('v_mul_u32_u24 v%d, 3072, v%d' % (t + 7, t + 7))
    p('v_and_b32 v%d, 1, v%d' % (t + 8, t + 2))
    p('v_lshlrev_b32 v%d, 2, v%d' % (t + 8, t + 8))
    p('v_xor_b32 v%d, v%d, v%d' % (t + 8, t + 8, t + 1))
    p('v_lshl_add_u32 v%d, v%d, 4, v%d' % (vD2, t + 8, t + 7))
    p('s_cmp_lt_u32 s%d, 2' % sCG)
    p('s_cselect_b64 vcc, -1, 0')
    p('v_add_u32 v%d, %d, v%d' % (vD2 + 1, 8 * 3072 - 1024, vD2))
    p('v_cndmask_b32 v%d, v%d, v%d, vcc' % (vD2, vD2, vDS))
    p('v_cndmask_b32 v%d, v%d, v%d, vcc' % (vD2 + 1, vD2 + 1, vDS + 1))
    p('s_lshl_b32 s42, s%d, 7' % sQ); p('s_max_i32 s42, s42, 0')
    p('s_lshl_b32 s43, s%d, 13' % sWV)
    a = 58
    p('v_lshl_add_u32 v%d, v%d, 5, v%d' % (a, vWAVE, vLANE))
    p('v_min_u32 v%d, 119, v%d' % (a, a))
    p('v_lshlrev_b32 v%d, 4, v%d' % (a + 1, a))
    p('s_lshl_b32 s60, s%d, 6' % sG)
    p('v_cmp_le_u32 s[92:93], 8, v%d' % a); p('v_cmp_le_u32 s[94:95], 16, v%d' % a); p('v_cmp_le_u32 s[96:97], 24, v%d' % a); p('v_cmp_le_u32 s[98:99], 40, v%d' % a)
    p('v_and_b32 v%d, 0x70, v%d' % (a + 2, a + 1)); p('v_add_u32 v%d, s60, v%d' % (a + 2, a + 2)); p('v_min_u32 v%d, 1264, v%d' % (a + 2, a + 2))
    p('v_subrev_u32 v%d, %d, v%d' % (a + 3, 16 * 24, a + 1)); p('v_add_u32 v%d, s42, v%d' % (a + 3, a + 3))
    p('v_cndmask_b32 v%d, v%d, v%d, s[96:97]' % (a + 2, a + 2, a + 3))
    p('v_subrev_u32 v%d, %d, v%d' % (a + 3, 16 * 40, a + 1))
    p('v_cndmask_b32 v%d, v%d, v%d, s[98:99]' % (a + 2, a + 2, a + 3))
    p('v_mov_b32 v%d, 0' % (a + 3))
    p('s_mul_i32 s60, s%d, %d' % (sRB, 128 * 1280))
    p('s_mul_i32 s61, s%d, %d' % (sG, 32 * 1280))
    p.wait(lg='all')
    if opt.get('echo'): p('s_mov_b32 s0, s64')
    if opt.get('stamps'):
        p('v_writelane_b32 v%d, s66, 0' % vST); p('v_writelane_b32 v%d, s68, 1' % vST); st.names += ['rt0', 'start']; st.n = 2
    st('karg')
    if opt.get('wsoff'): p('s_add_u32 s%d, s%d, %d' % (sWS, sWS, opt['wsoff'] << 20)); p('s_addc_u32 s%d, s%d, 0' % (sWS + 1, sWS + 1))
    srd(p, rX, sX, 128 * 1280, 's60')
    p('s_mov_b32 s65, s61')
    d0 = dma_stage(0)
    XF = opt.get('xfirst', 0)
    def small():
        p('s_lshl_b32 s60, s%d, 9' % sWV); p('s_add_u32 m0, s60, %d' % SMO)
        p('v_mov_b32 v%d, s%d' % (a + 4, sLRE)); p('v_mov_b32 v%d, s%d' % (a + 5, sLRE + 1))
        for m, sb in ((92, sLIM), (94, sLDT), (96, sB1), (98, sGATE)):
            p('v_mov_b32 v%d, s%d' % (a + 6, sb)); p('v_mov_b32 v%d, s%d' % (a + 7, sb + 1))
            p('v_cndmask_b32 v%d, v%d, v%d, %s' % (a + 4, a + 4, a + 6, S2(m))); p('v_cndmask_b32 v%d, v%d, v%d, %s' % (a + 5, a + 5, a + 7, S2(m)))
        p('v_lshl_add_u64 v[%d:%d], v[%d:%d], 0, v[%d:%d]' % (a + 4, a + 5, a + 2, a + 3, a + 4, a + 5))
        p('s_mov_b32 exec_hi, 0')
        p('global_load_lds_dwordx4 v[%d:%d], off' % (a + 4, a + 5), tag='sm')
        p('s_mov_b64 exec, -1')
    if not XF: small()
    for x in d0[:6]: put(x)
    if XF: small()
    p('s_cmp_lt_u32 s%d, 2' % sWV)
    p('s_cselect_b32 s66, s%d, s%d' % (sBRE, sBIM)); p('s_cselect_b32 s67, s%d, s%d' % (sBRE + 1, sBIM + 1))
    p('s_add_u32 s66, s66, s65'); p('s_addc_u32 s67, s67, 0')
    p('s_add_u32 s%d, s%d, s42' % (rP0, sW1)); p('s_addc_u32 s%d, s%d, 0' % (rP0 + 1, sW1 + 1))
    p('s_sub_u32 s%d, %d, s42' % (rP0 + 2, 640 * 3072))
    p('s_cmp_lt_u32 s%d, 2' % sCG)
    p('s_cselect_b32 s%d, s66, s%d' % (rP0, rP0)); p('s_cselect_b32 s%d, s67, s%d' % (rP0 + 1, rP0 + 1))
    p('s_cselect_b32 s%d, %d, s%d' % (rP0 + 2, 64 * 1280, rP0 + 2)); p('s_mov_b32 s%d, 0x20000' % (rP0 + 3))
    p('s_mov_b32 s60, %d' % (128 - 2048)); p('s_cselect_b32 s60, %d, s60' % (32 * 1280 - 2048)); p('s_ashr_i32 s65, s60, 31')
    p('s_add_u32 s%d, s%d, s60' % (rP1, rP0)); p('s_addc_u32 s%d, s%d, s65' % (rP1 + 1, rP0 + 1)); p('s_sub_u32 s%d, s%d, s60' % (rP1 + 2, rP0 + 2))
    put(d0[6])
    p('s_mov_b32 s%d, 0x20000' % (rP1 + 3))
    for x in d0[7:]: put(x)
    st('dma0')
    p('s_mov_b64 %s, s[66:67]' % S2(sSB))
    srd(p, rWS, sWS, WS_USED)
    l = p.newlabel('L_nn')
    p('s_or_b32 s64, s64, 1')
    p('v_mov_b32 v%d, 0' % vZ)
    p('s_or_b32 s60, s2, s%d' % sWV)
    p('s_cmp_lg_u32 s60, 0')
    p('s_cbranch_scc1 ' + l)
    p('v_mov_b32 v52, s64')
    p('s_mov_b64 exec, 1')
    p('global_store_dword v%d, v52, %s sc1' % (vZ, S2(sDBG)), optional=True)
    p('s_mov_b64 exec, -1')
    p.label(l)
    for i in range(1, 10):
        for x in sigma(i): p(x)
    for x in addr_setup() + late_setup(opt.get('cls', 1), opt.get('lbq', 1)): put(x)
    p('s_cmp_lt_u32 s%d, 2' % sCG)
    p('s_cbranch_scc1 L_typeA')
    save = (list(p.vm), list(p.lg), p.smem, st.n, st.pending); seen0 = set(p.seen)
    body(p, 'B', opt, st)
    names1 = list(st.names)
    p('s_branch L_end')
    p.label('L_typeA')
    p.vm, p.lg, p.smem, st.n, st.pending = list(save[0]), list(save[1]), save[2], save[3], save[4]
    st.names = st.names[:st.n]; p.seen = seen0
    body(p, 'A', opt, st)
    p.namesA = list(st.names); st.names = names1
    p.label('L_end')
    p('s_endpgm')
    p.finalize(opt.get('verbose'))
    return p, dict(A=p.namesA, B=st.names)

def addr_setup():
    n_, h_ = vN, vHH
    r = ['v_and_b32 v%d, 31, v%d' % (n_, vLANE), 'v_lshrrev_b32 v48, 1, v%d' % n_, 'v_and_b32 v48, 7, v48',
         'v_xor_b32 v48, v48, v%d' % h_, 'v_lshlrev_b32 v49, 7, v%d' % n_, 'v_add_u32 v49, s43, v49',
         'v_lshrrev_b32 v50, 4, v%d' % n_, 'v_lshlrev_b32 v50, 13, v50', 'v_and_b32 v51, 15, v%d' % n_, 'v_lshl_add_u32 v50, v51, 7, v50']
    for s in range(4):
        r += ['v_xor_b32 v51, %d, v48' % (2 * s), 'v_lshl_add_u32 v%d, v51, 4, v49' % (vRX + s), 'v_lshl_add_u32 v%d, v51, 4, v50' % (vRS + s),
              'v_add_u32 v%d, 0x10000, v%d' % (vRX + 4 + s, vRX + s), 'v_add_u32 v%d, 0x10000, v%d' % (vRS + 4 + s, vRS + s)]
    r += ['v_bfe_u32 v48, v%d, 2, 2' % vLANE, 'v_lshl_add_u32 v49, v%d, 3, v48' % h_, 'v_lshlrev_b32 v49, 7, v49',
          'v_lshrrev_b32 v50, 1, v48', 'v_lshl_add_u32 v49, v50, 6, v49', 'v_and_b32 v50, 1, v%d' % vLANE,
          'v_lshl_add_u32 v49, v50, 5, v49', 'v_bfe_u32 v50, v%d, 4, 1' % vLANE, 'v_lshl_add_u32 v49, v50, 4, v49',
          'v_bfe_u32 v50, v%d, 1, 1' % vLANE, 'v_lshl_add_u32 v%d, v50, 3, v49' % vRF, 'v_xor_b32 v%d, 64, v%d' % (vRF + 1, vRF),
          'v_add_u32 v%d, 0x10000, v%d' % (vRF + 2, vRF), 'v_add_u32 v%d, 0x10000, v%d' % (vRF + 3, vRF + 1)]
    r += ['s_lshl_b32 s62, s%d, 3' % sHF, 's_add_u32 s62, s62, s%d' % sCG, 's_lshl_b32 s%d, s62, 8' % sFL, 's_lshl_b32 s62, s62, 2',
          's_and_b32 s65, s%d, 1' % sWV, 's_lshl_b32 s65, s65, 1', 's_add_u32 s62, s62, s65', 's_lshl_b32 s65, s65, 6', 's_add_u32 s%d, s%d, s65' % (sFL, sFL),
          's_lshr_b32 s65, s%d, 1' % sWV, 's_lshl_b32 s66, s65, 6', 's_add_u32 s62, s62, s66',
          's_lshl_b32 s66, s%d, 1' % sRB, 's_add_u32 s65, s65, s66', 's_mul_i32 s64, s65, %d' % HID_RT,
          's_lshl_b32 s65, s65, 12', 's_add_u32 s%d, s%d, s65' % (sFL, sFL), 's_add_u32 s%d, s%d, %d' % (sFL, sFL, WS_FH),
          's_and_b32 s65, s%d, 1' % sWV, 's_lshl_b32 s65, s65, 11', 's_add_u32 s64, s64, s65',
          'v_add_u32 v48, s62, v%d' % h_, 's_lshl_b32 s62, s%d, 7' % sRB, 'v_add_lshl_u32 v%d, v48, s62, 3' % (vGA + 9),
          'v_bfe_u32 v49, v48, 2, 2', 'v_bfe_u32 v50, v48, 4, 1', 'v_lshl_add_u32 v49, v49, 1, v50',
          'v_and_b32 v50, 3, v48', 'v_lshl_add_u32 v49, v49, 2, v50',
          'v_lshrrev_b32 v48, 5, v48', 'v_lshlrev_b32 v48, 13, v48', 'v_lshl_add_u32 v48, v49, 7, v48',
          'v_bfe_u32 v49, v49, 1, 3', 'v_lshrrev_b32 v50, 2, v%d' % n_, 'v_xor_b32 v49, v49, v50',
          'v_lshl_add_u32 v48, v49, 4, v48', 'v_and_b32 v49, 3, v%d' % n_, 'v_lshl_add_u32 v%d, v49, 2, v48' % vGA,
          'v_add_u32 v%d, 0x10000, v%d' % (vGA + 1, vGA), 'v_lshlrev_b32 v%d, 2, v%d' % (vGA + 2, n_),
          'v_add_u32 v%d, %d, v%d' % (vGA + 2, SMO + 640, vGA + 2), 'v_mov_b32 v%d, 0' % (vGA + 8),
          's_lshr_b32 s62, s43, 1', 'v_lshlrev_b32 v%d, 4, v%d' % (vL16, vLANE)]
    return r

def sidejob_setup(p, SJO):
    D = sSJD
    for x in ['s_cmp_lt_u32 s2, 224', 's_cselect_b32 s%d, 1, 0' % sSJK, 's_cmp_lt_u32 s%d, 3' % sWV, 's_cselect_b32 s%d, s%d, 0' % (sSJK, sSJK),
              's_sub_u32 s41, s2, 64', 's_lshr_b32 s65, s41, 4',
              's_and_b32 s41, s41, 15', 's_mul_i32 s41, s41, 3', 's_add_u32 s41, s41, s%d' % sWV,
              's_mul_i32 s%d, s41, %d' % (sSJO2, 32 * 1280), 's_lshl_b32 s60, s65, 7', 's_add_u32 s%d, s%d, s60' % (sSJO2, sSJO2),
              's_lshl_b32 s65, s65, 2',
              's_bfe_u32 s60, s41, 0x10001', 's_mul_i32 s60, s60, 24', 's_and_b32 s40, s41, 1', 's_add_u32 s60, s60, s40',
              's_lshr_b32 s41, s41, 2', 's_lshl_b32 s41, s41, 1', 's_add_u32 s41, s41, s60', 's_mul_i32 s41, s41, 5120',
              's_add_u32 s41, s41, %d' % WS_W2P,
              's_mov_b32 s%d, s%d' % (rSJ, sW2), 's_mov_b32 s%d, s%d' % (rSJ + 1, sW2 + 1), 's_mov_b32 s%d, %d' % (rSJ + 2, 1536 * 1280),
              's_mov_b32 s%d, 0x20000' % (rSJ + 3),
              's_cmp_lg_u32 s%d, 0' % sSJK, 's_cselect_b32 s%d, s%d, 0' % (rSJ + 2, rSJ + 2), 's_cselect_b32 s40, 0, 0x7ff00000',
              'v_add_u32 v%d, s40, v%d' % (vDJ + 5, vL16)]: p(x)
    for e in range(4):
        p('s_add_u32 s60, s65, %d' % e); p('s_mul_i32 s40, s60, 52'); p('s_lshr_b32 s40, s40, 8')
        p('s_mul_i32 s%d, s40, %d' % (D + e, W2P_CT - 5 * 1024)); p('s_lshl_b32 s60, s60, 10')
        p('s_add_u32 s%d, s%d, s60' % (D + e, D + e)); p('s_add_u32 s%d, s%d, s41' % (D + e, D + e))
    for x in ['v_lshrrev_b32 v48, 3, v%d' % vLANE, 'v_mul_u32_u24 v48, 1280, v48', 'v_and_b32 v49, 7, v%d' % vLANE, 'v_lshl_add_u32 v%d, v49, 4, v48' % vDJ,
              'v_lshrrev_b32 v48, 4, v%d' % vLANE, 'v_bfe_u32 v49, v%d, 2, 2' % vLANE, 'v_lshl_add_u32 v48, v48, 3, v49', 'v_lshlrev_b32 v48, 7, v48',
              'v_and_b32 v49, 3, v%d' % vLANE, 'v_lshl_add_u32 v48, v49, 3, v48', 's_add_u32 s60, s43, %d' % SJO, 'v_add_u32 v%d, s60, v48' % (vDJ + 4)]: p(x)
    for i in range(1, 4): p('v_add_u32 v%d, %d, v%d' % (vDJ + i, i * (8 * 1280 - 1024), vDJ))

def late_setup(CLS, LBQ):
    n_, h_ = vN, vHH
    return ['v_bfe_u32 v48, v%d, 2, 1' % n_, 'v_lshlrev_b32 v48, 10, v48',
            'v_lshl_add_u32 v48, v%d, 9, v48' % h_, 'v_lshrrev_b32 v49, 3, v%d' % n_, 'v_lshl_add_u32 v48, v49, 6, v48',
            'v_and_b32 v49, 3, v%d' % n_, 'v_lshl_add_u32 v%d, v49, 4, v48' % vSTF,
            'v_lshlrev_b32 v%d, 3, v%d' % (vEXA + 1, n_), 'v_add_u32 v%d, %d, v%d' % (vEXA + 1, EXO, vEXA + 1), 'v_lshl_add_u32 v48, v%d, 1, v%d' % (vWAVE, h_),
            'v_lshl_add_u32 v%d, v48, 8, v%d' % (vEXA, vEXA + 1),
            's_add_u32 s6, s43, %d' % TRO,
            'v_lshlrev_b32 v48, 10, v%d' % h_, 'v_lshl_add_u32 v48, v%d, 4, v48' % n_, 'v_add_u32 v%d, s6, v48' % vTW,
            'v_xor_b32 v%d, 0x240, v%d' % (vTW + 1, vTW),
            'v_lshrrev_b32 v48, 4, v%d' % vLANE, 'v_lshlrev_b32 v48, 7, v48', 'v_bfe_u32 v49, v%d, 2, 2' % vLANE,
            'v_lshl_add_u32 v48, v49, 4, v48', 'v_and_b32 v49, 1, v%d' % vLANE, 'v_lshl_add_u32 v48, v49, 3, v48',
            'v_bfe_u32 v49, v%d, 1, 1' % vLANE, 'v_mul_u32_u24 v49, 0x240, v49', 'v_add_u32 v48, v48, v49',
            'v_add_u32 v%d, s6, v48' % (vTW + 2), 'v_xor_b32 v%d, 64, v%d' % (vTW + 3, vTW + 2),
            's_sub_u32 s6, s%d, 1' % sRB, 's_lshl_b32 s7, s%d, 2' % sWV if LBQ else 's_mov_b32 s7, 0', 's_sub_u32 s6, s6, s7', 'v_sub_u32 v48, s6, v%d' % h_, 'v_lshlrev_b32 v48, 9, v48',
            'v_lshl_add_u32 v%d, v%d, 4, v48' % (vEO, n_),
            's_lshr_b32 s6, s%d, 2' % sRB, 's_lshl_b32 s6, s6, 3', 's_lshr_b32 s7, s3, 2', 's_add_u32 s%d, s6, s7' % sRT,
            's_lshl_b32 s6, s%d, 2' % sHF, 's_and_b32 s7, s3, 3', 's_add_u32 s%d, s6, s7' % sCT,
            's_sub_u32 s6, s%d, s%d' % (sCT, sRT) if CLS else 's_mov_b32 s6, s%d' % sCT, 's_and_b32 s6, s6, 3', 's_lshl_b32 s6, s6, 3', 's_or_b32 s%d, s6, 0x80000' % sSEL,
            'v_mul_u32_u24 v%d, 5120, v%d' % (vB, vWAVE), 'v_add_u32 v%d, v%d, v%d' % (vB, vB, vL16), 'v_add_u32 v%d, 0x1000, v%d' % (vB + 1, vB),
            'v_lshl_add_u32 v%d, v%d, 12, v%d' % (vA, vWAVE, vL16),
            's_lshl_b32 s6, s%d, 12' % sRT, 's_add_u32 s6, s6, %d' % WS_FH, 'v_lshl_add_u32 v%d, v%d, 7, s6' % (vFP, n_),
            's_mul_i32 s6, s%d, 5' % sCT, 's_lshr_b32 s6, s6, 2', 's_lshl_b32 s6, s6, 11', 's_add_u32 s6, s6, %d' % (WS_FL + 64 * 128),
            'v_lshl_add_u32 v%d, v%d, 7, s6' % (vWP, n_)]

def c_setup(vDC=vDC):
    return ['v_lshrrev_b32 v48, 3, v%d' % vLANE, 'v_mul_u32_u24 v48, 1280, v48', 'v_and_b32 v49, 7, v%d' % vLANE, 'v_lshrrev_b32 v50, 4, v%d' % vLANE,
            'v_xor_b32 v49, v49, v50', 'v_lshl_add_u32 v%d, v49, 4, v48' % vDC, 'v_xor_b32 v%d, 64, v%d' % (vDC + 1, vDC),
            'v_add_u32 v%d, %d, v%d' % (vDC + 1, 8 * 1280 - 1024, vDC + 1),
            'v_and_b32 v48, 15, v%d' % vLANE, 'v_lshrrev_b32 v49, 1, v48', 'v_xor_b32 v49, v49, v50', 'v_lshlrev_b32 v49, 4, v49',
            'v_lshl_add_u32 v48, v48, 7, v49', 'v_add_u32 v%d, s43, v48' % vRC, 'v_xor_b32 v%d, 64, v%d' % (vRC + 1, vRC),
            'v_add_u32 v%d, %d, v%d' % (vRC + 2, 3 * SLOT, vRC), 'v_add_u32 v%d, %d, v%d' % (vRC + 3, 3 * SLOT, vRC + 1)]

def body(p, ty, opt, st):
    put = p.put
    B = ty == 'B'
    NG = 1 if B else 2
    WS = S4(rWS)
    vPAR = 72
    S2OFF = [0, SLOT, 2 * SLOT]
    DELTA = opt.get('delta', 2); LBQ = opt.get('lbq', 1); NLB = 2 if LBQ else 8
    def spin(load, check):
        l1, l2 = p.newlabel('L_sp'), p.newlabel('L_sp')
        p('s_mov_b32 s65, 0')
        p.label(l1)
        check(l2)
        p('s_add_u32 s65, s65, 1'); p('s_cmp_gt_u32 s65, %d' % SPIN_MAX); p('s_cbranch_scc1 ' + l2)
        load(True)
        p('s_waitcnt vmcnt(0)'); p('s_branch ' + l1)
        p.label(l2)
    def dma_s2(c):
        r = []
        for sg in range(4 if c < 2 else 2):
            r.append('s_add_u32 m0, s43, %d' % (S2OFF[c] + 2048 * sg))
            r += [('buffer_load_dwordx4 v%d, %s, s%d offen offset:%d lds' % (vDS + i, S4(rS2), SIG + 4 * c + sg, 1024 * i), 's2c%d' % c) for i in range(2)]
        return r
    def s2_srd(): srd(p, rS2, sSB, 32 * 1280)
    def par_reads():
        r = ['v_lshlrev_b32 v48, 1, v%d' % vN, 'v_add_u32 v48, %d, v48' % SMO]
        for g in range(NG):
            r += [('ds_read_u16 v%d, v48 offset:%d' % (vPAR + 3 * g + k, 128 * k + 64 * g), 'par') for k in range(3)]
        return r
    def bias_reads(dst, T):
        return [('ds_read_b128 v[%d:%d], v49 offset:%d' % (dst + 8 * T + 4 * q, dst + 3 + 8 * T + 4 * q, 64 * T + 16 * q), 'b1%d' % T) for q in range(2)]
    def setup(g):
        c = CON[g]; tr, ti = TAB[g], TAB[g] + 16; pr = vPAR + 3 * g
        a, b = 48, 50
        M = S2(sM)
        r = ['v_lshlrev_b32 v%d, 16, v%d' % (pr + k, pr + k) for k in range(3)]
        r += ['v_mul_f32 v%d, %s, v%d' % (a, LOG2E, pr + 2), 'v_exp_f32 v%d, v%d' % (a, a),
              'v_mul_f32 v%d, v%d, v%d' % (c + 4, pr, pr),
              'v_cvt_pk_bf16_f32 v%d, v%d, v%d' % (a, a, a), 'v_lshlrev_b32 v%d, 16, v%d' % (a, a),
              'v_mul_f32 v%d, v%d, v%d' % (a + 1, a, pr + 1), 'v_mul_f32 v%d, v%d, v%d' % (a, a, pr),
              'v_mul_f32 v%d, %s, v%d' % (a + 1, INV2PI, a + 1), 'v_mul_f32 v%d, %s, v%d' % (a, LOG2E, a),
              'v_fract_f32 v%d, v%d' % (a + 1, a + 1), 'v_exp_f32 v%d, v%d' % (a, a),
              'v_cos_f32 v%d, v%d' % (b, a + 1), 'v_sin_f32 v%d, v%d' % (b + 1, a + 1),
              'v_fmac_f32 v%d, v%d, v%d' % (c + 4, pr + 1, pr + 1),
              'v_mul_f32 v%d, v%d, v%d' % (c, a, b), 'v_mul_f32 v%d, v%d, v%d' % (c + 1, a, b + 1),
              'v_rcp_f32 v%d, v%d' % (a, c + 4), 'v_add_f32 v%d, -1.0, v%d' % (b, c),
              'v_mul_f32 v%d, v%d, v%d' % (c + 2, b, pr), 'v_mul_f32 v%d, v%d, v%d' % (c + 3, c + 1, pr),
              'v_fmac_f32 v%d, v%d, v%d' % (c + 2, c + 1, pr + 1), 'v_fma_f32 v%d, -v%d, v%d, v%d' % (c + 3, b, pr + 1, c + 3),
              'v_mul_f32 v%d, v%d, v%d' % (c + 2, c + 2, a), 'v_mul_f32 v%d, v%d, v%d' % (c + 3, c + 3, a),
              'v_mov_b32 v%d, v%d' % (tr, c), 'v_mov_b32 v%d, v%d' % (ti, c + 1)]
        for k in range(1, 16): r += cmul(tr + k, ti + k, tr + k - 1, ti + k - 1, c, c + 1)
        mu = c + 4
        r += ['v_cmp_eq_u32 %s, 1, v%d' % (M, vHH), 'v_mov_b32 v%d, v%d' % (mu, tr + 15), 'v_mov_b32 v%d, v%d' % (mu + 1, ti + 15)]
        r += ['v_cndmask_b32 v%d, 1.0, v%d, %s' % (b, mu, M), 'v_cndmask_b32 v%d, 0, v%d, %s' % (b + 1, mu + 1, M)]
        r += cm(c + 6, c + 2, b) + csq(a, mu)
        r += ['v_cndmask_b32 v%d, 1.0, v%d, s[66:67]' % (b, a), 'v_cndmask_b32 v%d, 0, v%d, s[66:67]' % (b + 1, a + 1)]
        r += cm(c + 12, c + 6, b) + csq(c + 8, a)
        r += ['v_cndmask_b32 v%d, 1.0, v%d, s[68:69]' % (b, c + 8), 'v_cndmask_b32 v%d, 0, v%d, s[68:69]' % (b + 1, c + 9)]
        r += cm(c + 6, c + 12, b) + csq(a, c + 8)
        r += ['v_cndmask_b32 v%d, 1.0, v%d, %s' % (c + 10, a, M), 'v_cndmask_b32 v%d, 0, v%d, %s' % (c + 11, a + 1, M)]
        r += csq(c + 8, a)
        if LBQ:
            r += csq(a, c + 8) + ['v_cndmask_b32 v%d, 1.0, v%d, s[66:67]' % (b, a), 'v_cndmask_b32 v%d, 0, v%d, s[66:67]' % (b + 1, a + 1)]
            r += cm(c + 12, c + 10, b) + csq(b, a) + ['v_cndmask_b32 v%d, 1.0, v%d, s[68:69]' % (b, b), 'v_cndmask_b32 v%d, 0, v%d, s[68:69]' % (b + 1, b + 1)]
            r += cm(c + 10, c + 12, b)
        r += ['v_lshl_add_u32 v%d, v%d, 1, v%d' % (c + 14, vWAVE, vHH), 'v_mov_b32 v%d, 0' % (c + 12), 'v_mov_b32 v%d, 0' % (c + 13)]
        return r
    def masks():
        p('s_bitcmp1_b32 s%d, 0' % sWV); p('s_cselect_b64 s[66:67], -1, 0')
        p('s_bitcmp1_b32 s%d, 1' % sWV); p('s_cselect_b64 s[68:69], -1, 0')
    def gate_reads(s):
        sl = s % 5; d = vGA + 4 + 2 * (s & 1)
        return [('ds_read_b32 v%d, v%d offset:%d' % (d, vGA3 if sl == 4 else vGA + (sl >> 1), (sl & 1) * SLOT), 'g%d' % s)]
    def third_set():
        r = ['v_add_u32 v%d, %d, v%d' % (vRX3 + k, 4 * SLOT, vRX + k) for k in range(4)] + ['v_add_u32 v%d, %d, v%d' % (vGA3, 4 * SLOT, vGA)]
        return r + ['v_add_u32 v%d, %d, v%d' % (vW3 + k, 4 * SLOT, (vRF if B else vRS) + k) for k in range(2 if B else 4)]
    def gw_reads():
        r = []
        for s in range(10): r += ['v_add_u32 v%d, s%d, v%d' % (vGA + 3, SIG + s, vGA + 2), ('ds_read_b32 v%d, v%d' % (vGW + s, vGA + 3), 'gw')]
        return r
    def gate_step(s):
        if opt.get('nogate'): return []
        x = vGA + 4 + 2 * (s & 1); w = vGW + s; a = vGA + 10; acc = vGA + 8
        return [lambda: p.wait(lg='g%d' % s),
                'v_lshlrev_b32 v%d, 16, v%d' % (a, x), 'v_lshlrev_b32 v%d, 16, v%d' % (a + 1, w),
                'v_and_b32 v%d, 0xffff0000, v%d' % (x, x), 'v_and_b32 v%d, 0xffff0000, v%d' % (w, w),
                'v_mul_f32 v%d, v%d, v%d' % (a, a, a + 1), 'v_mul_f32 v%d, v%d, v%d' % (x, x, w),
                'v_cvt_pk_bf16_f32 v%d, v%d, v%d' % (a, a, x),
                'v_lshlrev_b32 v%d, 16, v%d' % (a + 1, a), 'v_and_b32 v%d, 0xffff0000, v%d' % (a, a),
                'v_add_f32 v%d, v%d, v%d' % (acc, acc, a + 1), 'v_add_f32 v%d, v%d, v%d' % (acc, acc, a)]
    def gate_store():
        a = vGA + 10
        p('s_mov_b32 s40, %d' % WS_G)
        p('s_mov_b32 exec_lo, 1'); p('s_mov_b32 exec_hi, 1')
        p('buffer_store_dwordx2 v[%d:%d], v%d, %s, s40 offen%s' % (a, a + 1, vGA + 9, WS, SC), tag='gst')
        p('s_mov_b64 exec, -1')
    gstore = [gate_store]
    def gate_fin():
        r = []; s = vGA + 8; a = vGA + 10
        for m in ('quad_perm:[1,0,3,2]', 'quad_perm:[2,3,0,1]', 'row_half_mirror', 'row_mirror'):
            r.append('v_add_f32_dpp v%d, v%d, v%d %s row_mask:0xf bank_mask:0xf' % (s, s, s, m))
        r += ['v_mov_b32 v%d, v%d' % (a, s), 'v_permlane16_swap_b32 v%d, v%d' % (a, s), 'v_add_f32 v%d, v%d, v%d' % (s, s, a),
              'v_cvt_pk_bf16_f32 v%d, v%d, v%d' % (s, s, s), 'v_lshlrev_b32 v%d, 16, v%d' % (s, s),
              'v_mul_f32 v%d, 0xbfb8aa3b, v%d' % (s, s), 'v_exp_f32 v%d, v%d' % (s, s), 'v_add_f32 v%d, 1.0, v%d' % (s, s),
              'v_rcp_f32 v%d, v%d' % (s, s), 'v_cvt_pk_bf16_f32 v%d, v%d, v%d' % (s, s, s), 'v_lshlrev_b32 v%d, 16, v%d' % (a, s),
              'v_sub_f32 v%d, 1.0, v%d' % (a + 1, a), 'v_cvt_pk_bf16_f32 v%d, v%d, v%d' % (a + 1, a + 1, a + 1),
              'v_lshlrev_b32 v%d, 16, v%d' % (a + 1, a + 1)]
        store = gstore[0]
        def unused():
            p('s_mov_b32 s40, %d' % WS_G)
            p('s_mov_b32 exec_lo, 1'); p('s_mov_b32 exec_hi, 1')
            p('buffer_store_dwordx2 v[%d:%d], v%d, %s, s40 offen%s' % (a, a + 1, vGA + 9, WS, SC), tag='gst')
            p('s_mov_b64 exec, -1')
        if not (B and opt.get('fburst', 1) and opt.get('gmerge', 0)): r.append(store)
        return r
    SJM = 0; SJL = 0; SJO = 4096 if SJL else XREG
    def sj_dma():
        p('s_add_u32 m0, s43, %d' % SJO)
        for i in range(4): p('buffer_load_dwordx4 v%d, %s, s%d offen offset:%d lds' % (vDJ + i, S4(rSJ), sSJO2, 1024 * i), tag='sj')
    def sj_read():
        p.wait(vm='sj')
        for e in range(4):
            for j in range(2): p('ds_read_b64_tr_b16 a[%d:%d], v%d offset:%d' % (232 + 4 * e + 2 * j, 233 + 4 * e + 2 * j, vDJ + 4, 32 * e + 512 * j), tag='sjr')
    def sj_store():
        p.wait(lg='sjr')
        for e in range(4): p('buffer_store_dwordx4 a[%d:%d], v%d, %s, s%d offen%s' % (232 + 4 * e, 235 + 4 * e, vDJ + 5, WS, sSJD + e, SC), tag='sjs')
    def a_prefetch(which):
        p('s_and_b32 s65, s2, 7'); p('s_lshl_b32 s65, s65, 3'); p('s_add_u32 s65, s65, s3'); p('s_lshl_b32 s65, s65, 2'); p('s_add_u32 s65, s65, s%d' % sWV)
        if which == 'C':
            p('s_bitcmp1_b32 s%d, 0' % sWV)
            p('s_cselect_b32 s40, s%d, s%d' % (sCIM, sCRE)); p('s_cselect_b32 s41, s%d, s%d' % (sCIM + 1, sCRE + 1))
            p('s_lshr_b32 s65, s65, 1'); p('s_mul_i32 s65, s65, 6400'); p('v_min_u32 v94, 49, v%d' % vLANE)
        else:
            p('s_mov_b64 s[40:41], %s' % S2(sW2)); p('s_mul_i32 s65, s65, 7680'); p('v_min_u32 v94, 59, v%d' % vLANE)
        p('v_lshl_add_u32 v94, v94, 7, s65')
        p('global_load_dword v93, v94, s[40:41]', tag='cpf')
    def c_prefetch():
        p('s_bitcmp1_b32 s%d, 0' % sWV)
        p('s_cselect_b32 s40, s%d, s%d' % (sCIM, sCRE)); p('s_cselect_b32 s41, s%d, s%d' % (sCIM + 1, sCRE + 1))
        p('s_lshl_b32 s65, s2, 1'); p('s_lshr_b32 s23, s%d, 1' % sWV); p('s_add_u32 s65, s65, s23'); p('s_mul_i32 s65, s65, 1600')
        p('v_lshl_add_u32 v94, v%d, 7, s65' % vLANE); p('v_min_u32 v94, %d, v94' % (640 * 1280 - 4))
        p('s_mov_b64 exec, 0x1fff')
        p('global_load_dword v93, v94, s[40:41]', tag='cpf')
        p('s_mov_b64 exec, -1')
    def c_srd():
        p.seen.add('csrd')
        p('s_bitcmp1_b32 s%d, 0' % sWV)
        p('s_cselect_b32 s%d, s%d, s%d' % (rC, sCIM, sCRE)); p('s_cselect_b32 s%d, s%d, s%d' % (rC + 1, sCIM + 1, sCRE + 1))
        p('s_mul_i32 s40, s%d, %d' % (sCT, 80 * 1280)); p('s_add_u32 s%d, s%d, s40' % (rC, rC)); p('s_addc_u32 s%d, s%d, 0' % (rC + 1, rC + 1))
        p('s_mov_b32 s%d, %d' % (rC + 2, 80 * 1280)); p('s_mov_b32 s%d, 0x20000' % (rC + 3))
        p('s_lshr_b32 s%d, s%d, 1' % (sSJO, sWV)); p('s_lshl_b32 s%d, s%d, 7' % (sSJO, sSJO))
    DS = opt.get('deltas', 1)
    def sp_lit(pos): return sum(order(5, c, DS)[pos] << (8 * c) for c in range(4))
    def c_dma(q):
        pos, n = divmod(q, 5); pl = q % 16
        r = [lambda: p.wait(lg='cr%d' % (q - 16))] if q >= 16 else []
        r += ['s_add_u32 m0, s43, %d' % (CPL[pl >> 2] + 2048 * (pl & 3))]
        if n == 0: r += ['s_bfe_u32 s23, 0x%x, s%d' % (sp_lit(pos), sSEL5), 's_lshl_b32 s23, s23, 8', 's_add_u32 s23, s23, s%d' % sSJO]
        else: r += ['s_add_u32 s23, s23, %d' % (16 * 1280)]
        ld = [('buffer_load_dwordx4 v%d, %s, s23 offen offset:%d lds' % (vDC + i, S4(rC), 1024 * i), 'cd%d' % q) for i in range(2)]
        def first():
            assert 'csrd' in p.seen
            for x in r + ld[:1]: put(x)
        return [first, ld[1]]
    def c_read(q, dst=None):
        pl = q % 16; dst = AX + 8 * q if dst is None else dst
        hi, o = {0: (1, 0), 1: (1, SLOT), 2: (0, 0), 3: (0, SLOT)}[pl >> 2]
        rd = [('ds_read_b128 a[%d:%d], v%d offset:%d' % (dst + 4 * gg, dst + 4 * gg + 3, vRC + 2 * hi + gg, o + 2048 * (pl & 3)), 'cr%d' % q) for gg in range(2)]
        return [lambda: (p.wait(vm='cd%d' % q), put(rd[0])), rd[1]]
    def cD(a, b): return [x for q in range(a, b) for x in c_dma(q)]
    def cR(a, b): return [x for q in range(a, b) for x in c_read(q)]
    def nonce_load(o=False): p('global_load_dword v%d, v%d, %s sc1' % (vPOLL, vZ, S2(sDBG)), tag='nonce', optional=o)
    def get_nonce():
        def chk(l2):
            p('v_readfirstlane_b32 s%d, v%d' % (sNON, vPOLL)); p('s_cmp_lg_u32 s%d, 0' % sNON); p('s_cbranch_scc1 ' + l2)
        p.wait(vm='nonce'); spin(nonce_load, chk)
        p('v_mov_b32 v47, s%d' % sNON)
    def w2_signal():
        def go():
            p('s_lshl_b32 s40, s2, 7'); p('s_add_u32 s40, s40, %d' % WS_FL); p('s_mov_b64 exec, 1')
            p('buffer_store_dword v47, v%d, %s, s40 offen%s' % (vZ, WS, SC), optional=True)
            p('s_mov_b64 exec, -1')
        wave0(go)
    def signal(level, tags):
        def go():
            p.wait(vm=tags)
            p('s_add_u32 s65, s%d, %d' % (sFL, 131072 * level)); p('s_mov_b64 exec, 1')
            p('buffer_store_dword v47, v%d, %s, s65 offen%s' % (vZ, WS, SC), tag='flag')
            p('s_mov_b64 exec, -1')
        return go
    def fl_load(level):
        if level == 'FW':
            p('v_cmp_eq_u32 vcc, 1, v%d' % vHH); p('v_cndmask_b32 v94, v%d, v%d, vcc' % (vFP, vWP))
            p('buffer_load_dword v%d, v94, %s, 0 offen sc1' % (vPOLL, WS), optional=True)
            return
        p('s_mov_b32 s40, %d' % (0 if level == 'W' else 131072 * level)); p('s_mov_b32 exec_hi, 0')
        p('buffer_load_dword v%d, v%d, %s, s40 offen sc1' % (vPOLL, vWP if level == 'W' else vFP, WS), optional=True)
        p('s_mov_b32 exec_hi, -1')
    def wave0(fn):
        l = p.newlabel('L_w0')
        p('s_cmp_lg_u32 s%d, 0' % sWV); p('s_cbranch_scc1 ' + l)
        fn()
        p.label(l)
    def fl_issue(level):
        def go():
            wave0(lambda: fl_load(level))
            p.marks[level] = p.total_vm()
        return go
    def fl_check(level, bar=True):
        def chk(l2):
            p('v_cmp_ne_u32 vcc, s%d, v%d' % (sNON, vPOLL))
            if level == 'FW': p('s_cbranch_vccz ' + l2)
            else: p('s_cmp_eq_u32 vcc_lo, 0'); p('s_cbranch_scc1 ' + l2)
        def body_():
            p('s_waitcnt vmcnt(%d)' % min(63, p.total_vm() - p.marks[level]))
            spin(lambda o: fl_load(level), chk)
        def go():
            wave0(body_)
            if bar: p('s_barrier')
        return go
    def rnd_lit(i):
        for o, n in PARTS:
            if o <= i < o + n: return sum((o + order(n, c, DELTA)[i - o]) << (8 * c) for c in range(4))
    def b_reg(i, n):
        if i < 12: return ('a', 208 + 20 * (i % 3) + 4 * n) if i % 3 < 2 else ('v', 12 + 4 * n)
        pos, gg = divmod(i - 12, 2)
        return 'a', AX + 8 * (5 * (pos % 4) + n) + 4 * gg
    def b_loads(i):
        r = ['s_bfe_u32 s61, 0x%x, s%d' % (rnd_lit(i), sSEL), 's_mul_i32 s61, s61, 20480']
        for n in range(5):
            k, b = b_reg(i, n)
            r.append(('buffer_load_dwordx4 %s[%d:%d], v%d, %s, s61 offen%s sc1' % (k, b, b + 3, vB + (n >> 2), S4(rW2P), ' offset:%d' % (1024 * n) if n < 4 else ''), 'B%d' % i))
        return r
    def a_loads(i, pos=None):
        b = AH + 16 * ((i if pos is None else pos) % 3)
        if i < 12: r = ['s_bfe_u32 s60, 0x%x, s%d' % (rnd_lit(i), sSEL), 's_lshl_b32 s60, s60, 14']
        else: r = ['s_bfe_u32 s60, 0x%x, s%d' % (sp_lit((i - 12) >> 1), sSEL5), 's_lshl_b32 s60, s60, 15', 's_add_u32 s60, s60, %d' % ((12 + (i & 1)) << 14)]
        r += [('buffer_load_dwordx4 a[%d:%d], v%d, %s, s60 offen offset:%d sc1' % (b + 4 * m, b + 4 * m + 3, vA, S4(rHID), 1024 * m), 'A%d' % i) for m in range(4)]
        return r
    def w2_prefetch():
        if not opt.get('wpf', 0): return
        p('s_and_b32 s40, s%d, 7' % sRT); p('s_lshl_b32 s40, s40, 2'); p('s_add_u32 s40, s40, s%d' % sWV); p('s_mul_i32 s40, s40, 7680')
        p('v_min_u32 v94, 59, v%d' % vLANE); p('v_lshlrev_b32 v94, 7, v94')
        p('buffer_load_dword v93, v94, %s, s40 offen sc1' % S4(rW2P), tag='wpf')
    def hid_srd():
        p('s_mul_i32 s40, s%d, %d' % (sRT, HID_RT)); srd(p, rHID, sWS, HID_RT, 's40')
        p('s_mul_i32 s40, s%d, %d' % (sCT, W2P_CT)); p('s_add_u32 s40, s40, %d' % WS_W2P); srd(p, rW2P, sWS, W2P_CT, 's40')
        if opt.get('fake'):
            p('s_lshr_b32 s40, s%d, 2' % sRB); p('s_mul_i32 s40, s40, %d' % (512 * 1280)); p('s_lshl_b32 s41, s3, 13'); p('s_add_u32 s40, s40, s41')
            if opt['fake'] & 1: srd(p, rHID, sX, HID_RT, 's40')
            if opt['fake'] & 2: srd(p, rW2P, sX, HID_RT, 's40')
    def reads1(k):
        s, ks = divmod(k, 4); sl = s % 5; hi = 4 * (sl >> 1); o = (sl & 1) * SLOT
        w = AW + 16 * (k % 3); tg = 'k%d' % k
        rx, rs, rf = (vRX3, vW3, vW3) if sl == 4 else (vRX + hi, vRS + hi, vRF + (hi >> 1))
        r = [('ds_read_b128 a[%d:%d], v%d offset:%d' % (AX + 4 * k, AX + 4 * k + 3, rx + ks, o), tg)]
        for T in range(4):
            if B:
                for j in range(2):
                    r.append(('ds_read_b64_tr_b16 a[%d:%d], v%d offset:%d' % (w + 4 * T + 2 * j, w + 1 + 4 * T + 2 * j, rf + (T & 1),
                                                                          o + ks * 8192 + 4096 + 2048 * (T >> 1) + 512 * j), tg))
            else:
                r.append(('ds_read_b128 a[%d:%d], v%d offset:%d' % (w + 4 * T, w + 4 * T + 3, rs + ks, o + 4096 + 2048 * (T >> 1) + 16384 * (T & 1)), tg))
        return r
    L2 = opt.get('lead2', 5); NB2 = L2 + 1
    def reads2(m):
        k, T = divmod(m, 2); s, ks = divmod(k, 4); c, sg = divmod(s, 4)
        w = AW2 + 4 * (m % NB2)
        return [('ds_read_b128 a[%d:%d], v%d offset:%d' % (w, w + 3, vRS + 4 * (S2OFF[c] >> 16) + ks, (S2OFF[c] & 0xffff) + 16384 * T + 2048 * sg), 'm%d' % m)]
    mf = 'v_mfma_f32_32x32x16_bf16 v[%d:%d], a[%d:%d], a[%d:%d], %s'
    def mfma1(k, T):
        x = AX + 4 * k; f = AW + 16 * (k % 3) + 4 * T
        if B: a = FAC + 16 * T; return mf % (a, a + 15, f, f + 3, x, x + 3, 'v[%d:%d]' % (a, a + 15))
        a = SAC[T >> 1] + 16 * (T & 1)
        return mf % (a, a + 15, x, x + 3, f, f + 3, 'v[%d:%d]' % (a, a + 15) if k else '0')
    def mfma2(m):
        k, T = divmod(m, 2); x = AX + 4 * k; a = SAC[0] + 16 * T; f = AW2 + 4 * (m % NB2)
        return mf % (a, a + 15, x, x + 3, f, f + 3, 'v[%d:%d]' % (a, a + 15) if k else '0')
    LOOK = opt.get('look', 3); SJS = opt.get('sjs', 2); AE = opt.get('aearly', 0)
    def sync1(s):
        p.wait(vm='st%d' % s, lg=None if s else 'all'); p('s_barrier')
        r = [lambda: p.wait(lg='sjr')] if (B and s == 1) else []
        if s == 0: r += dma_stage(2)
        if s + LOOK < 10: r += dma_stage(s + LOOK)
        elif B: r += dma_s2(s + LOOK - 10)
        if s == 7 and opt.get('cpf', 2) == 1: r = [c_prefetch] + r
        if not B and opt.get('cpf', 2) == 2:
            if s == opt.get('pfc', 7): r = r + [lambda: a_prefetch('C')]
            if s == opt.get('pfw', 4) and (SJL or SJM): r = r + [lambda: a_prefetch('W')]
        if B and s == SJM and SJM: r = r + [sj_dma]
        return r
    def scanA1(g):
        c = CON[g]; re, im = SAC[g], SAC[g] + 16
        r = []
        for k in range(1, 16): r += cfma(re + k, im + k, c, re + k - 1, im + k - 1)
        r += ['v_mov_b32 v%d, v%d' % (48 + 2 * g, re + 15), 'v_mov_b32 v%d, v%d' % (49 + 2 * g, im + 15),
              ('ds_write_b64 v%d, v[%d:%d] offset:%d' % (vEXA, 48 + 2 * g, 49 + 2 * g, 8192 * g), 'ex')]
        return r
    def scanA2(g):
        c = CON[g]; re, im = SAC[g], SAC[g] + 16; be = P2(c + 2)
        r = []
        for k in range(0, 16, 2):
            tt = 48 + (k & 2)
            r += ['v_pk_mul_f32 %s, %s, %s op_sel:[1,0] op_sel_hi:[1,1]' % (P2(tt), be, P2(re + k)),
                  'v_pk_mul_f32 %s, %s, %s op_sel:[0,0] op_sel_hi:[0,1]' % (P2(re + k), be, P2(re + k)),
                  'v_pk_fma_f32 %s, %s, %s, %s op_sel:[1,0,0] op_sel_hi:[1,1,1] neg_lo:[1,0,0] neg_hi:[1,0,0]' % (P2(re + k), be, P2(im + k), P2(re + k)),
                  'v_pk_fma_f32 %s, %s, %s, %s op_sel:[0,0,0] op_sel_hi:[0,1,1]' % (P2(im + k), be, P2(im + k), P2(tt))]
        return r
    def ex_reads(g, e):
        return [('ds_read_b64 v[%d:%d], v%d offset:%d' % (e + 2 * k, e + 2 * k + 1, vEXA + 1, 8192 * g + 256 * k), 'exr%d' % g) for k in range(8)]
    def ex_prefix(g, e, pk):
        c = CON[g]; r = []
        for k in range(1, 8):
            r += pcfma(e + 2 * k, c + 4, e + 2 * k - 2) if pk else cfma(e + 2 * k, e + 2 * k + 1, c + 4, e + 2 * k - 2, e + 2 * k - 1)
        return r
    def ex_pub(g, e):
        def pub():
            p('v_mov_b32 v%d, v47' % (e + 16)); p('v_mov_b32 v%d, v47' % (e + 17))
            p('s_add_u32 s40, s%d, %d' % (sG, g)); p('s_lshl_b32 s40, s40, 4'); p('s_add_u32 s40, s40, s%d' % sRB); p('s_lshl_b32 s40, s40, 9')
            p('s_add_u32 s40, s40, %d' % WS_E)
            p('s_lshl_b32 s41, s%d, 3' % sWV); p('s_lshl_b32 exec_lo, 0xff, s41'); p('s_mov_b32 exec_hi, 0')
            p('buffer_store_dwordx4 v[%d:%d], v%d, %s, s40 offen%s' % (e + 14, e + 17, vL16, WS, SC), tag='pub')
            p('s_mov_b64 exec, -1')
        return [pub]
    def ex_own(g, e):
        c = CON[g]; r = []
        for k in range(1, 8):
            r += ['v_cmp_eq_u32 %s, %d, v%d' % (S2(sM + 2 * (k & 1)), k, c + 14)]
            if k > 1: r += ['v_cndmask_b32 v%d, v%d, v%d, %s' % (c + 12 + z, c + 12 + z, e + 2 * k - 4 + z, S2(sM + 2 - 2 * (k & 1))) for z in range(2)]
        r += ['v_cndmask_b32 v%d, v%d, v%d, %s' % (48 + z, c + 12 + z, e + 12 + z, S2(sM + 2)) for z in range(2)]
        return r + cm(c + 12, c + 2, 48)
    def ffn_epi(T, pk=False):
        a = FAC + 16 * T; r = []
        for k in range(0, 16, 2):
            r += ['v_max_f32 v%d, 0, v%d' % (a + k, a + k), 'v_max_f32 v%d, 0, v%d' % (a + k + 1, a + k + 1)]
            if pk: r += ['v_pk_mul_f32 %s, %s, %s' % (P2(a + k), P2(a + k), P2(a + k))]
            else: r += ['v_mul_f32 v%d, v%d, v%d' % (a + k + z, a + k + z, a + k + z) for z in range(2)]
        for k in range(8): r.append('v_cvt_pk_bf16_f32 v%d, v%d, v%d' % (a + k, a + 2 * k, a + 2 * k + 1))
        def stores():
            p('s_lshl_b32 s40, s%d, 12' % sQ); p('s_add_u32 s40, s40, s64'); p('s_add_u32 s40, s40, %d' % (((T & 1) + (24 if T >= 2 else 0)) * 4096))
            for q in range(2):
                p('buffer_store_dwordx4 v[%d:%d], v%d, %s, s40 offen offset:%d%s' % (a + 4 * q, a + 4 * q + 3, vSTF, WS, 256 * q, SC), tag='hf')
        return r + [stores]
    EXP = 84 if B else 52
    def lb_expect():
        r = []
        for k in range(NLB):
            r += ['v_subrev_u32 v%d, %d, v%d' % (EXP + k, 1024 * k, vEO), 'v_ashrrev_i32 v%d, 31, v%d' % (EXP + k, EXP + k),
                  'v_bfi_b32 v%d, v%d, 0, v47' % (EXP + k, EXP + k)]
        return r
    def lb_loads(g, e, o=False):
        p('s_add_u32 s40, s%d, %d' % (sG, g)); p('s_lshl_b32 s40, s40, 13'); p('s_add_u32 s40, s40, %d' % WS_E)
        srd(p, rE, sWS, 8192, 's40')
        for k in range(NLB):
            if k: p('v_subrev_u32 v48, %d, v%d' % (1024 * k, vEO))
            p('buffer_load_dwordx4 v[%d:%d], v%d, %s, 0 offen sc1' % (e[k], e[k] + 3, 48 if k else vEO, S4(rE)), tag='lb%d' % g, optional=o)
    def lb_finish(g, e):
        c = CON[g]
        def chk(l2):
            for k in range(NLB): p('v_xor_b32 v%d, v%d, v%d' % (e[k] + 2, e[k] + 2, EXP + k))
            if LBQ: p('v_or_b32 v48, v%d, v%d' % (e[0] + 2, e[1] + 2))
            else:
                p('v_or3_b32 v48, v%d, v%d, v%d' % (e[0] + 2, e[1] + 2, e[2] + 2)); p('v_or3_b32 v49, v%d, v%d, v%d' % (e[3] + 2, e[4] + 2, e[5] + 2))
                p('v_or3_b32 v48, v%d, v%d, v48' % (e[6] + 2, e[7] + 2)); p('v_or_b32 v48, v48, v49')
            p('v_cmp_ne_u32 vcc, 0, v48'); p('s_cbranch_vccz ' + l2)
        p.wait(vm='lb%d' % g); spin(lambda o: lb_loads(g, e, o), chk)
        for k in range(NLB - 2, -1, -1):
            for x in pcfma(e[k], c + 8, e[k + 1]): put(x)
        for x in pcmul(48, c + 10, e[0]): put(x)
        if not LBQ: p('v_mov_b32 v50, v48'); p('v_mov_b32 v51, v49')
        if LBQ:
            p('ds_write_b64 v%d, v[48:49] offset:%d' % (vEXA, 8192 * g), tag='lw')
            p.wait(lg='lw'); p('s_barrier')
            for k in range(8): p('ds_read_b64 v[%d:%d], v%d offset:%d' % (e[2] + 2 * k, e[2] + 2 * k + 1, vEXA + 1, 8192 * g + 256 * k), tag='lr%d' % (k // 2))
            for k in range(4):
                p.wait(lg='lr%d' % k)
                p('v_pk_add_f32 %s, %s, %s' % (P2(e[2] + 4 * k), P2(e[2] + 4 * k), P2(e[2] + 4 * k + 2)))
            p('v_pk_add_f32 %s, %s, %s' % (P2(e[2]), P2(e[2]), P2(e[2] + 4))); p('v_pk_add_f32 %s, %s, %s' % (P2(e[2] + 8), P2(e[2] + 8), P2(e[2] + 12)))
            p('v_pk_add_f32 v[48:49], %s, %s' % (P2(e[2]), P2(e[2] + 8)))
        else:
            p('v_permlane32_swap_b32 v48, v50'); p('v_permlane32_swap_b32 v49, v51')
            p('v_pk_add_f32 v[48:49], v[48:49], v[50:51]')
        for x in pcfma(c + 12, c + 6, 48): put(x)
    def scanB(g, pk):
        c = CON[g]; tr, ti = TAB[g], TAB[g] + 16; re, im = SAC[g], SAC[g] + 16; cc = P2(c + 12)
        r = []
        for k in range(0, 16, 2):
            if pk:
                r += ['v_pk_fma_f32 %s, %s, %s, %s op_sel:[0,0,0] op_sel_hi:[1,0,1]' % (P2(re + k), P2(tr + k), cc, P2(re + k)),
                      'v_pk_fma_f32 %s, %s, %s, %s op_sel:[0,1,0] op_sel_hi:[1,1,1]' % (P2(im + k), P2(tr + k), cc, P2(im + k)),
                      'v_pk_fma_f32 %s, %s, %s, %s op_sel:[0,1,0] op_sel_hi:[1,1,1] neg_lo:[1,0,0] neg_hi:[1,0,0]' % (P2(re + k), P2(ti + k), cc, P2(re + k)),
                      'v_pk_fma_f32 %s, %s, %s, %s op_sel:[0,0,0] op_sel_hi:[1,0,1]' % (P2(im + k), P2(ti + k), cc, P2(im + k))]
            else:
                for z in (k, k + 1):
                    r += ['v_fmac_f32 v%d, v%d, v%d' % (re + z, tr + z, c + 12), 'v_fmac_f32 v%d, v%d, v%d' % (im + z, tr + z, c + 13),
                          'v_fma_f32 v%d, -v%d, v%d, v%d' % (re + z, ti + z, c + 13, re + z), 'v_fmac_f32 v%d, v%d, v%d' % (im + z, ti + z, c + 12)]
        for part in range(2):
            a = re + 16 * part; ng = '-' if part else ''
            for q in range(2):
                r += ['v_cvt_pk_bf16_f32 v%d, %sv%d, %sv%d' % (a + 8 * q + k, ng, a + 8 * q + 2 * k, ng, a + 8 * q + 2 * k + 1) for k in range(4)]
                r += [('ds_write_b128 v%d, v[%d:%d]' % (vTW + q, a + 8 * q, a + 8 * q + 3), 'tw')]
            r += [('ds_read_b64_tr_b16 v[%d:%d], v%d offset:%d' % (a + 8 * b + 4 + 2 * j, a + 8 * b + 5 + 2 * j, vTW + 2 + j, 1024 * b), 'tr%d' % part) for b in range(2) for j in range(2)]
        def stores(part):
            p('s_add_u32 s41, s%d, %d' % (sG, g)); p('s_lshr_b32 s40, s41, 2'); p('s_lshl_b32 s40, s40, 1'); p('s_and_b32 s65, s41, 1'); p('s_add_u32 s40, s40, s65')
            p('s_lshl_b32 s40, s40, 1'); p('s_bfe_u32 s65, s41, 0x10001'); p('s_add_u32 s40, s40, s65'); p('s_lshl_b32 s40, s40, 13')
            p('s_add_u32 s40, s40, s64'); p('s_add_u32 s40, s40, %d' % ((48 + part) * 4096))
            p.wait(lg='tr%d' % part)
            for b in range(2):
                o = re + 16 * part + 8 * b + 4
                p('buffer_store_dwordx4 v[%d:%d], v%d, %s, s40 offen offset:%d%s' % (o, o + 3, vL16, WS, 1024 * b, SC), tag='hs')
        return r + [lambda: stores(0), lambda: stores(1)]
    masks()
    if B:
        sidejob_setup(p, SJO); s2_srd()
        if not SJL and not SJM: sj_dma()
    else: c_srd()
    if B: p('v_lshlrev_b32 v49, 5, v%d' % vHH); p('v_add_u32 v49, %d, v49' % (SMO + 384))
    p.wait(vm='sm'); p('s_barrier')
    st('sm')
    for x in par_reads() + gw_reads(): put(x)
    pre = []
    if B:
        for T in range(4):
            for x in bias_reads(176, T): put(x)
    pre += [lambda: p.wait(lg='par')]
    for g in range(NG): pre += setup(g)
    if B:
        for T in range(4): pre += [lambda T=T: p.wait(lg='b1%d' % T)] + unpack(FAC + 16 * T, 176 + 8 * T, 8)
    nearly = max(0, len(pre) - opt.get('sp1', 12) * 8)
    for x in pre[:nearly] + sprinkle(pre[nearly:], dma_stage(1), opt.get('sp1', 12)): put(x)
    for x in third_set(): put(x)
    st('issued')
    pend = sync1(0)
    st('first')
    for x in reads1(0) + reads1(1) + gate_reads(0): put(x)
    fill = []
    prio = gate_step(0)
    p.marks = {}
    bar = lambda s_: 16 * s_ - 8
    events = {28: [nonce_load], bar(9) + 2: [get_nonce]}
    if B and SJM:
        events[bar(SJM + 2) + 4] = [sj_read]; events[bar(SJM + 2) + 12] = [sj_store]
        events[186] = [lambda: p.wait(vm='sjs')]; events[188] = [w2_signal]
    elif B and not SJL:
        events[bar(1) - 1] = [sj_read]; events[bar(1) + 6] = [sj_store]
        events[bar(6) - 1] = [lambda: p.wait(vm='sjs')]; events[bar(6) + 2] = [get_nonce, w2_signal]; del events[bar(9) + 2]
    if B and SJL:
        events[opt.get('sjr', 200)] = [sj_read]; events[opt.get('sjr', 200) + 6] = [sj_store]
    assert LOOK == 3
    nslots = 240 if B else 160
    GAP = opt.get('gap', 6)
    if B:
        ep = [ffn_epi(T) for T in range(4)]
        if opt.get('fburst', 1):
            fill2 = [x for e in ep for x in e[:-1]] + [lambda: [e[-1]() for e in ep]] + ([gstore[0]] if opt.get('gmerge', 0) else []) + [lambda: st('fst')] + lb_expect()
        else: fill2 = ep[0] + ep[1] + ep[2] + ep[3] + [lambda: st('fst')] + lb_expect()
        cq = cD(0, 16); ncq = 0
        if SJL: events[opt.get('sjd', 182)] = [sj_dma]
        else: events[opt.get('wpoll', 230)] = [fl_issue('W')]
    rd = []
    for i in range(nslots):
        if i < 160:
            k, T = divmod(i, 4)
            if T == 0:
                if k + 2 < 40:
                    rd = reads1(k + 2)
                    if (k + 2) % 4 == 0:
                        pend += sync1((k + 2) // 4)
                        rd = gate_reads((k + 2) // 4) + rd; prio += gate_step((k + 2) // 4)
                        if k + 2 == 36: prio += gate_fin()
                p.wait(lg='k%d' % k)
            p(mfma1(k, T))
        else:
            if i == 160:
                for x in prio + fill: put(x)
                st('pass1'); prio = []; fill = fill2
                c_srd()
            if i % 2 == 0: p.wait(lg=['m%d' % (i - 160), 'm%d' % (i - 159)])
            p(mfma2(i - 160))
        budget = GAP
        if opt.get('fine') == 1 and i % 16 == 9 and i < 160: st('s%d' % i)
        if opt.get('fine') == 2 and i % 8 == 0 and i > 160: st('s%d' % i)
        m = i + L2 - 160
        if B and 0 <= m < 80:
            if m in (0, 32, 64): p.wait(vm='s2c%d' % (m // 32), lg='all'); p('s_barrier')
            for x in reads2(m): put(x); budget -= 1
        nrd = -(-len(rd) // (4 - i % 4))
        for _ in range(nrd): put(rd.pop(0)); budget -= 1
        if pend and (i % 2 == 1 or sum(not isinstance(x, str) for x in pend) > (23 - i % 16 if i % 16 >= 8 else 7 - i % 16) // 2 + 1):
            while isinstance(pend[0], str): put(pend.pop(0)); budget -= 1
            budget -= 3 if callable(pend[0]) else 1
            put(pend.pop(0))
            while pend and isinstance(pend[0], str): put(pend.pop(0)); budget -= 1
        elif B and i > 160 and i % 2 == 1 and cq and i >= opt.get('cstart', 161) and (ncq < 16 or (ncq < 24 and m > 32) or m > 64):
            put(cq.pop(0)); ncq += 1; budget -= 2
        for x in events.pop(i, []): put(x); budget -= 1
        if i == 146: assert not (B and pend); fill += c_setup()
        if i < 160:
            if i % 16 >= 13 or i % 16 < 8:
                n = 0
                while prio and budget > 0 and n < 2: put(prio.pop(0)); budget -= 1; n += 1
            want = -(-len(fill) // max(1, 158 - i)) if i >= 2 else 0
            for _ in range(min(want, budget)):
                if fill: put(fill.pop(0))
        elif i > 160:
            while fill and budget > 0: put(fill.pop(0)); budget -= 1
        p.check_depth()
    assert not pend and not rd and not events
    bpre = b_loads(0) + b_loads(1) + b_loads(2)
    if B:
        assert not fill
        for x in cq: put(x)
        st('pass2')
        signal(0, ['hf', 'sjs', 'gst'])()
        for x in scanA1(0): put(x)
        if not SJL: fl_check('W', False)()
        p.wait(lg='ex'); p('s_barrier')
        for x in ex_reads(0, 52): put(x)
        if SJL: w2_signal()
        hid_srd()
        p.wait(lg='exr0')
        for x in ex_prefix(0, 52, True) + ex_pub(0, 52): put(x)
        st('pub')
        e0 = [52 + 4 * k for k in range(8)]
        LBR = opt.get('lbr', -1)
        if SJL:
            NX = 25; NP = opt.get('np', 21)
            for x in cR(0, 9) + sprinkle(cR(9, 16) + ex_own(0, 52) + scanA2(0), cD(16, NP) + [fl_issue('FW')] + cD(NP, NX), 4): put(x)
            st('end1')
            fl_check('FW')()
            st('fok')
            if LBR < 0: lb_loads(0, e0)
            for x in a_loads(0) + bpre[:7] + a_loads(1) + bpre[7:]: put(x)
        else:
            NX = opt.get('nx', 22); NP = opt.get('np', 18)
            for x in cR(0, 6) + sprinkle(cR(6, 16) + ex_own(0, 52) + scanA2(0), bpre + cD(16, NP) + [fl_issue(0)] + cD(NP, NX), 3): put(x)
            if LBR < 0: lb_loads(0, e0)
            st('end1')
            fl_check(0)()
            st('fok')
            NY = min(25, NX + opt.get('ny', 3))
            for x in a_loads(0) + a_loads(1) + cD(NX, NY): put(x)
            NX = NY
        if LBR < 0:
            st('lbstart'); lb_finish(0, e0); st('lbdone')
            for x in scanB(0, True): put(x)
            extra = {8: cR(16, 20)}
            sigS, geo = 2, 1
        else:
            extra = {LBR: [lambda: lb_loads(0, e0)], LBR + 1: [lambda: (st('lbstart'), lb_finish(0, e0), st('lbdone'))] + scanB(0, False), 8: cR(16, 20)}
            sigS, geo = LBR + 4, LBR + 4
    else:
        for x in prio + fill: put(x)
        st('pass1')
        c0 = 0
        for x in interleave(scanA1(0), scanA1(1)): put(x)
        p.wait(lg='all'); p('s_barrier')
        for x in ex_reads(0, 52) + ex_reads(1, 72): put(x)
        hid_srd()
        p.wait(lg='exr1')
        for x in interleave(ex_prefix(0, 52, True), ex_prefix(1, 72, True)) + ex_pub(0, 52) + ex_pub(1, 72): put(x)
        st('pub')
        signal(0, 'gst')()
        if not SJL: fl_issue('W')()
        NA = opt.get('na', 20)
        for x in sprinkle(ex_own(0, 52) + ex_own(1, 72) + lb_expect() + scanA2(0) + scanA2(1), cD(c0, 16), 8) + cR(0, NA - 16) + cD(16, NA): put(x)
        e0 = [60 + 4 * k for k in range(8)]
        e1 = [84, 88] + e0[2:] if LBQ else e0
        lb_loads(0, e0)
        if LBQ: lb_loads(1, e1)
        if not SJL: fl_check('W')()
        for x in cR(NA - 16, 16): put(x)
        st('lbstart')
        lb_finish(0, e0)
        if not LBQ: lb_loads(1, e0)
        if SJL:
            for x in sprinkle(scanB(0, True), cD(NA, 25), 4): put(x)
            NA = 25
            fl_issue('FW')()
        else:
            fl_issue(0)()
            for x in sprinkle(scanB(0, True), bpre, 4): put(x)
        lb_finish(1, e1)
        st('lbdone'); st('end1')
        if SJL:
            for x in scanB(1, True): put(x)
            fl_check('FW')()
            st('fok')
            for x in a_loads(0) + bpre[:7] + a_loads(1) + bpre[7:]: put(x)
        else:
            fl_check(0)()
            st('fok')
            for x in sprinkle(scanB(1, True), a_loads(0) + a_loads(1), 3): put(x)
        extra = {8: cR(16, 20)}
        sigS, geo = 2, 1
    NL = NX if B else NA
    xload = {i: c_dma(NL + i) for i in range(25 - NL)}
    phase2(p, opt, st, a_loads, b_loads, b_reg, c_read, signal, fl_issue, fl_check, extra, xload, sigS, geo)

def phase2(p, opt, st, a_loads, b_loads, b_reg, c_read, signal, fl_issue, fl_check, extra, xload, sigS, geo):
    put = p.put
    ACCB, ACCA = 96, 176
    vG, vX, vLR, vOut = 32, 52, 62, 67
    vCR, vLW, t = 72, 82, 84
    rXT, rO, rSM = 44, 16, 52
    def geom():
        r = []
        def srds():
            p('s_mul_i32 s40, s%d, 160' % sCT); p('s_mul_i32 s41, s%d, %d' % (sRT, 64 * 1280)); p('s_add_u32 s41, s41, s40')
            srd(p, rXT, sX, 64 * 1280 - 1280 + 160, 's41')
            p('s_lshl_b32 s41, s41, 1')
            srd(p, rO, sOUT, 64 * 2560 - 2560 + 320, 's41')
            p('s_lshl_b32 s41, s%d, 9' % sRT); p('s_add_u32 s41, s41, %d' % WS_G)
            p('s_cmp_eq_u32 s%d, 1' % sWV); p('s_cselect_b32 s65, 256, 0'); p('s_add_u32 s41, s41, s65')
            p('s_cmp_eq_u32 s%d, 2' % sWV)
            p('s_cselect_b32 s%d, s%d, s%d' % (rSM, sDSK, sB2)); p('s_cselect_b32 s%d, s%d, s%d' % (rSM + 1, sDSK + 1, sB2 + 1))
            p('s_cmp_lt_u32 s%d, 2' % sWV)
            p('s_cselect_b32 s%d, s%d, s%d' % (rSM, sWS, rSM)); p('s_cselect_b32 s%d, s%d, s%d' % (rSM + 1, sWS + 1, rSM + 1))
            p('s_cselect_b32 s40, s41, s40')
            p('s_mov_b32 s65, 160'); p('s_cselect_b32 s%d, 256, s65' % (rSM + 2))
            p('s_add_u32 s%d, s%d, s40' % (rSM, rSM)); p('s_addc_u32 s%d, s%d, 0' % (rSM + 1, rSM + 1)); p('s_mov_b32 s%d, 0x20000' % (rSM + 3))
        r.append(srds)
        for i in range(5):
            r += ['v_add_u32 v%d, %d, v0' % (t, 256 * i), 'v_mul_u32_u24 v%d, 0xcccd, v%d' % (t + 1, t), 'v_lshrrev_b32 v%d, 20, v%d' % (t + 1, t + 1),
                  'v_mul_u32_u24 v%d, 20, v%d' % (t + 2, t + 1), 'v_sub_u32 v%d, v%d, v%d' % (t + 2, t, t + 2),
                  'v_mul_u32_u24 v%d, 1280, v%d' % (t + 3, t + 1), 'v_lshl_add_u32 v%d, v%d, 3, v%d' % (t + 3, t + 2, t + 3),
                  ('buffer_load_dwordx2 v[%d:%d], v%d, %s, 0 offen' % (vX + 2 * i, vX + 2 * i + 1, t + 3, S4(rXT)), 'X'),
                  'v_lshlrev_b32 v%d, 1, v%d' % (vOut + i, t + 3), 'v_bfe_u32 v%d, v%d, 1, 2' % (t + 3, t + 1), 'v_xor_b32 v%d, v%d, v%d' % (t + 3, t + 3, t + 2), 'v_mul_u32_u24 v%d, 320, v%d' % (vLR + i, t + 1),
                  'v_add_u32 v%d, %d, v%d' % (vLR + i, PB, vLR + i), 'v_lshl_add_u32 v%d, v%d, 4, v%d' % (vLR + i, t + 3, vLR + i),
                  'v_lshl_add_u32 v%d, v%d, 3, s66' % (vCR + 2 * i, t + 2), 'v_lshl_add_u32 v%d, v%d, 3, s66' % (vCR + 2 * i + 1, t + 1)]
        r += ['v_and_b32 v%d, 15, v%d' % (t, vLANE), 'v_mul_u32_u24 v%d, 320, v%d' % (vLW, t), 'v_lshrrev_b32 v%d, 4, v%d' % (t + 1, vLANE),
              'v_bfe_u32 v%d, v%d, 1, 2' % (t + 2, t), 'v_xor_b32 v%d, v%d, v%d' % (t + 1, t + 1, t + 2),
              'v_lshl_add_u32 v%d, v%d, 4, v%d' % (vLW, t + 1, vLW), 'v_mul_u32_u24 v%d, %d, v%d' % (t + 1, 64 * 320, vWAVE),
              'v_add_u32 v%d, v%d, v%d' % (vLW, vLW, t + 1), 'v_add_u32 v%d, %d, v%d' % (vLW, PB, vLW),
              'v_lshl_add_u32 v%d, v%d, 3, s66' % (vLW + 1, t), 'v_lshlrev_b32 v%d, 2, v%d' % (48, vLANE)]
        return r
    def sm_dma():
        p('s_lshl_b32 s40, s%d, 8' % sWV); p('s_add_u32 m0, s40, %d' % SM2)
        p('buffer_load_dword v48, %s, 0 offen sc1 lds' % S4(rSM), tag='SM')
    def bias():
        def f_sync(): p.wait(vm=['SM', 'X']); p('s_barrier')
        r = [f_sync]
        r += [('ds_read_b64 v[%d:%d], v%d offset:%d' % (vG + 2 * m, vG + 2 * m + 1, vLW + 1, 128 * m), 'g') for m in range(4)]
        for i in range(5):
            r += [('ds_read_b64 v[%d:%d], v%d' % (t, t + 1, vCR + 2 * i + 1), 'c'), ('ds_read_b64 v[%d:%d], v%d offset:512' % (t + 2, t + 3, vCR + 2 * i), 'c'),
                  ('ds_read_b64 v[%d:%d], v%d offset:768' % (t + 4, t + 5, vCR + 2 * i), 'c')]
            for h in range(2):
                r += ['v_lshlrev_b32 v%d, 16, v%d' % (t + 6 + 2 * h, vX + 2 * i + h), 'v_and_b32 v%d, 0xffff0000, v%d' % (t + 7 + 2 * h, vX + 2 * i + h)]
            r.append(lambda: p.wait(lg='c'))
            for h in range(2):
                r += ['v_lshlrev_b32 v48, 16, v%d' % (t + 2 + h), 'v_and_b32 v49, 0xffff0000, v%d' % (t + 2 + h),
                      'v_lshlrev_b32 v50, 16, v%d' % (t + 4 + h), 'v_and_b32 v51, 0xffff0000, v%d' % (t + 4 + h)]
                for e in range(2):
                    d = (vCR if h else vX) + 2 * i + e
                    r += ['v_mul_f32 v%d, v%d, v%d' % (48 + e, 48 + e, t + 6 + 2 * h + e), 'v_mul_f32 v%d, v%d, v%d' % (d, t + 1, 50 + e),
                          'v_fmac_f32 v%d, v%d, v%d' % (d, t, 48 + e)]
        r += ['v_add_f32 v%d, v%d, v%d' % (vG + 2 * m, vG + 2 * m, vG + 2 * m) for m in range(4)]
        return r
    def scale():
        r = []
        for m in range(4):
            for n in range(5):
                r += ['v_mul_f32 v%d, v%d, v%d' % (ACCB + 20 * m + 4 * n + z, vG + 2 * m + 1, ACCB + 20 * m + 4 * n + z) for z in range(4)]
        return r
    def comb(k, pk):
        n, m = divmod(k, 5)[::-1] if opt.get('tsplit', 1) else divmod(k, 4)
        a = ACCA + 20 * m + 4 * n; bb = ACCB + 20 * m + 4 * n
        if pk:
            for r in (0, 2): p('v_pk_fma_f32 %s, %s, %s, %s op_sel:[0,0,0] op_sel_hi:[0,1,1]' % (P2(bb + r), P2(vG + 2 * m), P2(a + r), P2(bb + r)))
        else:
            for r in range(4): p('v_fmac_f32 v%d, v%d, v%d' % (bb + r, vG + 2 * m, a + r))
        p('ds_write_b128 v%d, v[%d:%d] offset:%d' % (vLW, bb, bb + 3, m * 16 * 320 + n * 64), tag='w')
    p('s_mov_b32 s66, %d' % SM2)
    fill = []
    NS = 22; LA = 2
    NF0 = opt.get('nf0', 8)
    seq = list(range(NF0)); rest = list(range(NF0, 12)); sr = list(range(12, 22))
    for j in range(len(rest)):
        n = -(-(len(sr) - 3) // (len(rest) - j))
        seq += sr[:n] + [rest[j]]; sr = sr[n:]
    seq += sr
    pos = {r: i for i, r in enumerate(seq)}
    bq = []; nb = 3
    for i in range(NS):
        r = seq[i]; pre = []
        fill += extra.get(i, [])
        if i == sigS: fill += [signal(1, ['hs', 'gst'])]
        if i == geo: fill += geom() + [sm_dma]
        if i == geo + 3: fill += bias()
        if i == pos[12] - LA - 1: pre += [fl_issue(1)]
        if i == pos[12] - LA: pre += [fl_check(1)]
        if i == pos[11] + 1: fill += scale()
        if i == pos[13] + 1:
            fill = [x for n in range(5) for x in c_read(20 + n, AX + 8 * n)] + fill
        if i == pos[13] + 3: pre += [lambda: (p.wait(lg='cr24'), p('s_barrier'))]
        p.wait(vm=['A%d' % r, 'B%d' % r])
        if opt.get('fine') == 3 and i not in (0, 6, 12): st('r%d' % i)
        if i == 0: st('p2first')
        if i == 6: st('p2_6')
        if i == 12: st('p2_12')
        while nb < 12 and pos[nb - 3] < i: bq.append([nb, b_loads(nb)]); nb += 1
        nxt = a_loads(seq[i + LA], i + LA) if i + LA < NS else []
        if bq:
            f, it = bq[0]; left = sum(not isinstance(x, str) for x in it)
            n = -(-left // max(1, pos[f] - LA - i + 1))
            while n:
                x = it.pop(0); nxt.append(x)
                if not isinstance(x, str): n -= 1
            if not it: bq.pop(0)
        nxt += xload.get(i, [])
        acc = ACCB if r < 12 else ACCA
        first = r in (0, 12)
        bh = AH + 16 * (i % 3)
        k = 0
        TS = opt.get('tsplit', 1)
        for n, m in ([(n, m) for m in range(4) for n in range(5)] if (i == NS - 1 and TS) else [(n, m) for n in range(5) for m in range(4)]):
            if True:
                a = acc + 20 * m + 4 * n
                bk, bw = b_reg(r, n)
                p('v_mfma_f32_16x16x32_bf16 v[%d:%d], %s[%d:%d], a[%d:%d], %s' % (a, a + 3, bk, bw, bw + 3, bh + 4 * m, bh + 4 * m + 3,
                                                                              '0' if first else 'v[%d:%d]' % (a, a + 3)))
                k += 1
                if k == 1:
                    for x in pre: put(x)
                if nxt and (k % 2 == 1 or sum(not isinstance(x, str) for x in nxt) > (21 - k) // 2):
                    while isinstance(nxt[0], str): put(nxt.pop(0))
                    put(nxt.pop(0))
                for _ in range(opt.get('fill2', 3) if i < 12 else 2):
                    if fill: put(fill.pop(0))
                if i == NS - 1 and 3 < k < (14 if TS else 99): comb(k - 4, False)
        assert not nxt and not (i == NS - 2 and fill)
        p.check_depth()
    assert not bq and nb == 12
    assert not fill
    st('mainend')
    R = ACCA
    def rd(i):
        for w in range(4):
            p('ds_read_b128 v[%d:%d], v%d offset:%d' % (R + 16 * i + 4 * w, R + 16 * i + 4 * w + 3, vLR + i, w * 64 * 320), tag='r%d' % i)
    def fin(i):
        p.wait(lg='r%d' % i)
        for r in (0, 2):
            p('v_pk_add_f32 %s, %s, %s' % (P2(R + 16 * i + r), P2(R + 16 * i + r), P2(R + 16 * i + 4 + r)))
            p('v_pk_add_f32 %s, %s, %s' % (P2(R + 16 * i + 8 + r), P2(R + 16 * i + 8 + r), P2(R + 16 * i + 12 + r)))
        bb = {0: vX + 2 * i, 2: vCR + 2 * i}
        for r in (0, 2): p('v_pk_add_f32 %s, %s, %s' % (P2(bb[r]), P2(bb[r]), P2(R + 16 * i + r)))
        for r in (0, 2): p('v_pk_add_f32 %s, %s, %s' % (P2(R + 16 * i + r), P2(bb[r]), P2(R + 16 * i + 8 + r)))
        p('buffer_store_dwordx4 v[%d:%d], v%d, %s, 0 offen%s' % (R + 16 * i, R + 16 * i + 3, vOut + i, S4(rO), opt.get('out_sc', SC)), tag='o')
    if TS:
        p.wait(lg='all'); p('s_barrier')
        rd(0); rd(1)
        for k in range(10, 15): comb(k, True)
        fin(0)
        for k in range(15, 20): comb(k, True)
        fin(1)
        p.wait(lg='all'); p('s_barrier')
        st('red')
        for i in range(2, 5): rd(i)
        for i in range(2, 5): fin(i)
    else:
        for k in range(17, 20): comb(k, True)
        p.wait(lg='all'); p('s_barrier')
        st('red')
        for i in range(5): rd(i)
        for i in range(5): fin(i)
    st('stored')
    if opt.get('echo'):
        p.wait(vm='all'); st('drained'); p.wait(lg='all', force=True)
        l = p.newlabel('L_echo'); ins = 's_memtime' if opt['echo'] == 'cyc' else 's_memrealtime'
        if opt['echo'] == 'cyc': p('s_mov_b32 s1, 20000')
        else: p('s_sub_u32 s1, s%d, s0' % sST)
        p(ins + ' s[4:5]'); p.wait(lg='all', force=True)
        p.label(l)
        p(ins + ' s[6:7]'); p.wait(lg='all', force=True)
        p('s_sub_u32 s6, s6, s4'); p('s_cmp_lt_u32 s6, s1'); p('s_cbranch_scc1 ' + l)
    if opt.get('stamps'):
        p.wait(vm='all'); st('drained'); st('rt1')
    st.dump(sWS, 60, 48)
```

```python
import re

REG_RE = re.compile(r'^(-|neg\()?(\|)?(abs\()?([vas])(\d+|\[(\d+):(\d+)\])\)?\|?\)?$')

def regs_of(op):
    op = op.strip()
    if op in ('vcc', 'exec', 'm0', 'scc'):
        return [op]
    if op in ('vcc_lo', 'vcc_hi'): return ['vcc']
    if op in ('exec_lo', 'exec_hi'): return ['exec']
    m = REG_RE.match(op)
    if not m:
        return []
    k = m.group(4)
    if m.group(6) is not None:
        return [k + str(i) for i in range(int(m.group(6)), int(m.group(7)) + 1)]
    return [k + m.group(5)]

TRANS = ('v_exp_f32', 'v_log_f32', 'v_rcp_f32', 'v_rsq_f32', 'v_sqrt_f32', 'v_sin_f32', 'v_cos_f32', 'v_rcp_iflag_f32')

class Ins:
    __slots__ = ('text', 'mn', 'kind', 'rd', 'wr', 'srcC', 'srcAB', 'passes', 'dpp', 'nop', 'storedata', 'lds_dma', 'opsel')
    def __init__(self, text):
        self.text = text
        t = text.split(';')[0].split('//')[0].strip()
        self.rd, self.wr, self.srcC, self.srcAB = set(), set(), [], set()
        self.passes = 0; self.dpp = False; self.nop = 1; self.storedata = set(); self.lds_dma = False; self.opsel = False
        if t.endswith(':') or t.startswith('.') or not t:
            self.mn = ''; self.kind = 'label'; self.nop = 0; return
        parts = t.split(None, 1)
        mn = parts[0]; self.mn = mn
        rest = parts[1] if len(parts) > 1 else ''
        ops = []; depth = 0; cur = ''
        for ch in rest:
            if ch in '[(': depth += 1
            if ch in '])': depth -= 1
            if ch == ',' and depth == 0:
                ops.append(cur.strip()); cur = ''
            else: cur += ch
        if cur.strip(): ops.append(cur.strip())
        mods = ''
        if ops:
            last = ops[-1].split()
            ops[-1] = last[0]; mods = ' '.join(last[1:])
        R = lambda o: regs_of(o)
        base = re.sub(r'_(e32|e64|dpp|sdwa)$', '', mn)
        if mn.startswith('v_mfma'):
            self.kind = 'mfma'
            self.wr = set(R(ops[0])); self.srcAB = set(R(ops[1]) + R(ops[2])); self.srcC = R(ops[3])
            self.rd = self.srcAB | set(self.srcC) | {'exec'}
            self.passes = 8 if '32x32x16' in mn else 4
        elif mn.startswith('v_'):
            self.kind = 'trans' if base in TRANS else 'valu'
            self.dpp = ('quad_perm' in mods or 'row_' in mods or 'wave_' in mods or mn.endswith('_dpp'))
            self.opsel = ('op_sel:' in mods and not mn.startswith('v_pk_')) or 'dst_sel' in mods
            if base.startswith('v_cmp'):
                self.wr = set(R(ops[0])); src = ops[1:]
                if base.startswith('v_cmpx'): self.wr.add('exec')
            elif base.startswith('v_permlane') and 'swap' in base:
                self.wr = set(R(ops[0]) + R(ops[1])); src = ops
            elif base in ('v_add_co_u32', 'v_sub_co_u32', 'v_addc_co_u32', 'v_subb_co_u32'):
                self.wr = set(R(ops[0]) + R(ops[1])); src = ops[2:]
            else:
                self.wr = set(R(ops[0])); src = ops[1:]
                if base.startswith('v_fmac') or base.startswith('v_dot2c') or base == 'v_writelane_b32' or self.dpp:
                    src = ops
                if base == 'v_cndmask_b32' and len(ops) == 3: self.rd.add('vcc')
            for o in src: self.rd |= set(R(o))
            self.rd.add('exec')
        elif mn.startswith('ds_'):
            self.kind = 'ds'
            if mn.startswith('ds_read') or mn.startswith('ds_bpermute') or mn.startswith('ds_swizzle'):
                self.wr = set(R(ops[0])); src = ops[1:]
            else: src = ops
            for o in src: self.rd |= set(R(o))
        elif mn.startswith('buffer_') or mn.startswith('global_'):
            self.kind = 'vmem'
            ml = mods.split()
            if mn in ('buffer_wbl2', 'buffer_inv'):
                pass
            elif 'load' in mn and ('lds' in ml or '_lds_' in mn):
                self.lds_dma = True
                for o in ops: self.rd |= set(R(o))
                self.rd.add('m0')
            elif 'load' in mn:
                self.wr = set(R(ops[0]))
                for o in ops[1:]: self.rd |= set(R(o))
            else:
                for o in ops: self.rd |= set(R(o))
                d = ops[0] if mn.startswith('buffer_') else ops[1]
                if 'x3' in mn or 'x4' in mn: self.storedata = set(R(d))
                if 'atomic' in mn and 'sc0' in ml and mn.startswith('buffer_'): self.wr = set(R(ops[0]))
                if 'atomic' in mn and 'sc0' in ml and mn.startswith('global_'):
                    self.wr = set(R(ops[0]))
        elif mn.startswith('s_'):
            self.kind = 'salu'
            if mn == 's_nop': self.nop = int(ops[0], 0) + 1
            elif mn.startswith('s_cmp') or mn in ('s_waitcnt', 's_barrier', 's_endpgm', 's_branch', 's_setprio', 's_sleep') or mn.startswith('s_cbranch'):
                for o in ops: self.rd |= set(R(o))
            else:
                self.wr = set(R(ops[0]))
                for o in ops[1:]: self.rd |= set(R(o))
                if 'saveexec' in mn: self.wr.add('exec'); self.rd.add('exec')
        else:
            raise ValueError('unknown instr: ' + text)

def need(p, c):
    n = 0
    pv = p.kind in ('valu', 'trans')
    cv = c.kind in ('valu', 'trans')
    if pv:
        vw = {r for r in p.wr if r[0] in 'va' and r not in ('vcc',)}
        sw = {r for r in p.wr if r[0] == 's' or r == 'vcc'}
        if c.kind == 'mfma' and vw & c.rd: n = max(n, 2)
        if c.kind == 'mfma' and 'exec' in p.wr: n = max(n, 4)
        if p.kind == 'trans' and cv and c.kind != 'trans' and vw & c.rd: n = max(n, 1)
        if p.kind == 'trans' and c.kind == 'trans' and vw & c.rd: n = max(n, 1)
        if p.opsel and cv and vw & (c.rd | c.wr): n = max(n, 1)
        if cv and c.dpp and vw & c.rd: n = max(n, 2)
        if cv and c.dpp and 'exec' in p.wr: n = max(n, 5)
        if c.mn.startswith('v_permlane') and vw & c.rd: n = max(n, 2)
        if c.mn.startswith('v_permlane') and 'exec' in p.wr: n = max(n, 4)
        if c.mn.startswith('v_readlane') or c.mn.startswith('v_readfirstlane'):
            if vw & c.rd: n = max(n, 1)
            if 'exec' in p.wr: n = max(n, 4)
            if sw & c.rd: n = max(n, 4)
        if cv and sw & c.rd: n = max(n, 2)
        if c.kind == 'vmem' and sw & c.rd: n = max(n, 5)
        if c.kind == 'salu' and sw & c.rd: n = max(n, 1)
    if p.kind == 'salu':
        if 'm0' in p.wr and c.lds_dma: n = max(n, 1)
    if p.kind == 'mfma':
        big = {4: 8, 8: 12}[p.passes]
        if c.kind == 'mfma':
            if p.wr & c.srcAB: n = max(n, big)
            if p.wr & set(c.srcC):
                if not (set(c.srcC) == p.wr and c.passes == p.passes): n = max(n, p.passes + 2)
            elif p.wr & c.wr: n = max(n, big)
        elif c.kind in ('valu', 'trans', 'ds', 'vmem'):
            if p.wr & (c.rd | c.wr): n = max(n, big)
        if cv and set(p.srcC) & c.wr: n = max(n, {4: 3, 8: 7}[p.passes])
    if p.kind == 'vmem' and p.storedata:
        if cv and p.storedata & c.wr: n = max(n, 2)
        elif p.storedata & c.wr: n = max(n, 1)
    return n

class Prog:
    nlabel = 0
    def __init__(self):
        self.ins = []
        self.vm = []
        self.lg = []
        self.smem = False
        self.seen = set()
        self.nvm = 0
    def total_vm(self): return self.nvm
    def raw(self, text):
        self.ins.append(Ins(text))
    def __call__(self, text, tag=None, optional=False):
        for line in text.split('\n'):
            line = line.strip()
            if not line or line.startswith(';'): continue
            i = Ins(line)
            self.ins.append(i)
            if i.kind == 'vmem' and not optional: self.vm.append(tag); self.nvm += 1
            if i.kind == 'ds' and not optional: self.lg.append(tag)
            if tag: self.seen.add(tag)
            if i.mn.startswith('s_load') or i.mn.startswith('s_memtime') or i.mn.startswith('s_memrealtime'): self.smem = True
    def label(self, name): self.raw(name + ':')
    def newlabel(self, base):
        Prog.nlabel += 1
        return '%s_%d' % (base, Prog.nlabel)
    def _cnt(self, q, tags):
        if tags is None: return None
        if tags == 'all': return 0
        if not isinstance(tags, (list, tuple, set)): tags = [tags]
        for t in tags: assert t in self.seen or t[0] == 'B', 'wait on a tag never issued: ' + t
        last = -1
        for k, t in enumerate(q):
            if t in tags: last = k
        if last < 0: return None
        return len(q) - 1 - last
    def wait(self, vm=None, lg=None, force=False):
        a = self._cnt(self.vm, vm); b = self._cnt(self.lg, lg)
        if lg is not None and self.smem: b = 0
        if vm == 'all' and not self.vm and not force: a = None
        if lg == 'all' and not self.lg and not self.smem and not force: b = None
        s = []
        if a is not None:
            assert a <= 63, a
            s.append('vmcnt(%d)' % a); self.vm = self.vm[len(self.vm) - a:] if a else []
        if b is not None:
            b = min(b, 15)
            s.append('lgkmcnt(%d)' % b); self.lg = self.lg[len(self.lg) - b:] if b else []
            if b == 0: self.smem = False
        if s: self.raw('s_waitcnt ' + ' '.join(s))
    def check_depth(self):
        assert len(self.vm) <= 63, len(self.vm)
    def finalize(self, verbose=False):
        out = []; added = 0
        fwd = {}
        def scan(c, start, dist, seen):
            req = 0; k = start
            while k >= 0 and dist < 20:
                p = out[k]
                if p.kind == 'label':
                    for j in fwd.get(p.text.rstrip(':'), []):
                        if (j, dist) not in seen:
                            seen.add((j, dist)); req = max(req, scan(c, j, dist, seen))
                elif p.mn == 's_branch' and k != start: break
                else:
                    req = max(req, need(p, c) - dist); dist += p.nop
                k -= 1
            return req
        for c in self.ins:
            if c.kind == 'label':
                out.append(c); continue
            st = len(out) - 1
            req = 0
            k = st; labels = []
            while k >= 0 and out[k].kind == 'label': labels.append(out[k]); k -= 1
            if k >= 0 and out[k].mn == 's_branch':
                for l in labels:
                    for j in fwd.get(l.text.rstrip(':'), []): req = max(req, scan(c, j, 0, set()))
            else: req = scan(c, st, 0, set())
            if req > 0:
                out.append(Ins('s_nop %d' % (req - 1))); added += 1
                if verbose: print('  pad %d before %s' % (req, c.text))
            out.append(c)
            if c.mn == 's_branch' or c.mn.startswith('s_cbranch'):
                fwd.setdefault(c.text.split()[1], []).append(len(out) - 1)
        pos = {i.text.rstrip(':'): k for k, i in enumerate(out) if i.kind == 'label'}
        for k, br in enumerate(out):
            if (br.mn == 's_branch' or br.mn.startswith('s_cbranch')) and pos.get(br.text.split()[1], 1 << 30) < k:
                d0 = 0
                for c in out[pos[br.text.split()[1]]:k]:
                    if c.kind == 'label': continue
                    if d0 >= 20: break
                    dist = d0
                    for p in reversed(out[:k + 1]):
                        if dist >= 20: break
                        if p.kind == 'label': continue
                        assert need(p, c) <= dist, ('loop-carried hazard', p.text, c.text)
                        dist += p.nop
                    d0 += c.nop
        self.ins = out
        return added
    def text(self):
        return '\n'.join((i.text if i.kind == 'label' else '    ' + i.text) for i in self.ins) + '\n'
```

```python
from emit import Prog
from common import *

LDS_BYTES = 163840
SPIN_MAX = 100000
SLOT = 32768
XREG = 4 * SLOT
SMO = XREG + 28672 + 2048
TRO = 2 * SLOT + 4096
EXO = 2 * SLOT + 6144
SM2 = 2 * SLOT + 2 * 8192 + 6144
PB = 0
CPL = [3 * SLOT, 4 * SLOT, 0, SLOT]
vRX3, vW3, vGA3 = 72, 68, 78
LOG2E = '0x3fb8aa3b'
INV2PI = '0.15915494'
SC = ' sc1'

sX, sLRE, sLIM, sBRE, sBIM, sCRE, sCIM, sLDT = 4, 6, 8, 10, 12, 14, 16, 18
sDSK, sW1, sB1, sW2, sB2, sGATE, sOUT, sDBG, sWS = 20, 24, 26, 28, 30, 32, 34, 36, 38
rX, rP0, rP1, rWS = 44, 48, 52, 56
rE, rHID, rW2P, rSJ, rS2, rC = 44, 48, 8, 8, 92, 92
sSB = 24
sM = 12
SIG = 70
sNON, sHF, sRB, sCG, sG, sQ, sWV, sRT, sCT, sSEL, sFL = 80, 81, 82, 83, 84, 85, 86, 87, 88, 89, 90
sSEL5 = sSEL
sBIM2 = 26
sSJO2 = 26
sSJO, sSJD, sSJK = 91, 96, 22
sST = 100
vLANE, vWAVE, vHH = 1, 2, 3
vDX, vDS, vD2 = 4, 8, 10
vRX, vRS, vRF = 12, 20, 28
vSTF, vL16, vEXA, vTW, vEO = 32, 33, 34, 36, 40
vDJ = 62
vB, vFP, vA = 41, 43, 44
vZ, vPOLL = 45, 46
vDC, vRC, vWP = 4, 6, 92
vT = 48
vN = 79
vGA = 80
vGW = 52
vST = 95
SAC = [176, 96]
TAB = [208, 128]
CON = [240, 160]
FAC = 96
AX = 0
AW = 160
AW2 = 208
AH = 160
PARTS = [(0, 12)]

def order(n, c, delta):
    return sorted(range(n), key=lambda i: (i - (delta if i % 4 == c else 0), 0 if i % 4 == c else 1))
def P2(r): return 'v[%d:%d]' % (r, r + 1)
def S4(r): return 's[%d:%d]' % (r, r + 3)
def S2(r): return 's[%d:%d]' % (r, r + 1)
def cmul(dr, di, ar, ai, br, bi):
    return ['v_mul_f32 v%d, v%d, v%d' % (dr, ar, br), 'v_mul_f32 v%d, v%d, v%d' % (di, ar, bi),
            'v_fma_f32 v%d, -v%d, v%d, v%d' % (dr, ai, bi, dr), 'v_fmac_f32 v%d, v%d, v%d' % (di, ai, br)]
def cm(d, a, b): return cmul(d, d + 1, a, a + 1, b, b + 1)
def cfma(dr, di, a, br, bi):
    return ['v_fmac_f32 v%d, v%d, v%d' % (dr, a, br), 'v_fmac_f32 v%d, v%d, v%d' % (di, a, bi),
            'v_fma_f32 v%d, -v%d, v%d, v%d' % (dr, a + 1, bi, dr), 'v_fmac_f32 v%d, v%d, v%d' % (di, a + 1, br)]
def pcfma(d, a, b):
    return ['v_pk_fma_f32 %s, %s, %s, %s op_sel:[0,0,0] op_sel_hi:[0,1,1]' % (P2(d), P2(a), P2(b), P2(d)),
            'v_pk_fma_f32 %s, %s, %s, %s op_sel:[1,1,0] op_sel_hi:[1,0,1] neg_lo:[1,0,0]' % (P2(d), P2(a), P2(b), P2(d))]
def pcmul(d, a, b):
    return ['v_pk_mul_f32 %s, %s, %s op_sel:[0,0] op_sel_hi:[0,1]' % (P2(d), P2(a), P2(b)),
            'v_pk_fma_f32 %s, %s, %s, %s op_sel:[1,1,0] op_sel_hi:[1,0,1] neg_lo:[1,0,0]' % (P2(d), P2(a), P2(b), P2(d))]
def csq(d, a):
    return ['v_mul_f32 v%d, v%d, v%d' % (d, a, a), 'v_add_f32 v%d, v%d, v%d' % (d + 1, a, a),
            'v_fma_f32 v%d, -v%d, v%d, v%d' % (d, a + 1, a + 1, d), 'v_mul_f32 v%d, v%d, v%d' % (d + 1, d + 1, a + 1)]
def interleave(*ls):
    out = []; ls = [list(l) for l in ls]
    while any(ls):
        for l in ls:
            if l: out.append(l.pop(0))
    return out
def sprinkle(main, extra, every):
    out = []; extra = list(extra)
    for i, x in enumerate(main):
        out.append(x)
        if i % every == every - 1 and extra:
            while isinstance(extra[0], str): out.append(extra.pop(0))
            out.append(extra.pop(0))
    return out + extra
def unpack(dst, src, n):
    r = []
    for k in range(n):
        r.append('v_lshlrev_b32 v%d, 16, v%d' % (dst + 2 * k, src + k))
        r.append('v_and_b32 v%d, 0xffff0000, v%d' % (dst + 2 * k + 1, src + k))
    return r

def dma_stage(s):
    sl = (s % 5) * SLOT; tg = 'st%d' % s; so = SIG + s
    r = ['s_add_u32 m0, s43, %d' % sl, 's_mul_i32 s61, s%d, s63' % so]
    r += [('buffer_load_dwordx4 v%d, %s, s%d offen offset:%d lds' % (vDX + i, S4(rX), so, 1024 * i), tg) for i in range(4)]
    r += ['s_add_u32 m0, s43, %d' % (sl + 4096)]
    r += [('buffer_load_dwordx4 v%d, %s, s61 offen offset:%d lds' % (vD2 + i, S4(rP0), 1024 * i), tg) for i in range(2)]
    r += [('buffer_load_dwordx4 v%d, %s, s61 offen offset:%d lds' % (vD2 + i, S4(rP1), 1024 * i + 2048), tg) for i in range(2)]
    return r

def gen(name, opt):
    p = Prog()
    st = Stamps(p, sST, vST, opt.get('stamps'))
    st.echo = opt.get('echo')
    def put(x):
        if callable(x): x()
        elif isinstance(x, tuple): p(x[0], tag=x[1])
        else: p(x)
    p.put = put
    p.label(name)
    p('s_cmp_ge_u32 s2, 256')
    p('s_cbranch_scc1 L_end')
    p('s_load_dwordx16 s[4:19], s[0:1], 0')
    p('s_load_dwordx8 s[20:27], s[0:1], 64')
    p('s_load_dwordx8 s[28:35], s[0:1], 96')
    p('s_load_dwordx4 s[36:39], s[0:1], 128')
    p('s_memrealtime s[64:65]')
    if opt.get('stamps'): p('s_memrealtime s[66:67]'); p('%s s[68:69]' % ('s_memrealtime' if opt['stamps'] == 2 else 's_memtime'))
    p('s_lshr_b32 s3, s2, 3')
    code_prefetch(p, 'L_end', 44, 40, 3)
    p('v_and_b32 v%d, 63, v0' % vLANE)
    p('v_lshrrev_b32 v%d, 6, v0' % vWAVE)
    p('s_and_b32 s%d, s2, 7' % sHF)
    p('s_lshr_b32 s40, s%d, 1' % sHF)
    p('s_lshl_b32 s%d, s40, 2' % sRB)
    p('s_and_b32 s41, s3, 3')
    p('v_readfirstlane_b32 s%d, v%d' % (sWV, vWAVE))
    p('s_add_u32 s%d, s%d, s41' % (sRB, sRB))
    p('s_and_b32 s%d, s%d, 1' % (sHF, sHF))
    p('s_lshr_b32 s%d, s3, 2' % sCG)
    p('s_add_u32 s41, s41, s%d' % sCG); p('s_and_b32 s41, s41, 3'); p('s_lshl_b32 s41, s41, 3'); p('s_or_b32 s41, s41, 0x80000')
    p('s_mul_i32 s40, s40, 5'); p('s_add_u32 s40, s40, 1'); p('s_lshr_b32 s40, s40, 1')
    p('s_mul_i32 s60, s%d, 5' % sHF); p('s_add_u32 s40, s40, s60')
    if not opt.get('rot', 1): p('s_mov_b32 s40, 0')
    p('s_sub_u32 s60, s40, 10'); p('s_cmp_ge_u32 s40, 10'); p('s_cselect_b32 s40, s60, s40')
    tabs = [order(10, c, opt.get('d1', 3)) for c in range(4)]
    if opt.get('hyb'): tabs = [[0] + [1 + x for x in order(9, c, opt.get('d1', 3))] for c in range(4)]
    def sigma(i):
        lit = sum(tabs[c][i] << (8 * c) for c in range(4)); s = SIG + i
        return ['s_bfe_u32 s%d, 0x%x, s41' % (s, lit), 's_add_u32 s%d, s%d, s40' % (s, s), 's_sub_u32 s60, s%d, 10' % s,
                's_min_u32 s%d, s60, s%d' % (s, s), 's_lshl_b32 s%d, s%d, 7' % (s, s)]
    for x in sigma(0): p(x)
    p('s_mul_i32 s%d, s%d, 10' % (sG, sHF))
    p('s_lshl_b32 s%d, s%d, 1' % (sQ, sCG))
    p('s_add_u32 s60, s%d, 2' % sCG)
    p('s_cmp_lt_u32 s%d, 2' % sCG)
    p('s_cselect_b32 s60, s%d, s60' % sQ)
    p('s_cselect_b32 s63, 1, 1536')
    p('s_add_u32 s%d, s%d, s60' % (sG, sG))
    p('s_mul_i32 s60, s%d, 12' % sHF)
    p('s_add_u32 s%d, s%d, s60' % (sQ, sQ))
    p('s_sub_u32 s%d, s%d, 4' % (sQ, sQ))
    t = vT
    p('v_lshrrev_b32 v%d, 3, v%d' % (t, vLANE))
    p('v_and_b32 v%d, 7, v%d' % (t + 1, vLANE))
    p('v_lshrrev_b32 v%d, 4, v%d' % (t + 2, vLANE))
    p('v_and_b32 v%d, 3, v%d' % (t + 3, t))
    p('v_lshrrev_b32 v%d, 5, v%d' % (vHH, vLANE))
    p('v_lshl_add_u32 v%d, v%d, 4, v%d' % (t + 3, vHH, t + 3))
    p('v_lshl_add_u32 v%d, v%d, 5, v%d' % (t + 3, vWAVE, t + 3))
    p('v_mul_u32_u24 v%d, 1280, v%d' % (t + 3, t + 3))
    p('v_xor_b32 v%d, v%d, v%d' % (t + 5, t + 1, t + 2))
    p('v_xor_b32 v%d, 4, v%d' % (t + 6, t + 5))
    for i in range(4):
        p('v_lshl_add_u32 v%d, v%d, 4, v%d' % (vDX + i, t + 5 + (i & 1), t + 3))
        if i: p('v_add_u32 v%d, %d, v%d' % (vDX + i, 4096 * i, vDX + i))
    p('v_and_b32 v%d, 1, v%d' % (t + 7, vWAVE))
    p('v_lshl_add_u32 v%d, v%d, 4, v%d' % (t + 7, t + 7, t))
    p('v_mul_u32_u24 v%d, 1280, v%d' % (t + 7, t + 7))
    p('v_lshl_add_u32 v%d, v%d, 4, v%d' % (vDS, t + 5, t + 7))
    p('v_lshl_add_u32 v%d, v%d, 4, v%d' % (vDS + 1, t + 6, t + 7))
    p('v_add_u32 v%d, %d, v%d' % (vDS + 1, 8 * 1280 - 1024, vDS + 1))
    p('v_lshl_add_u32 v%d, v%d, 4, v%d' % (t + 7, vWAVE, t))
    p('v_mul_u32_u24 v%d, 3072, v%d' % (t + 7, t + 7))
    p('v_and_b32 v%d, 1, v%d' % (t + 8, t + 2))
    p('v_lshlrev_b32 v%d, 2, v%d' % (t + 8, t + 8))
    p('v_xor_b32 v%d, v%d, v%d' % (t + 8, t + 8, t + 1))
    p('v_lshl_add_u32 v%d, v%d, 4, v%d' % (vD2, t + 8, t + 7))
    p('s_cmp_lt_u32 s%d, 2' % sCG)
    p('s_cselect_b64 vcc, -1, 0')
    p('v_add_u32 v%d, %d, v%d' % (vD2 + 1, 8 * 3072 - 1024, vD2))
    p('v_cndmask_b32 v%d, v%d, v%d, vcc' % (vD2, vD2, vDS))
    p('v_cndmask_b32 v%d, v%d, v%d, vcc' % (vD2 + 1, vD2 + 1, vDS + 1))
    p('s_lshl_b32 s42, s%d, 7' % sQ); p('s_max_i32 s42, s42, 0')
    p('s_lshl_b32 s43, s%d, 13' % sWV)
    a = 58
    p('v_lshl_add_u32 v%d, v%d, 5, v%d' % (a, vWAVE, vLANE))
    DW = opt.get('dwarm', 1)
    p('v_min_u32 v%d, %d, v%d' % (a, 127 if DW else 119, a))
    p('v_lshlrev_b32 v%d, 4, v%d' % (a + 1, a))
    p('s_lshl_b32 s60, s%d, 6' % sG)
    p('v_cmp_le_u32 s[92:93], 8, v%d' % a); p('v_cmp_le_u32 s[94:95], 16, v%d' % a); p('v_cmp_le_u32 s[96:97], 24, v%d' % a); p('v_cmp_le_u32 s[98:99], 40, v%d' % a)
    p('v_and_b32 v%d, 0x70, v%d' % (a + 2, a + 1)); p('v_add_u32 v%d, s60, v%d' % (a + 2, a + 2)); p('v_min_u32 v%d, 1264, v%d' % (a + 2, a + 2))
    p('v_subrev_u32 v%d, %d, v%d' % (a + 3, 16 * 24, a + 1)); p('v_add_u32 v%d, s42, v%d' % (a + 3, a + 3))
    p('v_cndmask_b32 v%d, v%d, v%d, s[96:97]' % (a + 2, a + 2, a + 3))
    p('v_subrev_u32 v%d, %d, v%d' % (a + 3, 16 * 40, a + 1))
    p('v_cndmask_b32 v%d, v%d, v%d, s[98:99]' % (a + 2, a + 2, a + 3))
    if DW:
        p('s_lshl_b32 s60, s%d, 2' % sHF); p('s_and_b32 s61, s3, 3'); p('s_add_u32 s60, s60, s61'); p('s_mul_i32 s60, s60, 160')
        p('v_cmp_le_u32 s[90:91], 0x78, v%d' % a) if False else None
        p('v_and_b32 v%d, 3, v%d' % (a + 3, a)); p('v_mul_u32_u24 v%d, 48, v%d' % (a + 3, a + 3)); p('v_add_u32 v%d, s60, v%d' % (a + 3, a + 3))
        p('v_cmp_le_u32 vcc, 0x78, v%d' % a); p('s_mov_b64 s[70:71], vcc') if False else None
        p('v_cndmask_b32 v%d, v%d, v%d, vcc' % (a + 2, a + 2, a + 3)); p('s_mov_b64 s[76:77], vcc')
        p('v_cmp_le_u32 vcc, 0x7c, v%d' % a); p('s_nop 0'); p('s_mov_b64 s[78:79], vcc')
    p('v_mov_b32 v%d, 0' % (a + 3))
    p('s_mul_i32 s60, s%d, %d' % (sRB, 128 * 1280))
    p('s_mul_i32 s61, s%d, %d' % (sG, 32 * 1280))
    p.wait(lg='all')
    if opt.get('echo'): p('s_mov_b32 s0, s64')
    if opt.get('stamps'):
        p('v_writelane_b32 v%d, s66, 0' % vST); p('v_writelane_b32 v%d, s68, 1' % vST); st.names += ['rt0', 'start']; st.n = 2
    st('karg')
    if opt.get('wsoff'): p('s_add_u32 s%d, s%d, %d' % (sWS, sWS, opt['wsoff'] << 20)); p('s_addc_u32 s%d, s%d, 0' % (sWS + 1, sWS + 1))
    srd(p, rX, sX, 128 * 1280, 's60')
    p('s_mov_b32 s65, s61')
    d0 = dma_stage(0)
    XF = opt.get('xfirst', 0)
    def small():
        p('s_lshl_b32 s60, s%d, 9' % sWV); p('s_add_u32 m0, s60, %d' % SMO)
        p('v_mov_b32 v%d, s%d' % (a + 4, sLRE)); p('v_mov_b32 v%d, s%d' % (a + 5, sLRE + 1))
        for m, sb in ((92, sLIM), (94, sLDT), (96, sB1), (98, sGATE)) + (((76, sDSK), (78, sB2)) if DW else ()):
            p('v_mov_b32 v%d, s%d' % (a + 6, sb)); p('v_mov_b32 v%d, s%d' % (a + 7, sb + 1))
            p('v_cndmask_b32 v%d, v%d, v%d, %s' % (a + 4, a + 4, a + 6, S2(m))); p('v_cndmask_b32 v%d, v%d, v%d, %s' % (a + 5, a + 5, a + 7, S2(m)))
        p('v_lshl_add_u64 v[%d:%d], v[%d:%d], 0, v[%d:%d]' % (a + 4, a + 5, a + 2, a + 3, a + 4, a + 5))
        p('s_mov_b32 exec_hi, 0')
        p('global_load_lds_dwordx4 v[%d:%d], off' % (a + 4, a + 5), tag='sm')
        p('s_mov_b64 exec, -1')
    if not XF: small()
    for x in d0[:6]: put(x)
    if XF: small()
    p('s_cmp_lt_u32 s%d, 2' % sWV)
    p('s_cselect_b32 s66, s%d, s%d' % (sBRE, sBIM)); p('s_cselect_b32 s67, s%d, s%d' % (sBRE + 1, sBIM + 1))
    p('s_add_u32 s66, s66, s65'); p('s_addc_u32 s67, s67, 0')
    p('s_add_u32 s%d, s%d, s42' % (rP0, sW1)); p('s_addc_u32 s%d, s%d, 0' % (rP0 + 1, sW1 + 1))
    p('s_sub_u32 s%d, %d, s42' % (rP0 + 2, 640 * 3072))
    p('s_cmp_lt_u32 s%d, 2' % sCG)
    p('s_cselect_b32 s%d, s66, s%d' % (rP0, rP0)); p('s_cselect_b32 s%d, s67, s%d' % (rP0 + 1, rP0 + 1))
    p('s_cselect_b32 s%d, %d, s%d' % (rP0 + 2, 64 * 1280, rP0 + 2)); p('s_mov_b32 s%d, 0x20000' % (rP0 + 3))
    p('s_mov_b32 s60, %d' % (128 - 2048)); p('s_cselect_b32 s60, %d, s60' % (32 * 1280 - 2048)); p('s_ashr_i32 s65, s60, 31')
    p('s_add_u32 s%d, s%d, s60' % (rP1, rP0)); p('s_addc_u32 s%d, s%d, s65' % (rP1 + 1, rP0 + 1)); p('s_sub_u32 s%d, s%d, s60' % (rP1 + 2, rP0 + 2))
    put(d0[6])
    p('s_mov_b32 s%d, 0x20000' % (rP1 + 3))
    for x in d0[7:]: put(x)
    st('dma0')
    if opt.get('tlb', 0):
        p('s_lshl_b32 s60, s3, 2'); p('s_add_u32 s60, s60, s%d' % sWV); p('s_and_b32 s60, s60, 31')
        p('s_mov_b64 s[92:93], %s' % S2(sWS)); p('s_mov_b32 s65, s60')
        for lim, sb in ((16, sOUT), (21, sCRE), (22, sCIM), (23, sW2), (25, sX), (28, sW1), (30, sBRE), (31, sBIM)):
            p('s_sub_u32 s94, s60, %d' % lim); p('s_cmp_ge_u32 s60, %d' % lim)
            p('s_cselect_b64 s[92:93], %s, s[92:93]' % S2(sb)); p('s_cselect_b32 s65, s94, s65')
        p('s_lshl_b32 s65, s65, 20')
        p('s_load_dword s23, s[92:93], s65')
    p('s_mov_b64 %s, s[66:67]' % S2(sSB))
    srd(p, rWS, sWS, WS_USED)
    l = p.newlabel('L_nn')
    p('s_or_b32 s64, s64, 1')
    p('v_mov_b32 v%d, 0' % vZ)
    p('s_or_b32 s60, s2, s%d' % sWV)
    p('s_cmp_lg_u32 s60, 0')
    p('s_cbranch_scc1 ' + l)
    p('v_mov_b32 v52, s64')
    p('s_mov_b64 exec, 1')
    p('global_store_dword v%d, v52, %s sc1' % (vZ, S2(sDBG)), optional=True)
    p('s_mov_b64 exec, -1')
    p.label(l)
    for i in range(1, 10):
        for x in sigma(i): p(x)
    for x in addr_setup() + late_setup(opt.get('cls', 1), 1): put(x)
    p('s_cmp_lt_u32 s%d, 2' % sCG)
    p('s_cbranch_scc1 L_typeA')
    save = (list(p.vm), list(p.lg), p.smem, st.n, st.pending); seen0 = set(p.seen)
    body(p, 'B', opt, st)
    names1 = list(st.names)
    p('s_branch L_end')
    p.label('L_typeA')
    p.vm, p.lg, p.smem, st.n, st.pending = list(save[0]), list(save[1]), save[2], save[3], save[4]
    st.names = st.names[:st.n]; p.seen = seen0
    body(p, 'A', opt, st)
    p.namesA = list(st.names); st.names = names1
    p.label('L_end')
    p('s_endpgm')
    p.finalize(opt.get('verbose'))
    return p, dict(A=p.namesA, B=st.names)

def addr_setup():
    n_, h_ = vN, vHH
    r = ['v_and_b32 v%d, 31, v%d' % (n_, vLANE), 'v_lshrrev_b32 v48, 1, v%d' % n_, 'v_and_b32 v48, 7, v48',
         'v_xor_b32 v48, v48, v%d' % h_, 'v_lshlrev_b32 v49, 7, v%d' % n_, 'v_add_u32 v49, s43, v49',
         'v_lshrrev_b32 v50, 4, v%d' % n_, 'v_lshlrev_b32 v50, 13, v50', 'v_and_b32 v51, 15, v%d' % n_, 'v_lshl_add_u32 v50, v51, 7, v50']
    for s in range(4):
        r += ['v_xor_b32 v51, %d, v48' % (2 * s), 'v_lshl_add_u32 v%d, v51, 4, v49' % (vRX + s), 'v_lshl_add_u32 v%d, v51, 4, v50' % (vRS + s),
              'v_add_u32 v%d, 0x10000, v%d' % (vRX + 4 + s, vRX + s), 'v_add_u32 v%d, 0x10000, v%d' % (vRS + 4 + s, vRS + s)]
    r += ['v_bfe_u32 v48, v%d, 2, 2' % vLANE, 'v_lshl_add_u32 v49, v%d, 3, v48' % h_, 'v_lshlrev_b32 v49, 7, v49',
          'v_lshrrev_b32 v50, 1, v48', 'v_lshl_add_u32 v49, v50, 6, v49', 'v_and_b32 v50, 1, v%d' % vLANE,
          'v_lshl_add_u32 v49, v50, 5, v49', 'v_bfe_u32 v50, v%d, 4, 1' % vLANE, 'v_lshl_add_u32 v49, v50, 4, v49',
          'v_bfe_u32 v50, v%d, 1, 1' % vLANE, 'v_lshl_add_u32 v%d, v50, 3, v49' % vRF, 'v_xor_b32 v%d, 64, v%d' % (vRF + 1, vRF),
          'v_add_u32 v%d, 0x10000, v%d' % (vRF + 2, vRF), 'v_add_u32 v%d, 0x10000, v%d' % (vRF + 3, vRF + 1)]
    r += ['s_lshl_b32 s62, s%d, 3' % sHF, 's_add_u32 s62, s62, s%d' % sCG, 's_lshl_b32 s%d, s62, 8' % sFL, 's_lshl_b32 s62, s62, 2',
          's_and_b32 s65, s%d, 1' % sWV, 's_lshl_b32 s65, s65, 1', 's_add_u32 s62, s62, s65', 's_lshl_b32 s65, s65, 6', 's_add_u32 s%d, s%d, s65' % (sFL, sFL),
          's_lshr_b32 s65, s%d, 1' % sWV, 's_lshl_b32 s66, s65, 6', 's_add_u32 s62, s62, s66',
          's_lshl_b32 s66, s%d, 1' % sRB, 's_add_u32 s65, s65, s66', 's_mul_i32 s64, s65, %d' % HID_RT,
          's_lshl_b32 s65, s65, 12', 's_add_u32 s%d, s%d, s65' % (sFL, sFL), 's_add_u32 s%d, s%d, %d' % (sFL, sFL, WS_FH),
          's_and_b32 s65, s%d, 1' % sWV, 's_lshl_b32 s65, s65, 11', 's_add_u32 s64, s64, s65',
          'v_add_u32 v48, s62, v%d' % h_, 's_lshl_b32 s62, s%d, 7' % sRB, 'v_add_lshl_u32 v%d, v48, s62, 3' % (vGA + 9),
          'v_bfe_u32 v49, v48, 2, 2', 'v_bfe_u32 v50, v48, 4, 1', 'v_lshl_add_u32 v49, v49, 1, v50',
          'v_and_b32 v50, 3, v48', 'v_lshl_add_u32 v49, v49, 2, v50',
          'v_lshrrev_b32 v48, 5, v48', 'v_lshlrev_b32 v48, 13, v48', 'v_lshl_add_u32 v48, v49, 7, v48',
          'v_bfe_u32 v49, v49, 1, 3', 'v_lshrrev_b32 v50, 2, v%d' % n_, 'v_xor_b32 v49, v49, v50',
          'v_lshl_add_u32 v48, v49, 4, v48', 'v_and_b32 v49, 3, v%d' % n_, 'v_lshl_add_u32 v%d, v49, 2, v48' % vGA,
          'v_add_u32 v%d, 0x10000, v%d' % (vGA + 1, vGA), 'v_lshlrev_b32 v%d, 2, v%d' % (vGA + 2, n_),
          'v_add_u32 v%d, %d, v%d' % (vGA + 2, SMO + 640, vGA + 2), 'v_mov_b32 v%d, 0' % (vGA + 8),
          's_lshr_b32 s62, s43, 1', 'v_lshlrev_b32 v%d, 4, v%d' % (vL16, vLANE)]
    return r

def sidejob_setup(p, SJO):
    D = sSJD
    for x in ['s_cmp_lt_u32 s2, 224', 's_cselect_b32 s%d, 1, 0' % sSJK, 's_cmp_lt_u32 s%d, 3' % sWV, 's_cselect_b32 s%d, s%d, 0' % (sSJK, sSJK),
              's_sub_u32 s41, s2, 64', 's_lshr_b32 s65, s41, 4',
              's_and_b32 s41, s41, 15', 's_mul_i32 s41, s41, 3', 's_add_u32 s41, s41, s%d' % sWV,
              's_mul_i32 s%d, s41, %d' % (sSJO2, 32 * 1280), 's_lshl_b32 s60, s65, 7', 's_add_u32 s%d, s%d, s60' % (sSJO2, sSJO2),
              's_lshl_b32 s65, s65, 2',
              's_bfe_u32 s60, s41, 0x10001', 's_mul_i32 s60, s60, 24', 's_and_b32 s40, s41, 1', 's_add_u32 s60, s60, s40',
              's_lshr_b32 s41, s41, 2', 's_lshl_b32 s41, s41, 1', 's_add_u32 s41, s41, s60', 's_mul_i32 s41, s41, 5120',
              's_add_u32 s41, s41, %d' % WS_W2P,
              's_mov_b32 s%d, s%d' % (rSJ, sW2), 's_mov_b32 s%d, s%d' % (rSJ + 1, sW2 + 1), 's_mov_b32 s%d, %d' % (rSJ + 2, 1536 * 1280),
              's_mov_b32 s%d, 0x20000' % (rSJ + 3),
              's_cmp_lg_u32 s%d, 0' % sSJK, 's_cselect_b32 s%d, s%d, 0' % (rSJ + 2, rSJ + 2), 's_cselect_b32 s40, 0, 0x7ff00000',
              'v_add_u32 v%d, s40, v%d' % (vDJ + 5, vL16)]: p(x)
    for e in range(4):
        p('s_add_u32 s60, s65, %d' % e); p('s_mul_i32 s40, s60, 52'); p('s_lshr_b32 s40, s40, 8')
        p('s_mul_i32 s%d, s40, %d' % (D + e, W2P_CT - 5 * 1024)); p('s_lshl_b32 s60, s60, 10')
        p('s_add_u32 s%d, s%d, s60' % (D + e, D + e)); p('s_add_u32 s%d, s%d, s41' % (D + e, D + e))
    for x in ['v_lshrrev_b32 v48, 3, v%d' % vLANE, 'v_mul_u32_u24 v48, 1280, v48', 'v_and_b32 v49, 7, v%d' % vLANE, 'v_lshl_add_u32 v%d, v49, 4, v48' % vDJ,
              'v_lshrrev_b32 v48, 4, v%d' % vLANE, 'v_bfe_u32 v49, v%d, 2, 2' % vLANE, 'v_lshl_add_u32 v48, v48, 3, v49', 'v_lshlrev_b32 v48, 7, v48',
              'v_and_b32 v49, 3, v%d' % vLANE, 'v_lshl_add_u32 v48, v49, 3, v48', 's_add_u32 s60, s43, %d' % SJO, 'v_add_u32 v%d, s60, v48' % (vDJ + 4)]: p(x)
    for i in range(1, 4): p('v_add_u32 v%d, %d, v%d' % (vDJ + i, i * (8 * 1280 - 1024), vDJ))

def late_setup(CLS, LBQ):
    n_, h_ = vN, vHH
    return ['v_bfe_u32 v48, v%d, 2, 1' % n_, 'v_lshlrev_b32 v48, 10, v48',
            'v_lshl_add_u32 v48, v%d, 9, v48' % h_, 'v_lshrrev_b32 v49, 3, v%d' % n_, 'v_lshl_add_u32 v48, v49, 6, v48',
            'v_and_b32 v49, 3, v%d' % n_, 'v_lshl_add_u32 v%d, v49, 4, v48' % vSTF,
            'v_lshlrev_b32 v%d, 3, v%d' % (vEXA + 1, n_), 'v_add_u32 v%d, %d, v%d' % (vEXA + 1, EXO, vEXA + 1), 'v_lshl_add_u32 v48, v%d, 1, v%d' % (vWAVE, h_),
            'v_lshl_add_u32 v%d, v48, 8, v%d' % (vEXA, vEXA + 1),
            's_add_u32 s6, s43, %d' % TRO,
            'v_lshlrev_b32 v48, 10, v%d' % h_, 'v_lshl_add_u32 v48, v%d, 4, v48' % n_, 'v_add_u32 v%d, s6, v48' % vTW,
            'v_xor_b32 v%d, 0x240, v%d' % (vTW + 1, vTW),
            'v_lshrrev_b32 v48, 4, v%d' % vLANE, 'v_lshlrev_b32 v48, 7, v48', 'v_bfe_u32 v49, v%d, 2, 2' % vLANE,
            'v_lshl_add_u32 v48, v49, 4, v48', 'v_and_b32 v49, 1, v%d' % vLANE, 'v_lshl_add_u32 v48, v49, 3, v48',
            'v_bfe_u32 v49, v%d, 1, 1' % vLANE, 'v_mul_u32_u24 v49, 0x240, v49', 'v_add_u32 v48, v48, v49',
            'v_add_u32 v%d, s6, v48' % (vTW + 2), 'v_xor_b32 v%d, 64, v%d' % (vTW + 3, vTW + 2),
            's_sub_u32 s6, s%d, 1' % sRB, 's_lshl_b32 s7, s%d, 2' % sWV if LBQ else 's_mov_b32 s7, 0', 's_sub_u32 s6, s6, s7', 'v_sub_u32 v48, s6, v%d' % h_, 'v_lshlrev_b32 v48, 9, v48',
            'v_lshl_add_u32 v%d, v%d, 4, v48' % (vEO, n_),
            's_lshr_b32 s6, s%d, 2' % sRB, 's_lshl_b32 s6, s6, 3', 's_lshr_b32 s7, s3, 2', 's_add_u32 s%d, s6, s7' % sRT,
            's_lshl_b32 s6, s%d, 2' % sHF, 's_and_b32 s7, s3, 3', 's_add_u32 s%d, s6, s7' % sCT,
            's_sub_u32 s6, s%d, s%d' % (sCT, sRT) if CLS else 's_mov_b32 s6, s%d' % sCT, 's_and_b32 s6, s6, 3', 's_lshl_b32 s6, s6, 3', 's_or_b32 s%d, s6, 0x80000' % sSEL,
            'v_mul_u32_u24 v%d, 5120, v%d' % (vB, vWAVE), 'v_add_u32 v%d, v%d, v%d' % (vB, vB, vL16), 'v_add_u32 v%d, 0x1000, v%d' % (vB + 1, vB),
            'v_lshl_add_u32 v%d, v%d, 12, v%d' % (vA, vWAVE, vL16),
            's_lshl_b32 s6, s%d, 12' % sRT, 's_add_u32 s6, s6, %d' % WS_FH, 'v_lshl_add_u32 v%d, v%d, 7, s6' % (vFP, n_),
            's_mul_i32 s6, s%d, 5' % sCT, 's_lshr_b32 s6, s6, 2', 's_lshl_b32 s6, s6, 11', 's_add_u32 s6, s6, %d' % (WS_FL + 64 * 128),
            'v_lshl_add_u32 v%d, v%d, 7, s6' % (vWP, n_)]

def c_setup(vDC=vDC):
    return ['v_lshrrev_b32 v48, 3, v%d' % vLANE, 'v_mul_u32_u24 v48, 1280, v48', 'v_and_b32 v49, 7, v%d' % vLANE, 'v_lshrrev_b32 v50, 4, v%d' % vLANE,
            'v_xor_b32 v49, v49, v50', 'v_lshl_add_u32 v%d, v49, 4, v48' % vDC, 'v_xor_b32 v%d, 64, v%d' % (vDC + 1, vDC),
            'v_add_u32 v%d, %d, v%d' % (vDC + 1, 8 * 1280 - 1024, vDC + 1),
            'v_and_b32 v48, 15, v%d' % vLANE, 'v_lshrrev_b32 v49, 1, v48', 'v_xor_b32 v49, v49, v50', 'v_lshlrev_b32 v49, 4, v49',
            'v_lshl_add_u32 v48, v48, 7, v49', 'v_add_u32 v%d, s43, v48' % vRC, 'v_xor_b32 v%d, 64, v%d' % (vRC + 1, vRC),
            'v_add_u32 v%d, %d, v%d' % (vRC + 2, 3 * SLOT, vRC), 'v_add_u32 v%d, %d, v%d' % (vRC + 3, 3 * SLOT, vRC + 1)]

def body(p, ty, opt, st):
    put = p.put
    B = ty == 'B'
    NG = 1 if B else 2
    WS = S4(rWS)
    vPAR = 72
    S2OFF = [0, SLOT, 2 * SLOT]
    DELTA = opt.get('delta', 2); LBQ = 1; NLB = 2
    def spin(load, check):
        l1, l2 = p.newlabel('L_sp'), p.newlabel('L_sp')
        p('s_mov_b32 s65, 0')
        p.label(l1)
        check(l2)
        p('s_add_u32 s65, s65, 1'); p('s_cmp_gt_u32 s65, %d' % SPIN_MAX); p('s_cbranch_scc1 ' + l2)
        load(True)
        p('s_waitcnt vmcnt(0)'); p('s_branch ' + l1)
        p.label(l2)
    def dma_s2(c):
        r = []
        for sg in range(4 if c < 2 else 2):
            r.append('s_add_u32 m0, s43, %d' % (S2OFF[c] + 2048 * sg))
            r += [('buffer_load_dwordx4 v%d, %s, s%d offen offset:%d lds' % (vDS + i, S4(rS2), SIG + 4 * c + sg, 1024 * i), 's2c%d' % c) for i in range(2)]
        return r
    def s2_srd(): srd(p, rS2, sSB, 32 * 1280)
    def par_reads():
        r = ['v_lshlrev_b32 v48, 1, v%d' % vN, 'v_add_u32 v48, %d, v48' % SMO]
        for g in range(NG):
            r += [('ds_read_u16 v%d, v48 offset:%d' % (vPAR + 3 * g + k, 128 * k + 64 * g), 'par') for k in range(3)]
        return r
    def bias_reads(dst, T):
        return [('ds_read_b128 v[%d:%d], v49 offset:%d' % (dst + 8 * T + 4 * q, dst + 3 + 8 * T + 4 * q, 64 * T + 16 * q), 'b1%d' % T) for q in range(2)]
    def setup(g):
        c = CON[g]; tr, ti = TAB[g], TAB[g] + 16; pr = vPAR + 3 * g
        a, b = 48, 50
        M = S2(sM)
        r = ['v_lshlrev_b32 v%d, 16, v%d' % (pr + k, pr + k) for k in range(3)]
        r += ['v_mul_f32 v%d, %s, v%d' % (a, LOG2E, pr + 2), 'v_exp_f32 v%d, v%d' % (a, a),
              'v_mul_f32 v%d, v%d, v%d' % (c + 4, pr, pr),
              'v_cvt_pk_bf16_f32 v%d, v%d, v%d' % (a, a, a), 'v_lshlrev_b32 v%d, 16, v%d' % (a, a),
              'v_mul_f32 v%d, v%d, v%d' % (a + 1, a, pr + 1), 'v_mul_f32 v%d, v%d, v%d' % (a, a, pr),
              'v_mul_f32 v%d, %s, v%d' % (a + 1, INV2PI, a + 1), 'v_mul_f32 v%d, %s, v%d' % (a, LOG2E, a),
              'v_fract_f32 v%d, v%d' % (a + 1, a + 1), 'v_exp_f32 v%d, v%d' % (a, a),
              'v_cos_f32 v%d, v%d' % (b, a + 1), 'v_sin_f32 v%d, v%d' % (b + 1, a + 1),
              'v_fmac_f32 v%d, v%d, v%d' % (c + 4, pr + 1, pr + 1),
              'v_mul_f32 v%d, v%d, v%d' % (c, a, b), 'v_mul_f32 v%d, v%d, v%d' % (c + 1, a, b + 1),
              'v_rcp_f32 v%d, v%d' % (a, c + 4), 'v_add_f32 v%d, -1.0, v%d' % (b, c),
              'v_mul_f32 v%d, v%d, v%d' % (c + 2, b, pr), 'v_mul_f32 v%d, v%d, v%d' % (c + 3, c + 1, pr),
              'v_fmac_f32 v%d, v%d, v%d' % (c + 2, c + 1, pr + 1), 'v_fma_f32 v%d, -v%d, v%d, v%d' % (c + 3, b, pr + 1, c + 3),
              'v_mul_f32 v%d, v%d, v%d' % (c + 2, c + 2, a), 'v_mul_f32 v%d, v%d, v%d' % (c + 3, c + 3, a),
              'v_mov_b32 v%d, v%d' % (tr, c), 'v_mov_b32 v%d, v%d' % (ti, c + 1)]
        for k in range(1, 16): r += cmul(tr + k, ti + k, tr + k - 1, ti + k - 1, c, c + 1)
        mu = c + 4
        r += ['v_cmp_eq_u32 %s, 1, v%d' % (M, vHH), 'v_mov_b32 v%d, v%d' % (mu, tr + 15), 'v_mov_b32 v%d, v%d' % (mu + 1, ti + 15)]
        r += ['v_cndmask_b32 v%d, 1.0, v%d, %s' % (b, mu, M), 'v_cndmask_b32 v%d, 0, v%d, %s' % (b + 1, mu + 1, M)]
        r += cm(c + 6, c + 2, b) + csq(a, mu)
        r += ['v_cndmask_b32 v%d, 1.0, v%d, s[66:67]' % (b, a), 'v_cndmask_b32 v%d, 0, v%d, s[66:67]' % (b + 1, a + 1)]
        r += cm(c + 12, c + 6, b) + csq(c + 8, a)
        r += ['v_cndmask_b32 v%d, 1.0, v%d, s[68:69]' % (b, c + 8), 'v_cndmask_b32 v%d, 0, v%d, s[68:69]' % (b + 1, c + 9)]
        r += cm(c + 6, c + 12, b) + csq(a, c + 8)
        r += ['v_cndmask_b32 v%d, 1.0, v%d, %s' % (c + 10, a, M), 'v_cndmask_b32 v%d, 0, v%d, %s' % (c + 11, a + 1, M)]
        r += csq(c + 8, a)
        if LBQ:
            r += csq(a, c + 8) + ['v_cndmask_b32 v%d, 1.0, v%d, s[66:67]' % (b, a), 'v_cndmask_b32 v%d, 0, v%d, s[66:67]' % (b + 1, a + 1)]
            r += cm(c + 12, c + 10, b) + csq(b, a) + ['v_cndmask_b32 v%d, 1.0, v%d, s[68:69]' % (b, b), 'v_cndmask_b32 v%d, 0, v%d, s[68:69]' % (b + 1, b + 1)]
            r += cm(c + 10, c + 12, b)
        r += ['v_lshl_add_u32 v%d, v%d, 1, v%d' % (c + 14, vWAVE, vHH), 'v_mov_b32 v%d, 0' % (c + 12), 'v_mov_b32 v%d, 0' % (c + 13)]
        return r
    def masks():
        p('s_bitcmp1_b32 s%d, 0' % sWV); p('s_cselect_b64 s[66:67], -1, 0')
        p('s_bitcmp1_b32 s%d, 1' % sWV); p('s_cselect_b64 s[68:69], -1, 0')
    def gate_reads(s):
        sl = s % 5; d = vGA + 4 + 2 * (s & 1)
        return [('ds_read_b32 v%d, v%d offset:%d' % (d, vGA3 if sl == 4 else vGA + (sl >> 1), (sl & 1) * SLOT), 'g%d' % s)]
    def third_set():
        r = ['v_add_u32 v%d, %d, v%d' % (vRX3 + k, 4 * SLOT, vRX + k) for k in range(4)] + ['v_add_u32 v%d, %d, v%d' % (vGA3, 4 * SLOT, vGA)]
        return r + ['v_add_u32 v%d, %d, v%d' % (vW3 + k, 4 * SLOT, (vRF if B else vRS) + k) for k in range(2 if B else 4)]
    def gw_reads():
        r = []
        for s in range(10): r += ['v_add_u32 v%d, s%d, v%d' % (vGA + 3, SIG + s, vGA + 2), ('ds_read_b32 v%d, v%d' % (vGW + s, vGA + 3), 'gw')]
        return r
    def gate_step(s):
        if opt.get('nogate'): return []
        x = vGA + 4 + 2 * (s & 1); w = vGW + s; a = vGA + 10; acc = vGA + 8
        return [lambda: p.wait(lg='g%d' % s),
                'v_lshlrev_b32 v%d, 16, v%d' % (a, x), 'v_lshlrev_b32 v%d, 16, v%d' % (a + 1, w),
                'v_and_b32 v%d, 0xffff0000, v%d' % (x, x), 'v_and_b32 v%d, 0xffff0000, v%d' % (w, w),
                'v_mul_f32 v%d, v%d, v%d' % (a, a, a + 1), 'v_mul_f32 v%d, v%d, v%d' % (x, x, w),
                'v_cvt_pk_bf16_f32 v%d, v%d, v%d' % (a, a, x),
                'v_lshlrev_b32 v%d, 16, v%d' % (a + 1, a), 'v_and_b32 v%d, 0xffff0000, v%d' % (a, a),
                'v_add_f32 v%d, v%d, v%d' % (acc, acc, a + 1), 'v_add_f32 v%d, v%d, v%d' % (acc, acc, a)]
    def gate_store():
        a = vGA + 10
        p('s_mov_b32 s40, %d' % WS_G)
        p('s_mov_b32 exec_lo, 1'); p('s_mov_b32 exec_hi, 1')
        p('buffer_store_dwordx2 v[%d:%d], v%d, %s, s40 offen%s' % (a, a + 1, vGA + 9, WS, SC), tag='gst')
        p('s_mov_b64 exec, -1')
    gstore = [gate_store]
    def gate_fin():
        r = []; s = vGA + 8; a = vGA + 10
        for m in ('quad_perm:[1,0,3,2]', 'quad_perm:[2,3,0,1]', 'row_half_mirror', 'row_mirror'):
            r.append('v_add_f32_dpp v%d, v%d, v%d %s row_mask:0xf bank_mask:0xf' % (s, s, s, m))
        r += ['v_mov_b32 v%d, v%d' % (a, s), 'v_permlane16_swap_b32 v%d, v%d' % (a, s), 'v_add_f32 v%d, v%d, v%d' % (s, s, a),
              'v_cvt_pk_bf16_f32 v%d, v%d, v%d' % (s, s, s), 'v_lshlrev_b32 v%d, 16, v%d' % (s, s),
              'v_mul_f32 v%d, 0xbfb8aa3b, v%d' % (s, s), 'v_exp_f32 v%d, v%d' % (s, s), 'v_add_f32 v%d, 1.0, v%d' % (s, s),
              'v_rcp_f32 v%d, v%d' % (s, s), 'v_cvt_pk_bf16_f32 v%d, v%d, v%d' % (s, s, s), 'v_lshlrev_b32 v%d, 16, v%d' % (a, s),
              'v_sub_f32 v%d, 1.0, v%d' % (a + 1, a), 'v_cvt_pk_bf16_f32 v%d, v%d, v%d' % (a + 1, a + 1, a + 1),
              'v_lshlrev_b32 v%d, 16, v%d' % (a + 1, a + 1)]
        store = gstore[0]
        def unused():
            p('s_mov_b32 s40, %d' % WS_G)
            p('s_mov_b32 exec_lo, 1'); p('s_mov_b32 exec_hi, 1')
            p('buffer_store_dwordx2 v[%d:%d], v%d, %s, s40 offen%s' % (a, a + 1, vGA + 9, WS, SC), tag='gst')
            p('s_mov_b64 exec, -1')
        if not (B and opt.get('fburst', 1) and opt.get('gmerge', 0)): r.append(store)
        return r
    SJP = opt.get('sjpos', 0); SJM = 0; SJL = 0; SJO = 4096 if SJL else XREG
    def sj_dma():
        p('s_add_u32 m0, s43, %d' % SJO)
        for i in range(4): p('buffer_load_dwordx4 v%d, %s, s%d offen offset:%d lds' % (vDJ + i, S4(rSJ), sSJO2, 1024 * i), tag='sj')
    def sj_read():
        p.wait(vm='sj')
        for e in range(4):
            for j in range(2): p('ds_read_b64_tr_b16 a[%d:%d], v%d offset:%d' % (232 + 4 * e + 2 * j, 233 + 4 * e + 2 * j, vDJ + 4, 32 * e + 512 * j), tag='sjr')
    def sj_store():
        p.wait(lg='sjr')
        for e in range(4): p('buffer_store_dwordx4 a[%d:%d], v%d, %s, s%d offen%s' % (232 + 4 * e, 235 + 4 * e, vDJ + 5, WS, sSJD + e, SC), tag='sjs')
    def a_prefetch(which):
        p('s_and_b32 s65, s2, 7'); p('s_lshl_b32 s65, s65, 3'); p('s_add_u32 s65, s65, s3'); p('s_lshl_b32 s65, s65, 2'); p('s_add_u32 s65, s65, s%d' % sWV)
        if which == 'C':
            p('s_bitcmp1_b32 s%d, 0' % sWV)
            p('s_cselect_b32 s40, s%d, s%d' % (sCIM, sCRE)); p('s_cselect_b32 s41, s%d, s%d' % (sCIM + 1, sCRE + 1))
            p('s_lshr_b32 s65, s65, 1'); p('s_mul_i32 s65, s65, 6400'); p('v_min_u32 v94, 49, v%d' % vLANE)
        elif which == 'S':
            p('s_bitcmp1_b32 s%d, 0' % sWV)
            p('s_cselect_b32 s40, s%d, s%d' % (sBIM2, sBRE)); p('s_cselect_b32 s41, s%d, s%d' % (sBIM2 + 1, sBRE + 1))
            p('s_lshr_b32 s65, s65, 1'); p('s_cmp_ge_u32 s65, 64'); p('s_cselect_b32 s23, %d, %d' % (256, 128)) if False else None
            p('s_mul_i32 s65, s65, 3'); p('s_cselect_b32 s23, 128, 0'); p('s_add_u32 s65, s65, s23'); p('s_add_u32 s65, s65, 128')
            p('s_mul_i32 s65, s65, 1280'); p('v_min_u32 v94, 29, v%d' % vLANE)
        else:
            p('s_mov_b64 s[40:41], %s' % S2(sW2)); p('s_mul_i32 s65, s65, 7680'); p('v_min_u32 v94, 59, v%d' % vLANE)
        p('v_lshl_add_u32 v94, v94, 7, s65')
        p('global_load_dword v93, v94, s[40:41]', tag='cpf')
    def c_prefetch():
        p('s_bitcmp1_b32 s%d, 0' % sWV)
        p('s_cselect_b32 s40, s%d, s%d' % (sCIM, sCRE)); p('s_cselect_b32 s41, s%d, s%d' % (sCIM + 1, sCRE + 1))
        p('s_lshl_b32 s65, s2, 1'); p('s_lshr_b32 s23, s%d, 1' % sWV); p('s_add_u32 s65, s65, s23'); p('s_mul_i32 s65, s65, 1600')
        p('v_lshl_add_u32 v94, v%d, 7, s65' % vLANE); p('v_min_u32 v94, %d, v94' % (640 * 1280 - 4))
        p('s_mov_b64 exec, 0x1fff')
        p('global_load_dword v93, v94, s[40:41]', tag='cpf')
        p('s_mov_b64 exec, -1')
    def c_srd():
        p.seen.add('csrd')
        p('s_bitcmp1_b32 s%d, 0' % sWV)
        p('s_cselect_b32 s%d, s%d, s%d' % (rC, sCIM, sCRE)); p('s_cselect_b32 s%d, s%d, s%d' % (rC + 1, sCIM + 1, sCRE + 1))
        p('s_mul_i32 s40, s%d, %d' % (sCT, 80 * 1280)); p('s_add_u32 s%d, s%d, s40' % (rC, rC)); p('s_addc_u32 s%d, s%d, 0' % (rC + 1, rC + 1))
        p('s_mov_b32 s%d, %d' % (rC + 2, 80 * 1280)); p('s_mov_b32 s%d, 0x20000' % (rC + 3))
        p('s_lshr_b32 s%d, s%d, 1' % (sSJO, sWV)); p('s_lshl_b32 s%d, s%d, 7' % (sSJO, sSJO))
    DS = opt.get('deltas', 1)
    def sp_lit(pos): return sum(order(5, c, DS)[pos] << (8 * c) for c in range(4))
    def c_dma(q):
        pos, n = divmod(q, 5); pl = q % 16
        r = [lambda: p.wait(lg='cr%d' % (q - 16))] if q >= 16 else []
        r += ['s_add_u32 m0, s43, %d' % (CPL[pl >> 2] + 2048 * (pl & 3))]
        if n == 0: r += ['s_bfe_u32 s23, 0x%x, s%d' % (sp_lit(pos), sSEL5), 's_lshl_b32 s23, s23, 8', 's_add_u32 s23, s23, s%d' % sSJO]
        else: r += ['s_add_u32 s23, s23, %d' % (16 * 1280)]
        ld = [('buffer_load_dwordx4 v%d, %s, s23 offen offset:%d lds' % (vDC + i, S4(rC), 1024 * i), 'cd%d' % q) for i in range(2)]
        def first():
            assert 'csrd' in p.seen
            for x in r + ld[:1]: put(x)
        return [first, ld[1]]
    def c_read(q, dst=None):
        pl = q % 16; dst = AX + 8 * q if dst is None else dst
        hi, o = {0: (1, 0), 1: (1, SLOT), 2: (0, 0), 3: (0, SLOT)}[pl >> 2]
        rd = [('ds_read_b128 a[%d:%d], v%d offset:%d' % (dst + 4 * gg, dst + 4 * gg + 3, vRC + 2 * hi + gg, o + 2048 * (pl & 3)), 'cr%d' % q) for gg in range(2)]
        return [lambda: (p.wait(vm='cd%d' % q), put(rd[0])), rd[1]]
    def cD(a, b): return [x for q in range(a, b) for x in c_dma(q)]
    def cR(a, b): return [x for q in range(a, b) for x in c_read(q)]
    def nonce_load(o=False): p('global_load_dword v%d, v%d, %s sc1' % (vPOLL, vZ, S2(sDBG)), tag='nonce', optional=o)
    def get_nonce():
        def chk(l2):
            p('v_readfirstlane_b32 s%d, v%d' % (sNON, vPOLL)); p('s_cmp_lg_u32 s%d, 0' % sNON); p('s_cbranch_scc1 ' + l2)
        p.wait(vm='nonce'); spin(nonce_load, chk)
        p('v_mov_b32 v47, s%d' % sNON)
    def w2_signal():
        def go():
            p('s_lshl_b32 s40, s2, 7'); p('s_add_u32 s40, s40, %d' % WS_FL); p('s_mov_b64 exec, 1')
            p('buffer_store_dword v47, v%d, %s, s40 offen%s' % (vZ, WS, SC), optional=True)
            p('s_mov_b64 exec, -1')
        wave0(go)
    def signal(level, tags):
        def go():
            p.wait(vm=tags)
            p('s_add_u32 s65, s%d, %d' % (sFL, 131072 * level)); p('s_mov_b64 exec, 1')
            p('buffer_store_dword v47, v%d, %s, s65 offen%s' % (vZ, WS, SC), tag='flag')
            p('s_mov_b64 exec, -1')
        return go
    def fl_load(level):
        if level == 'FW':
            p('v_cmp_eq_u32 vcc, 1, v%d' % vHH); p('v_cndmask_b32 v94, v%d, v%d, vcc' % (vFP, vWP))
            p('buffer_load_dword v%d, v94, %s, 0 offen sc1' % (vPOLL, WS), optional=True)
            return
        p('s_mov_b32 s40, %d' % (0 if level == 'W' else 131072 * level)); p('s_mov_b32 exec_hi, 0')
        p('buffer_load_dword v%d, v%d, %s, s40 offen sc1' % (vPOLL, vWP if level == 'W' else vFP, WS), optional=True)
        p('s_mov_b32 exec_hi, -1')
    def wave0(fn):
        l = p.newlabel('L_w0')
        p('s_cmp_lg_u32 s%d, 0' % sWV); p('s_cbranch_scc1 ' + l)
        fn()
        p.label(l)
    def fl_issue(level):
        def go():
            wave0(lambda: fl_load(level))
            p.marks[level] = p.total_vm()
        return go
    def fl_check(level, bar=True):
        def chk(l2):
            p('v_cmp_ne_u32 vcc, s%d, v%d' % (sNON, vPOLL))
            if level == 'FW': p('s_cbranch_vccz ' + l2)
            else: p('s_cmp_eq_u32 vcc_lo, 0'); p('s_cbranch_scc1 ' + l2)
        def body_():
            p('s_waitcnt vmcnt(%d)' % min(63, p.total_vm() - p.marks[level]))
            spin(lambda o: fl_load(level), chk)
        def go():
            wave0(body_)
            if bar: p('s_barrier')
        return go
    def rnd_lit(i):
        for o, n in PARTS:
            if o <= i < o + n: return sum((o + order(n, c, DELTA)[i - o]) << (8 * c) for c in range(4))
    def b_reg(i, n):
        if i < 12: return ('a', 208 + 20 * (i % 3) + 4 * n) if i % 3 < 2 else ('v', 12 + 4 * n)
        pos, gg = divmod(i - 12, 2)
        return 'a', AX + 8 * (5 * (pos % 4) + n) + 4 * gg
    def b_loads(i):
        r = ['s_bfe_u32 s61, 0x%x, s%d' % (rnd_lit(i), sSEL), 's_mul_i32 s61, s61, 20480']
        for n in range(5):
            k, b = b_reg(i, n)
            r.append(('buffer_load_dwordx4 %s[%d:%d], v%d, %s, s61 offen%s sc1' % (k, b, b + 3, vB + (n >> 2), S4(rW2P), ' offset:%d' % (1024 * n) if n < 4 else ''), 'B%d' % i))
        return r
    def a_loads(i, pos=None):
        b = AH + 16 * ((i if pos is None else pos) % 3)
        if i < 12: r = ['s_bfe_u32 s60, 0x%x, s%d' % (rnd_lit(i), sSEL), 's_lshl_b32 s60, s60, 14']
        else: r = ['s_bfe_u32 s60, 0x%x, s%d' % (sp_lit((i - 12) >> 1), sSEL5), 's_lshl_b32 s60, s60, 15', 's_add_u32 s60, s60, %d' % ((12 + (i & 1)) << 14)]
        r += [('buffer_load_dwordx4 a[%d:%d], v%d, %s, s60 offen offset:%d sc1' % (b + 4 * m, b + 4 * m + 3, vA, S4(rHID), 1024 * m), 'A%d' % i) for m in range(4)]
        return r
    def w2_prefetch():
        if not opt.get('wpf', 0): return
        p('s_and_b32 s40, s%d, 7' % sRT); p('s_lshl_b32 s40, s40, 2'); p('s_add_u32 s40, s40, s%d' % sWV); p('s_mul_i32 s40, s40, 7680')
        p('v_min_u32 v94, 59, v%d' % vLANE); p('v_lshlrev_b32 v94, 7, v94')
        p('buffer_load_dword v93, v94, %s, s40 offen sc1' % S4(rW2P), tag='wpf')
    def hid_srd():
        p('s_mul_i32 s40, s%d, %d' % (sRT, HID_RT)); srd(p, rHID, sWS, HID_RT, 's40')
        p('s_mul_i32 s40, s%d, %d' % (sCT, W2P_CT)); p('s_add_u32 s40, s40, %d' % WS_W2P); srd(p, rW2P, sWS, W2P_CT, 's40')
        if opt.get('fake'):
            p('s_lshr_b32 s40, s%d, 2' % sRB); p('s_mul_i32 s40, s40, %d' % (512 * 1280)); p('s_lshl_b32 s41, s3, 13'); p('s_add_u32 s40, s40, s41')
            if opt['fake'] & 1: srd(p, rHID, sX, HID_RT, 's40')
            if opt['fake'] & 2: srd(p, rW2P, sX, HID_RT, 's40')
    def reads1(k):
        s, ks = divmod(k, 4); sl = s % 5; hi = 4 * (sl >> 1); o = (sl & 1) * SLOT
        w = AW + 16 * (k % 3); tg = 'k%d' % k
        rx, rs, rf = (vRX3, vW3, vW3) if sl == 4 else (vRX + hi, vRS + hi, vRF + (hi >> 1))
        r = [('ds_read_b128 a[%d:%d], v%d offset:%d' % (AX + 4 * k, AX + 4 * k + 3, rx + ks, o), tg)]
        for T in range(4):
            if B:
                for j in range(2):
                    r.append(('ds_read_b64_tr_b16 a[%d:%d], v%d offset:%d' % (w + 4 * T + 2 * j, w + 1 + 4 * T + 2 * j, rf + (T & 1),
                                                                          o + ks * 8192 + 4096 + 2048 * (T >> 1) + 512 * j), tg))
            else:
                r.append(('ds_read_b128 a[%d:%d], v%d offset:%d' % (w + 4 * T, w + 4 * T + 3, rs + ks, o + 4096 + 2048 * (T >> 1) + 16384 * (T & 1)), tg))
        return r
    L2 = opt.get('lead2', 5); NB2 = L2 + 1
    def reads2(m):
        k, T = divmod(m, 2); s, ks = divmod(k, 4); c, sg = divmod(s, 4)
        w = AW2 + 4 * (m % NB2)
        return [('ds_read_b128 a[%d:%d], v%d offset:%d' % (w, w + 3, vRS + 4 * (S2OFF[c] >> 16) + ks, (S2OFF[c] & 0xffff) + 16384 * T + 2048 * sg), 'm%d' % m)]
    mf = 'v_mfma_f32_32x32x16_bf16 v[%d:%d], a[%d:%d], a[%d:%d], %s'
    def mfma1(k, T):
        x = AX + 4 * k; f = AW + 16 * (k % 3) + 4 * T
        if B: a = FAC + 16 * T; return mf % (a, a + 15, f, f + 3, x, x + 3, 'v[%d:%d]' % (a, a + 15))
        a = SAC[T >> 1] + 16 * (T & 1)
        return mf % (a, a + 15, x, x + 3, f, f + 3, 'v[%d:%d]' % (a, a + 15) if k else '0')
    def mfma2(m):
        k, T = divmod(m, 2); x = AX + 4 * k; a = SAC[0] + 16 * T; f = AW2 + 4 * (m % NB2)
        return mf % (a, a + 15, x, x + 3, f, f + 3, 'v[%d:%d]' % (a, a + 15) if k else '0')
    LOOK = opt.get('look', 3); SJS = opt.get('sjs', 2); AE = opt.get('aearly', 0)
    def sync1(s):
        p.wait(vm='st%d' % s, lg=None if s else 'all'); p('s_barrier')
        r = [lambda: p.wait(lg='sjr')] if (B and s == 1 + SJP) else []
        if B and SJP and s == 1: return r
        if B and SJP and s == 2: r += dma_stage(4)
        if s == 0: r += dma_stage(2)
        if s + LOOK < 10: r += dma_stage(s + LOOK)
        elif B: r += dma_s2(s + LOOK - 10)
        if s == 7 and opt.get('cpf', 2) == 1: r = [c_prefetch] + r
        if not B and opt.get('cpf', 2) == 2:
            if s == opt.get('pfc', 7): r = r + [lambda: a_prefetch('C')]
            if s == opt.get('pfs', 5): r = r + [lambda: a_prefetch('S')]
            if s == opt.get('pfw', 4) and (SJL or SJM): r = r + [lambda: a_prefetch('W')]
        if B and s == SJM and SJM: r = r + [sj_dma]
        return r
    def scanA1(g):
        c = CON[g]; re, im = SAC[g], SAC[g] + 16
        r = []
        for k in range(1, 16): r += cfma(re + k, im + k, c, re + k - 1, im + k - 1)
        r += ['v_mov_b32 v%d, v%d' % (48 + 2 * g, re + 15), 'v_mov_b32 v%d, v%d' % (49 + 2 * g, im + 15),
              ('ds_write_b64 v%d, v[%d:%d] offset:%d' % (vEXA, 48 + 2 * g, 49 + 2 * g, 8192 * g), 'ex')]
        return r
    def scanA2(g):
        c = CON[g]; re, im = SAC[g], SAC[g] + 16; be = P2(c + 2)
        r = []
        for k in range(0, 16, 2):
            tt = 48 + (k & 2)
            r += ['v_pk_mul_f32 %s, %s, %s op_sel:[1,0] op_sel_hi:[1,1]' % (P2(tt), be, P2(re + k)),
                  'v_pk_mul_f32 %s, %s, %s op_sel:[0,0] op_sel_hi:[0,1]' % (P2(re + k), be, P2(re + k)),
                  'v_pk_fma_f32 %s, %s, %s, %s op_sel:[1,0,0] op_sel_hi:[1,1,1] neg_lo:[1,0,0] neg_hi:[1,0,0]' % (P2(re + k), be, P2(im + k), P2(re + k)),
                  'v_pk_fma_f32 %s, %s, %s, %s op_sel:[0,0,0] op_sel_hi:[0,1,1]' % (P2(im + k), be, P2(im + k), P2(tt))]
        return r
    def ex_reads(g, e):
        return [('ds_read_b64 v[%d:%d], v%d offset:%d' % (e + 2 * k, e + 2 * k + 1, vEXA + 1, 8192 * g + 256 * k), 'exr%d' % g) for k in range(8)]
    def ex_prefix(g, e, pk):
        c = CON[g]; r = []
        for k in range(1, 8):
            r += pcfma(e + 2 * k, c + 4, e + 2 * k - 2) if pk else cfma(e + 2 * k, e + 2 * k + 1, c + 4, e + 2 * k - 2, e + 2 * k - 1)
        return r
    def ex_pub(g, e):
        def pub():
            p('v_mov_b32 v%d, v%d' % (e + 16, e + 15)); p('v_mov_b32 v%d, v47' % (e + 17)); p('v_mov_b32 v%d, v47' % (e + 15))
            p('s_add_u32 s40, s%d, %d' % (sG, g)); p('s_lshl_b32 s40, s40, 4'); p('s_add_u32 s40, s40, s%d' % sRB); p('s_lshl_b32 s40, s40, 9')
            p('s_add_u32 s40, s40, %d' % WS_E)
            p('s_lshl_b32 s41, s%d, 3' % sWV); p('s_lshl_b32 exec_lo, 0xff, s41'); p('s_mov_b32 exec_hi, 0')
            p('buffer_store_dwordx4 v[%d:%d], v%d, %s, s40 offen%s' % (e + 14, e + 17, vL16, WS, SC), tag='pub')
            p('s_mov_b64 exec, -1')
        return [pub]
    def ex_own(g, e):
        c = CON[g]; r = []
        for k in range(1, 8):
            r += ['v_cmp_eq_u32 %s, %d, v%d' % (S2(sM + 2 * (k & 1)), k, c + 14)]
            if k > 1: r += ['v_cndmask_b32 v%d, v%d, v%d, %s' % (c + 12 + z, c + 12 + z, e + 2 * k - 4 + z, S2(sM + 2 - 2 * (k & 1))) for z in range(2)]
        r += ['v_cndmask_b32 v%d, v%d, v%d, %s' % (48 + z, c + 12 + z, e + 12 + z, S2(sM + 2)) for z in range(2)]
        return r + cm(c + 12, c + 2, 48)
    def ffn_epi(T, pk=False):
        a = FAC + 16 * T; r = []
        for k in range(0, 16, 2):
            r += ['v_max_f32 v%d, 0, v%d' % (a + k, a + k), 'v_max_f32 v%d, 0, v%d' % (a + k + 1, a + k + 1)]
            if pk: r += ['v_pk_mul_f32 %s, %s, %s' % (P2(a + k), P2(a + k), P2(a + k))]
            else: r += ['v_mul_f32 v%d, v%d, v%d' % (a + k + z, a + k + z, a + k + z) for z in range(2)]
        for k in range(8): r.append('v_cvt_pk_bf16_f32 v%d, v%d, v%d' % (a + k, a + 2 * k, a + 2 * k + 1))
        def stores():
            p('s_lshl_b32 s40, s%d, 12' % sQ); p('s_add_u32 s40, s40, s64'); p('s_add_u32 s40, s40, %d' % (((T & 1) + (24 if T >= 2 else 0)) * 4096))
            for q in range(2):
                p('buffer_store_dwordx4 v[%d:%d], v%d, %s, s40 offen offset:%d%s' % (a + 4 * q, a + 4 * q + 3, vSTF, WS, 256 * q, opt.get('f_sc', SC)), tag='hf')
        return r + [stores]
    EXP = 84 if B else 52
    def lb_expect():
        r = []
        for k in range(NLB):
            r += ['v_subrev_u32 v%d, %d, v%d' % (EXP + k, 1024 * k, vEO), 'v_ashrrev_i32 v%d, 31, v%d' % (EXP + k, EXP + k),
                  'v_bfi_b32 v%d, v%d, 0, v47' % (EXP + k, EXP + k)]
        return r
    def lb_loads(g, e, o=False):
        p('s_add_u32 s40, s%d, %d' % (sG, g)); p('s_lshl_b32 s40, s40, 13'); p('s_add_u32 s40, s40, %d' % WS_E)
        srd(p, rE, sWS, 8192, 's40')
        for k in range(NLB):
            if k: p('v_subrev_u32 v48, %d, v%d' % (1024 * k, vEO))
            p('buffer_load_dwordx4 v[%d:%d], v%d, %s, 0 offen sc1' % (e[k], e[k] + 3, 48 if k else vEO, S4(rE)), tag='lb%d' % g, optional=o)
    def lb_finish(g, e):
        c = CON[g]
        def chk(l2):
            for k in range(2):
                p('v_xor_b32 v%d, v%d, v%d' % (e[k] + 1, e[k] + 1, EXP + k)); p('v_xor_b32 v%d, v%d, v%d' % (e[k] + 3, e[k] + 3, EXP + k))
            p('v_or3_b32 v48, v%d, v%d, v%d' % (e[0] + 1, e[0] + 3, e[1] + 1)); p('v_or_b32 v48, v48, v%d' % (e[1] + 3))
            p('v_cmp_ne_u32 vcc, 0, v48'); p('s_cbranch_vccz ' + l2)
        p.wait(vm='lb%d' % g); spin(lambda o: lb_loads(g, e, o), chk)
        for k in range(2): p('v_mov_b32 v%d, v%d' % (e[k] + 1, e[k] + 2))
        for k in range(NLB - 2, -1, -1):
            for x in pcfma(e[k], c + 8, e[k + 1]): put(x)
        for x in pcmul(48, c + 10, e[0]): put(x)
        if not LBQ: p('v_mov_b32 v50, v48'); p('v_mov_b32 v51, v49')
        if LBQ:
            p('ds_write_b64 v%d, v[48:49] offset:%d' % (vEXA, 8192 * g), tag='lw')
            p.wait(lg='lw'); p('s_barrier')
            for k in range(8): p('ds_read_b64 v[%d:%d], v%d offset:%d' % (e[2] + 2 * k, e[2] + 2 * k + 1, vEXA + 1, 8192 * g + 256 * k), tag='lr%d' % (k // 2))
            for k in range(4):
                p.wait(lg='lr%d' % k)
                p('v_pk_add_f32 %s, %s, %s' % (P2(e[2] + 4 * k), P2(e[2] + 4 * k), P2(e[2] + 4 * k + 2)))
            p('v_pk_add_f32 %s, %s, %s' % (P2(e[2]), P2(e[2]), P2(e[2] + 4))); p('v_pk_add_f32 %s, %s, %s' % (P2(e[2] + 8), P2(e[2] + 8), P2(e[2] + 12)))
            p('v_pk_add_f32 v[48:49], %s, %s' % (P2(e[2]), P2(e[2] + 8)))
        else:
            p('v_permlane32_swap_b32 v48, v50'); p('v_permlane32_swap_b32 v49, v51')
            p('v_pk_add_f32 v[48:49], v[48:49], v[50:51]')
        for x in pcfma(c + 12, c + 6, 48): put(x)
    def scanB(g, pk):
        c = CON[g]; tr, ti = TAB[g], TAB[g] + 16; re, im = SAC[g], SAC[g] + 16; cc = P2(c + 12)
        r = []
        for k in range(0, 16, 2):
            if pk:
                r += ['v_pk_fma_f32 %s, %s, %s, %s op_sel:[0,0,0] op_sel_hi:[1,0,1]' % (P2(re + k), P2(tr + k), cc, P2(re + k)),
                      'v_pk_fma_f32 %s, %s, %s, %s op_sel:[0,1,0] op_sel_hi:[1,1,1]' % (P2(im + k), P2(tr + k), cc, P2(im + k)),
                      'v_pk_fma_f32 %s, %s, %s, %s op_sel:[0,1,0] op_sel_hi:[1,1,1] neg_lo:[1,0,0] neg_hi:[1,0,0]' % (P2(re + k), P2(ti + k), cc, P2(re + k)),
                      'v_pk_fma_f32 %s, %s, %s, %s op_sel:[0,0,0] op_sel_hi:[1,0,1]' % (P2(im + k), P2(ti + k), cc, P2(im + k))]
            else:
                for z in (k, k + 1):
                    r += ['v_fmac_f32 v%d, v%d, v%d' % (re + z, tr + z, c + 12), 'v_fmac_f32 v%d, v%d, v%d' % (im + z, tr + z, c + 13),
                          'v_fma_f32 v%d, -v%d, v%d, v%d' % (re + z, ti + z, c + 13, re + z), 'v_fmac_f32 v%d, v%d, v%d' % (im + z, ti + z, c + 12)]
        for part in range(2):
            a = re + 16 * part; ng = '-' if part else ''
            for q in range(2):
                r += ['v_cvt_pk_bf16_f32 v%d, %sv%d, %sv%d' % (a + 8 * q + k, ng, a + 8 * q + 2 * k, ng, a + 8 * q + 2 * k + 1) for k in range(4)]
                r += [('ds_write_b128 v%d, v[%d:%d]' % (vTW + q, a + 8 * q, a + 8 * q + 3), 'tw')]
            r += [('ds_read_b64_tr_b16 v[%d:%d], v%d offset:%d' % (a + 8 * b + 4 + 2 * j, a + 8 * b + 5 + 2 * j, vTW + 2 + j, 1024 * b), 'tr%d' % part) for b in range(2) for j in range(2)]
        def stores(part):
            p('s_add_u32 s41, s%d, %d' % (sG, g)); p('s_lshr_b32 s40, s41, 2'); p('s_lshl_b32 s40, s40, 1'); p('s_and_b32 s65, s41, 1'); p('s_add_u32 s40, s40, s65')
            p('s_lshl_b32 s40, s40, 1'); p('s_bfe_u32 s65, s41, 0x10001'); p('s_add_u32 s40, s40, s65'); p('s_lshl_b32 s40, s40, 13')
            p('s_add_u32 s40, s40, s64'); p('s_add_u32 s40, s40, %d' % ((48 + part) * 4096))
            p.wait(lg='tr%d' % part)
            for b in range(2):
                o = re + 16 * part + 8 * b + 4
                p('buffer_store_dwordx4 v[%d:%d], v%d, %s, s40 offen offset:%d%s' % (o, o + 3, vL16, WS, 1024 * b, opt.get('h_sc', SC)), tag='hs')
        return r + [lambda: stores(0), lambda: stores(1)]
    masks()
    if B:
        sidejob_setup(p, SJO); s2_srd()
        if not SJP: sj_dma()
    else: c_srd(); p('s_mov_b64 %s, %s' % (S2(sBIM2), S2(sBIM)))
    if B: p('v_lshlrev_b32 v49, 5, v%d' % vHH); p('v_add_u32 v49, %d, v49' % (SMO + 384))
    p.wait(vm='sm'); p('s_barrier')
    st('sm')
    for x in par_reads() + gw_reads(): put(x)
    pre = []
    if B:
        for T in range(4):
            for x in bias_reads(176, T): put(x)
    pre += [lambda: p.wait(lg='par')]
    late = []
    for g in range(NG):
        su = setup(g); cut = opt.get('sucut', 999)
        pre += su[:cut]; late += su[cut:]
    if B:
        for T in range(4): pre += [lambda T=T: p.wait(lg='b1%d' % T)] + unpack(FAC + 16 * T, 176 + 8 * T, 8)
    nearly = max(0, len(pre) - opt.get('sp1', 12) * 8)
    for x in pre[:nearly] + sprinkle(pre[nearly:], dma_stage(1), opt.get('sp1', 12)): put(x)
    if B and SJP: sj_dma()
    for x in third_set(): put(x)
    st('issued')
    pend = sync1(0)
    st('first')
    for x in reads1(0) + reads1(1) + gate_reads(0): put(x)
    fill = late
    prio = gate_step(0)
    p.marks = {}
    bar = lambda s_: 16 * s_ - 8
    events = {28: [nonce_load], bar(9) + 2: [get_nonce]}
    if B and SJM:
        events[bar(SJM + 2) + 4] = [sj_read]; events[bar(SJM + 2) + 12] = [sj_store]
        events[186] = [lambda: p.wait(vm='sjs')]; events[188] = [w2_signal]
    elif B and not SJL:
        events[bar(1 + SJP) - 1] = [sj_read]; events[bar(1 + SJP) + 6] = [sj_store]
        WS_ = opt.get('wsb', 9); del events[bar(9) + 2]
        events[bar(WS_) - 1] = [lambda: p.wait(vm='sjs')]; events[bar(WS_) + opt.get('wso', 10)] = [get_nonce, w2_signal]
    if B and SJL:
        events[opt.get('sjr', 200)] = [sj_read]; events[opt.get('sjr', 200) + 6] = [sj_store]
    assert LOOK == 3
    nslots = 240 if B else 160
    GAP = opt.get('gap', 6)
    if B:
        ep = [ffn_epi(T) for T in range(4)]
        if opt.get('fburst', 1):
            fill2 = [x for e in ep for x in e[:-1]] + [lambda: [e[-1]() for e in ep]] + ([gstore[0]] if opt.get('gmerge', 0) else []) + [lambda: st('fst')] + lb_expect()
        else: fill2 = ep[0] + ep[1] + ep[2] + ep[3] + [lambda: st('fst')] + lb_expect()
        cq = cD(0, 16); ncq = 0
        if SJL: events[opt.get('sjd', 182)] = [sj_dma]
        else: events[opt.get('wpoll', 230)] = [fl_issue('W')]
    rd = []
    for i in range(nslots):
        if i < 160:
            k, T = divmod(i, 4)
            if T == 0:
                if k + 2 < 40:
                    rd = reads1(k + 2)
                    if (k + 2) % 4 == 0:
                        pend += sync1((k + 2) // 4)
                        rd = gate_reads((k + 2) // 4) + rd; prio += gate_step((k + 2) // 4)
                        if k + 2 == 36: prio += gate_fin()
                p.wait(lg='k%d' % k)
            p(mfma1(k, T))
        else:
            if i == 160:
                for x in prio + fill: put(x)
                st('pass1'); prio = []; fill = fill2
                c_srd()
            if i % 2 == 0: p.wait(lg=['m%d' % (i - 160), 'm%d' % (i - 159)])
            p(mfma2(i - 160))
        budget = GAP
        if opt.get('fine') == 1 and i % 16 == 9 and i < 160: st('s%d' % i)
        if opt.get('fine') == 2 and i % 8 == 0 and i > 160: st('s%d' % i)
        m = i + L2 - 160
        if B and 0 <= m < 80:
            if m in (0, 32, 64): p.wait(vm='s2c%d' % (m // 32), lg='all'); p('s_barrier')
            for x in reads2(m): put(x); budget -= 1
        nrd = -(-len(rd) // (4 - i % 4))
        for _ in range(nrd): put(rd.pop(0)); budget -= 1
        if pend and (i % 2 == 1 or sum(not isinstance(x, str) for x in pend) > (23 - i % 16 if i % 16 >= 8 else 7 - i % 16) // 2 + 1):
            while isinstance(pend[0], str): put(pend.pop(0)); budget -= 1
            budget -= 3 if callable(pend[0]) else 1
            put(pend.pop(0))
            while pend and isinstance(pend[0], str): put(pend.pop(0)); budget -= 1
        elif B and i > 160 and i % 2 == 1 and cq and i >= opt.get('cstart', 161) and (ncq < 16 or (ncq < 24 and m > 32) or m > 64):
            put(cq.pop(0)); ncq += 1; budget -= 2
        for x in events.pop(i, []): put(x); budget -= 1
        if i == 146: assert not (B and pend); fill += c_setup()
        if i < 160:
            if i % 16 >= 13 or i % 16 < 8:
                n = 0
                while prio and budget > 0 and n < 2: put(prio.pop(0)); budget -= 1; n += 1
            want = -(-len(fill) // max(1, 158 - i)) if i >= 2 else 0
            for _ in range(min(want, budget)):
                if fill: put(fill.pop(0))
        elif i > 160:
            while fill and budget > 0: put(fill.pop(0)); budget -= 1
        p.check_depth()
    assert not pend and not rd and not events
    bpre = b_loads(0) + b_loads(1) + b_loads(2)
    if B:
        assert not fill
        for x in cq: put(x)
        st('pass2')
        signal(0, ['hf', 'sjs', 'gst'])()
        for x in scanA1(0): put(x)
        if not SJL: fl_check('W', False)()
        p.wait(lg='ex'); p('s_barrier')
        for x in ex_reads(0, 52): put(x)
        if SJL: w2_signal()
        hid_srd()
        p.wait(lg='exr0')
        for x in ex_prefix(0, 52, True) + ex_pub(0, 52): put(x)
        st('pub')
        e0 = [52 + 4 * k for k in range(8)]
        LBR = opt.get('lbr', -1)
        if SJL:
            NX = 25; NP = opt.get('np', 21)
            for x in cR(0, 9) + sprinkle(cR(9, 16) + ex_own(0, 52) + scanA2(0), cD(16, NP) + [fl_issue('FW')] + cD(NP, NX), 4): put(x)
            st('end1')
            fl_check('FW')()
            st('fok')
            if LBR < 0: lb_loads(0, e0)
            for x in a_loads(0) + bpre[:7] + a_loads(1) + bpre[7:]: put(x)
        else:
            NX = opt.get('nx', 22); NP = opt.get('np', 18)
            for x in cR(0, 6) + sprinkle(cR(6, 16) + ex_own(0, 52) + scanA2(0), bpre + cD(16, NP) + [fl_issue(0)] + cD(NP, NX), 3): put(x)
            if LBR < 0: lb_loads(0, e0)
            st('end1')
            fl_check(0)()
            st('fok')
            NY = min(25, NX + opt.get('ny', 3))
            for x in a_loads(0) + a_loads(1) + cD(NX, NY): put(x)
            NX = NY
        if LBR < 0:
            st('lbstart'); lb_finish(0, e0); st('lbdone')
            for x in scanB(0, True): put(x)
            extra = {8: cR(16, 20)}
            sigS, geo = 2, 1
        else:
            extra = {LBR: [lambda: lb_loads(0, e0)], LBR + 1: [lambda: (st('lbstart'), lb_finish(0, e0), st('lbdone'))] + scanB(0, False), 8: cR(16, 20)}
            sigS, geo = LBR + 4, LBR + 4
    else:
        for x in prio + fill: put(x)
        st('pass1')
        c0 = 0
        for x in interleave(scanA1(0), scanA1(1)): put(x)
        p.wait(lg='all'); p('s_barrier')
        for x in ex_reads(0, 52) + ex_reads(1, 72): put(x)
        hid_srd()
        p.wait(lg='exr1')
        for x in interleave(ex_prefix(0, 52, True), ex_prefix(1, 72, True)) + ex_pub(0, 52) + ex_pub(1, 72): put(x)
        st('pub')
        signal(0, 'gst')()
        if not SJL: fl_issue('W')()
        NA = opt.get('na', 20)
        for x in sprinkle(ex_own(0, 52) + ex_own(1, 72) + lb_expect() + scanA2(0) + scanA2(1), cD(c0, 16), 8) + cR(0, NA - 16) + cD(16, NA): put(x)
        e0 = [60 + 4 * k for k in range(8)]
        e1 = [84, 88] + e0[2:] if LBQ else e0
        lb_loads(0, e0)
        if LBQ: lb_loads(1, e1)
        if not SJL: fl_check('W')()
        for x in cR(NA - 16, 16): put(x)
        st('lbstart')
        lb_finish(0, e0)
        if not LBQ: lb_loads(1, e0)
        if SJL:
            for x in sprinkle(scanB(0, True), cD(NA, 25), 4): put(x)
            NA = 25
            fl_issue('FW')()
        else:
            fl_issue(0)()
            for x in sprinkle(scanB(0, True), bpre, 4): put(x)
        lb_finish(1, e1)
        st('lbdone'); st('end1')
        if SJL:
            for x in scanB(1, True): put(x)
            fl_check('FW')()
            st('fok')
            for x in a_loads(0) + bpre[:7] + a_loads(1) + bpre[7:]: put(x)
        else:
            fl_check(0)()
            st('fok')
            for x in sprinkle(scanB(1, True), a_loads(0) + a_loads(1), 3): put(x)
        extra = {8: cR(16, 20)}
        sigS, geo = 2, 1
    NL = NX if B else NA
    xload = {i: c_dma(NL + i) for i in range(25 - NL)}
    phase2(p, opt, st, a_loads, b_loads, b_reg, c_read, signal, fl_issue, fl_check, extra, xload, sigS, geo)

def phase2(p, opt, st, a_loads, b_loads, b_reg, c_read, signal, fl_issue, fl_check, extra, xload, sigS, geo):
    put = p.put
    ACCB, ACCA = 96, 176
    vG, vX, vLR, vOut = 32, 52, 62, 67
    vCR, vLW, t = 72, 82, 84
    rXT, rO, rSM = 44, 16, 52
    def geom():
        r = []
        def srds():
            p('s_mul_i32 s40, s%d, 160' % sCT); p('s_mul_i32 s41, s%d, %d' % (sRT, 64 * 1280)); p('s_add_u32 s41, s41, s40')
            srd(p, rXT, sX, 64 * 1280 - 1280 + 160, 's41')
            p('s_lshl_b32 s41, s41, 1')
            srd(p, rO, sOUT, 64 * 2560 - 2560 + 320, 's41')
            p('s_lshl_b32 s41, s%d, 9' % sRT); p('s_add_u32 s41, s41, %d' % WS_G)
            p('s_cmp_eq_u32 s%d, 1' % sWV); p('s_cselect_b32 s65, 256, 0'); p('s_add_u32 s41, s41, s65')
            p('s_cmp_eq_u32 s%d, 2' % sWV)
            p('s_cselect_b32 s%d, s%d, s%d' % (rSM, sDSK, sB2)); p('s_cselect_b32 s%d, s%d, s%d' % (rSM + 1, sDSK + 1, sB2 + 1))
            p('s_cmp_lt_u32 s%d, 2' % sWV)
            p('s_cselect_b32 s%d, s%d, s%d' % (rSM, sWS, rSM)); p('s_cselect_b32 s%d, s%d, s%d' % (rSM + 1, sWS + 1, rSM + 1))
            p('s_cselect_b32 s40, s41, s40')
            p('s_mov_b32 s65, 160'); p('s_cselect_b32 s%d, 256, s65' % (rSM + 2))
            p('s_add_u32 s%d, s%d, s40' % (rSM, rSM)); p('s_addc_u32 s%d, s%d, 0' % (rSM + 1, rSM + 1)); p('s_mov_b32 s%d, 0x20000' % (rSM + 3))
        r.append(srds)
        for i in range(5):
            r += ['v_add_u32 v%d, %d, v0' % (t, 256 * i), 'v_mul_u32_u24 v%d, 0xcccd, v%d' % (t + 1, t), 'v_lshrrev_b32 v%d, 20, v%d' % (t + 1, t + 1),
                  'v_mul_u32_u24 v%d, 20, v%d' % (t + 2, t + 1), 'v_sub_u32 v%d, v%d, v%d' % (t + 2, t, t + 2),
                  'v_mul_u32_u24 v%d, 1280, v%d' % (t + 3, t + 1), 'v_lshl_add_u32 v%d, v%d, 3, v%d' % (t + 3, t + 2, t + 3),
                  ('buffer_load_dwordx2 v[%d:%d], v%d, %s, 0 offen' % (vX + 2 * i, vX + 2 * i + 1, t + 3, S4(rXT)), 'X'),
                  'v_lshlrev_b32 v%d, 1, v%d' % (vOut + i, t + 3), 'v_bfe_u32 v%d, v%d, 1, 2' % (t + 3, t + 1), 'v_xor_b32 v%d, v%d, v%d' % (t + 3, t + 3, t + 2), 'v_mul_u32_u24 v%d, 320, v%d' % (vLR + i, t + 1),
                  'v_add_u32 v%d, %d, v%d' % (vLR + i, PB, vLR + i), 'v_lshl_add_u32 v%d, v%d, 4, v%d' % (vLR + i, t + 3, vLR + i),
                  'v_lshl_add_u32 v%d, v%d, 3, s66' % (vCR + 2 * i, t + 2), 'v_lshl_add_u32 v%d, v%d, 3, s66' % (vCR + 2 * i + 1, t + 1)]
        r += ['v_and_b32 v%d, 15, v%d' % (t, vLANE), 'v_mul_u32_u24 v%d, 320, v%d' % (vLW, t), 'v_lshrrev_b32 v%d, 4, v%d' % (t + 1, vLANE),
              'v_bfe_u32 v%d, v%d, 1, 2' % (t + 2, t), 'v_xor_b32 v%d, v%d, v%d' % (t + 1, t + 1, t + 2),
              'v_lshl_add_u32 v%d, v%d, 4, v%d' % (vLW, t + 1, vLW), 'v_mul_u32_u24 v%d, %d, v%d' % (t + 1, 64 * 320, vWAVE),
              'v_add_u32 v%d, v%d, v%d' % (vLW, vLW, t + 1), 'v_add_u32 v%d, %d, v%d' % (vLW, PB, vLW),
              'v_lshl_add_u32 v%d, v%d, 3, s66' % (vLW + 1, t), 'v_lshlrev_b32 v%d, 2, v%d' % (48, vLANE)]
        return r
    def sm_dma():
        p('s_lshl_b32 s40, s%d, 8' % sWV); p('s_add_u32 m0, s40, %d' % SM2)
        p('buffer_load_dword v48, %s, 0 offen sc1 lds' % S4(rSM), tag='SM')
    def bias():
        def f_sync(): p.wait(vm=['SM', 'X']); p('s_barrier')
        r = [f_sync]
        r += [('ds_read_b64 v[%d:%d], v%d offset:%d' % (vG + 2 * m, vG + 2 * m + 1, vLW + 1, 128 * m), 'g') for m in range(4)]
        for i in range(5):
            r += [('ds_read_b64 v[%d:%d], v%d' % (t, t + 1, vCR + 2 * i + 1), 'c'), ('ds_read_b64 v[%d:%d], v%d offset:512' % (t + 2, t + 3, vCR + 2 * i), 'c'),
                  ('ds_read_b64 v[%d:%d], v%d offset:768' % (t + 4, t + 5, vCR + 2 * i), 'c')]
            for h in range(2):
                r += ['v_lshlrev_b32 v%d, 16, v%d' % (t + 6 + 2 * h, vX + 2 * i + h), 'v_and_b32 v%d, 0xffff0000, v%d' % (t + 7 + 2 * h, vX + 2 * i + h)]
            r.append(lambda: p.wait(lg='c'))
            for h in range(2):
                r += ['v_lshlrev_b32 v48, 16, v%d' % (t + 2 + h), 'v_and_b32 v49, 0xffff0000, v%d' % (t + 2 + h),
                      'v_lshlrev_b32 v50, 16, v%d' % (t + 4 + h), 'v_and_b32 v51, 0xffff0000, v%d' % (t + 4 + h)]
                for e in range(2):
                    d = (vCR if h else vX) + 2 * i + e
                    r += ['v_mul_f32 v%d, v%d, v%d' % (48 + e, 48 + e, t + 6 + 2 * h + e), 'v_mul_f32 v%d, v%d, v%d' % (d, t + 1, 50 + e),
                          'v_fmac_f32 v%d, v%d, v%d' % (d, t, 48 + e)]
        r += ['v_add_f32 v%d, v%d, v%d' % (vG + 2 * m, vG + 2 * m, vG + 2 * m) for m in range(4)]
        return r
    def scale():
        r = []
        for m in range(4):
            for n in range(5):
                r += ['v_mul_f32 v%d, v%d, v%d' % (ACCB + 20 * m + 4 * n + z, vG + 2 * m + 1, ACCB + 20 * m + 4 * n + z) for z in range(4)]
        return r
    def comb(k, pk):
        n, m = divmod(k, 5)[::-1] if opt.get('tsplit', 1) else divmod(k, 4)
        a = ACCA + 20 * m + 4 * n; bb = ACCB + 20 * m + 4 * n
        if pk:
            for r in (0, 2): p('v_pk_fma_f32 %s, %s, %s, %s op_sel:[0,0,0] op_sel_hi:[0,1,1]' % (P2(bb + r), P2(vG + 2 * m), P2(a + r), P2(bb + r)))
        else:
            for r in range(4): p('v_fmac_f32 v%d, v%d, v%d' % (bb + r, vG + 2 * m, a + r))
        p('ds_write_b128 v%d, v[%d:%d] offset:%d' % (vLW, bb, bb + 3, m * 16 * 320 + n * 64), tag='w')
    p('s_mov_b32 s66, %d' % SM2)
    fill = []
    NS = 22; LA = 2
    NF0 = opt.get('nf0', 9)
    seq = list(range(NF0)); rest = list(range(NF0, 12)); sr = list(range(12, 22))
    for j in range(len(rest)):
        n = -(-(len(sr) - 3) // (len(rest) - j))
        seq += sr[:n] + [rest[j]]; sr = sr[n:]
    seq += sr
    pos = {r: i for i, r in enumerate(seq)}
    bq = []; nb = 3
    for i in range(NS):
        r = seq[i]; pre = []
        fill += extra.get(i, [])
        if i == sigS: pre += [signal(1, ['hs', 'gst'])]
        if i == geo: fill += geom() + [sm_dma]
        if i == geo + 3: fill += bias()
        if i == pos[12] - LA - 1: pre += [fl_issue(1)]
        if i == pos[12] - LA: pre += [fl_check(1)]
        if i == pos[11] + 1: fill += scale()
        if i == pos[13] + 1:
            fill = [x for n in range(5) for x in c_read(20 + n, AX + 8 * n)] + fill
        if i == pos[13] + 3: pre += [lambda: (p.wait(lg='cr24'), p('s_barrier'))]
        p.wait(vm=['A%d' % r, 'B%d' % r])
        if opt.get('fine') == 3 and i not in (0, 6, 12): st('r%d' % i)
        if i == 0: st('p2first')
        if i == 6: st('p2_6')
        if i == 12: st('p2_12')
        while nb < 12 and pos[nb - 3] < i: bq.append([nb, b_loads(nb)]); nb += 1
        nxt = a_loads(seq[i + LA], i + LA) if i + LA < NS else []
        if bq:
            f, it = bq[0]; left = sum(not isinstance(x, str) for x in it)
            n = -(-left // max(1, pos[f] - LA - i + 1))
            while n:
                x = it.pop(0); nxt.append(x)
                if not isinstance(x, str): n -= 1
            if not it: bq.pop(0)
        nxt += xload.get(i, [])
        acc = ACCB if r < 12 else ACCA
        first = r in (0, 12)
        bh = AH + 16 * (i % 3)
        k = 0
        TS = opt.get('tsplit', 1)
        for n, m in ([(n, m) for m in range(4) for n in range(5)] if (i == NS - 1 and TS) else [(n, m) for n in range(5) for m in range(4)]):
            if True:
                a = acc + 20 * m + 4 * n
                bk, bw = b_reg(r, n)
                p('v_mfma_f32_16x16x32_bf16 v[%d:%d], %s[%d:%d], a[%d:%d], %s' % (a, a + 3, bk, bw, bw + 3, bh + 4 * m, bh + 4 * m + 3,
                                                                              '0' if first else 'v[%d:%d]' % (a, a + 3)))
                k += 1
                if k == 1:
                    for x in pre: put(x)
                if nxt and (k % 2 == 1 or sum(not isinstance(x, str) for x in nxt) > (21 - k) // 2):
                    while isinstance(nxt[0], str): put(nxt.pop(0))
                    put(nxt.pop(0))
                for _ in range(opt.get('fill2', 3) if i < 12 else 2):
                    if fill: put(fill.pop(0))
                if i == NS - 1 and 3 < k < (14 if TS else 99): comb(k - 4, False)
        assert not nxt and not (i == NS - 2 and fill)
        p.check_depth()
    assert not bq and nb == 12
    assert not fill
    st('mainend')
    R = ACCA
    def rd(i):
        for w in range(4):
            p('ds_read_b128 v[%d:%d], v%d offset:%d' % (R + 16 * i + 4 * w, R + 16 * i + 4 * w + 3, vLR + i, w * 64 * 320), tag='r%d' % i)
    def fin(i):
        p.wait(lg='r%d' % i)
        for r in (0, 2):
            p('v_pk_add_f32 %s, %s, %s' % (P2(R + 16 * i + r), P2(R + 16 * i + r), P2(R + 16 * i + 4 + r)))
            p('v_pk_add_f32 %s, %s, %s' % (P2(R + 16 * i + 8 + r), P2(R + 16 * i + 8 + r), P2(R + 16 * i + 12 + r)))
        bb = {0: vX + 2 * i, 2: vCR + 2 * i}
        for r in (0, 2): p('v_pk_add_f32 %s, %s, %s' % (P2(bb[r]), P2(bb[r]), P2(R + 16 * i + r)))
        for r in (0, 2): p('v_pk_add_f32 %s, %s, %s' % (P2(R + 16 * i + r), P2(bb[r]), P2(R + 16 * i + 8 + r)))
        p('buffer_store_dwordx4 v[%d:%d], v%d, %s, 0 offen%s' % (R + 16 * i, R + 16 * i + 3, vOut + i, S4(rO), opt.get('out_sc', SC)), tag='o')
    if TS:
        p.wait(lg='all'); p('s_barrier')
        rd(0); rd(1)
        for k in range(10, 15): comb(k, True)
        fin(0)
        for k in range(15, 20): comb(k, True)
        fin(1)
        p.wait(lg='all'); p('s_barrier')
        st('red')
        for i in range(2, 5): rd(i)
        for i in range(2, 5): fin(i)
    else:
        for k in range(17, 20): comb(k, True)
        p.wait(lg='all'); p('s_barrier')
        st('red')
        for i in range(5): rd(i)
        for i in range(5): fin(i)
    st('stored')
    if opt.get('echo'):
        p.wait(vm='all'); st('drained'); p.wait(lg='all', force=True)
        l = p.newlabel('L_echo'); ins = 's_memtime' if opt['echo'] == 'cyc' else 's_memrealtime'
        if opt['echo'] == 'cyc': p('s_mov_b32 s1, 20000')
        else: p('s_sub_u32 s1, s%d, s0' % sST)
        p(ins + ' s[4:5]'); p.wait(lg='all', force=True)
        p.label(l)
        p(ins + ' s[6:7]'); p.wait(lg='all', force=True)
        p('s_sub_u32 s6, s6, s4'); p('s_cmp_lt_u32 s6, s1'); p('s_cbranch_scc1 ' + l)
    if opt.get('stamps'):
        p.wait(vm='all'); st('drained'); st('rt1')
    st.dump(sWS, 60, 48)
```

```python
from emit import Prog
from common import *

LDS_BYTES = 163840
SPIN_MAX = 100000
SLOT = 32768
XREG = 4 * SLOT
SMO = XREG + 28672 + 2048
TRO = 2 * SLOT + 4096
EXO = 2 * SLOT + 6144
SM2 = 2 * SLOT + 2 * 8192 + 6144
PB = 0
CPL = [3 * SLOT, 4 * SLOT, 0, SLOT]
vRX3, vRS3, vRF3, vGA3 = 72, 68, 76, 78
LOG2E = '0x3fb8aa3b'
INV2PI = '0.15915494'
SC = ' sc1'

sX, sLRE, sLIM, sBRE, sBIM, sCRE, sCIM, sLDT = 4, 6, 8, 10, 12, 14, 16, 18
sDSK, sW1, sB1, sW2, sB2, sGATE, sOUT, sDBG, sWS = 20, 24, 26, 28, 30, 32, 34, 36, 38
rX, rP0, rP1, rWS = 44, 48, 52, 56
rE, rHID, rW2P, rSJ, rF2, rC = 44, 48, 8, 8, 92, 92
sM = 12
SIG = 70
sNON, sHF, sRB, sCG, sG, sQ, sWV, sRT, sCT, sSEL, sFL = 80, 81, 82, 83, 84, 85, 86, 87, 88, 89, 90
sSEL5 = sSEL
sSJO2 = 26
sSJO, sSJD, sSJK = 91, 96, 22
sST = 100
vLANE, vWAVE, vHH = 1, 2, 3
vDX, vDS, vD2 = 4, 8, 10
vRX, vRS, vRF = 12, 20, 28
vSTF, vL16, vEXA, vTW, vEO = 32, 33, 34, 36, 40
vDJ = 62
vB, vFP, vA = 41, 43, 44
vZ, vPOLL = 45, 46
vDC, vRC, vWP = 4, 6, 92
vT = 48
vN = 79
vGA = 80
vGW = 52
vST = 95
SAC = [176, 96]
TAB = [208, 128]
CON = [240, 160]
FAC = 96
AX = 0
AW = 160
AW2 = 208
AH = 160
PARTS = [(0, 6), (6, 6)]

def order(n, c, delta):
    return sorted(range(n), key=lambda i: (i - (delta if i % 4 == c else 0), 0 if i % 4 == c else 1))
def P2(r): return 'v[%d:%d]' % (r, r + 1)
def S4(r): return 's[%d:%d]' % (r, r + 3)
def S2(r): return 's[%d:%d]' % (r, r + 1)
def cmul(dr, di, ar, ai, br, bi):
    return ['v_mul_f32 v%d, v%d, v%d' % (dr, ar, br), 'v_mul_f32 v%d, v%d, v%d' % (di, ar, bi),
            'v_fma_f32 v%d, -v%d, v%d, v%d' % (dr, ai, bi, dr), 'v_fmac_f32 v%d, v%d, v%d' % (di, ai, br)]
def cm(d, a, b): return cmul(d, d + 1, a, a + 1, b, b + 1)
def cfma(dr, di, a, br, bi):
    return ['v_fmac_f32 v%d, v%d, v%d' % (dr, a, br), 'v_fmac_f32 v%d, v%d, v%d' % (di, a, bi),
            'v_fma_f32 v%d, -v%d, v%d, v%d' % (dr, a + 1, bi, dr), 'v_fmac_f32 v%d, v%d, v%d' % (di, a + 1, br)]
def pcfma(d, a, b):
    return ['v_pk_fma_f32 %s, %s, %s, %s op_sel:[0,0,0] op_sel_hi:[0,1,1]' % (P2(d), P2(a), P2(b), P2(d)),
            'v_pk_fma_f32 %s, %s, %s, %s op_sel:[1,1,0] op_sel_hi:[1,0,1] neg_lo:[1,0,0]' % (P2(d), P2(a), P2(b), P2(d))]
def pcmul(d, a, b):
    return ['v_pk_mul_f32 %s, %s, %s op_sel:[0,0] op_sel_hi:[0,1]' % (P2(d), P2(a), P2(b)),
            'v_pk_fma_f32 %s, %s, %s, %s op_sel:[1,1,0] op_sel_hi:[1,0,1] neg_lo:[1,0,0]' % (P2(d), P2(a), P2(b), P2(d))]
def csq(d, a):
    return ['v_mul_f32 v%d, v%d, v%d' % (d, a, a), 'v_add_f32 v%d, v%d, v%d' % (d + 1, a, a),
            'v_fma_f32 v%d, -v%d, v%d, v%d' % (d, a + 1, a + 1, d), 'v_mul_f32 v%d, v%d, v%d' % (d + 1, d + 1, a + 1)]
def interleave(*ls):
    out = []; ls = [list(l) for l in ls]
    while any(ls):
        for l in ls:
            if l: out.append(l.pop(0))
    return out
def sprinkle(main, extra, every):
    out = []; extra = list(extra)
    for i, x in enumerate(main):
        out.append(x)
        if i % every == every - 1 and extra:
            while isinstance(extra[0], str): out.append(extra.pop(0))
            out.append(extra.pop(0))
    return out + extra
def unpack(dst, src, n):
    r = []
    for k in range(n):
        r.append('v_lshlrev_b32 v%d, 16, v%d' % (dst + 2 * k, src + k))
        r.append('v_and_b32 v%d, 0xffff0000, v%d' % (dst + 2 * k + 1, src + k))
    return r

def dma_stage(s):
    sl = (s % 5) * SLOT; tg = 'st%d' % s; so = SIG + s
    r = ['s_add_u32 m0, s43, %d' % sl, 's_mul_i32 s61, s%d, s63' % so]
    r += [('buffer_load_dwordx4 v%d, %s, s%d offen offset:%d lds' % (vDX + i, S4(rX), so, 1024 * i), tg) for i in range(4)]
    r += ['s_add_u32 m0, s43, %d' % (sl + 4096)]
    r += [('buffer_load_dwordx4 v%d, %s, s%d offen offset:%d lds' % (vDS + i, S4(rP0), so, 1024 * i), tg) for i in range(2)]
    r += [('buffer_load_dwordx4 v%d, %s, s61 offen offset:%d lds' % (vD2 + i, S4(rP1), 1024 * i + 2048), tg) for i in range(2)]
    return r

def gen(name, opt):
    p = Prog()
    st = Stamps(p, sST, vST, opt.get('stamps'))
    st.echo = opt.get('echo')
    def put(x):
        if callable(x): x()
        elif isinstance(x, tuple): p(x[0], tag=x[1])
        else: p(x)
    p.put = put
    p.label(name)
    p('s_cmp_ge_u32 s2, 256')
    p('s_cbranch_scc1 L_end')
    p('s_load_dwordx16 s[4:19], s[0:1], 0')
    p('s_load_dwordx8 s[20:27], s[0:1], 64')
    p('s_load_dwordx8 s[28:35], s[0:1], 96')
    p('s_load_dwordx4 s[36:39], s[0:1], 128')
    p('s_memrealtime s[64:65]')
    if opt.get('stamps'): p('s_memrealtime s[66:67]'); p('%s s[68:69]' % ('s_memrealtime' if opt['stamps'] == 2 else 's_memtime'))
    p('s_lshr_b32 s3, s2, 3')
    code_prefetch(p, 'L_end', 44, 40, 3)
    p('v_and_b32 v%d, 63, v0' % vLANE)
    p('v_lshrrev_b32 v%d, 6, v0' % vWAVE)
    p('s_and_b32 s%d, s2, 7' % sHF)
    p('s_lshr_b32 s40, s%d, 1' % sHF)
    p('s_lshl_b32 s%d, s40, 2' % sRB)
    p('s_and_b32 s41, s3, 3')
    p('v_readfirstlane_b32 s%d, v%d' % (sWV, vWAVE))
    p('s_add_u32 s%d, s%d, s41' % (sRB, sRB))
    p('s_and_b32 s%d, s%d, 1' % (sHF, sHF))
    p('s_lshr_b32 s%d, s3, 2' % sCG)
    p('s_add_u32 s41, s41, s%d' % sCG); p('s_and_b32 s41, s41, 3'); p('s_lshl_b32 s41, s41, 3'); p('s_or_b32 s41, s41, 0x80000')
    p('s_mul_i32 s40, s40, 5'); p('s_add_u32 s40, s40, 1'); p('s_lshr_b32 s40, s40, 1')
    p('s_mul_i32 s60, s%d, 5' % sHF); p('s_add_u32 s40, s40, s60')
    if not opt.get('rot', 1): p('s_mov_b32 s40, 0')
    p('s_sub_u32 s60, s40, 10'); p('s_cmp_ge_u32 s40, 10'); p('s_cselect_b32 s40, s60, s40')
    tabs = [order(10, c, opt.get('d1', 3)) for c in range(4)]
    if opt.get('hyb'): tabs = [[0] + [1 + x for x in order(9, c, opt.get('d1', 3))] for c in range(4)]
    def sigma(i):
        lit = sum(tabs[c][i] << (8 * c) for c in range(4)); s = SIG + i
        return ['s_bfe_u32 s%d, 0x%x, s41' % (s, lit), 's_add_u32 s%d, s%d, s40' % (s, s), 's_sub_u32 s60, s%d, 10' % s,
                's_min_u32 s%d, s60, s%d' % (s, s), 's_lshl_b32 s%d, s%d, 7' % (s, s)]
    for x in sigma(0): p(x)
    p('s_mul_i32 s%d, s%d, 10' % (sG, sHF))
    p('s_lshl_b32 s%d, s%d, 1' % (sQ, sCG))
    p('s_add_u32 s60, s%d, 2' % sCG)
    p('s_cmp_lt_u32 s%d, 2' % sCG)
    p('s_cselect_b32 s60, s%d, s60' % sQ)
    p('s_cselect_b32 s63, 1, 1536')
    p('s_add_u32 s%d, s%d, s60' % (sG, sG))
    p('s_mul_i32 s60, s%d, 12' % sHF)
    p('s_add_u32 s%d, s%d, s60' % (sQ, sQ))
    p('s_sub_u32 s%d, s%d, 4' % (sQ, sQ))
    t = vT
    p('v_lshrrev_b32 v%d, 3, v%d' % (t, vLANE))
    p('v_and_b32 v%d, 7, v%d' % (t + 1, vLANE))
    p('v_lshrrev_b32 v%d, 4, v%d' % (t + 2, vLANE))
    p('v_and_b32 v%d, 3, v%d' % (t + 3, t))
    p('v_lshrrev_b32 v%d, 5, v%d' % (vHH, vLANE))
    p('v_lshl_add_u32 v%d, v%d, 4, v%d' % (t + 3, vHH, t + 3))
    p('v_lshl_add_u32 v%d, v%d, 5, v%d' % (t + 3, vWAVE, t + 3))
    p('v_mul_u32_u24 v%d, 1280, v%d' % (t + 3, t + 3))
    p('v_xor_b32 v%d, v%d, v%d' % (t + 5, t + 1, t + 2))
    p('v_xor_b32 v%d, 4, v%d' % (t + 6, t + 5))
    for i in range(4):
        p('v_lshl_add_u32 v%d, v%d, 4, v%d' % (vDX + i, t + 5 + (i & 1), t + 3))
        if i: p('v_add_u32 v%d, %d, v%d' % (vDX + i, 4096 * i, vDX + i))
    p('v_and_b32 v%d, 1, v%d' % (t + 7, vWAVE))
    p('v_lshl_add_u32 v%d, v%d, 4, v%d' % (t + 7, t + 7, t))
    p('v_mul_u32_u24 v%d, 1280, v%d' % (t + 7, t + 7))
    p('v_lshl_add_u32 v%d, v%d, 4, v%d' % (vDS, t + 5, t + 7))
    p('v_lshl_add_u32 v%d, v%d, 4, v%d' % (vDS + 1, t + 6, t + 7))
    p('v_add_u32 v%d, %d, v%d' % (vDS + 1, 8 * 1280 - 1024, vDS + 1))
    p('v_lshl_add_u32 v%d, v%d, 4, v%d' % (t + 7, vWAVE, t))
    p('v_mul_u32_u24 v%d, 3072, v%d' % (t + 7, t + 7))
    p('v_and_b32 v%d, 1, v%d' % (t + 8, t + 2))
    p('v_lshlrev_b32 v%d, 2, v%d' % (t + 8, t + 8))
    p('v_xor_b32 v%d, v%d, v%d' % (t + 8, t + 8, t + 1))
    p('v_lshl_add_u32 v%d, v%d, 4, v%d' % (vD2, t + 8, t + 7))
    p('s_cmp_lt_u32 s%d, 2' % sCG)
    p('s_cselect_b64 vcc, -1, 0')
    p('v_add_u32 v%d, %d, v%d' % (vD2 + 1, 8 * 3072 - 1024, vD2))
    p('v_cndmask_b32 v%d, v%d, v%d, vcc' % (vD2, vD2, vDS))
    p('v_cndmask_b32 v%d, v%d, v%d, vcc' % (vD2 + 1, vD2 + 1, vDS + 1))
    p('s_lshl_b32 s42, s%d, 7' % sQ); p('s_max_i32 s42, s42, 0')
    p('s_lshl_b32 s43, s%d, 13' % sWV)
    a = 58
    p('v_lshl_add_u32 v%d, v%d, 5, v%d' % (a, vWAVE, vLANE))
    DW = opt.get('dwarm', 1)
    p('v_min_u32 v%d, %d, v%d' % (a, 127 if DW else 119, a))
    p('v_lshlrev_b32 v%d, 4, v%d' % (a + 1, a))
    p('s_lshl_b32 s60, s%d, 6' % sG)
    p('v_cmp_le_u32 s[92:93], 8, v%d' % a); p('v_cmp_le_u32 s[94:95], 16, v%d' % a); p('v_cmp_le_u32 s[96:97], 24, v%d' % a); p('v_cmp_le_u32 s[98:99], 40, v%d' % a)
    p('v_and_b32 v%d, 0x70, v%d' % (a + 2, a + 1)); p('v_add_u32 v%d, s60, v%d' % (a + 2, a + 2)); p('v_min_u32 v%d, 1264, v%d' % (a + 2, a + 2))
    p('v_subrev_u32 v%d, %d, v%d' % (a + 3, 16 * 24, a + 1)); p('v_add_u32 v%d, s42, v%d' % (a + 3, a + 3))
    p('v_cndmask_b32 v%d, v%d, v%d, s[96:97]' % (a + 2, a + 2, a + 3))
    p('v_subrev_u32 v%d, %d, v%d' % (a + 3, 16 * 40, a + 1))
    p('v_cndmask_b32 v%d, v%d, v%d, s[98:99]' % (a + 2, a + 2, a + 3))
    if DW:
        p('s_lshl_b32 s60, s%d, 2' % sHF); p('s_and_b32 s61, s3, 3'); p('s_add_u32 s60, s60, s61'); p('s_mul_i32 s60, s60, 160')
        p('v_cmp_le_u32 s[90:91], 0x78, v%d' % a) if False else None
        p('v_and_b32 v%d, 3, v%d' % (a + 3, a)); p('v_mul_u32_u24 v%d, 48, v%d' % (a + 3, a + 3)); p('v_add_u32 v%d, s60, v%d' % (a + 3, a + 3))
        p('v_cmp_le_u32 vcc, 0x78, v%d' % a); p('s_mov_b64 s[70:71], vcc') if False else None
        p('v_cndmask_b32 v%d, v%d, v%d, vcc' % (a + 2, a + 2, a + 3)); p('s_mov_b64 s[76:77], vcc')
        p('v_cmp_le_u32 vcc, 0x7c, v%d' % a); p('s_nop 0'); p('s_mov_b64 s[78:79], vcc')
    p('v_mov_b32 v%d, 0' % (a + 3))
    p('s_mul_i32 s60, s%d, %d' % (sRB, 128 * 1280))
    p('s_mul_i32 s61, s%d, %d' % (sG, 32 * 1280))
    p.wait(lg='all')
    if opt.get('echo'): p('s_mov_b32 s0, s64')
    if opt.get('stamps'):
        p('v_writelane_b32 v%d, s66, 0' % vST); p('v_writelane_b32 v%d, s68, 1' % vST); st.names += ['rt0', 'start']; st.n = 2
    st('karg')
    if opt.get('wsoff'): p('s_add_u32 s%d, s%d, %d' % (sWS, sWS, opt['wsoff'] << 20)); p('s_addc_u32 s%d, s%d, 0' % (sWS + 1, sWS + 1))
    srd(p, rX, sX, 128 * 1280, 's60')
    p('s_mov_b32 s65, s61')
    d0 = dma_stage(0)
    XF = opt.get('xfirst', 0)
    def small():
        p('s_lshl_b32 s60, s%d, 9' % sWV); p('s_add_u32 m0, s60, %d' % SMO)
        p('v_mov_b32 v%d, s%d' % (a + 4, sLRE)); p('v_mov_b32 v%d, s%d' % (a + 5, sLRE + 1))
        for m, sb in ((92, sLIM), (94, sLDT), (96, sB1), (98, sGATE)) + (((76, sDSK), (78, sB2)) if DW else ()):
            p('v_mov_b32 v%d, s%d' % (a + 6, sb)); p('v_mov_b32 v%d, s%d' % (a + 7, sb + 1))
            p('v_cndmask_b32 v%d, v%d, v%d, %s' % (a + 4, a + 4, a + 6, S2(m))); p('v_cndmask_b32 v%d, v%d, v%d, %s' % (a + 5, a + 5, a + 7, S2(m)))
        p('v_lshl_add_u64 v[%d:%d], v[%d:%d], 0, v[%d:%d]' % (a + 4, a + 5, a + 2, a + 3, a + 4, a + 5))
        p('s_mov_b32 exec_hi, 0')
        p('global_load_lds_dwordx4 v[%d:%d], off' % (a + 4, a + 5), tag='sm')
        p('s_mov_b64 exec, -1')
    if not XF: small()
    for x in d0[:6]: put(x)
    if XF: small()
    p('s_cmp_lt_u32 s%d, 2' % sWV)
    p('s_cselect_b32 s%d, s%d, s%d' % (rP0, sBRE, sBIM)); p('s_cselect_b32 s%d, s%d, s%d' % (rP0 + 1, sBRE + 1, sBIM + 1))
    p('s_add_u32 s%d, s%d, s65' % (rP0, rP0)); p('s_addc_u32 s%d, s%d, 0' % (rP0 + 1, rP0 + 1))
    p('s_sub_u32 s%d, %d, s65' % (rP0 + 2, 640 * 1280)); p('s_mov_b32 s%d, 0x20000' % (rP0 + 3))
    p('s_cmp_lt_u32 s%d, 2' % sCG)
    p('s_cselect_b32 s%d, s%d, s%d' % (rP1, rP0, sW1)); p('s_cselect_b32 s%d, s%d, s%d' % (rP1 + 1, rP0 + 1, sW1 + 1))
    p('s_cselect_b32 s%d, s%d, %d' % (rP1 + 2, rP0 + 2, 640 * 3072)); p('s_cselect_b32 s60, %d, s42' % (32 * 1280))
    p('s_sub_u32 s60, s60, 2048'); p('s_ashr_i32 s65, s60, 31')
    p('s_add_u32 s%d, s%d, s60' % (rP1, rP1)); p('s_addc_u32 s%d, s%d, s65' % (rP1 + 1, rP1 + 1)); p('s_sub_u32 s%d, s%d, s60' % (rP1 + 2, rP1 + 2))
    put(d0[6])
    p('s_mov_b32 s%d, 0x20000' % (rP1 + 3))
    for x in d0[7:]: put(x)
    st('dma0')
    srd(p, rWS, sWS, WS_USED)
    l = p.newlabel('L_nn')
    p('s_or_b32 s64, s64, 1')
    p('v_mov_b32 v%d, 0' % vZ)
    p('s_or_b32 s60, s2, s%d' % sWV)
    p('s_cmp_lg_u32 s60, 0')
    p('s_cbranch_scc1 ' + l)
    p('v_mov_b32 v52, s64')
    p('s_mov_b64 exec, 1')
    p('global_store_dword v%d, v52, %s sc1' % (vZ, S2(sDBG)), optional=True)
    p('s_mov_b64 exec, -1')
    p.label(l)
    for i in range(1, 10):
        for x in sigma(i): p(x)
    for x in addr_setup() + late_setup(opt.get('cls', 1), 1): put(x)
    p('s_cmp_lt_u32 s%d, 2' % sCG)
    p('s_cbranch_scc1 L_typeA')
    save = (list(p.vm), list(p.lg), p.smem, st.n, st.pending); seen0 = set(p.seen)
    body(p, 'B', opt, st)
    names1 = list(st.names)
    p('s_branch L_end')
    p.label('L_typeA')
    p.vm, p.lg, p.smem, st.n, st.pending = list(save[0]), list(save[1]), save[2], save[3], save[4]
    st.names = st.names[:st.n]; p.seen = seen0
    body(p, 'A', opt, st)
    p.namesA = list(st.names); st.names = names1
    p.label('L_end')
    p('s_endpgm')
    p.finalize(opt.get('verbose'))
    return p, dict(A=p.namesA, B=st.names)

def addr_setup():
    n_, h_ = vN, vHH
    r = ['v_and_b32 v%d, 31, v%d' % (n_, vLANE), 'v_lshrrev_b32 v48, 1, v%d' % n_, 'v_and_b32 v48, 7, v48',
         'v_xor_b32 v48, v48, v%d' % h_, 'v_lshlrev_b32 v49, 7, v%d' % n_, 'v_add_u32 v49, s43, v49',
         'v_lshrrev_b32 v50, 4, v%d' % n_, 'v_lshlrev_b32 v50, 13, v50', 'v_and_b32 v51, 15, v%d' % n_, 'v_lshl_add_u32 v50, v51, 7, v50']
    for s in range(4):
        r += ['v_xor_b32 v51, %d, v48' % (2 * s), 'v_lshl_add_u32 v%d, v51, 4, v49' % (vRX + s), 'v_lshl_add_u32 v%d, v51, 4, v50' % (vRS + s),
              'v_add_u32 v%d, 0x10000, v%d' % (vRX + 4 + s, vRX + s), 'v_add_u32 v%d, 0x10000, v%d' % (vRS + 4 + s, vRS + s)]
    r += ['v_bfe_u32 v48, v%d, 2, 2' % vLANE, 'v_lshl_add_u32 v49, v%d, 3, v48' % h_, 'v_lshlrev_b32 v49, 7, v49',
          'v_lshrrev_b32 v50, 1, v48', 'v_lshl_add_u32 v49, v50, 6, v49', 'v_and_b32 v50, 1, v%d' % vLANE,
          'v_lshl_add_u32 v49, v50, 5, v49', 'v_bfe_u32 v50, v%d, 4, 1' % vLANE, 'v_lshl_add_u32 v49, v50, 4, v49',
          'v_bfe_u32 v50, v%d, 1, 1' % vLANE, 'v_lshl_add_u32 v%d, v50, 3, v49' % vRF, 'v_xor_b32 v%d, 64, v%d' % (vRF + 1, vRF),
          'v_add_u32 v%d, 0x10000, v%d' % (vRF + 2, vRF), 'v_add_u32 v%d, 0x10000, v%d' % (vRF + 3, vRF + 1)]
    r += ['s_lshl_b32 s62, s%d, 3' % sHF, 's_add_u32 s62, s62, s%d' % sCG, 's_lshl_b32 s%d, s62, 8' % sFL, 's_lshl_b32 s62, s62, 2',
          's_and_b32 s65, s%d, 1' % sWV, 's_lshl_b32 s65, s65, 1', 's_add_u32 s62, s62, s65', 's_lshl_b32 s65, s65, 6', 's_add_u32 s%d, s%d, s65' % (sFL, sFL),
          's_lshr_b32 s65, s%d, 1' % sWV, 's_lshl_b32 s66, s65, 6', 's_add_u32 s62, s62, s66',
          's_lshl_b32 s66, s%d, 1' % sRB, 's_add_u32 s65, s65, s66', 's_mul_i32 s64, s65, %d' % HID_RT,
          's_lshl_b32 s65, s65, 12', 's_add_u32 s%d, s%d, s65' % (sFL, sFL), 's_add_u32 s%d, s%d, %d' % (sFL, sFL, WS_FH),
          's_and_b32 s65, s%d, 1' % sWV, 's_lshl_b32 s65, s65, 11', 's_add_u32 s64, s64, s65',
          'v_add_u32 v48, s62, v%d' % h_, 's_lshl_b32 s62, s%d, 7' % sRB, 'v_add_lshl_u32 v%d, v48, s62, 3' % (vGA + 9),
          'v_bfe_u32 v49, v48, 2, 2', 'v_bfe_u32 v50, v48, 4, 1', 'v_lshl_add_u32 v49, v49, 1, v50',
          'v_and_b32 v50, 3, v48', 'v_lshl_add_u32 v49, v49, 2, v50',
          'v_lshrrev_b32 v48, 5, v48', 'v_lshlrev_b32 v48, 13, v48', 'v_lshl_add_u32 v48, v49, 7, v48',
          'v_bfe_u32 v49, v49, 1, 3', 'v_lshrrev_b32 v50, 2, v%d' % n_, 'v_xor_b32 v49, v49, v50',
          'v_lshl_add_u32 v48, v49, 4, v48', 'v_and_b32 v49, 3, v%d' % n_, 'v_lshl_add_u32 v%d, v49, 2, v48' % vGA,
          'v_add_u32 v%d, 0x10000, v%d' % (vGA + 1, vGA), 'v_lshlrev_b32 v%d, 2, v%d' % (vGA + 2, n_),
          'v_add_u32 v%d, %d, v%d' % (vGA + 2, SMO + 640, vGA + 2), 'v_mov_b32 v%d, 0' % (vGA + 8),
          's_lshr_b32 s62, s43, 1', 'v_lshlrev_b32 v%d, 4, v%d' % (vL16, vLANE)]
    return r

def sidejob_setup(p, SJO):
    D = sSJD
    for x in ['s_cmp_lt_u32 s2, 224', 's_cselect_b32 s%d, 1, 0' % sSJK, 's_cmp_lt_u32 s%d, 3' % sWV, 's_cselect_b32 s%d, s%d, 0' % (sSJK, sSJK),
              's_sub_u32 s41, s2, 64', 's_lshr_b32 s65, s41, 4',
              's_and_b32 s41, s41, 15', 's_mul_i32 s41, s41, 3', 's_add_u32 s41, s41, s%d' % sWV,
              's_mul_i32 s%d, s41, %d' % (sSJO2, 32 * 1280), 's_lshl_b32 s60, s65, 7', 's_add_u32 s%d, s%d, s60' % (sSJO2, sSJO2),
              's_lshl_b32 s65, s65, 2',
              's_bfe_u32 s60, s41, 0x10001', 's_mul_i32 s60, s60, 24', 's_and_b32 s40, s41, 1', 's_add_u32 s60, s60, s40',
              's_lshr_b32 s41, s41, 2', 's_lshl_b32 s41, s41, 1', 's_add_u32 s41, s41, s60', 's_mul_i32 s41, s41, 5120',
              's_add_u32 s41, s41, %d' % WS_W2P,
              's_mov_b32 s%d, s%d' % (rSJ, sW2), 's_mov_b32 s%d, s%d' % (rSJ + 1, sW2 + 1), 's_mov_b32 s%d, %d' % (rSJ + 2, 1536 * 1280),
              's_mov_b32 s%d, 0x20000' % (rSJ + 3),
              's_cmp_lg_u32 s%d, 0' % sSJK, 's_cselect_b32 s%d, s%d, 0' % (rSJ + 2, rSJ + 2), 's_cselect_b32 s40, 0, 0x7ff00000',
              'v_add_u32 v%d, s40, v%d' % (vDJ + 5, vL16)]: p(x)
    for e in range(4):
        p('s_add_u32 s60, s65, %d' % e); p('s_mul_i32 s40, s60, 52'); p('s_lshr_b32 s40, s40, 8')
        p('s_mul_i32 s%d, s40, %d' % (D + e, W2P_CT - 5 * 1024)); p('s_lshl_b32 s60, s60, 10')
        p('s_add_u32 s%d, s%d, s60' % (D + e, D + e)); p('s_add_u32 s%d, s%d, s41' % (D + e, D + e))
    for x in ['v_lshrrev_b32 v48, 3, v%d' % vLANE, 'v_mul_u32_u24 v48, 1280, v48', 'v_and_b32 v49, 7, v%d' % vLANE, 'v_lshl_add_u32 v%d, v49, 4, v48' % vDJ,
              'v_lshrrev_b32 v48, 4, v%d' % vLANE, 'v_bfe_u32 v49, v%d, 2, 2' % vLANE, 'v_lshl_add_u32 v48, v48, 3, v49', 'v_lshlrev_b32 v48, 7, v48',
              'v_and_b32 v49, 3, v%d' % vLANE, 'v_lshl_add_u32 v48, v49, 3, v48', 's_add_u32 s60, s43, %d' % SJO, 'v_add_u32 v%d, s60, v48' % (vDJ + 4)]: p(x)
    for i in range(1, 4): p('v_add_u32 v%d, %d, v%d' % (vDJ + i, i * (8 * 1280 - 1024), vDJ))

def late_setup(CLS, LBQ):
    n_, h_ = vN, vHH
    return ['v_bfe_u32 v48, v%d, 2, 1' % n_, 'v_lshlrev_b32 v48, 10, v48',
            'v_lshl_add_u32 v48, v%d, 9, v48' % h_, 'v_lshrrev_b32 v49, 3, v%d' % n_, 'v_lshl_add_u32 v48, v49, 6, v48',
            'v_and_b32 v49, 3, v%d' % n_, 'v_lshl_add_u32 v%d, v49, 4, v48' % vSTF,
            'v_lshlrev_b32 v%d, 3, v%d' % (vEXA + 1, n_), 'v_add_u32 v%d, %d, v%d' % (vEXA + 1, EXO, vEXA + 1), 'v_lshl_add_u32 v48, v%d, 1, v%d' % (vWAVE, h_),
            'v_lshl_add_u32 v%d, v48, 8, v%d' % (vEXA, vEXA + 1),
            's_add_u32 s6, s43, %d' % TRO,
            'v_lshlrev_b32 v48, 10, v%d' % h_, 'v_lshl_add_u32 v48, v%d, 4, v48' % n_, 'v_add_u32 v%d, s6, v48' % vTW,
            'v_xor_b32 v%d, 0x240, v%d' % (vTW + 1, vTW),
            'v_lshrrev_b32 v48, 4, v%d' % vLANE, 'v_lshlrev_b32 v48, 7, v48', 'v_bfe_u32 v49, v%d, 2, 2' % vLANE,
            'v_lshl_add_u32 v48, v49, 4, v48', 'v_and_b32 v49, 1, v%d' % vLANE, 'v_lshl_add_u32 v48, v49, 3, v48',
            'v_bfe_u32 v49, v%d, 1, 1' % vLANE, 'v_mul_u32_u24 v49, 0x240, v49', 'v_add_u32 v48, v48, v49',
            'v_add_u32 v%d, s6, v48' % (vTW + 2), 'v_xor_b32 v%d, 64, v%d' % (vTW + 3, vTW + 2),
            's_sub_u32 s6, s%d, 1' % sRB, 's_lshl_b32 s7, s%d, 2' % sWV if LBQ else 's_mov_b32 s7, 0', 's_sub_u32 s6, s6, s7', 'v_sub_u32 v48, s6, v%d' % h_, 'v_lshlrev_b32 v48, 9, v48',
            'v_lshl_add_u32 v%d, v%d, 4, v48' % (vEO, n_),
            's_lshr_b32 s6, s%d, 2' % sRB, 's_lshl_b32 s6, s6, 3', 's_lshr_b32 s7, s3, 2', 's_add_u32 s%d, s6, s7' % sRT,
            's_lshl_b32 s6, s%d, 2' % sHF, 's_and_b32 s7, s3, 3', 's_add_u32 s%d, s6, s7' % sCT,
            's_sub_u32 s6, s%d, s%d' % (sCT, sRT) if CLS else 's_mov_b32 s6, s%d' % sCT, 's_and_b32 s6, s6, 3', 's_lshl_b32 s6, s6, 3', 's_or_b32 s%d, s6, 0x80000' % sSEL,
            'v_mul_u32_u24 v%d, 5120, v%d' % (vB, vWAVE), 'v_add_u32 v%d, v%d, v%d' % (vB, vB, vL16), 'v_add_u32 v%d, 0x1000, v%d' % (vB + 1, vB),
            'v_lshl_add_u32 v%d, v%d, 12, v%d' % (vA, vWAVE, vL16),
            's_lshl_b32 s6, s%d, 12' % sRT, 's_add_u32 s6, s6, %d' % WS_FH, 'v_lshl_add_u32 v%d, v%d, 7, s6' % (vFP, n_),
            's_mul_i32 s6, s%d, 5' % sCT, 's_lshr_b32 s6, s6, 2', 's_lshl_b32 s6, s6, 11', 's_add_u32 s6, s6, %d' % (WS_FL + 64 * 128),
            'v_lshl_add_u32 v%d, v%d, 7, s6' % (vWP, n_)]

def c_setup(vDC=vDC):
    return ['v_lshrrev_b32 v48, 3, v%d' % vLANE, 'v_mul_u32_u24 v48, 1280, v48', 'v_and_b32 v49, 7, v%d' % vLANE, 'v_lshrrev_b32 v50, 4, v%d' % vLANE,
            'v_xor_b32 v49, v49, v50', 'v_lshl_add_u32 v%d, v49, 4, v48' % vDC, 'v_xor_b32 v%d, 64, v%d' % (vDC + 1, vDC),
            'v_add_u32 v%d, %d, v%d' % (vDC + 1, 8 * 1280 - 1024, vDC + 1),
            'v_and_b32 v48, 15, v%d' % vLANE, 'v_lshrrev_b32 v49, 1, v48', 'v_xor_b32 v49, v49, v50', 'v_lshlrev_b32 v49, 4, v49',
            'v_lshl_add_u32 v48, v48, 7, v49', 'v_add_u32 v%d, s43, v48' % vRC, 'v_xor_b32 v%d, 64, v%d' % (vRC + 1, vRC),
            'v_add_u32 v%d, %d, v%d' % (vRC + 2, 3 * SLOT, vRC), 'v_add_u32 v%d, %d, v%d' % (vRC + 3, 3 * SLOT, vRC + 1)]

def body(p, ty, opt, st):
    put = p.put
    B = ty == 'B'
    NG = 1 if B else 2
    WS = S4(rWS)
    vPAR = 72
    S2OFF = [0, SLOT, 2 * SLOT]
    DELTA = opt.get('delta', 2); LBQ = 1; NLB = 2
    def spin(load, check):
        l1, l2 = p.newlabel('L_sp'), p.newlabel('L_sp')
        p('s_mov_b32 s65, 0')
        p.label(l1)
        check(l2)
        p('s_add_u32 s65, s65, 1'); p('s_cmp_gt_u32 s65, %d' % SPIN_MAX); p('s_cbranch_scc1 ' + l2)
        load(True)
        p('s_waitcnt vmcnt(0)'); p('s_branch ' + l1)
        p.label(l2)
    def dma_f2(c):
        r = []
        for sg in range(4 if c < 2 else 2):
            r += ['s_add_u32 m0, s43, %d' % (S2OFF[c] + 2048 * sg), 's_mul_i32 s61, s%d, s63' % (SIG + 4 * c + sg)]
            r += [('buffer_load_dwordx4 v%d, %s, s61 offen offset:%d lds' % (vD2 + i, S4(rF2), 1024 * i), 's2c%d' % c) for i in range(2)]
        return r
    def f2_srd():
        p('s_add_u32 s%d, s%d, %d' % (rF2, rP1, 2048 + 128)); p('s_addc_u32 s%d, s%d, 0' % (rF2 + 1, rP1 + 1))
        p('s_sub_u32 s%d, s%d, %d' % (rF2 + 2, rP1 + 2, 2048 + 128)); p('s_mov_b32 s%d, 0x20000' % (rF2 + 3))
    def par_reads():
        r = ['v_lshlrev_b32 v48, 1, v%d' % vN, 'v_add_u32 v48, %d, v48' % SMO]
        for g in range(NG):
            r += [('ds_read_u16 v%d, v48 offset:%d' % (vPAR + 3 * g + k, 128 * k + 64 * g), 'par') for k in range(3)]
        return r
    def bias_reads(dst, T):
        return [('ds_read_b128 v[%d:%d], v49 offset:%d' % (dst + 8 * T + 4 * q, dst + 3 + 8 * T + 4 * q, 64 * T + 16 * q), 'b1%d' % T) for q in range(2)]
    def setup(g):
        c = CON[g]; tr, ti = TAB[g], TAB[g] + 16; pr = vPAR + 3 * g
        a, b = 48, 50
        M = S2(sM)
        r = ['v_lshlrev_b32 v%d, 16, v%d' % (pr + k, pr + k) for k in range(3)]
        r += ['v_mul_f32 v%d, %s, v%d' % (a, LOG2E, pr + 2), 'v_exp_f32 v%d, v%d' % (a, a),
              'v_mul_f32 v%d, v%d, v%d' % (c + 4, pr, pr),
              'v_cvt_pk_bf16_f32 v%d, v%d, v%d' % (a, a, a), 'v_lshlrev_b32 v%d, 16, v%d' % (a, a),
              'v_mul_f32 v%d, v%d, v%d' % (a + 1, a, pr + 1), 'v_mul_f32 v%d, v%d, v%d' % (a, a, pr),
              'v_mul_f32 v%d, %s, v%d' % (a + 1, INV2PI, a + 1), 'v_mul_f32 v%d, %s, v%d' % (a, LOG2E, a),
              'v_fract_f32 v%d, v%d' % (a + 1, a + 1), 'v_exp_f32 v%d, v%d' % (a, a),
              'v_cos_f32 v%d, v%d' % (b, a + 1), 'v_sin_f32 v%d, v%d' % (b + 1, a + 1),
              'v_fmac_f32 v%d, v%d, v%d' % (c + 4, pr + 1, pr + 1),
              'v_mul_f32 v%d, v%d, v%d' % (c, a, b), 'v_mul_f32 v%d, v%d, v%d' % (c + 1, a, b + 1),
              'v_rcp_f32 v%d, v%d' % (a, c + 4), 'v_add_f32 v%d, -1.0, v%d' % (b, c),
              'v_mul_f32 v%d, v%d, v%d' % (c + 2, b, pr), 'v_mul_f32 v%d, v%d, v%d' % (c + 3, c + 1, pr),
              'v_fmac_f32 v%d, v%d, v%d' % (c + 2, c + 1, pr + 1), 'v_fma_f32 v%d, -v%d, v%d, v%d' % (c + 3, b, pr + 1, c + 3),
              'v_mul_f32 v%d, v%d, v%d' % (c + 2, c + 2, a), 'v_mul_f32 v%d, v%d, v%d' % (c + 3, c + 3, a),
              'v_mov_b32 v%d, v%d' % (tr, c), 'v_mov_b32 v%d, v%d' % (ti, c + 1)]
        for k in range(1, 16): r += cmul(tr + k, ti + k, tr + k - 1, ti + k - 1, c, c + 1)
        mu = c + 4
        r += ['v_cmp_eq_u32 %s, 1, v%d' % (M, vHH), 'v_mov_b32 v%d, v%d' % (mu, tr + 15), 'v_mov_b32 v%d, v%d' % (mu + 1, ti + 15)]
        r += ['v_cndmask_b32 v%d, 1.0, v%d, %s' % (b, mu, M), 'v_cndmask_b32 v%d, 0, v%d, %s' % (b + 1, mu + 1, M)]
        r += cm(c + 6, c + 2, b) + csq(a, mu)
        r += ['v_cndmask_b32 v%d, 1.0, v%d, s[66:67]' % (b, a), 'v_cndmask_b32 v%d, 0, v%d, s[66:67]' % (b + 1, a + 1)]
        r += cm(c + 12, c + 6, b) + csq(c + 8, a)
        r += ['v_cndmask_b32 v%d, 1.0, v%d, s[68:69]' % (b, c + 8), 'v_cndmask_b32 v%d, 0, v%d, s[68:69]' % (b + 1, c + 9)]
        r += cm(c + 6, c + 12, b) + csq(a, c + 8)
        r += ['v_cndmask_b32 v%d, 1.0, v%d, %s' % (c + 10, a, M), 'v_cndmask_b32 v%d, 0, v%d, %s' % (c + 11, a + 1, M)]
        r += csq(c + 8, a)
        if LBQ:
            r += csq(a, c + 8) + ['v_cndmask_b32 v%d, 1.0, v%d, s[66:67]' % (b, a), 'v_cndmask_b32 v%d, 0, v%d, s[66:67]' % (b + 1, a + 1)]
            r += cm(c + 12, c + 10, b) + csq(b, a) + ['v_cndmask_b32 v%d, 1.0, v%d, s[68:69]' % (b, b), 'v_cndmask_b32 v%d, 0, v%d, s[68:69]' % (b + 1, b + 1)]
            r += cm(c + 10, c + 12, b)
        r += ['v_lshl_add_u32 v%d, v%d, 1, v%d' % (c + 14, vWAVE, vHH), 'v_mov_b32 v%d, 0' % (c + 12), 'v_mov_b32 v%d, 0' % (c + 13)]
        return r
    def masks():
        p('s_bitcmp1_b32 s%d, 0' % sWV); p('s_cselect_b64 s[66:67], -1, 0')
        p('s_bitcmp1_b32 s%d, 1' % sWV); p('s_cselect_b64 s[68:69], -1, 0')
    def gate_reads(s):
        sl = s % 5; d = vGA + 4 + 2 * (s & 1)
        return [('ds_read_b32 v%d, v%d offset:%d' % (d, vGA3 if sl == 4 else vGA + (sl >> 1), (sl & 1) * SLOT), 'g%d' % s)]
    def third_set():
        r = ['v_add_u32 v%d, %d, v%d' % (vRX3 + k, 4 * SLOT, vRX + k) for k in range(4)] + ['v_add_u32 v%d, %d, v%d' % (vGA3, 4 * SLOT, vGA)]
        r += ['v_add_u32 v%d, %d, v%d' % (vRS3 + k, 4 * SLOT, vRS + k) for k in range(4)]
        return r + ['v_add_u32 v%d, %d, v%d' % (vRF3 + k, 4 * SLOT, vRF + k) for k in range(2 if B else 0)]
    def gw_reads():
        r = []
        for s in range(10): r += ['v_add_u32 v%d, s%d, v%d' % (vGA + 3, SIG + s, vGA + 2), ('ds_read_b32 v%d, v%d' % (vGW + s, vGA + 3), 'gw')]
        return r
    def gate_step(s):
        if opt.get('nogate'): return []
        x = vGA + 4 + 2 * (s & 1); w = vGW + s; a = vGA + 10; acc = vGA + 8
        return [lambda: p.wait(lg='g%d' % s),
                'v_lshlrev_b32 v%d, 16, v%d' % (a, x), 'v_lshlrev_b32 v%d, 16, v%d' % (a + 1, w),
                'v_and_b32 v%d, 0xffff0000, v%d' % (x, x), 'v_and_b32 v%d, 0xffff0000, v%d' % (w, w),
                'v_mul_f32 v%d, v%d, v%d' % (a, a, a + 1), 'v_mul_f32 v%d, v%d, v%d' % (x, x, w),
                'v_cvt_pk_bf16_f32 v%d, v%d, v%d' % (a, a, x),
                'v_lshlrev_b32 v%d, 16, v%d' % (a + 1, a), 'v_and_b32 v%d, 0xffff0000, v%d' % (a, a),
                'v_add_f32 v%d, v%d, v%d' % (acc, acc, a + 1), 'v_add_f32 v%d, v%d, v%d' % (acc, acc, a)]
    def gate_store():
        a = vGA + 10
        p('s_mov_b32 s40, %d' % WS_G)
        p('s_mov_b32 exec_lo, 1'); p('s_mov_b32 exec_hi, 1')
        p('buffer_store_dwordx2 v[%d:%d], v%d, %s, s40 offen%s' % (a, a + 1, vGA + 9, WS, SC), tag='gst')
        p('s_mov_b64 exec, -1')
    gstore = [gate_store]
    def gate_fin():
        r = []; s = vGA + 8; a = vGA + 10
        for m in ('quad_perm:[1,0,3,2]', 'quad_perm:[2,3,0,1]', 'row_half_mirror', 'row_mirror'):
            r.append('v_add_f32_dpp v%d, v%d, v%d %s row_mask:0xf bank_mask:0xf' % (s, s, s, m))
        r += ['v_mov_b32 v%d, v%d' % (a, s), 'v_permlane16_swap_b32 v%d, v%d' % (a, s), 'v_add_f32 v%d, v%d, v%d' % (s, s, a),
              'v_cvt_pk_bf16_f32 v%d, v%d, v%d' % (s, s, s), 'v_lshlrev_b32 v%d, 16, v%d' % (s, s),
              'v_mul_f32 v%d, 0xbfb8aa3b, v%d' % (s, s), 'v_exp_f32 v%d, v%d' % (s, s), 'v_add_f32 v%d, 1.0, v%d' % (s, s),
              'v_rcp_f32 v%d, v%d' % (s, s), 'v_cvt_pk_bf16_f32 v%d, v%d, v%d' % (s, s, s), 'v_lshlrev_b32 v%d, 16, v%d' % (a, s),
              'v_sub_f32 v%d, 1.0, v%d' % (a + 1, a), 'v_cvt_pk_bf16_f32 v%d, v%d, v%d' % (a + 1, a + 1, a + 1),
              'v_lshlrev_b32 v%d, 16, v%d' % (a + 1, a + 1)]
        store = gstore[0]
        def unused():
            p('s_mov_b32 s40, %d' % WS_G)
            p('s_mov_b32 exec_lo, 1'); p('s_mov_b32 exec_hi, 1')
            p('buffer_store_dwordx2 v[%d:%d], v%d, %s, s40 offen%s' % (a, a + 1, vGA + 9, WS, SC), tag='gst')
            p('s_mov_b64 exec, -1')
        if not (B and opt.get('fburst', 1) and opt.get('gmerge', 0)): r.append(store)
        return r
    SJM = 0; SJL = 0; SJO = 4096 if SJL else XREG
    def sj_dma():
        p('s_add_u32 m0, s43, %d' % SJO)
        for i in range(4): p('buffer_load_dwordx4 v%d, %s, s%d offen offset:%d lds' % (vDJ + i, S4(rSJ), sSJO2, 1024 * i), tag='sj')
    def sj_read():
        p.wait(vm='sj')
        for e in range(4):
            for j in range(2): p('ds_read_b64_tr_b16 a[%d:%d], v%d offset:%d' % (232 + 4 * e + 2 * j, 233 + 4 * e + 2 * j, vDJ + 4, 32 * e + 512 * j), tag='sjr')
    def sj_store():
        p.wait(lg='sjr')
        for e in range(4): p('buffer_store_dwordx4 a[%d:%d], v%d, %s, s%d offen%s' % (232 + 4 * e, 235 + 4 * e, vDJ + 5, WS, sSJD + e, SC), tag='sjs')
    def a_prefetch(which):
        p('s_and_b32 s65, s2, 7'); p('s_lshl_b32 s65, s65, 3'); p('s_add_u32 s65, s65, s3'); p('s_lshl_b32 s65, s65, 2'); p('s_add_u32 s65, s65, s%d' % sWV)
        if which == 'C':
            p('s_bitcmp1_b32 s%d, 0' % sWV)
            p('s_cselect_b32 s40, s%d, s%d' % (sCIM, sCRE)); p('s_cselect_b32 s41, s%d, s%d' % (sCIM + 1, sCRE + 1))
            p('s_lshr_b32 s65, s65, 1'); p('s_mul_i32 s65, s65, 6400'); p('v_min_u32 v94, 49, v%d' % vLANE)
        else:
            p('s_mov_b64 s[40:41], %s' % S2(sW2)); p('s_mul_i32 s65, s65, 7680'); p('v_min_u32 v94, 59, v%d' % vLANE)
        p('v_lshl_add_u32 v94, v94, 7, s65')
        p('global_load_dword v93, v94, s[40:41]', tag='cpf')
    def c_prefetch():
        p('s_bitcmp1_b32 s%d, 0' % sWV)
        p('s_cselect_b32 s40, s%d, s%d' % (sCIM, sCRE)); p('s_cselect_b32 s41, s%d, s%d' % (sCIM + 1, sCRE + 1))
        p('s_lshl_b32 s65, s2, 1'); p('s_lshr_b32 s23, s%d, 1' % sWV); p('s_add_u32 s65, s65, s23'); p('s_mul_i32 s65, s65, 1600')
        p('v_lshl_add_u32 v94, v%d, 7, s65' % vLANE); p('v_min_u32 v94, %d, v94' % (640 * 1280 - 4))
        p('s_mov_b64 exec, 0x1fff')
        p('global_load_dword v93, v94, s[40:41]', tag='cpf')
        p('s_mov_b64 exec, -1')
    def c_srd():
        p.seen.add('csrd')
        p('s_bitcmp1_b32 s%d, 0' % sWV)
        p('s_cselect_b32 s%d, s%d, s%d' % (rC, sCIM, sCRE)); p('s_cselect_b32 s%d, s%d, s%d' % (rC + 1, sCIM + 1, sCRE + 1))
        p('s_mul_i32 s40, s%d, %d' % (sCT, 80 * 1280)); p('s_add_u32 s%d, s%d, s40' % (rC, rC)); p('s_addc_u32 s%d, s%d, 0' % (rC + 1, rC + 1))
        p('s_mov_b32 s%d, %d' % (rC + 2, 80 * 1280)); p('s_mov_b32 s%d, 0x20000' % (rC + 3))
        p('s_lshr_b32 s%d, s%d, 1' % (sSJO, sWV)); p('s_lshl_b32 s%d, s%d, 7' % (sSJO, sSJO))
    DS = opt.get('deltas', 1)
    def sp_lit(pos): return sum(order(5, c, DS)[pos] << (8 * c) for c in range(4))
    def c_dma(q):
        pos, n = divmod(q, 5); pl = q % 16
        r = [lambda: p.wait(lg='cr%d' % (q - 16))] if q >= 16 else []
        r += ['s_add_u32 m0, s43, %d' % (CPL[pl >> 2] + 2048 * (pl & 3))]
        if n == 0: r += ['s_bfe_u32 s23, 0x%x, s%d' % (sp_lit(pos), sSEL5), 's_lshl_b32 s23, s23, 8', 's_add_u32 s23, s23, s%d' % sSJO]
        else: r += ['s_add_u32 s23, s23, %d' % (16 * 1280)]
        ld = [('buffer_load_dwordx4 v%d, %s, s23 offen offset:%d lds' % (vDC + i, S4(rC), 1024 * i), 'cd%d' % q) for i in range(2)]
        def first():
            assert 'csrd' in p.seen
            for x in r + ld[:1]: put(x)
        return [first, ld[1]]
    def c_read(q, dst=None):
        pl = q % 16; dst = AX + 8 * q if dst is None else dst
        hi, o = {0: (1, 0), 1: (1, SLOT), 2: (0, 0), 3: (0, SLOT)}[pl >> 2]
        rd = [('ds_read_b128 a[%d:%d], v%d offset:%d' % (dst + 4 * gg, dst + 4 * gg + 3, vRC + 2 * hi + gg, o + 2048 * (pl & 3)), 'cr%d' % q) for gg in range(2)]
        return [lambda: (p.wait(vm='cd%d' % q), put(rd[0])), rd[1]]
    def cD(a, b): return [x for q in range(a, b) for x in c_dma(q)]
    def cR(a, b): return [x for q in range(a, b) for x in c_read(q)]
    def nonce_load(o=False): p('global_load_dword v%d, v%d, %s sc1' % (vPOLL, vZ, S2(sDBG)), tag='nonce', optional=o)
    def get_nonce():
        def chk(l2):
            p('v_readfirstlane_b32 s%d, v%d' % (sNON, vPOLL)); p('s_cmp_lg_u32 s%d, 0' % sNON); p('s_cbranch_scc1 ' + l2)
        p.wait(vm='nonce'); spin(nonce_load, chk)
        p('v_mov_b32 v47, s%d' % sNON)
    def w2_signal():
        def go():
            p('s_lshl_b32 s40, s2, 7'); p('s_add_u32 s40, s40, %d' % WS_FL); p('s_mov_b64 exec, 1')
            p('buffer_store_dword v47, v%d, %s, s40 offen%s' % (vZ, WS, SC), optional=True)
            p('s_mov_b64 exec, -1')
        wave0(go)
    def signal(level, tags):
        def go():
            p.wait(vm=tags)
            p('s_add_u32 s65, s%d, %d' % (sFL, 131072 * level)); p('s_mov_b64 exec, 1')
            p('buffer_store_dword v47, v%d, %s, s65 offen%s' % (vZ, WS, SC), tag='flag')
            p('s_mov_b64 exec, -1')
        return go
    def fl_load(level):
        if level == 'FW':
            p('v_cmp_eq_u32 vcc, 1, v%d' % vHH); p('v_cndmask_b32 v94, v%d, v%d, vcc' % (vFP, vWP))
            p('buffer_load_dword v%d, v94, %s, 0 offen sc1' % (vPOLL, WS), optional=True)
            return
        p('s_mov_b32 s40, %d' % (0 if level == 'W' else 131072 * level)); p('s_mov_b32 exec_hi, 0')
        p('buffer_load_dword v%d, v%d, %s, s40 offen sc1' % (vPOLL, vWP if level == 'W' else vFP, WS), optional=True)
        p('s_mov_b32 exec_hi, -1')
    def wave0(fn):
        l = p.newlabel('L_w0')
        p('s_cmp_lg_u32 s%d, 0' % sWV); p('s_cbranch_scc1 ' + l)
        fn()
        p.label(l)
    def fl_issue(level):
        def go():
            wave0(lambda: fl_load(level))
            p.marks[level] = p.total_vm()
        return go
    def fl_check(level, bar=True):
        def chk(l2):
            p('v_cmp_ne_u32 vcc, s%d, v%d' % (sNON, vPOLL))
            if level == 'FW': p('s_cbranch_vccz ' + l2)
            elif level == 0: p('s_and_b32 s40, vcc_lo, 0xfff0fff0'); p('s_cbranch_scc0 ' + l2)
            else: p('s_cmp_eq_u32 vcc_lo, 0'); p('s_cbranch_scc1 ' + l2)
        def body_():
            p('s_waitcnt vmcnt(%d)' % min(63, p.total_vm() - p.marks[level]))
            spin(lambda o: fl_load(level), chk)
        def go():
            wave0(body_)
            if bar: p('s_barrier')
        return go
    def rnd_lit(i):
        for o, n in PARTS:
            if o <= i < o + n: return sum((o + order(n, c, DELTA)[i - o]) << (8 * c) for c in range(4))
    def b_reg(i, n):
        if i < 12: return ('a', 208 + 20 * (i % 3) + 4 * n) if i % 3 < 2 else ('v', 12 + 4 * n)
        pos, gg = divmod(i - 12, 2)
        return 'a', AX + 8 * (5 * (pos % 4) + n) + 4 * gg
    def b_loads(i):
        r = ['s_bfe_u32 s61, 0x%x, s%d' % (rnd_lit(i), sSEL), 's_mul_i32 s61, s61, 20480']
        for n in range(5):
            k, b = b_reg(i, n)
            r.append(('buffer_load_dwordx4 %s[%d:%d], v%d, %s, s61 offen%s sc1' % (k, b, b + 3, vB + (n >> 2), S4(rW2P), ' offset:%d' % (1024 * n) if n < 4 else ''), 'B%d' % i))
        return r
    def a_loads(i, pos=None):
        b = AH + 16 * ((i if pos is None else pos) % 3)
        if i < 12: r = ['s_bfe_u32 s60, 0x%x, s%d' % (rnd_lit(i), sSEL), 's_lshl_b32 s60, s60, 14']
        else: r = ['s_bfe_u32 s60, 0x%x, s%d' % (sp_lit((i - 12) >> 1), sSEL5), 's_lshl_b32 s60, s60, 15', 's_add_u32 s60, s60, %d' % ((12 + (i & 1)) << 14)]
        r += [('buffer_load_dwordx4 a[%d:%d], v%d, %s, s60 offen offset:%d sc1' % (b + 4 * m, b + 4 * m + 3, vA, S4(rHID), 1024 * m), 'A%d' % i) for m in range(4)]
        return r
    def w2_prefetch():
        if not opt.get('wpf', 0): return
        p('s_and_b32 s40, s%d, 7' % sRT); p('s_lshl_b32 s40, s40, 2'); p('s_add_u32 s40, s40, s%d' % sWV); p('s_mul_i32 s40, s40, 7680')
        p('v_min_u32 v94, 59, v%d' % vLANE); p('v_lshlrev_b32 v94, 7, v94')
        p('buffer_load_dword v93, v94, %s, s40 offen sc1' % S4(rW2P), tag='wpf')
    def hid_srd():
        p('s_mul_i32 s40, s%d, %d' % (sRT, HID_RT)); srd(p, rHID, sWS, HID_RT, 's40')
        p('s_mul_i32 s40, s%d, %d' % (sCT, W2P_CT)); p('s_add_u32 s40, s40, %d' % WS_W2P); srd(p, rW2P, sWS, W2P_CT, 's40')
        if opt.get('fake'):
            p('s_lshr_b32 s40, s%d, 2' % sRB); p('s_mul_i32 s40, s40, %d' % (512 * 1280)); p('s_lshl_b32 s41, s3, 13'); p('s_add_u32 s40, s40, s41')
            if opt['fake'] & 1: srd(p, rHID, sX, HID_RT, 's40')
            if opt['fake'] & 2: srd(p, rW2P, sX, HID_RT, 's40')
    def reads1(k):
        s, ks = divmod(k, 4); sl = s % 5; hi = 4 * (sl >> 1); o = (sl & 1) * SLOT
        w = AW + 16 * (k % 3); tg = 'k%d' % k
        rx, rs, rf = (vRX3, vRS3, vRF3) if sl == 4 else (vRX + hi, vRS + hi, vRF + (hi >> 1))
        r = [('ds_read_b128 a[%d:%d], v%d offset:%d' % (AX + 4 * k, AX + 4 * k + 3, rx + ks, o), tg)]
        for T in range(4):
            if B and T >= 2:
                for j in range(2):
                    r.append(('ds_read_b64_tr_b16 a[%d:%d], v%d offset:%d' % (w + 4 * T + 2 * j, w + 1 + 4 * T + 2 * j, rf + (T & 1),
                                                                          o + ks * 8192 + 4096 + 2048 * (T >> 1) + 512 * j), tg))
            else:
                r.append(('ds_read_b128 a[%d:%d], v%d offset:%d' % (w + 4 * T, w + 4 * T + 3, rs + ks, o + 4096 + 2048 * (T >> 1) + 16384 * (T & 1)), tg))
        return r
    L2 = opt.get('lead2', 5); NB2 = L2 + 1
    def reads2(m):
        k, T = divmod(m, 2); s, ks = divmod(k, 4); c, sg = divmod(s, 4)
        w = AW2 + 4 * (m % NB2)
        return [('ds_read_b64_tr_b16 a[%d:%d], v%d offset:%d' % (w + 2 * j, w + 1 + 2 * j, vRF + 2 * (S2OFF[c] >> 16) + T, (S2OFF[c] & 0xffff) + 8192 * ks + 2048 * sg + 512 * j), 'm%d' % m)
                for j in range(2)]
    mf = 'v_mfma_f32_32x32x16_bf16 v[%d:%d], a[%d:%d], a[%d:%d], %s'
    def mfma1(k, T):
        x = AX + 4 * k; f = AW + 16 * (k % 3) + 4 * T
        if B and T >= 2: a = FAC + 16 * (T - 2); return mf % (a, a + 15, f, f + 3, x, x + 3, 'v[%d:%d]' % (a, a + 15))
        a = SAC[T >> 1] + 16 * (T & 1)
        return mf % (a, a + 15, x, x + 3, f, f + 3, 'v[%d:%d]' % (a, a + 15) if k else '0')
    def mfma2(m):
        k, T = divmod(m, 2); x = AX + 4 * k; a = FAC + 32 + 16 * T; f = AW2 + 4 * (m % NB2)
        return mf % (a, a + 15, f, f + 3, x, x + 3, 'v[%d:%d]' % (a, a + 15))
    LOOK = opt.get('look', 3); SJS = opt.get('sjs', 2); AE = opt.get('aearly', 0)
    def sync1(s):
        p.wait(vm='st%d' % s, lg=None if s else 'all'); p('s_barrier')
        r = [lambda: p.wait(lg='sjr')] if (B and s == 1) else []
        if s == 0: r += dma_stage(2)
        if s + LOOK < 10: r += dma_stage(s + LOOK)
        elif B: r += dma_f2(s + LOOK - 10)
        if s == 7 and opt.get('cpf', 2) == 1: r = [c_prefetch] + r
        if not B and opt.get('cpf', 2) == 2:
            if s == opt.get('pfc', 7): r = r + [lambda: a_prefetch('C')]
            if s == opt.get('pfw', 4) and (SJL or SJM): r = r + [lambda: a_prefetch('W')]
        if B and s == SJM and SJM: r = r + [sj_dma]
        return r
    def scanA1(g):
        c = CON[g]; re, im = SAC[g], SAC[g] + 16
        r = []
        for k in range(1, 16): r += cfma(re + k, im + k, c, re + k - 1, im + k - 1)
        r += ['v_mov_b32 v%d, v%d' % (48 + 2 * g, re + 15), 'v_mov_b32 v%d, v%d' % (49 + 2 * g, im + 15),
              ('ds_write_b64 v%d, v[%d:%d] offset:%d' % (vEXA, 48 + 2 * g, 49 + 2 * g, 8192 * g), 'ex')]
        return r
    def scanA2(g):
        c = CON[g]; re, im = SAC[g], SAC[g] + 16; be = P2(c + 2)
        r = []
        for k in range(0, 16, 2):
            tt = 48 + (k & 2)
            r += ['v_pk_mul_f32 %s, %s, %s op_sel:[1,0] op_sel_hi:[1,1]' % (P2(tt), be, P2(re + k)),
                  'v_pk_mul_f32 %s, %s, %s op_sel:[0,0] op_sel_hi:[0,1]' % (P2(re + k), be, P2(re + k)),
                  'v_pk_fma_f32 %s, %s, %s, %s op_sel:[1,0,0] op_sel_hi:[1,1,1] neg_lo:[1,0,0] neg_hi:[1,0,0]' % (P2(re + k), be, P2(im + k), P2(re + k)),
                  'v_pk_fma_f32 %s, %s, %s, %s op_sel:[0,0,0] op_sel_hi:[0,1,1]' % (P2(im + k), be, P2(im + k), P2(tt))]
        return r
    def ex_reads(g, e):
        return [('ds_read_b64 v[%d:%d], v%d offset:%d' % (e + 2 * k, e + 2 * k + 1, vEXA + 1, 8192 * g + 256 * k), 'exr%d' % g) for k in range(8)]
    def ex_prefix(g, e, pk):
        c = CON[g]; r = []
        for k in range(1, 8):
            r += pcfma(e + 2 * k, c + 4, e + 2 * k - 2) if pk else cfma(e + 2 * k, e + 2 * k + 1, c + 4, e + 2 * k - 2, e + 2 * k - 1)
        return r
    def ex_pub(g, e):
        def pub():
            p('v_mov_b32 v%d, v%d' % (e + 16, e + 15)); p('v_mov_b32 v%d, v47' % (e + 17)); p('v_mov_b32 v%d, v47' % (e + 15))
            p('s_add_u32 s40, s%d, %d' % (sG, g)); p('s_lshl_b32 s40, s40, 4'); p('s_add_u32 s40, s40, s%d' % sRB); p('s_lshl_b32 s40, s40, 9')
            p('s_add_u32 s40, s40, %d' % WS_E)
            p('s_lshl_b32 s41, s%d, 3' % sWV); p('s_lshl_b32 exec_lo, 0xff, s41'); p('s_mov_b32 exec_hi, 0')
            p('buffer_store_dwordx4 v[%d:%d], v%d, %s, s40 offen%s' % (e + 14, e + 17, vL16, WS, SC), tag='pub')
            p('s_mov_b64 exec, -1')
        return [pub]
    def ex_own(g, e):
        c = CON[g]; r = []
        for k in range(1, 8):
            r += ['v_cmp_eq_u32 %s, %d, v%d' % (S2(sM + 2 * (k & 1)), k, c + 14)]
            if k > 1: r += ['v_cndmask_b32 v%d, v%d, v%d, %s' % (c + 12 + z, c + 12 + z, e + 2 * k - 4 + z, S2(sM + 2 - 2 * (k & 1))) for z in range(2)]
        r += ['v_cndmask_b32 v%d, v%d, v%d, %s' % (48 + z, c + 12 + z, e + 12 + z, S2(sM + 2)) for z in range(2)]
        return r + cm(c + 12, c + 2, 48)
    def ffn_epi(T, pk=False):
        a = FAC + 16 * T; r = []
        for k in range(0, 16, 2):
            r += ['v_max_f32 v%d, 0, v%d' % (a + k, a + k), 'v_max_f32 v%d, 0, v%d' % (a + k + 1, a + k + 1)]
            if pk: r += ['v_pk_mul_f32 %s, %s, %s' % (P2(a + k), P2(a + k), P2(a + k))]
            else: r += ['v_mul_f32 v%d, v%d, v%d' % (a + k + z, a + k + z, a + k + z) for z in range(2)]
        for k in range(8): r.append('v_cvt_pk_bf16_f32 v%d, v%d, v%d' % (a + k, a + 2 * k, a + 2 * k + 1))
        def stores():
            p('s_lshl_b32 s40, s%d, 12' % sQ); p('s_add_u32 s40, s40, s64'); p('s_add_u32 s40, s40, %d' % (((T & 1) + (24 if T >= 2 else 0)) * 4096))
            for q in range(2):
                p('buffer_store_dwordx4 v[%d:%d], v%d, %s, s40 offen offset:%d%s' % (a + 4 * q, a + 4 * q + 3, vSTF, WS, 256 * q, opt.get('f_sc', SC)), tag='hf%d' % (T >> 1))
        return r + [stores]
    EXP = 84 if B else 52
    def lb_expect():
        r = []
        for k in range(NLB):
            r += ['v_subrev_u32 v%d, %d, v%d' % (EXP + k, 1024 * k, vEO), 'v_ashrrev_i32 v%d, 31, v%d' % (EXP + k, EXP + k),
                  'v_bfi_b32 v%d, v%d, 0, v47' % (EXP + k, EXP + k)]
        return r
    def lb_loads(g, e, o=False):
        p('s_add_u32 s40, s%d, %d' % (sG, g)); p('s_lshl_b32 s40, s40, 13'); p('s_add_u32 s40, s40, %d' % WS_E)
        srd(p, rE, sWS, 8192, 's40')
        for k in range(NLB):
            if k: p('v_subrev_u32 v48, %d, v%d' % (1024 * k, vEO))
            p('buffer_load_dwordx4 v[%d:%d], v%d, %s, 0 offen sc1' % (e[k], e[k] + 3, 48 if k else vEO, S4(rE)), tag='lb%d' % g, optional=o)
    def lb_finish(g, e, before_barrier=None):
        c = CON[g]
        def chk(l2):
            for k in range(2):
                p('v_xor_b32 v%d, v%d, v%d' % (e[k] + 1, e[k] + 1, EXP + k)); p('v_xor_b32 v%d, v%d, v%d' % (e[k] + 3, e[k] + 3, EXP + k))
            p('v_or3_b32 v48, v%d, v%d, v%d' % (e[0] + 1, e[0] + 3, e[1] + 1)); p('v_or_b32 v48, v48, v%d' % (e[1] + 3))
            p('v_cmp_ne_u32 vcc, 0, v48'); p('s_cbranch_vccz ' + l2)
        p.wait(vm='lb%d' % g); spin(lambda o: lb_loads(g, e, o), chk)
        for k in range(2): p('v_mov_b32 v%d, v%d' % (e[k] + 1, e[k] + 2))
        for k in range(NLB - 2, -1, -1):
            for x in pcfma(e[k], c + 8, e[k + 1]): put(x)
        for x in pcmul(48, c + 10, e[0]): put(x)
        if not LBQ: p('v_mov_b32 v50, v48'); p('v_mov_b32 v51, v49')
        if LBQ:
            p('ds_write_b64 v%d, v[48:49] offset:%d' % (vEXA, 8192 * g), tag='lw')
            if before_barrier: before_barrier()
            p.wait(lg='lw'); p('s_barrier')
            for k in range(8): p('ds_read_b64 v[%d:%d], v%d offset:%d' % (e[2] + 2 * k, e[2] + 2 * k + 1, vEXA + 1, 8192 * g + 256 * k), tag='lr%d' % (k // 2))
            for k in range(4):
                p.wait(lg='lr%d' % k)
                p('v_pk_add_f32 %s, %s, %s' % (P2(e[2] + 4 * k), P2(e[2] + 4 * k), P2(e[2] + 4 * k + 2)))
            p('v_pk_add_f32 %s, %s, %s' % (P2(e[2]), P2(e[2]), P2(e[2] + 4))); p('v_pk_add_f32 %s, %s, %s' % (P2(e[2] + 8), P2(e[2] + 8), P2(e[2] + 12)))
            p('v_pk_add_f32 v[48:49], %s, %s' % (P2(e[2]), P2(e[2] + 8)))
        else:
            p('v_permlane32_swap_b32 v48, v50'); p('v_permlane32_swap_b32 v49, v51')
            p('v_pk_add_f32 v[48:49], v[48:49], v[50:51]')
        for x in pcfma(c + 12, c + 6, 48): put(x)
    def scanB(g, pk):
        c = CON[g]; tr, ti = TAB[g], TAB[g] + 16; re, im = SAC[g], SAC[g] + 16; cc = P2(c + 12)
        r = []
        for k in range(0, 16, 2):
            if pk:
                r += ['v_pk_fma_f32 %s, %s, %s, %s op_sel:[0,0,0] op_sel_hi:[1,0,1]' % (P2(re + k), P2(tr + k), cc, P2(re + k)),
                      'v_pk_fma_f32 %s, %s, %s, %s op_sel:[0,1,0] op_sel_hi:[1,1,1]' % (P2(im + k), P2(tr + k), cc, P2(im + k)),
                      'v_pk_fma_f32 %s, %s, %s, %s op_sel:[0,1,0] op_sel_hi:[1,1,1] neg_lo:[1,0,0] neg_hi:[1,0,0]' % (P2(re + k), P2(ti + k), cc, P2(re + k)),
                      'v_pk_fma_f32 %s, %s, %s, %s op_sel:[0,0,0] op_sel_hi:[1,0,1]' % (P2(im + k), P2(ti + k), cc, P2(im + k))]
            else:
                for z in (k, k + 1):
                    r += ['v_fmac_f32 v%d, v%d, v%d' % (re + z, tr + z, c + 12), 'v_fmac_f32 v%d, v%d, v%d' % (im + z, tr + z, c + 13),
                          'v_fma_f32 v%d, -v%d, v%d, v%d' % (re + z, ti + z, c + 13, re + z), 'v_fmac_f32 v%d, v%d, v%d' % (im + z, ti + z, c + 12)]
        for part in range(2):
            a = re + 16 * part; ng = '-' if part else ''
            for q in range(2):
                r += ['v_cvt_pk_bf16_f32 v%d, %sv%d, %sv%d' % (a + 8 * q + k, ng, a + 8 * q + 2 * k, ng, a + 8 * q + 2 * k + 1) for k in range(4)]
                r += [('ds_write_b128 v%d, v[%d:%d]' % (vTW + q, a + 8 * q, a + 8 * q + 3), 'tw')]
            r += [('ds_read_b64_tr_b16 v[%d:%d], v%d offset:%d' % (a + 8 * b + 4 + 2 * j, a + 8 * b + 5 + 2 * j, vTW + 2 + j, 1024 * b), 'tr%d' % part) for b in range(2) for j in range(2)]
        def stores(part):
            p('s_add_u32 s41, s%d, %d' % (sG, g)); p('s_lshr_b32 s40, s41, 2'); p('s_lshl_b32 s40, s40, 1'); p('s_and_b32 s65, s41, 1'); p('s_add_u32 s40, s40, s65')
            p('s_lshl_b32 s40, s40, 1'); p('s_bfe_u32 s65, s41, 0x10001'); p('s_add_u32 s40, s40, s65'); p('s_lshl_b32 s40, s40, 13')
            p('s_add_u32 s40, s40, s64'); p('s_add_u32 s40, s40, %d' % ((48 + part) * 4096))
            p.wait(lg='tr%d' % part)
            for b in range(2):
                o = re + 16 * part + 8 * b + 4
                p('buffer_store_dwordx4 v[%d:%d], v%d, %s, s40 offen offset:%d%s' % (o, o + 3, vL16, WS, 1024 * b, opt.get('h_sc', SC)), tag='hs')
        return r + [lambda: stores(0), lambda: stores(1)]
    masks()
    if B:
        sidejob_setup(p, SJO); f2_srd(); sj_dma()
    else: c_srd()
    if B: p('v_lshlrev_b32 v49, 5, v%d' % vHH); p('v_add_u32 v49, %d, v49' % (SMO + 384))
    p.wait(vm='sm'); p('s_barrier')
    st('sm')
    for x in par_reads() + gw_reads(): put(x)
    pre = []
    if B:
        for T in range(4):
            for x in bias_reads(176, T): put(x)
    pre += [lambda: p.wait(lg='par')]
    late = []
    for g in range(NG):
        su = setup(g); cut = opt.get('sucut', 999)
        pre += su[:cut]; late += su[cut:]
    if B:
        for T in range(4): pre += [lambda T=T: p.wait(lg='b1%d' % T)] + unpack(FAC + 16 * T, 176 + 8 * T, 8)
    nearly = max(0, len(pre) - opt.get('sp1', 12) * 8)
    for x in pre[:nearly] + sprinkle(pre[nearly:], dma_stage(1), opt.get('sp1', 12)): put(x)
    for x in third_set(): put(x)
    st('issued')
    pend = sync1(0)
    st('first')
    for x in reads1(0) + reads1(1) + gate_reads(0): put(x)
    fill = late
    prio = gate_step(0)
    p.marks = {}
    bar = lambda s_: 16 * s_ - 8
    events = {28: [nonce_load], bar(6) + 2: [get_nonce]}
    nslots = 240 if B else 160
    GAP = opt.get('gap', 7)
    if B:
        events[bar(1) - 1] = [sj_read]; events[bar(1) + 6] = [sj_store]
        events[bar(6) - 1] = [lambda: p.wait(vm='sjs')]; events[bar(6) + 2] += [w2_signal]
        def exbar(): p.wait(lg='ex'); p('s_barrier')
        e0 = [52 + 4 * k for k in range(8)]
        ep = [ffn_epi(T, T >= 2) for T in range(4)]
        fill2 = scanA1(0) + [exbar] + ex_reads(0, 52) + [lambda: p.wait(lg='exr0')] + ex_prefix(0, 52, False) + ex_pub(0, 52) + [lambda: st('pub')]
        fill2 += ep[0][:-1] + ep[1][:-1] + [lambda: (ep[0][-1](), ep[1][-1]()), lambda: st('fst')] + ex_own(0, 52) + lb_expect() + [hid_srd, lambda: lb_loads(0, e0)]
        cq = cD(0, 16); ncq = 0
        events[opt.get('wpoll', 204)] = [fl_issue('W')]
    rd = []
    for i in range(nslots):
        if i < 160:
            k, T = divmod(i, 4)
            if T == 0:
                if k + 2 < 40:
                    rd = reads1(k + 2)
                    if (k + 2) % 4 == 0:
                        pend += sync1((k + 2) // 4)
                        rd = gate_reads((k + 2) // 4) + rd; prio += gate_step((k + 2) // 4)
                        if k + 2 == 36: prio += gate_fin()
                p.wait(lg='k%d' % k)
            p(mfma1(k, T))
        else:
            if i == 160:
                for x in prio + fill: put(x)
                st('pass1'); prio = []; fill = fill2
                c_srd()
            if i % 2 == 0: p.wait(lg=['m%d' % (i - 160), 'm%d' % (i - 159)])
            p(mfma2(i - 160))
        budget = GAP
        if opt.get('fine') == 1 and i % 16 == 9 and i < 160: st('s%d' % i)
        if opt.get('fine') == 2 and i % 8 == 0 and i > 160: st('s%d' % i)
        m = i + L2 - 160
        if B and 0 <= m < 80:
            if m == 64: fl_check('W', False)()
            if m in (0, 32, 64): p.wait(vm='s2c%d' % (m // 32), lg='all'); p('s_barrier')
            for x in reads2(m): put(x); budget -= 1
        nrd = -(-len(rd) // (4 - i % 4))
        for _ in range(nrd): put(rd.pop(0)); budget -= 1
        if pend and (i % 2 == 1 or sum(not isinstance(x, str) for x in pend) > (23 - i % 16 if i % 16 >= 8 else 7 - i % 16) // 2 + 1):
            while isinstance(pend[0], str): put(pend.pop(0)); budget -= 1
            budget -= 3 if callable(pend[0]) else 1
            put(pend.pop(0))
            while pend and isinstance(pend[0], str): put(pend.pop(0)); budget -= 1
        elif B and i > 160 and i % 2 == 1 and cq and i >= opt.get('cstart', 161) and (ncq < 16 or (ncq < 24 and m > 32) or m > 64):
            put(cq.pop(0)); ncq += 1; budget -= 2
        for x in events.pop(i, []): put(x); budget -= 1
        if i == 146: assert not (B and pend); fill += c_setup()
        if i < 160:
            if i % 16 >= 13 or i % 16 < 8:
                n = 0
                while prio and budget > 0 and n < 2: put(prio.pop(0)); budget -= 1; n += 1
            want = -(-len(fill) // max(1, 158 - i)) if i >= 2 else 0
            for _ in range(min(want, budget)):
                if fill: put(fill.pop(0))
        elif i > 160:
            while fill and budget > 0: put(fill.pop(0)); budget -= 1
        p.check_depth()
    assert not pend and not rd and not events
    bpre = b_loads(0) + b_loads(1) + b_loads(2)
    def atoms(items):
        out = []; cur = []
        for x in items:
            cur.append(x)
            if not isinstance(x, str): out.append(cur); cur = []
        return out
    seq = round_order(opt)
    sigH = signal(1, ['hf1', 'hs', 'gst'] if B else ['hs', 'gst'])
    if B:
        for x in fill + cq: put(x)
        st('pass2')
        signal(0, 'hf0')()
        for x in ep[2][:-1] + ep[3][:-1]: put(x)
        if opt.get('pollpos', 1) == 0: fl_issue(0)()
        ep[2][-1](); ep[3][-1]()
        for x in sprinkle(scanA2(0), cR(0, 16), 1): put(x)
        if opt.get('pollpos', 1) == 1: fl_issue(0)()
        nb = 7 * opt.get('bearly', 1)
        for x in bpre[:nb]: put(x)
        st('lbstart'); lb_finish(0, e0, fl_check(0, False)); st('lbdone')
        sb = scanB(0, True)
        for x in sprinkle(sb[:-2], a_loads(seq[0], 0) + a_loads(seq[1], 1) + bpre[nb:14], 5) + sb[-2:] + bpre[14:]: put(x)
        st('hst')
        NL = 16; pre2 = {opt.get('sigr', 2): [sigH]}
    else:
        for x in prio + fill: put(x)
        st('pass1')
        for x in interleave(scanA1(0), scanA1(1)): put(x)
        p.wait(lg='all'); p('s_barrier')
        for x in ex_reads(0, 52) + ex_reads(1, 72): put(x)
        hid_srd()
        p.wait(lg='exr1')
        for x in interleave(ex_prefix(0, 52, True), ex_prefix(1, 72, True)) + ex_pub(0, 52) + ex_pub(1, 72): put(x)
        st('pub')
        fl_issue('W')()
        NA = opt.get('na', 12)
        for x in sprinkle(ex_own(0, 52) + ex_own(1, 72) + lb_expect() + scanA2(0) + scanA2(1), cD(0, NA), opt.get('asp', 5)): put(x)
        e0 = [60 + 4 * k for k in range(8)]; e1 = [84, 88] + e0[2:]
        lb_loads(0, e0); lb_loads(1, e1)
        fl_check('W')()
        for x in cR(0, NA): put(x)
        st('lbstart')
        lb_finish(0, e0)
        for x in sprinkle(scanB(0, True), cD(NA, 16), 4): put(x)
        lb_finish(1, e1)
        st('lbdone')
        for x in scanB(1, True): put(x)
        st('hst')
        sigH()
        NL = opt.get('nla', 19)
        for x in bpre[:14] + [fl_issue(0)] + bpre[14:] + cR(NA, 16) + cD(16, NL): put(x)
        fl_check(0)()
        st('fok')
        for x in a_loads(seq[0], 0) + a_loads(seq[1], 1): put(x)
        pre2 = {}
    n1 = min(i for i, r in enumerate(seq) if r >= 6)
    pre2.setdefault(n1 - 3, []).append(fl_issue(1)); pre2.setdefault(n1 - 2, []).append(fl_check(1))
    xload = {}
    for j, q in enumerate(range(NL, 25)): xload.setdefault(j // opt.get('xper', 1), []).extend(c_dma(q))
    phase2(p, opt, st, a_loads, b_loads, b_reg, c_read, {max(xload) + 2 if xload else 2: cR(16, 20)}, n1 - 2, seq, pre2, xload)

def round_order(opt):
    NF0 = opt.get('nf0', 6)
    seq = list(range(NF0)); rest = list(range(NF0, 12)); sr = list(range(12, 22)); ns = len(sr) - 3
    for j in range(len(rest)):
        n = (ns * (j + 1)) // len(rest) - (ns * j) // len(rest)
        seq += sr[:n] + [rest[j]]; sr = sr[n:]
    return seq + sr

def phase2(p, opt, st, a_loads, b_loads, b_reg, c_read, extra, geo, seq, pre2, xload):
    put = p.put
    ACCB, ACCA = 96, 176
    vG, vX, vLR, vOut = 32, 52, 62, 67
    vCR, vLW, t = 72, 82, 84
    rXT, rO, rSM = 44, 16, 52
    def geom():
        r = []
        def srds():
            p('s_mul_i32 s40, s%d, 160' % sCT); p('s_mul_i32 s41, s%d, %d' % (sRT, 64 * 1280)); p('s_add_u32 s41, s41, s40')
            srd(p, rXT, sX, 64 * 1280 - 1280 + 160, 's41')
            p('s_lshl_b32 s41, s41, 1')
            srd(p, rO, sOUT, 64 * 2560 - 2560 + 320, 's41')
            p('s_lshl_b32 s41, s%d, 9' % sRT); p('s_add_u32 s41, s41, %d' % WS_G)
            p('s_cmp_eq_u32 s%d, 1' % sWV); p('s_cselect_b32 s65, 256, 0'); p('s_add_u32 s41, s41, s65')
            p('s_cmp_eq_u32 s%d, 2' % sWV)
            p('s_cselect_b32 s%d, s%d, s%d' % (rSM, sDSK, sB2)); p('s_cselect_b32 s%d, s%d, s%d' % (rSM + 1, sDSK + 1, sB2 + 1))
            p('s_cmp_lt_u32 s%d, 2' % sWV)
            p('s_cselect_b32 s%d, s%d, s%d' % (rSM, sWS, rSM)); p('s_cselect_b32 s%d, s%d, s%d' % (rSM + 1, sWS + 1, rSM + 1))
            p('s_cselect_b32 s40, s41, s40')
            p('s_mov_b32 s65, 160'); p('s_cselect_b32 s%d, 256, s65' % (rSM + 2))
            p('s_add_u32 s%d, s%d, s40' % (rSM, rSM)); p('s_addc_u32 s%d, s%d, 0' % (rSM + 1, rSM + 1)); p('s_mov_b32 s%d, 0x20000' % (rSM + 3))
        r.append(srds)
        for i in range(5):
            r += ['v_add_u32 v%d, %d, v0' % (t, 256 * i), 'v_mul_u32_u24 v%d, 0xcccd, v%d' % (t + 1, t), 'v_lshrrev_b32 v%d, 20, v%d' % (t + 1, t + 1),
                  'v_mul_u32_u24 v%d, 20, v%d' % (t + 2, t + 1), 'v_sub_u32 v%d, v%d, v%d' % (t + 2, t, t + 2),
                  'v_mul_u32_u24 v%d, 1280, v%d' % (t + 3, t + 1), 'v_lshl_add_u32 v%d, v%d, 3, v%d' % (t + 3, t + 2, t + 3),
                  ('buffer_load_dwordx2 v[%d:%d], v%d, %s, 0 offen' % (vX + 2 * i, vX + 2 * i + 1, t + 3, S4(rXT)), 'X'),
                  'v_lshlrev_b32 v%d, 1, v%d' % (vOut + i, t + 3), 'v_bfe_u32 v%d, v%d, 1, 2' % (t + 3, t + 1), 'v_xor_b32 v%d, v%d, v%d' % (t + 3, t + 3, t + 2), 'v_mul_u32_u24 v%d, 320, v%d' % (vLR + i, t + 1),
                  'v_add_u32 v%d, %d, v%d' % (vLR + i, PB, vLR + i), 'v_lshl_add_u32 v%d, v%d, 4, v%d' % (vLR + i, t + 3, vLR + i),
                  'v_lshl_add_u32 v%d, v%d, 3, s66' % (vCR + 2 * i, t + 2), 'v_lshl_add_u32 v%d, v%d, 3, s66' % (vCR + 2 * i + 1, t + 1)]
        r += ['v_and_b32 v%d, 15, v%d' % (t, vLANE), 'v_mul_u32_u24 v%d, 320, v%d' % (vLW, t), 'v_lshrrev_b32 v%d, 4, v%d' % (t + 1, vLANE),
              'v_bfe_u32 v%d, v%d, 1, 2' % (t + 2, t), 'v_xor_b32 v%d, v%d, v%d' % (t + 1, t + 1, t + 2),
              'v_lshl_add_u32 v%d, v%d, 4, v%d' % (vLW, t + 1, vLW), 'v_mul_u32_u24 v%d, %d, v%d' % (t + 1, 64 * 320, vWAVE),
              'v_add_u32 v%d, v%d, v%d' % (vLW, vLW, t + 1), 'v_add_u32 v%d, %d, v%d' % (vLW, PB, vLW),
              'v_lshl_add_u32 v%d, v%d, 3, s66' % (vLW + 1, t), 'v_lshlrev_b32 v%d, 2, v%d' % (48, vLANE)]
        return r
    def sm_dma():
        p('s_lshl_b32 s40, s%d, 8' % sWV); p('s_add_u32 m0, s40, %d' % SM2)
        p('buffer_load_dword v48, %s, 0 offen sc1 lds' % S4(rSM), tag='SM')
    def bias():
        def f_sync(): p.wait(vm=['SM', 'X']); p('s_barrier')
        r = [f_sync]
        r += [('ds_read_b64 v[%d:%d], v%d offset:%d' % (vG + 2 * m, vG + 2 * m + 1, vLW + 1, 128 * m), 'g') for m in range(4)]
        for i in range(5):
            r += [('ds_read_b64 v[%d:%d], v%d' % (t, t + 1, vCR + 2 * i + 1), 'c'), ('ds_read_b64 v[%d:%d], v%d offset:512' % (t + 2, t + 3, vCR + 2 * i), 'c'),
                  ('ds_read_b64 v[%d:%d], v%d offset:768' % (t + 4, t + 5, vCR + 2 * i), 'c')]
            for h in range(2):
                r += ['v_lshlrev_b32 v%d, 16, v%d' % (t + 6 + 2 * h, vX + 2 * i + h), 'v_and_b32 v%d, 0xffff0000, v%d' % (t + 7 + 2 * h, vX + 2 * i + h)]
            r.append(lambda: p.wait(lg='c'))
            for h in range(2):
                r += ['v_lshlrev_b32 v48, 16, v%d' % (t + 2 + h), 'v_and_b32 v49, 0xffff0000, v%d' % (t + 2 + h),
                      'v_lshlrev_b32 v50, 16, v%d' % (t + 4 + h), 'v_and_b32 v51, 0xffff0000, v%d' % (t + 4 + h)]
                for e in range(2):
                    d = (vCR if h else vX) + 2 * i + e
                    r += ['v_mul_f32 v%d, v%d, v%d' % (48 + e, 48 + e, t + 6 + 2 * h + e), 'v_mul_f32 v%d, v%d, v%d' % (d, t + 1, 50 + e),
                          'v_fmac_f32 v%d, v%d, v%d' % (d, t, 48 + e)]
        r += ['v_add_f32 v%d, v%d, v%d' % (vG + 2 * m, vG + 2 * m, vG + 2 * m) for m in range(4)]
        return r
    def scale():
        r = []
        for m in range(4):
            for n in range(5):
                r += ['v_mul_f32 v%d, v%d, v%d' % (ACCB + 20 * m + 4 * n + z, vG + 2 * m + 1, ACCB + 20 * m + 4 * n + z) for z in range(4)]
        return r
    def comb(k, pk):
        n, m = divmod(k, 5)[::-1] if opt.get('tsplit', 1) else divmod(k, 4)
        a = ACCA + 20 * m + 4 * n; bb = ACCB + 20 * m + 4 * n
        if pk:
            for r in (0, 2): p('v_pk_fma_f32 %s, %s, %s, %s op_sel:[0,0,0] op_sel_hi:[0,1,1]' % (P2(bb + r), P2(vG + 2 * m), P2(a + r), P2(bb + r)))
        else:
            for r in range(4): p('v_fmac_f32 v%d, v%d, v%d' % (bb + r, vG + 2 * m, a + r))
        p('ds_write_b128 v%d, v[%d:%d] offset:%d' % (vLW, bb, bb + 3, m * 16 * 320 + n * 64), tag='w')
    p('s_mov_b32 s66, %d' % SM2)
    fill = []
    NS = 22; LA = 2
    pos = {r: i for i, r in enumerate(seq)}
    bq = []; nb = 3
    for i in range(NS):
        r = seq[i]; pre = pre2.get(i, [])
        fill += extra.get(i, [])
        if i == geo: fill += geom() + [sm_dma]
        if i == geo + 3: fill += bias()
        if i == pos[11] + 1: fill += scale()
        rr = max(pos[13] + 1, max(extra))
        if i == rr:
            fill = [x for n in range(5) for x in c_read(20 + n, AX + 8 * n)] + fill
        if i == rr + 2: pre += [lambda: (p.wait(lg='cr24'), p('s_barrier'))]
        p.wait(vm=['A%d' % r, 'B%d' % r])
        if opt.get('fine') == 3 and i not in (0, 6, 12): st('r%d' % i)
        if i == 0: st('p2first')
        if i == 6: st('p2_6')
        if i == 12: st('p2_12')
        while nb < 12 and pos[nb - 3] < i: bq.append([nb, b_loads(nb)]); nb += 1
        nxt = a_loads(seq[i + LA], i + LA) if i + LA < NS else []
        if bq:
            f, it = bq[0]; left = sum(not isinstance(x, str) for x in it)
            n = -(-left // max(1, pos[f] - LA - i + 1))
            while n:
                x = it.pop(0); nxt.append(x)
                if not isinstance(x, str): n -= 1
            if not it: bq.pop(0)
        nxt += xload.get(i, [])
        acc = ACCB if r < 12 else ACCA
        first = r in (0, 12)
        bh = AH + 16 * (i % 3)
        k = 0
        TS = opt.get('tsplit', 1)
        for n, m in ([(n, m) for m in range(4) for n in range(5)] if (i == NS - 1 and TS) else [(n, m) for n in range(5) for m in range(4)]):
            if True:
                a = acc + 20 * m + 4 * n
                bk, bw = b_reg(r, n)
                p('v_mfma_f32_16x16x32_bf16 v[%d:%d], %s[%d:%d], a[%d:%d], %s' % (a, a + 3, bk, bw, bw + 3, bh + 4 * m, bh + 4 * m + 3,
                                                                              '0' if first else 'v[%d:%d]' % (a, a + 3)))
                k += 1
                if k == 1:
                    for x in pre: put(x)
                if nxt and (k % 2 == 1 or sum(not isinstance(x, str) for x in nxt) > (21 - k) // 2):
                    while isinstance(nxt[0], str): put(nxt.pop(0))
                    put(nxt.pop(0))
                for _ in range(opt.get('fill2', 3) if i < 12 else 2):
                    if fill: put(fill.pop(0))
                if i == NS - 1 and 3 < k < (14 if TS else 99): comb(k - 4, False)
        assert not nxt and not (i == NS - 2 and fill)
        p.check_depth()
    assert not bq and nb == 12
    assert not fill
    st('mainend')
    R = ACCA
    def rd(i):
        for w in range(4):
            p('ds_read_b128 v[%d:%d], v%d offset:%d' % (R + 16 * i + 4 * w, R + 16 * i + 4 * w + 3, vLR + i, w * 64 * 320), tag='r%d' % i)
    def fin(i):
        p.wait(lg='r%d' % i)
        for r in (0, 2):
            p('v_pk_add_f32 %s, %s, %s' % (P2(R + 16 * i + r), P2(R + 16 * i + r), P2(R + 16 * i + 4 + r)))
            p('v_pk_add_f32 %s, %s, %s' % (P2(R + 16 * i + 8 + r), P2(R + 16 * i + 8 + r), P2(R + 16 * i + 12 + r)))
        bb = {0: vX + 2 * i, 2: vCR + 2 * i}
        for r in (0, 2): p('v_pk_add_f32 %s, %s, %s' % (P2(bb[r]), P2(bb[r]), P2(R + 16 * i + r)))
        for r in (0, 2): p('v_pk_add_f32 %s, %s, %s' % (P2(R + 16 * i + r), P2(bb[r]), P2(R + 16 * i + 8 + r)))
        p('buffer_store_dwordx4 v[%d:%d], v%d, %s, 0 offen%s' % (R + 16 * i, R + 16 * i + 3, vOut + i, S4(rO), opt.get('out_sc', SC)), tag='o')
    if TS:
        p.wait(lg='all'); p('s_barrier')
        rd(0); rd(1)
        for k in range(10, 15): comb(k, True)
        fin(0)
        for k in range(15, 20): comb(k, True)
        fin(1)
        p.wait(lg='all'); p('s_barrier')
        st('red')
        for i in range(2, 5): rd(i)
        for i in range(2, 5): fin(i)
    else:
        for k in range(17, 20): comb(k, True)
        p.wait(lg='all'); p('s_barrier')
        st('red')
        for i in range(5): rd(i)
        for i in range(5): fin(i)
    st('stored')
    if opt.get('echo'):
        p.wait(vm='all'); st('drained'); p.wait(lg='all', force=True)
        l = p.newlabel('L_echo'); ins = 's_memtime' if opt['echo'] == 'cyc' else 's_memrealtime'
        if opt['echo'] == 'cyc': p('s_mov_b32 s1, 20000')
        else: p('s_sub_u32 s1, s%d, s0' % sST)
        p(ins + ' s[4:5]'); p.wait(lg='all', force=True)
        p.label(l)
        p(ins + ' s[6:7]'); p.wait(lg='all', force=True)
        p('s_sub_u32 s6, s6, s4'); p('s_cmp_lt_u32 s6, s1'); p('s_cbranch_scc1 ' + l)
    if opt.get('stamps'):
        p.wait(vm='all'); st('drained'); st('rt1')
    st.dump(sWS, 60, 48)
```

```python
from emit import Prog
from common import *

LDS_BYTES = 163840
SPIN_MAX = 100000
SLOT = 32768
XREG = 4 * SLOT
SMO = XREG + 28672 + 2048
TRO = 2 * SLOT + 4096
EXO = 2 * SLOT + 6144
SM2 = 2 * SLOT + 2 * 8192 + 6144
PB = 0
CPL = [3 * SLOT, 4 * SLOT, 0, SLOT]
vRX3, vW3, vGA3 = 72, 68, 78
LOG2E = '0x3fb8aa3b'
INV2PI = '0.15915494'
SC = ' sc1'

sX, sLRE, sLIM, sBRE, sBIM, sCRE, sCIM, sLDT = 4, 6, 8, 10, 12, 14, 16, 18
sDSK, sW1, sB1, sW2, sB2, sGATE, sOUT, sDBG, sWS = 20, 24, 26, 28, 30, 32, 34, 36, 38
rX, rP0, rP1, rWS = 44, 48, 52, 56
rE, rHID, rW2P, rSJ, rS2, rC = 44, 48, 8, 8, 92, 92
sSB = 24
sM = 12
SIG = 70
sNON, sHF, sRB, sCG, sG, sQ, sWV, sRT, sCT, sSEL, sFL = 80, 81, 82, 83, 84, 85, 86, 87, 88, 89, 90
sSEL5 = sSEL
sBIM2 = 26
sSJO2 = 26
sSJO, sSJD, sSJK = 91, 96, 22
sST = 100
vLANE, vWAVE, vHH = 1, 2, 3
vDX, vDS, vD2 = 4, 8, 10
vRX, vRS, vRF = 12, 20, 28
vSTF, vL16, vEXA, vTW, vEO = 32, 33, 34, 36, 40
vDJ = 62
vB, vFP, vA = 41, 43, 44
vZ, vPOLL = 45, 46
vDC, vRC, vWP = 4, 6, 92
vT = 48
vN = 79
vGA = 80
vGW = 52
vST = 95
SAC = [176, 96]
TAB = [208, 128]
CON = [240, 160]
FAC = 96
AX = 0
AW = 160
AW2 = 208
AH = 160
PARTS = [(0, 12)]

def order(n, c, delta):
    return sorted(range(n), key=lambda i: (i - (delta if i % 4 == c else 0), 0 if i % 4 == c else 1))
def P2(r): return 'v[%d:%d]' % (r, r + 1)
def S4(r): return 's[%d:%d]' % (r, r + 3)
def S2(r): return 's[%d:%d]' % (r, r + 1)
def cmul(dr, di, ar, ai, br, bi):
    return ['v_mul_f32 v%d, v%d, v%d' % (dr, ar, br), 'v_mul_f32 v%d, v%d, v%d' % (di, ar, bi),
            'v_fma_f32 v%d, -v%d, v%d, v%d' % (dr, ai, bi, dr), 'v_fmac_f32 v%d, v%d, v%d' % (di, ai, br)]
def cm(d, a, b): return cmul(d, d + 1, a, a + 1, b, b + 1)
def cfma(dr, di, a, br, bi):
    return ['v_fmac_f32 v%d, v%d, v%d' % (dr, a, br), 'v_fmac_f32 v%d, v%d, v%d' % (di, a, bi),
            'v_fma_f32 v%d, -v%d, v%d, v%d' % (dr, a + 1, bi, dr), 'v_fmac_f32 v%d, v%d, v%d' % (di, a + 1, br)]
def pcfma(d, a, b):
    return ['v_pk_fma_f32 %s, %s, %s, %s op_sel:[0,0,0] op_sel_hi:[0,1,1]' % (P2(d), P2(a), P2(b), P2(d)),
            'v_pk_fma_f32 %s, %s, %s, %s op_sel:[1,1,0] op_sel_hi:[1,0,1] neg_lo:[1,0,0]' % (P2(d), P2(a), P2(b), P2(d))]
def pcmul(d, a, b):
    return ['v_pk_mul_f32 %s, %s, %s op_sel:[0,0] op_sel_hi:[0,1]' % (P2(d), P2(a), P2(b)),
            'v_pk_fma_f32 %s, %s, %s, %s op_sel:[1,1,0] op_sel_hi:[1,0,1] neg_lo:[1,0,0]' % (P2(d), P2(a), P2(b), P2(d))]
def csq(d, a):
    return ['v_mul_f32 v%d, v%d, v%d' % (d, a, a), 'v_add_f32 v%d, v%d, v%d' % (d + 1, a, a),
            'v_fma_f32 v%d, -v%d, v%d, v%d' % (d, a + 1, a + 1, d), 'v_mul_f32 v%d, v%d, v%d' % (d + 1, d + 1, a + 1)]
def interleave(*ls):
    out = []; ls = [list(l) for l in ls]
    while any(ls):
        for l in ls:
            if l: out.append(l.pop(0))
    return out
def sprinkle(main, extra, every):
    out = []; extra = list(extra)
    for i, x in enumerate(main):
        out.append(x)
        if i % every == every - 1 and extra:
            while isinstance(extra[0], str): out.append(extra.pop(0))
            out.append(extra.pop(0))
    return out + extra
def unpack(dst, src, n):
    r = []
    for k in range(n):
        r.append('v_lshlrev_b32 v%d, 16, v%d' % (dst + 2 * k, src + k))
        r.append('v_and_b32 v%d, 0xffff0000, v%d' % (dst + 2 * k + 1, src + k))
    return r

NT = dict(x='', w='', n=10)
def dma_stage(s):
    sl = (s % 5) * SLOT; tg = 'st%d' % s; so = SIG + s
    r = ['s_add_u32 m0, s43, %d' % sl, 's_mul_i32 s61, s%d, s63' % so]
    xf = NT['x'] if s < NT['n'] else ''; wf = NT['w'] if s < NT['n'] else ''
    r += [('buffer_load_dwordx4 v%d, %s, s%d offen offset:%d%s lds' % (vDX + i, S4(rX), so, 1024 * i, xf), tg) for i in range(4)]
    r += ['s_add_u32 m0, s43, %d' % (sl + 4096)]
    r += [('buffer_load_dwordx4 v%d, %s, s61 offen offset:%d%s lds' % (vD2 + i, S4(rP0), 1024 * i, wf), tg) for i in range(2)]
    r += [('buffer_load_dwordx4 v%d, %s, s61 offen offset:%d%s lds' % (vD2 + i, S4(rP1), 1024 * i + 2048, wf), tg) for i in range(2)]
    return r

def gen(name, opt):
    p = Prog()
    st = Stamps(p, sST, vST, opt.get('stamps'))
    NT.update(x=opt.get('xnt', ''), w=opt.get('wnt', ''), n=opt.get('ntn', 10))
    st.echo = opt.get('echo')
    def put(x):
        if callable(x): x()
        elif isinstance(x, tuple): p(x[0], tag=x[1])
        else: p(x)
    p.put = put
    p.label(name)
    p('s_cmp_ge_u32 s2, 256')
    p('s_cbranch_scc1 L_end')
    p('s_load_dwordx16 s[4:19], s[0:1], 0')
    p('s_load_dwordx8 s[20:27], s[0:1], 64')
    p('s_load_dwordx8 s[28:35], s[0:1], 96')
    p('s_load_dwordx4 s[36:39], s[0:1], 128')
    p('s_memrealtime s[64:65]')
    if opt.get('stamps'): p('s_memrealtime s[66:67]'); p('%s s[68:69]' % ('s_memrealtime' if opt['stamps'] == 2 else 's_memtime'))
    p('s_lshr_b32 s3, s2, 3')
    code_prefetch(p, 'L_end', 44, 40, 3)
    p('v_and_b32 v%d, 63, v0' % vLANE)
    p('v_lshrrev_b32 v%d, 6, v0' % vWAVE)
    p('s_and_b32 s%d, s2, 7' % sHF)
    p('s_lshr_b32 s40, s%d, 1' % sHF)
    p('s_lshl_b32 s%d, s40, 2' % sRB)
    p('s_and_b32 s41, s3, 3')
    p('v_readfirstlane_b32 s%d, v%d' % (sWV, vWAVE))
    p('s_add_u32 s%d, s%d, s41' % (sRB, sRB))
    p('s_and_b32 s%d, s%d, 1' % (sHF, sHF))
    p('s_lshr_b32 s%d, s3, 2' % sCG)
    p('s_add_u32 s41, s41, s%d' % sCG); p('s_and_b32 s41, s41, 3'); p('s_lshl_b32 s41, s41, 3'); p('s_or_b32 s41, s41, 0x80000')
    p('s_mul_i32 s40, s40, 5'); p('s_add_u32 s40, s40, 1'); p('s_lshr_b32 s40, s40, 1')
    p('s_mul_i32 s60, s%d, 5' % sHF); p('s_add_u32 s40, s40, s60')
    if not opt.get('rot', 1): p('s_mov_b32 s40, 0')
    p('s_sub_u32 s60, s40, 10'); p('s_cmp_ge_u32 s40, 10'); p('s_cselect_b32 s40, s60, s40')
    tabs = [order(10, c, opt.get('d1', 3)) for c in range(4)]
    if opt.get('hyb'): tabs = [[0] + [1 + x for x in order(9, c, opt.get('d1', 3))] for c in range(4)]
    def sigma(i):
        lit = sum(tabs[c][i] << (8 * c) for c in range(4)); s = SIG + i
        return ['s_bfe_u32 s%d, 0x%x, s41' % (s, lit), 's_add_u32 s%d, s%d, s40' % (s, s), 's_sub_u32 s60, s%d, 10' % s,
                's_min_u32 s%d, s60, s%d' % (s, s), 's_lshl_b32 s%d, s%d, 7' % (s, s)]
    for x in sigma(0): p(x)
    p('s_mul_i32 s%d, s%d, 10' % (sG, sHF))
    p('s_lshl_b32 s%d, s%d, 1' % (sQ, sCG))
    p('s_add_u32 s60, s%d, 2' % sCG)
    p('s_cmp_lt_u32 s%d, 2' % sCG)
    p('s_cselect_b32 s60, s%d, s60' % sQ)
    p('s_cselect_b32 s63, 1, 1536')
    p('s_add_u32 s%d, s%d, s60' % (sG, sG))
    p('s_mul_i32 s60, s%d, 12' % sHF)
    p('s_add_u32 s%d, s%d, s60' % (sQ, sQ))
    p('s_sub_u32 s%d, s%d, 4' % (sQ, sQ))
    t = vT
    p('v_lshrrev_b32 v%d, 3, v%d' % (t, vLANE))
    p('v_and_b32 v%d, 7, v%d' % (t + 1, vLANE))
    p('v_lshrrev_b32 v%d, 4, v%d' % (t + 2, vLANE))
    p('v_and_b32 v%d, 3, v%d' % (t + 3, t))
    p('v_lshrrev_b32 v%d, 5, v%d' % (vHH, vLANE))
    p('v_lshl_add_u32 v%d, v%d, 4, v%d' % (t + 3, vHH, t + 3))
    p('v_lshl_add_u32 v%d, v%d, 5, v%d' % (t + 3, vWAVE, t + 3))
    p('v_mul_u32_u24 v%d, 1280, v%d' % (t + 3, t + 3))
    p('v_xor_b32 v%d, v%d, v%d' % (t + 5, t + 1, t + 2))
    p('v_xor_b32 v%d, 4, v%d' % (t + 6, t + 5))
    for i in range(4):
        p('v_lshl_add_u32 v%d, v%d, 4, v%d' % (vDX + i, t + 5 + (i & 1), t + 3))
        if i: p('v_add_u32 v%d, %d, v%d' % (vDX + i, 4096 * i, vDX + i))
    p('v_and_b32 v%d, 1, v%d' % (t + 7, vWAVE))
    p('v_lshl_add_u32 v%d, v%d, 4, v%d' % (t + 7, t + 7, t))
    p('v_mul_u32_u24 v%d, 1280, v%d' % (t + 7, t + 7))
    p('v_lshl_add_u32 v%d, v%d, 4, v%d' % (vDS, t + 5, t + 7))
    p('v_lshl_add_u32 v%d, v%d, 4, v%d' % (vDS + 1, t + 6, t + 7))
    p('v_add_u32 v%d, %d, v%d' % (vDS + 1, 8 * 1280 - 1024, vDS + 1))
    p('v_lshl_add_u32 v%d, v%d, 4, v%d' % (t + 7, vWAVE, t))
    p('v_mul_u32_u24 v%d, 3072, v%d' % (t + 7, t + 7))
    p('v_and_b32 v%d, 1, v%d' % (t + 8, t + 2))
    p('v_lshlrev_b32 v%d, 2, v%d' % (t + 8, t + 8))
    p('v_xor_b32 v%d, v%d, v%d' % (t + 8, t + 8, t + 1))
    p('v_lshl_add_u32 v%d, v%d, 4, v%d' % (vD2, t + 8, t + 7))
    p('s_cmp_lt_u32 s%d, 2' % sCG)
    p('s_cselect_b64 vcc, -1, 0')
    p('v_add_u32 v%d, %d, v%d' % (vD2 + 1, 8 * 3072 - 1024, vD2))
    p('v_cndmask_b32 v%d, v%d, v%d, vcc' % (vD2, vD2, vDS))
    p('v_cndmask_b32 v%d, v%d, v%d, vcc' % (vD2 + 1, vD2 + 1, vDS + 1))
    p('s_lshl_b32 s42, s%d, 7' % sQ); p('s_max_i32 s42, s42, 0')
    p('s_lshl_b32 s43, s%d, 13' % sWV)
    a = 58
    p('v_lshl_add_u32 v%d, v%d, 5, v%d' % (a, vWAVE, vLANE))
    DW = opt.get('dwarm', 1)
    p('v_min_u32 v%d, %d, v%d' % (a, 127 if DW else 119, a))
    p('v_lshlrev_b32 v%d, 4, v%d' % (a + 1, a))
    p('s_lshl_b32 s60, s%d, 6' % sG)
    p('v_cmp_le_u32 s[92:93], 8, v%d' % a); p('v_cmp_le_u32 s[94:95], 16, v%d' % a); p('v_cmp_le_u32 s[96:97], 24, v%d' % a); p('v_cmp_le_u32 s[98:99], 40, v%d' % a)
    p('v_and_b32 v%d, 0x70, v%d' % (a + 2, a + 1)); p('v_add_u32 v%d, s60, v%d' % (a + 2, a + 2)); p('v_min_u32 v%d, 1264, v%d' % (a + 2, a + 2))
    p('v_subrev_u32 v%d, %d, v%d' % (a + 3, 16 * 24, a + 1)); p('v_add_u32 v%d, s42, v%d' % (a + 3, a + 3))
    p('v_cndmask_b32 v%d, v%d, v%d, s[96:97]' % (a + 2, a + 2, a + 3))
    p('v_subrev_u32 v%d, %d, v%d' % (a + 3, 16 * 40, a + 1))
    p('v_cndmask_b32 v%d, v%d, v%d, s[98:99]' % (a + 2, a + 2, a + 3))
    if DW:
        p('s_lshl_b32 s60, s%d, 2' % sHF); p('s_and_b32 s61, s3, 3'); p('s_add_u32 s60, s60, s61'); p('s_mul_i32 s60, s60, 160')
        p('v_cmp_le_u32 s[90:91], 0x78, v%d' % a) if False else None
        p('v_and_b32 v%d, 3, v%d' % (a + 3, a)); p('v_mul_u32_u24 v%d, 48, v%d' % (a + 3, a + 3)); p('v_add_u32 v%d, s60, v%d' % (a + 3, a + 3))
        p('v_cmp_le_u32 vcc, 0x78, v%d' % a); p('s_mov_b64 s[70:71], vcc') if False else None
        p('v_cndmask_b32 v%d, v%d, v%d, vcc' % (a + 2, a + 2, a + 3)); p('s_mov_b64 s[76:77], vcc')
        p('v_cmp_le_u32 vcc, 0x7c, v%d' % a); p('s_nop 0'); p('s_mov_b64 s[78:79], vcc')
    p('v_mov_b32 v%d, 0' % (a + 3))
    p('s_mul_i32 s60, s%d, %d' % (sRB, 128 * 1280))
    p('s_mul_i32 s61, s%d, %d' % (sG, 32 * 1280))
    p.wait(lg='all')
    if opt.get('echo'): p('s_mov_b32 s0, s64')
    if opt.get('stamps'):
        p('v_writelane_b32 v%d, s66, 0' % vST); p('v_writelane_b32 v%d, s68, 1' % vST); st.names += ['rt0', 'start']; st.n = 2
    st('karg')
    if opt.get('wsoff'): p('s_add_u32 s%d, s%d, %d' % (sWS, sWS, opt['wsoff'] << 20)); p('s_addc_u32 s%d, s%d, 0' % (sWS + 1, sWS + 1))
    srd(p, rX, sX, 128 * 1280, 's60')
    p('s_mov_b32 s65, s61')
    d0 = dma_stage(0)
    XF = opt.get('xfirst', 0)
    def small():
        p('s_lshl_b32 s60, s%d, 9' % sWV); p('s_add_u32 m0, s60, %d' % SMO)
        p('v_mov_b32 v%d, s%d' % (a + 4, sLRE)); p('v_mov_b32 v%d, s%d' % (a + 5, sLRE + 1))
        for m, sb in ((92, sLIM), (94, sLDT), (96, sB1), (98, sGATE)) + (((76, sDSK), (78, sB2)) if DW else ()):
            p('v_mov_b32 v%d, s%d' % (a + 6, sb)); p('v_mov_b32 v%d, s%d' % (a + 7, sb + 1))
            p('v_cndmask_b32 v%d, v%d, v%d, %s' % (a + 4, a + 4, a + 6, S2(m))); p('v_cndmask_b32 v%d, v%d, v%d, %s' % (a + 5, a + 5, a + 7, S2(m)))
        p('v_lshl_add_u64 v[%d:%d], v[%d:%d], 0, v[%d:%d]' % (a + 4, a + 5, a + 2, a + 3, a + 4, a + 5))
        p('s_mov_b32 exec_hi, 0')
        p('global_load_lds_dwordx4 v[%d:%d], off' % (a + 4, a + 5), tag='sm')
        p('s_mov_b64 exec, -1')
    if not XF: small()
    for x in d0[:6]: put(x)
    if XF: small()
    p('s_cmp_lt_u32 s%d, 2' % sWV)
    p('s_cselect_b32 s66, s%d, s%d' % (sBRE, sBIM)); p('s_cselect_b32 s67, s%d, s%d' % (sBRE + 1, sBIM + 1))
    p('s_add_u32 s66, s66, s65'); p('s_addc_u32 s67, s67, 0')
    p('s_add_u32 s%d, s%d, s42' % (rP0, sW1)); p('s_addc_u32 s%d, s%d, 0' % (rP0 + 1, sW1 + 1))
    p('s_sub_u32 s%d, %d, s42' % (rP0 + 2, 640 * 3072))
    p('s_cmp_lt_u32 s%d, 2' % sCG)
    p('s_cselect_b32 s%d, s66, s%d' % (rP0, rP0)); p('s_cselect_b32 s%d, s67, s%d' % (rP0 + 1, rP0 + 1))
    p('s_cselect_b32 s%d, %d, s%d' % (rP0 + 2, 64 * 1280, rP0 + 2)); p('s_mov_b32 s%d, 0x20000' % (rP0 + 3))
    p('s_mov_b32 s60, %d' % (128 - 2048)); p('s_cselect_b32 s60, %d, s60' % (32 * 1280 - 2048)); p('s_ashr_i32 s65, s60, 31')
    p('s_add_u32 s%d, s%d, s60' % (rP1, rP0)); p('s_addc_u32 s%d, s%d, s65' % (rP1 + 1, rP0 + 1)); p('s_sub_u32 s%d, s%d, s60' % (rP1 + 2, rP0 + 2))
    put(d0[6])
    p('s_mov_b32 s%d, 0x20000' % (rP1 + 3))
    for x in d0[7:]: put(x)
    st('dma0')
    if opt.get('tlb', 0):
        p('s_lshl_b32 s60, s3, 2'); p('s_add_u32 s60, s60, s%d' % sWV); p('s_and_b32 s60, s60, 31')
        p('s_mov_b64 s[92:93], %s' % S2(sWS)); p('s_mov_b32 s65, s60')
        for lim, sb in ((16, sOUT), (21, sCRE), (22, sCIM), (23, sW2), (25, sX), (28, sW1), (30, sBRE), (31, sBIM)):
            p('s_sub_u32 s94, s60, %d' % lim); p('s_cmp_ge_u32 s60, %d' % lim)
            p('s_cselect_b64 s[92:93], %s, s[92:93]' % S2(sb)); p('s_cselect_b32 s65, s94, s65')
        p('s_lshl_b32 s65, s65, 20')
        p('s_load_dword s23, s[92:93], s65')
    p('s_mov_b64 %s, s[66:67]' % S2(sSB))
    srd(p, rWS, sWS, WS_USED)
    l = p.newlabel('L_nn')
    p('s_or_b32 s64, s64, 1')
    p('v_mov_b32 v%d, 0' % vZ)
    p('s_or_b32 s60, s2, s%d' % sWV)
    p('s_cmp_lg_u32 s60, 0')
    p('s_cbranch_scc1 ' + l)
    p('v_mov_b32 v52, s64')
    p('s_mov_b64 exec, 1')
    p('global_store_dword v%d, v52, %s sc1' % (vZ, S2(sDBG)), optional=True)
    p('s_mov_b64 exec, -1')
    p.label(l)
    for i in range(1, 10):
        for x in sigma(i): p(x)
    for x in addr_setup() + late_setup(opt.get('cls', 1), 1): put(x)
    p('s_cmp_lt_u32 s%d, 2' % sCG)
    p('s_cbranch_scc1 L_typeA')
    save = (list(p.vm), list(p.lg), p.smem, st.n, st.pending); seen0 = set(p.seen)
    body(p, 'B', opt, st)
    names1 = list(st.names)
    p('s_branch L_end')
    p.label('L_typeA')
    p.vm, p.lg, p.smem, st.n, st.pending = list(save[0]), list(save[1]), save[2], save[3], save[4]
    st.names = st.names[:st.n]; p.seen = seen0
    body(p, 'A', opt, st)
    p.namesA = list(st.names); st.names = names1
    p.label('L_end')
    p('s_endpgm')
    p.finalize(opt.get('verbose'))
    return p, dict(A=p.namesA, B=st.names)

def addr_setup():
    n_, h_ = vN, vHH
    r = ['v_and_b32 v%d, 31, v%d' % (n_, vLANE), 'v_lshrrev_b32 v48, 1, v%d' % n_, 'v_and_b32 v48, 7, v48',
         'v_xor_b32 v48, v48, v%d' % h_, 'v_lshlrev_b32 v49, 7, v%d' % n_, 'v_add_u32 v49, s43, v49',
         'v_lshrrev_b32 v50, 4, v%d' % n_, 'v_lshlrev_b32 v50, 13, v50', 'v_and_b32 v51, 15, v%d' % n_, 'v_lshl_add_u32 v50, v51, 7, v50']
    for s in range(4):
        r += ['v_xor_b32 v51, %d, v48' % (2 * s), 'v_lshl_add_u32 v%d, v51, 4, v49' % (vRX + s), 'v_lshl_add_u32 v%d, v51, 4, v50' % (vRS + s),
              'v_add_u32 v%d, 0x10000, v%d' % (vRX + 4 + s, vRX + s), 'v_add_u32 v%d, 0x10000, v%d' % (vRS + 4 + s, vRS + s)]
    r += ['v_bfe_u32 v48, v%d, 2, 2' % vLANE, 'v_lshl_add_u32 v49, v%d, 3, v48' % h_, 'v_lshlrev_b32 v49, 7, v49',
          'v_lshrrev_b32 v50, 1, v48', 'v_lshl_add_u32 v49, v50, 6, v49', 'v_and_b32 v50, 1, v%d' % vLANE,
          'v_lshl_add_u32 v49, v50, 5, v49', 'v_bfe_u32 v50, v%d, 4, 1' % vLANE, 'v_lshl_add_u32 v49, v50, 4, v49',
          'v_bfe_u32 v50, v%d, 1, 1' % vLANE, 'v_lshl_add_u32 v%d, v50, 3, v49' % vRF, 'v_xor_b32 v%d, 64, v%d' % (vRF + 1, vRF),
          'v_add_u32 v%d, 0x10000, v%d' % (vRF + 2, vRF), 'v_add_u32 v%d, 0x10000, v%d' % (vRF + 3, vRF + 1)]
    r += ['s_lshl_b32 s62, s%d, 3' % sHF, 's_add_u32 s62, s62, s%d' % sCG, 's_lshl_b32 s%d, s62, 8' % sFL, 's_lshl_b32 s62, s62, 2',
          's_and_b32 s65, s%d, 1' % sWV, 's_lshl_b32 s65, s65, 1', 's_add_u32 s62, s62, s65', 's_lshl_b32 s65, s65, 6', 's_add_u32 s%d, s%d, s65' % (sFL, sFL),
          's_lshr_b32 s65, s%d, 1' % sWV, 's_lshl_b32 s66, s65, 6', 's_add_u32 s62, s62, s66',
          's_lshl_b32 s66, s%d, 1' % sRB, 's_add_u32 s65, s65, s66', 's_mul_i32 s64, s65, %d' % HID_RT,
          's_lshl_b32 s65, s65, 12', 's_add_u32 s%d, s%d, s65' % (sFL, sFL), 's_add_u32 s%d, s%d, %d' % (sFL, sFL, WS_FH),
          's_and_b32 s65, s%d, 1' % sWV, 's_lshl_b32 s65, s65, 11', 's_add_u32 s64, s64, s65',
          'v_add_u32 v48, s62, v%d' % h_, 's_lshl_b32 s62, s%d, 7' % sRB, 'v_add_lshl_u32 v%d, v48, s62, 3' % (vGA + 9),
          'v_bfe_u32 v49, v48, 2, 2', 'v_bfe_u32 v50, v48, 4, 1', 'v_lshl_add_u32 v49, v49, 1, v50',
          'v_and_b32 v50, 3, v48', 'v_lshl_add_u32 v49, v49, 2, v50',
          'v_lshrrev_b32 v48, 5, v48', 'v_lshlrev_b32 v48, 13, v48', 'v_lshl_add_u32 v48, v49, 7, v48',
          'v_bfe_u32 v49, v49, 1, 3', 'v_lshrrev_b32 v50, 2, v%d' % n_, 'v_xor_b32 v49, v49, v50',
          'v_lshl_add_u32 v48, v49, 4, v48', 'v_and_b32 v49, 3, v%d' % n_, 'v_lshl_add_u32 v%d, v49, 2, v48' % vGA,
          'v_add_u32 v%d, 0x10000, v%d' % (vGA + 1, vGA), 'v_lshlrev_b32 v%d, 2, v%d' % (vGA + 2, n_),
          'v_add_u32 v%d, %d, v%d' % (vGA + 2, SMO + 640, vGA + 2), 'v_mov_b32 v%d, 0' % (vGA + 8),
          's_lshr_b32 s62, s43, 1', 'v_lshlrev_b32 v%d, 4, v%d' % (vL16, vLANE)]
    return r

def sidejob_setup(p, SJO):
    D = sSJD
    for x in ['s_cmp_lt_u32 s2, 224', 's_cselect_b32 s%d, 1, 0' % sSJK, 's_cmp_lt_u32 s%d, 3' % sWV, 's_cselect_b32 s%d, s%d, 0' % (sSJK, sSJK),
              's_sub_u32 s41, s2, 64', 's_lshr_b32 s65, s41, 4',
              's_and_b32 s41, s41, 15', 's_mul_i32 s41, s41, 3', 's_add_u32 s41, s41, s%d' % sWV,
              's_mul_i32 s%d, s41, %d' % (sSJO2, 32 * 1280), 's_lshl_b32 s60, s65, 7', 's_add_u32 s%d, s%d, s60' % (sSJO2, sSJO2),
              's_lshl_b32 s65, s65, 2',
              's_bfe_u32 s60, s41, 0x10001', 's_mul_i32 s60, s60, 24', 's_and_b32 s40, s41, 1', 's_add_u32 s60, s60, s40',
              's_lshr_b32 s41, s41, 2', 's_lshl_b32 s41, s41, 1', 's_add_u32 s41, s41, s60', 's_mul_i32 s41, s41, 5120',
              's_add_u32 s41, s41, %d' % WS_W2P,
              's_mov_b32 s%d, s%d' % (rSJ, sW2), 's_mov_b32 s%d, s%d' % (rSJ + 1, sW2 + 1), 's_mov_b32 s%d, %d' % (rSJ + 2, 1536 * 1280),
              's_mov_b32 s%d, 0x20000' % (rSJ + 3),
              's_cmp_lg_u32 s%d, 0' % sSJK, 's_cselect_b32 s%d, s%d, 0' % (rSJ + 2, rSJ + 2), 's_cselect_b32 s40, 0, 0x7ff00000',
              'v_add_u32 v%d, s40, v%d' % (vDJ + 5, vL16)]: p(x)
    for e in range(4):
        p('s_add_u32 s60, s65, %d' % e); p('s_mul_i32 s40, s60, 52'); p('s_lshr_b32 s40, s40, 8')
        p('s_mul_i32 s%d, s40, %d' % (D + e, W2P_CT - 5 * 1024)); p('s_lshl_b32 s60, s60, 10')
        p('s_add_u32 s%d, s%d, s60' % (D + e, D + e)); p('s_add_u32 s%d, s%d, s41' % (D + e, D + e))
    for x in ['v_lshrrev_b32 v48, 3, v%d' % vLANE, 'v_mul_u32_u24 v48, 1280, v48', 'v_and_b32 v49, 7, v%d' % vLANE, 'v_lshl_add_u32 v%d, v49, 4, v48' % vDJ,
              'v_lshrrev_b32 v48, 4, v%d' % vLANE, 'v_bfe_u32 v49, v%d, 2, 2' % vLANE, 'v_lshl_add_u32 v48, v48, 3, v49', 'v_lshlrev_b32 v48, 7, v48',
              'v_and_b32 v49, 3, v%d' % vLANE, 'v_lshl_add_u32 v48, v49, 3, v48', 's_add_u32 s60, s43, %d' % SJO, 'v_add_u32 v%d, s60, v48' % (vDJ + 4)]: p(x)
    for i in range(1, 4): p('v_add_u32 v%d, %d, v%d' % (vDJ + i, i * (8 * 1280 - 1024), vDJ))

def late_setup(CLS, LBQ):
    n_, h_ = vN, vHH
    return ['v_bfe_u32 v48, v%d, 2, 1' % n_, 'v_lshlrev_b32 v48, 10, v48',
            'v_lshl_add_u32 v48, v%d, 9, v48' % h_, 'v_lshrrev_b32 v49, 3, v%d' % n_, 'v_lshl_add_u32 v48, v49, 6, v48',
            'v_and_b32 v49, 3, v%d' % n_, 'v_lshl_add_u32 v%d, v49, 4, v48' % vSTF,
            'v_lshlrev_b32 v%d, 3, v%d' % (vEXA + 1, n_), 'v_add_u32 v%d, %d, v%d' % (vEXA + 1, EXO, vEXA + 1), 'v_lshl_add_u32 v48, v%d, 1, v%d' % (vWAVE, h_),
            'v_lshl_add_u32 v%d, v48, 8, v%d' % (vEXA, vEXA + 1),
            's_add_u32 s6, s43, %d' % TRO,
            'v_lshlrev_b32 v48, 10, v%d' % h_, 'v_lshl_add_u32 v48, v%d, 4, v48' % n_, 'v_add_u32 v%d, s6, v48' % vTW,
            'v_xor_b32 v%d, 0x240, v%d' % (vTW + 1, vTW),
            'v_lshrrev_b32 v48, 4, v%d' % vLANE, 'v_lshlrev_b32 v48, 7, v48', 'v_bfe_u32 v49, v%d, 2, 2' % vLANE,
            'v_lshl_add_u32 v48, v49, 4, v48', 'v_and_b32 v49, 1, v%d' % vLANE, 'v_lshl_add_u32 v48, v49, 3, v48',
            'v_bfe_u32 v49, v%d, 1, 1' % vLANE, 'v_mul_u32_u24 v49, 0x240, v49', 'v_add_u32 v48, v48, v49',
            'v_add_u32 v%d, s6, v48' % (vTW + 2), 'v_xor_b32 v%d, 64, v%d' % (vTW + 3, vTW + 2),
            's_sub_u32 s6, s%d, 1' % sRB, 's_lshl_b32 s7, s%d, 2' % sWV if LBQ else 's_mov_b32 s7, 0', 's_sub_u32 s6, s6, s7', 'v_sub_u32 v48, s6, v%d' % h_, 'v_lshlrev_b32 v48, 9, v48',
            'v_lshl_add_u32 v%d, v%d, 4, v48' % (vEO, n_),
            's_lshr_b32 s6, s%d, 2' % sRB, 's_lshl_b32 s6, s6, 3', 's_lshr_b32 s7, s3, 2', 's_add_u32 s%d, s6, s7' % sRT,
            's_lshl_b32 s6, s%d, 2' % sHF, 's_and_b32 s7, s3, 3', 's_add_u32 s%d, s6, s7' % sCT,
            's_sub_u32 s6, s%d, s%d' % (sCT, sRT) if CLS else 's_mov_b32 s6, s%d' % sCT, 's_and_b32 s6, s6, 3', 's_lshl_b32 s6, s6, 3', 's_or_b32 s%d, s6, 0x80000' % sSEL,
            'v_mul_u32_u24 v%d, 5120, v%d' % (vB, vWAVE), 'v_add_u32 v%d, v%d, v%d' % (vB, vB, vL16), 'v_add_u32 v%d, 0x1000, v%d' % (vB + 1, vB),
            'v_lshl_add_u32 v%d, v%d, 12, v%d' % (vA, vWAVE, vL16),
            's_lshl_b32 s6, s%d, 12' % sRT, 's_add_u32 s6, s6, %d' % WS_FH, 'v_lshl_add_u32 v%d, v%d, 7, s6' % (vFP, n_),
            's_mul_i32 s6, s%d, 5' % sCT, 's_lshr_b32 s6, s6, 2', 's_lshl_b32 s6, s6, 11', 's_add_u32 s6, s6, %d' % (WS_FL + 64 * 128),
            'v_lshl_add_u32 v%d, v%d, 7, s6' % (vWP, n_)]

def c_setup(vDC=vDC):
    return ['v_lshrrev_b32 v48, 3, v%d' % vLANE, 'v_mul_u32_u24 v48, 1280, v48', 'v_and_b32 v49, 7, v%d' % vLANE, 'v_lshrrev_b32 v50, 4, v%d' % vLANE,
            'v_xor_b32 v49, v49, v50', 'v_lshl_add_u32 v%d, v49, 4, v48' % vDC, 'v_xor_b32 v%d, 64, v%d' % (vDC + 1, vDC),
            'v_add_u32 v%d, %d, v%d' % (vDC + 1, 8 * 1280 - 1024, vDC + 1),
            'v_and_b32 v48, 15, v%d' % vLANE, 'v_lshrrev_b32 v49, 1, v48', 'v_xor_b32 v49, v49, v50', 'v_lshlrev_b32 v49, 4, v49',
            'v_lshl_add_u32 v48, v48, 7, v49', 'v_add_u32 v%d, s43, v48' % vRC, 'v_xor_b32 v%d, 64, v%d' % (vRC + 1, vRC),
            'v_add_u32 v%d, %d, v%d' % (vRC + 2, 3 * SLOT, vRC), 'v_add_u32 v%d, %d, v%d' % (vRC + 3, 3 * SLOT, vRC + 1)]

def body(p, ty, opt, st):
    put = p.put
    B = ty == 'B'
    NG = 1 if B else 2
    WS = S4(rWS)
    vPAR = 72
    S2OFF = [0, SLOT, 2 * SLOT]
    DELTA = opt.get('delta', 2); LBQ = 1; NLB = 2
    def spin(load, check):
        l1, l2 = p.newlabel('L_sp'), p.newlabel('L_sp')
        p('s_mov_b32 s65, 0')
        p.label(l1)
        check(l2)
        p('s_add_u32 s65, s65, 1'); p('s_cmp_gt_u32 s65, %d' % SPIN_MAX); p('s_cbranch_scc1 ' + l2)
        load(True)
        p('s_waitcnt vmcnt(0)'); p('s_branch ' + l1)
        p.label(l2)
    def dma_s2(c):
        r = []
        for sg in range(4 if c < 2 else 2):
            r.append('s_add_u32 m0, s43, %d' % (S2OFF[c] + 2048 * sg))
            r += [('buffer_load_dwordx4 v%d, %s, s%d offen offset:%d lds' % (vDS + i, S4(rS2), SIG + 4 * c + sg, 1024 * i), 's2c%d' % c) for i in range(2)]
        return r
    def s2_srd(): srd(p, rS2, sSB, 32 * 1280)
    def par_reads():
        r = ['v_lshlrev_b32 v48, 1, v%d' % vN, 'v_add_u32 v48, %d, v48' % SMO]
        for g in range(NG):
            r += [('ds_read_u16 v%d, v48 offset:%d' % (vPAR + 3 * g + k, 128 * k + 64 * g), 'par') for k in range(3)]
        return r
    def bias_reads(dst, T):
        return [('ds_read_b128 v[%d:%d], v49 offset:%d' % (dst + 8 * T + 4 * q, dst + 3 + 8 * T + 4 * q, 64 * T + 16 * q), 'b1%d' % T) for q in range(2)]
    def setup(g):
        c = CON[g]; tr, ti = TAB[g], TAB[g] + 16; pr = vPAR + 3 * g
        a, b = 48, 50
        M = S2(sM)
        r = ['v_lshlrev_b32 v%d, 16, v%d' % (pr + k, pr + k) for k in range(3)]
        r += ['v_mul_f32 v%d, %s, v%d' % (a, LOG2E, pr + 2), 'v_exp_f32 v%d, v%d' % (a, a),
              'v_mul_f32 v%d, v%d, v%d' % (c + 4, pr, pr),
              'v_cvt_pk_bf16_f32 v%d, v%d, v%d' % (a, a, a), 'v_lshlrev_b32 v%d, 16, v%d' % (a, a),
              'v_mul_f32 v%d, v%d, v%d' % (a + 1, a, pr + 1), 'v_mul_f32 v%d, v%d, v%d' % (a, a, pr),
              'v_mul_f32 v%d, %s, v%d' % (a + 1, INV2PI, a + 1), 'v_mul_f32 v%d, %s, v%d' % (a, LOG2E, a),
              'v_fract_f32 v%d, v%d' % (a + 1, a + 1), 'v_exp_f32 v%d, v%d' % (a, a),
              'v_cos_f32 v%d, v%d' % (b, a + 1), 'v_sin_f32 v%d, v%d' % (b + 1, a + 1),
              'v_fmac_f32 v%d, v%d, v%d' % (c + 4, pr + 1, pr + 1),
              'v_mul_f32 v%d, v%d, v%d' % (c, a, b), 'v_mul_f32 v%d, v%d, v%d' % (c + 1, a, b + 1),
              'v_rcp_f32 v%d, v%d' % (a, c + 4), 'v_add_f32 v%d, -1.0, v%d' % (b, c),
              'v_mul_f32 v%d, v%d, v%d' % (c + 2, b, pr), 'v_mul_f32 v%d, v%d, v%d' % (c + 3, c + 1, pr),
              'v_fmac_f32 v%d, v%d, v%d' % (c + 2, c + 1, pr + 1), 'v_fma_f32 v%d, -v%d, v%d, v%d' % (c + 3, b, pr + 1, c + 3),
              'v_mul_f32 v%d, v%d, v%d' % (c + 2, c + 2, a), 'v_mul_f32 v%d, v%d, v%d' % (c + 3, c + 3, a),
              'v_mov_b32 v%d, v%d' % (tr, c), 'v_mov_b32 v%d, v%d' % (ti, c + 1)]
        for k in range(1, 16): r += cmul(tr + k, ti + k, tr + k - 1, ti + k - 1, c, c + 1)
        mu = c + 4
        r += ['v_cmp_eq_u32 %s, 1, v%d' % (M, vHH), 'v_mov_b32 v%d, v%d' % (mu, tr + 15), 'v_mov_b32 v%d, v%d' % (mu + 1, ti + 15)]
        r += ['v_cndmask_b32 v%d, 1.0, v%d, %s' % (b, mu, M), 'v_cndmask_b32 v%d, 0, v%d, %s' % (b + 1, mu + 1, M)]
        r += cm(c + 6, c + 2, b) + csq(a, mu)
        r += ['v_cndmask_b32 v%d, 1.0, v%d, s[66:67]' % (b, a), 'v_cndmask_b32 v%d, 0, v%d, s[66:67]' % (b + 1, a + 1)]
        r += cm(c + 12, c + 6, b) + csq(c + 8, a)
        r += ['v_cndmask_b32 v%d, 1.0, v%d, s[68:69]' % (b, c + 8), 'v_cndmask_b32 v%d, 0, v%d, s[68:69]' % (b + 1, c + 9)]
        r += cm(c + 6, c + 12, b) + csq(a, c + 8)
        r += ['v_cndmask_b32 v%d, 1.0, v%d, %s' % (c + 10, a, M), 'v_cndmask_b32 v%d, 0, v%d, %s' % (c + 11, a + 1, M)]
        r += csq(c + 8, a)
        if LBQ:
            r += csq(a, c + 8) + ['v_cndmask_b32 v%d, 1.0, v%d, s[66:67]' % (b, a), 'v_cndmask_b32 v%d, 0, v%d, s[66:67]' % (b + 1, a + 1)]
            r += cm(c + 12, c + 10, b) + csq(b, a) + ['v_cndmask_b32 v%d, 1.0, v%d, s[68:69]' % (b, b), 'v_cndmask_b32 v%d, 0, v%d, s[68:69]' % (b + 1, b + 1)]
            r += cm(c + 10, c + 12, b)
        r += ['v_lshl_add_u32 v%d, v%d, 1, v%d' % (c + 14, vWAVE, vHH), 'v_mov_b32 v%d, 0' % (c + 12), 'v_mov_b32 v%d, 0' % (c + 13)]
        return r
    def masks():
        p('s_bitcmp1_b32 s%d, 0' % sWV); p('s_cselect_b64 s[66:67], -1, 0')
        p('s_bitcmp1_b32 s%d, 1' % sWV); p('s_cselect_b64 s[68:69], -1, 0')
    def gate_reads(s):
        sl = s % 5; d = vGA + 4 + 2 * (s & 1)
        return [('ds_read_b32 v%d, v%d offset:%d' % (d, vGA3 if sl == 4 else vGA + (sl >> 1), (sl & 1) * SLOT), 'g%d' % s)]
    def third_set():
        r = ['v_add_u32 v%d, %d, v%d' % (vRX3 + k, 4 * SLOT, vRX + k) for k in range(4)] + ['v_add_u32 v%d, %d, v%d' % (vGA3, 4 * SLOT, vGA)]
        return r + ['v_add_u32 v%d, %d, v%d' % (vW3 + k, 4 * SLOT, (vRF if B else vRS) + k) for k in range(2 if B else 4)]
    def gw_reads():
        r = []
        for s in range(10): r += ['v_add_u32 v%d, s%d, v%d' % (vGA + 3, SIG + s, vGA + 2), ('ds_read_b32 v%d, v%d' % (vGW + s, vGA + 3), 'gw')]
        return r
    def gate_step(s):
        if opt.get('nogate'): return []
        x = vGA + 4 + 2 * (s & 1); w = vGW + s; a = vGA + 10; acc = vGA + 8
        return [lambda: p.wait(lg='g%d' % s),
                'v_lshlrev_b32 v%d, 16, v%d' % (a, x), 'v_lshlrev_b32 v%d, 16, v%d' % (a + 1, w),
                'v_and_b32 v%d, 0xffff0000, v%d' % (x, x), 'v_and_b32 v%d, 0xffff0000, v%d' % (w, w),
                'v_mul_f32 v%d, v%d, v%d' % (a, a, a + 1), 'v_mul_f32 v%d, v%d, v%d' % (x, x, w),
                'v_cvt_pk_bf16_f32 v%d, v%d, v%d' % (a, a, x),
                'v_lshlrev_b32 v%d, 16, v%d' % (a + 1, a), 'v_and_b32 v%d, 0xffff0000, v%d' % (a, a),
                'v_add_f32 v%d, v%d, v%d' % (acc, acc, a + 1), 'v_add_f32 v%d, v%d, v%d' % (acc, acc, a)]
    def gate_store():
        a = vGA + 10
        p('s_mov_b32 s40, %d' % WS_G)
        p('s_mov_b32 exec_lo, 1'); p('s_mov_b32 exec_hi, 1')
        p('buffer_store_dwordx2 v[%d:%d], v%d, %s, s40 offen%s' % (a, a + 1, vGA + 9, WS, SC), tag='gst')
        p('s_mov_b64 exec, -1')
    gstore = [gate_store]
    def gate_fin():
        r = []; s = vGA + 8; a = vGA + 10
        for m in ('quad_perm:[1,0,3,2]', 'quad_perm:[2,3,0,1]', 'row_half_mirror', 'row_mirror'):
            r.append('v_add_f32_dpp v%d, v%d, v%d %s row_mask:0xf bank_mask:0xf' % (s, s, s, m))
        r += ['v_mov_b32 v%d, v%d' % (a, s), 'v_permlane16_swap_b32 v%d, v%d' % (a, s), 'v_add_f32 v%d, v%d, v%d' % (s, s, a),
              'v_cvt_pk_bf16_f32 v%d, v%d, v%d' % (s, s, s), 'v_lshlrev_b32 v%d, 16, v%d' % (s, s),
              'v_mul_f32 v%d, 0xbfb8aa3b, v%d' % (s, s), 'v_exp_f32 v%d, v%d' % (s, s), 'v_add_f32 v%d, 1.0, v%d' % (s, s),
              'v_rcp_f32 v%d, v%d' % (s, s), 'v_cvt_pk_bf16_f32 v%d, v%d, v%d' % (s, s, s), 'v_lshlrev_b32 v%d, 16, v%d' % (a, s),
              'v_sub_f32 v%d, 1.0, v%d' % (a + 1, a), 'v_cvt_pk_bf16_f32 v%d, v%d, v%d' % (a + 1, a + 1, a + 1),
              'v_lshlrev_b32 v%d, 16, v%d' % (a + 1, a + 1)]
        store = gstore[0]
        def unused():
            p('s_mov_b32 s40, %d' % WS_G)
            p('s_mov_b32 exec_lo, 1'); p('s_mov_b32 exec_hi, 1')
            p('buffer_store_dwordx2 v[%d:%d], v%d, %s, s40 offen%s' % (a, a + 1, vGA + 9, WS, SC), tag='gst')
            p('s_mov_b64 exec, -1')
        if not (B and opt.get('fburst', 1) and opt.get('gmerge', 0)): r.append(store)
        return r
    SJP = opt.get('sjpos', 0); SJM = 0; SJL = 0; SJO = 4096 if SJL else XREG
    def sj_dma():
        p('s_add_u32 m0, s43, %d' % SJO)
        for i in range(4): p('buffer_load_dwordx4 v%d, %s, s%d offen offset:%d%s lds' % (vDJ + i, S4(rSJ), sSJO2, 1024 * i, opt.get('sjnt', ' nt')), tag='sj')
    def sj_read():
        p.wait(vm='sj')
        for e in range(4):
            for j in range(2): p('ds_read_b64_tr_b16 a[%d:%d], v%d offset:%d' % (232 + 4 * e + 2 * j, 233 + 4 * e + 2 * j, vDJ + 4, 32 * e + 512 * j), tag='sjr')
    def sj_store():
        p.wait(lg='sjr')
        for e in range(4): p('buffer_store_dwordx4 a[%d:%d], v%d, %s, s%d offen%s' % (232 + 4 * e, 235 + 4 * e, vDJ + 5, WS, sSJD + e, SC), tag='sjs')
    def a_prefetch(which):
        p('s_and_b32 s65, s2, 7'); p('s_lshl_b32 s65, s65, 3'); p('s_add_u32 s65, s65, s3'); p('s_lshl_b32 s65, s65, 2'); p('s_add_u32 s65, s65, s%d' % sWV)
        if which == 'C':
            p('s_bitcmp1_b32 s%d, 0' % sWV)
            p('s_cselect_b32 s40, s%d, s%d' % (sCIM, sCRE)); p('s_cselect_b32 s41, s%d, s%d' % (sCIM + 1, sCRE + 1))
            p('s_lshr_b32 s65, s65, 1'); p('s_mul_i32 s65, s65, 6400'); p('v_min_u32 v94, 49, v%d' % vLANE)
        elif which == 'S':
            p('s_bitcmp1_b32 s%d, 0' % sWV)
            p('s_cselect_b32 s40, s%d, s%d' % (sBIM2, sBRE)); p('s_cselect_b32 s41, s%d, s%d' % (sBIM2 + 1, sBRE + 1))
            p('s_lshr_b32 s65, s65, 1'); p('s_cmp_ge_u32 s65, 64'); p('s_cselect_b32 s23, %d, %d' % (256, 128)) if False else None
            p('s_mul_i32 s65, s65, 3'); p('s_cselect_b32 s23, 128, 0'); p('s_add_u32 s65, s65, s23'); p('s_add_u32 s65, s65, 128')
            p('s_mul_i32 s65, s65, 1280'); p('v_min_u32 v94, 29, v%d' % vLANE)
        else:
            p('s_mov_b64 s[40:41], %s' % S2(sW2)); p('s_mul_i32 s65, s65, 7680'); p('v_min_u32 v94, 59, v%d' % vLANE)
        p('v_lshl_add_u32 v94, v94, 7, s65')
        p('global_load_dword v93, v94, s[40:41]', tag='cpf')
    def c_prefetch():
        p('s_bitcmp1_b32 s%d, 0' % sWV)
        p('s_cselect_b32 s40, s%d, s%d' % (sCIM, sCRE)); p('s_cselect_b32 s41, s%d, s%d' % (sCIM + 1, sCRE + 1))
        p('s_lshl_b32 s65, s2, 1'); p('s_lshr_b32 s23, s%d, 1' % sWV); p('s_add_u32 s65, s65, s23'); p('s_mul_i32 s65, s65, 1600')
        p('v_lshl_add_u32 v94, v%d, 7, s65' % vLANE); p('v_min_u32 v94, %d, v94' % (640 * 1280 - 4))
        p('s_mov_b64 exec, 0x1fff')
        p('global_load_dword v93, v94, s[40:41]', tag='cpf')
        p('s_mov_b64 exec, -1')
    def c_srd():
        p.seen.add('csrd')
        p('s_bitcmp1_b32 s%d, 0' % sWV)
        p('s_cselect_b32 s%d, s%d, s%d' % (rC, sCIM, sCRE)); p('s_cselect_b32 s%d, s%d, s%d' % (rC + 1, sCIM + 1, sCRE + 1))
        p('s_mul_i32 s40, s%d, %d' % (sCT, 80 * 1280)); p('s_add_u32 s%d, s%d, s40' % (rC, rC)); p('s_addc_u32 s%d, s%d, 0' % (rC + 1, rC + 1))
        p('s_mov_b32 s%d, %d' % (rC + 2, 80 * 1280)); p('s_mov_b32 s%d, 0x20000' % (rC + 3))
        p('s_lshr_b32 s%d, s%d, 1' % (sSJO, sWV)); p('s_lshl_b32 s%d, s%d, 7' % (sSJO, sSJO))
    DS = opt.get('deltas', 1)
    def sp_lit(pos): return sum(order(5, c, DS)[pos] << (8 * c) for c in range(4))
    def c_dma(q):
        pos, n = divmod(q, 5); pl = q % 16
        r = [lambda: p.wait(lg='cr%d' % (q - 16))] if q >= 16 else []
        r += ['s_add_u32 m0, s43, %d' % (CPL[pl >> 2] + 2048 * (pl & 3))]
        if n == 0: r += ['s_bfe_u32 s23, 0x%x, s%d' % (sp_lit(pos), sSEL5), 's_lshl_b32 s23, s23, 8', 's_add_u32 s23, s23, s%d' % sSJO]
        else: r += ['s_add_u32 s23, s23, %d' % (16 * 1280)]
        ld = [('buffer_load_dwordx4 v%d, %s, s23 offen offset:%d lds' % (vDC + i, S4(rC), 1024 * i), 'cd%d' % q) for i in range(2)]
        def first():
            assert 'csrd' in p.seen
            for x in r + ld[:1]: put(x)
        return [first, ld[1]]
    def c_read(q, dst=None):
        pl = q % 16; dst = AX + 8 * q if dst is None else dst
        hi, o = {0: (1, 0), 1: (1, SLOT), 2: (0, 0), 3: (0, SLOT)}[pl >> 2]
        rd = [('ds_read_b128 a[%d:%d], v%d offset:%d' % (dst + 4 * gg, dst + 4 * gg + 3, vRC + 2 * hi + gg, o + 2048 * (pl & 3)), 'cr%d' % q) for gg in range(2)]
        return [lambda: (p.wait(vm='cd%d' % q), put(rd[0])), rd[1]]
    def cD(a, b): return [x for q in range(a, b) for x in c_dma(q)]
    def cR(a, b): return [x for q in range(a, b) for x in c_read(q)]
    def nonce_load(o=False): p('global_load_dword v%d, v%d, %s sc1' % (vPOLL, vZ, S2(sDBG)), tag='nonce', optional=o)
    def get_nonce():
        def chk(l2):
            p('v_readfirstlane_b32 s%d, v%d' % (sNON, vPOLL)); p('s_cmp_lg_u32 s%d, 0' % sNON); p('s_cbranch_scc1 ' + l2)
        p.wait(vm='nonce'); spin(nonce_load, chk)
        p('v_mov_b32 v47, s%d' % sNON)
    def w2_signal():
        def go():
            p('s_lshl_b32 s40, s2, 7'); p('s_add_u32 s40, s40, %d' % WS_FL); p('s_mov_b64 exec, 1')
            p('buffer_store_dword v47, v%d, %s, s40 offen%s' % (vZ, WS, SC), optional=True)
            p('s_mov_b64 exec, -1')
        wave0(go)
    def signal(level, tags):
        def go():
            p.wait(vm=tags)
            p('s_add_u32 s65, s%d, %d' % (sFL, 131072 * level)); p('s_mov_b64 exec, 1')
            p('buffer_store_dword v47, v%d, %s, s65 offen%s' % (vZ, WS, SC), tag='flag')
            p('s_mov_b64 exec, -1')
        return go
    def fl_load(level):
        if level == 'FW':
            p('v_cmp_eq_u32 vcc, 1, v%d' % vHH); p('v_cndmask_b32 v94, v%d, v%d, vcc' % (vFP, vWP))
            p('buffer_load_dword v%d, v94, %s, 0 offen sc1' % (vPOLL, WS), optional=True)
            return
        p('s_mov_b32 s40, %d' % (0 if level == 'W' else 131072 * level)); p('s_mov_b32 exec_hi, 0')
        p('buffer_load_dword v%d, v%d, %s, s40 offen sc1' % (vPOLL, vWP if level == 'W' else vFP, WS), optional=True)
        p('s_mov_b32 exec_hi, -1')
    def wave0(fn):
        l = p.newlabel('L_w0')
        p('s_cmp_lg_u32 s%d, 0' % sWV); p('s_cbranch_scc1 ' + l)
        fn()
        p.label(l)
    def fl_issue(level):
        def go():
            wave0(lambda: fl_load(level))
            p.marks[level] = p.total_vm()
        return go
    def fl_check(level, bar=True):
        def chk(l2):
            p('v_cmp_ne_u32 vcc, s%d, v%d' % (sNON, vPOLL))
            if level == 'FW': p('s_cbranch_vccz ' + l2)
            else: p('s_cmp_eq_u32 vcc_lo, 0'); p('s_cbranch_scc1 ' + l2)
        def body_():
            p('s_waitcnt vmcnt(%d)' % min(63, p.total_vm() - p.marks[level]))
            spin(lambda o: fl_load(level), chk)
        def go():
            wave0(body_)
            if bar: p('s_barrier')
        return go
    def rnd_lit(i):
        for o, n in PARTS:
            if o <= i < o + n: return sum((o + order(n, c, DELTA)[i - o]) << (8 * c) for c in range(4))
    def b_reg(i, n):
        if i < 12: return ('a', 208 + 20 * (i % 3) + 4 * n) if i % 3 < 2 else ('v', 12 + 4 * n)
        pos, gg = divmod(i - 12, 2)
        return 'a', AX + 8 * (5 * (pos % 4) + n) + 4 * gg
    def b_loads(i):
        r = ['s_bfe_u32 s61, 0x%x, s%d' % (rnd_lit(i), sSEL), 's_mul_i32 s61, s61, 20480']
        for n in range(5):
            k, b = b_reg(i, n)
            r.append(('buffer_load_dwordx4 %s[%d:%d], v%d, %s, s61 offen%s sc1' % (k, b, b + 3, vB + (n >> 2), S4(rW2P), ' offset:%d' % (1024 * n) if n < 4 else ''), 'B%d' % i))
        return r
    def a_loads(i, pos=None):
        b = AH + 16 * ((i if pos is None else pos) % 3)
        if i < 12: r = ['s_bfe_u32 s60, 0x%x, s%d' % (rnd_lit(i), sSEL), 's_lshl_b32 s60, s60, 14']
        else: r = ['s_bfe_u32 s60, 0x%x, s%d' % (sp_lit((i - 12) >> 1), sSEL5), 's_lshl_b32 s60, s60, 15', 's_add_u32 s60, s60, %d' % ((12 + (i & 1)) << 14)]
        r += [('buffer_load_dwordx4 a[%d:%d], v%d, %s, s60 offen offset:%d sc1' % (b + 4 * m, b + 4 * m + 3, vA, S4(rHID), 1024 * m), 'A%d' % i) for m in range(4)]
        return r
    def w2_prefetch():
        if not opt.get('wpf', 0): return
        p('s_and_b32 s40, s%d, 7' % sRT); p('s_lshl_b32 s40, s40, 2'); p('s_add_u32 s40, s40, s%d' % sWV); p('s_mul_i32 s40, s40, 7680')
        p('v_min_u32 v94, 59, v%d' % vLANE); p('v_lshlrev_b32 v94, 7, v94')
        p('buffer_load_dword v93, v94, %s, s40 offen sc1' % S4(rW2P), tag='wpf')
    def hid_srd():
        p('s_mul_i32 s40, s%d, %d' % (sRT, HID_RT)); srd(p, rHID, sWS, HID_RT, 's40')
        p('s_mul_i32 s40, s%d, %d' % (sCT, W2P_CT)); p('s_add_u32 s40, s40, %d' % WS_W2P); srd(p, rW2P, sWS, W2P_CT, 's40')
        if opt.get('fake'):
            p('s_lshr_b32 s40, s%d, 2' % sRB); p('s_mul_i32 s40, s40, %d' % (512 * 1280)); p('s_lshl_b32 s41, s3, 13'); p('s_add_u32 s40, s40, s41')
            if opt['fake'] & 1: srd(p, rHID, sX, HID_RT, 's40')
            if opt['fake'] & 2: srd(p, rW2P, sX, HID_RT, 's40')
    def reads1(k):
        s, ks = divmod(k, 4); sl = s % 5; hi = 4 * (sl >> 1); o = (sl & 1) * SLOT
        w = AW + 16 * (k % 3); tg = 'k%d' % k
        rx, rs, rf = (vRX3, vW3, vW3) if sl == 4 else (vRX + hi, vRS + hi, vRF + (hi >> 1))
        r = [('ds_read_b128 a[%d:%d], v%d offset:%d' % (AX + 4 * k, AX + 4 * k + 3, rx + ks, o), tg)]
        for T in range(4):
            if B:
                for j in range(2):
                    r.append(('ds_read_b64_tr_b16 a[%d:%d], v%d offset:%d' % (w + 4 * T + 2 * j, w + 1 + 4 * T + 2 * j, rf + (T & 1),
                                                                          o + ks * 8192 + 4096 + 2048 * (T >> 1) + 512 * j), tg))
            else:
                r.append(('ds_read_b128 a[%d:%d], v%d offset:%d' % (w + 4 * T, w + 4 * T + 3, rs + ks, o + 4096 + 2048 * (T >> 1) + 16384 * (T & 1)), tg))
        return r
    L2 = opt.get('lead2', 5); NB2 = L2 + 1
    def reads2(m):
        k, T = divmod(m, 2); s, ks = divmod(k, 4); c, sg = divmod(s, 4)
        w = AW2 + 4 * (m % NB2)
        return [('ds_read_b128 a[%d:%d], v%d offset:%d' % (w, w + 3, vRS + 4 * (S2OFF[c] >> 16) + ks, (S2OFF[c] & 0xffff) + 16384 * T + 2048 * sg), 'm%d' % m)]
    mf = 'v_mfma_f32_32x32x16_bf16 v[%d:%d], a[%d:%d], a[%d:%d], %s'
    def mfma1(k, T):
        x = AX + 4 * k; f = AW + 16 * (k % 3) + 4 * T
        if B: a = FAC + 16 * T; return mf % (a, a + 15, f, f + 3, x, x + 3, 'v[%d:%d]' % (a, a + 15))
        a = SAC[T >> 1] + 16 * (T & 1)
        return mf % (a, a + 15, x, x + 3, f, f + 3, 'v[%d:%d]' % (a, a + 15) if k else '0')
    def mfma2(m):
        k, T = divmod(m, 2); x = AX + 4 * k; a = SAC[0] + 16 * T; f = AW2 + 4 * (m % NB2)
        return mf % (a, a + 15, x, x + 3, f, f + 3, 'v[%d:%d]' % (a, a + 15) if k else '0')
    LOOK = opt.get('look', 3); SJS = opt.get('sjs', 2); AE = opt.get('aearly', 0)
    def sync1(s):
        p.wait(vm='st%d' % s, lg=None if s else 'all'); p('s_barrier')
        r = [lambda: p.wait(lg='sjr')] if (B and s == 1 + SJP) else []
        if B and SJP and s == 1: return r
        if B and SJP and s == 2: r += dma_stage(4)
        if s == 0: r += dma_stage(2)
        if s + LOOK < 10: r += dma_stage(s + LOOK)
        elif B: r += dma_s2(s + LOOK - 10)
        if s == 7 and opt.get('cpf', 2) == 1: r = [c_prefetch] + r
        if not B and opt.get('cpf', 2) == 2:
            if s == opt.get('pfc', 7): r = r + [lambda: a_prefetch('C')]
            if s == opt.get('pfs', 5): r = r + [lambda: a_prefetch('S')]
            if s == opt.get('pfw', 4) and (SJL or SJM): r = r + [lambda: a_prefetch('W')]
        if B and s == SJM and SJM: r = r + [sj_dma]
        return r
    def scanA1(g):
        c = CON[g]; re, im = SAC[g], SAC[g] + 16
        r = []
        for k in range(1, 16): r += cfma(re + k, im + k, c, re + k - 1, im + k - 1)
        r += ['v_mov_b32 v%d, v%d' % (48 + 2 * g, re + 15), 'v_mov_b32 v%d, v%d' % (49 + 2 * g, im + 15),
              ('ds_write_b64 v%d, v[%d:%d] offset:%d' % (vEXA, 48 + 2 * g, 49 + 2 * g, 8192 * g), 'ex')]
        return r
    def scanA2(g):
        c = CON[g]; re, im = SAC[g], SAC[g] + 16; be = P2(c + 2)
        r = []
        for k in range(0, 16, 2):
            tt = 48 + (k & 2)
            r += ['v_pk_mul_f32 %s, %s, %s op_sel:[1,0] op_sel_hi:[1,1]' % (P2(tt), be, P2(re + k)),
                  'v_pk_mul_f32 %s, %s, %s op_sel:[0,0] op_sel_hi:[0,1]' % (P2(re + k), be, P2(re + k)),
                  'v_pk_fma_f32 %s, %s, %s, %s op_sel:[1,0,0] op_sel_hi:[1,1,1] neg_lo:[1,0,0] neg_hi:[1,0,0]' % (P2(re + k), be, P2(im + k), P2(re + k)),
                  'v_pk_fma_f32 %s, %s, %s, %s op_sel:[0,0,0] op_sel_hi:[0,1,1]' % (P2(im + k), be, P2(im + k), P2(tt))]
        return r
    def ex_reads(g, e):
        return [('ds_read_b64 v[%d:%d], v%d offset:%d' % (e + 2 * k, e + 2 * k + 1, vEXA + 1, 8192 * g + 256 * k), 'exr%d' % g) for k in range(8)]
    def ex_prefix(g, e, pk):
        c = CON[g]; r = []
        for k in range(1, 8):
            r += pcfma(e + 2 * k, c + 4, e + 2 * k - 2) if pk else cfma(e + 2 * k, e + 2 * k + 1, c + 4, e + 2 * k - 2, e + 2 * k - 1)
        return r
    def ex_pub(g, e):
        def pub():
            p('v_mov_b32 v%d, v%d' % (e + 16, e + 15)); p('v_mov_b32 v%d, v47' % (e + 17)); p('v_mov_b32 v%d, v47' % (e + 15))
            p('s_add_u32 s40, s%d, %d' % (sG, g)); p('s_lshl_b32 s40, s40, 4'); p('s_add_u32 s40, s40, s%d' % sRB); p('s_lshl_b32 s40, s40, 9')
            p('s_add_u32 s40, s40, %d' % WS_E)
            p('s_lshl_b32 s41, s%d, 3' % sWV); p('s_lshl_b32 exec_lo, 0xff, s41'); p('s_mov_b32 exec_hi, 0')
            p('buffer_store_dwordx4 v[%d:%d], v%d, %s, s40 offen%s' % (e + 14, e + 17, vL16, WS, SC), tag='pub')
            p('s_mov_b64 exec, -1')
        return [pub]
    def ex_own(g, e):
        c = CON[g]; r = []
        for k in range(1, 8):
            r += ['v_cmp_eq_u32 %s, %d, v%d' % (S2(sM + 2 * (k & 1)), k, c + 14)]
            if k > 1: r += ['v_cndmask_b32 v%d, v%d, v%d, %s' % (c + 12 + z, c + 12 + z, e + 2 * k - 4 + z, S2(sM + 2 - 2 * (k & 1))) for z in range(2)]
        r += ['v_cndmask_b32 v%d, v%d, v%d, %s' % (48 + z, c + 12 + z, e + 12 + z, S2(sM + 2)) for z in range(2)]
        return r + cm(c + 12, c + 2, 48)
    def ffn_epi(T, pk=False):
        a = FAC + 16 * T; r = []
        for k in range(0, 16, 2):
            r += ['v_max_f32 v%d, 0, v%d' % (a + k, a + k), 'v_max_f32 v%d, 0, v%d' % (a + k + 1, a + k + 1)]
            if pk: r += ['v_pk_mul_f32 %s, %s, %s' % (P2(a + k), P2(a + k), P2(a + k))]
            else: r += ['v_mul_f32 v%d, v%d, v%d' % (a + k + z, a + k + z, a + k + z) for z in range(2)]
        for k in range(8): r.append('v_cvt_pk_bf16_f32 v%d, v%d, v%d' % (a + k, a + 2 * k, a + 2 * k + 1))
        def stores():
            p('s_lshl_b32 s40, s%d, 12' % sQ); p('s_add_u32 s40, s40, s64'); p('s_add_u32 s40, s40, %d' % (((T & 1) + (24 if T >= 2 else 0)) * 4096))
            for q in range(2):
                p('buffer_store_dwordx4 v[%d:%d], v%d, %s, s40 offen offset:%d%s' % (a + 4 * q, a + 4 * q + 3, vSTF, WS, 256 * q, opt.get('f_sc', SC)), tag='hf')
        return r + [stores]
    EXP = 84 if B else 52
    def lb_expect():
        r = []
        for k in range(NLB):
            r += ['v_subrev_u32 v%d, %d, v%d' % (EXP + k, 1024 * k, vEO), 'v_ashrrev_i32 v%d, 31, v%d' % (EXP + k, EXP + k),
                  'v_bfi_b32 v%d, v%d, 0, v47' % (EXP + k, EXP + k)]
        return r
    def lb_loads(g, e, o=False):
        p('s_add_u32 s40, s%d, %d' % (sG, g)); p('s_lshl_b32 s40, s40, 13'); p('s_add_u32 s40, s40, %d' % WS_E)
        srd(p, rE, sWS, 8192, 's40')
        for k in range(NLB):
            if k: p('v_subrev_u32 v48, %d, v%d' % (1024 * k, vEO))
            p('buffer_load_dwordx4 v[%d:%d], v%d, %s, 0 offen sc1' % (e[k], e[k] + 3, 48 if k else vEO, S4(rE)), tag='lb%d' % g, optional=o)
    def lb_finish(g, e):
        c = CON[g]
        def chk(l2):
            for k in range(2):
                p('v_xor_b32 v%d, v%d, v%d' % (e[k] + 1, e[k] + 1, EXP + k)); p('v_xor_b32 v%d, v%d, v%d' % (e[k] + 3, e[k] + 3, EXP + k))
            p('v_or3_b32 v48, v%d, v%d, v%d' % (e[0] + 1, e[0] + 3, e[1] + 1)); p('v_or_b32 v48, v48, v%d' % (e[1] + 3))
            p('v_cmp_ne_u32 vcc, 0, v48'); p('s_cbranch_vccz ' + l2)
        p.wait(vm='lb%d' % g); spin(lambda o: lb_loads(g, e, o), chk)
        for k in range(2): p('v_mov_b32 v%d, v%d' % (e[k] + 1, e[k] + 2))
        for k in range(NLB - 2, -1, -1):
            for x in pcfma(e[k], c + 8, e[k + 1]): put(x)
        for x in pcmul(48, c + 10, e[0]): put(x)
        if not LBQ: p('v_mov_b32 v50, v48'); p('v_mov_b32 v51, v49')
        if LBQ:
            p('ds_write_b64 v%d, v[48:49] offset:%d' % (vEXA, 8192 * g), tag='lw')
            p.wait(lg='lw'); p('s_barrier')
            for k in range(8): p('ds_read_b64 v[%d:%d], v%d offset:%d' % (e[2] + 2 * k, e[2] + 2 * k + 1, vEXA + 1, 8192 * g + 256 * k), tag='lr%d' % (k // 2))
            for k in range(4):
                p.wait(lg='lr%d' % k)
                p('v_pk_add_f32 %s, %s, %s' % (P2(e[2] + 4 * k), P2(e[2] + 4 * k), P2(e[2] + 4 * k + 2)))
            p('v_pk_add_f32 %s, %s, %s' % (P2(e[2]), P2(e[2]), P2(e[2] + 4))); p('v_pk_add_f32 %s, %s, %s' % (P2(e[2] + 8), P2(e[2] + 8), P2(e[2] + 12)))
            p('v_pk_add_f32 v[48:49], %s, %s' % (P2(e[2]), P2(e[2] + 8)))
        else:
            p('v_permlane32_swap_b32 v48, v50'); p('v_permlane32_swap_b32 v49, v51')
            p('v_pk_add_f32 v[48:49], v[48:49], v[50:51]')
        for x in pcfma(c + 12, c + 6, 48): put(x)
    def scanB(g, pk):
        c = CON[g]; tr, ti = TAB[g], TAB[g] + 16; re, im = SAC[g], SAC[g] + 16; cc = P2(c + 12)
        r = []
        for k in range(0, 16, 2):
            if pk:
                r += ['v_pk_fma_f32 %s, %s, %s, %s op_sel:[0,0,0] op_sel_hi:[1,0,1]' % (P2(re + k), P2(tr + k), cc, P2(re + k)),
                      'v_pk_fma_f32 %s, %s, %s, %s op_sel:[0,1,0] op_sel_hi:[1,1,1]' % (P2(im + k), P2(tr + k), cc, P2(im + k)),
                      'v_pk_fma_f32 %s, %s, %s, %s op_sel:[0,1,0] op_sel_hi:[1,1,1] neg_lo:[1,0,0] neg_hi:[1,0,0]' % (P2(re + k), P2(ti + k), cc, P2(re + k)),
                      'v_pk_fma_f32 %s, %s, %s, %s op_sel:[0,0,0] op_sel_hi:[1,0,1]' % (P2(im + k), P2(ti + k), cc, P2(im + k))]
            else:
                for z in (k, k + 1):
                    r += ['v_fmac_f32 v%d, v%d, v%d' % (re + z, tr + z, c + 12), 'v_fmac_f32 v%d, v%d, v%d' % (im + z, tr + z, c + 13),
                          'v_fma_f32 v%d, -v%d, v%d, v%d' % (re + z, ti + z, c + 13, re + z), 'v_fmac_f32 v%d, v%d, v%d' % (im + z, ti + z, c + 12)]
        for part in range(2):
            a = re + 16 * part; ng = '-' if part else ''
            for q in range(2):
                r += ['v_cvt_pk_bf16_f32 v%d, %sv%d, %sv%d' % (a + 8 * q + k, ng, a + 8 * q + 2 * k, ng, a + 8 * q + 2 * k + 1) for k in range(4)]
                r += [('ds_write_b128 v%d, v[%d:%d]' % (vTW + q, a + 8 * q, a + 8 * q + 3), 'tw')]
            r += [('ds_read_b64_tr_b16 v[%d:%d], v%d offset:%d' % (a + 8 * b + 4 + 2 * j, a + 8 * b + 5 + 2 * j, vTW + 2 + j, 1024 * b), 'tr%d' % part) for b in range(2) for j in range(2)]
        def stores(part):
            p('s_add_u32 s41, s%d, %d' % (sG, g)); p('s_lshr_b32 s40, s41, 2'); p('s_lshl_b32 s40, s40, 1'); p('s_and_b32 s65, s41, 1'); p('s_add_u32 s40, s40, s65')
            p('s_lshl_b32 s40, s40, 1'); p('s_bfe_u32 s65, s41, 0x10001'); p('s_add_u32 s40, s40, s65'); p('s_lshl_b32 s40, s40, 13')
            p('s_add_u32 s40, s40, s64'); p('s_add_u32 s40, s40, %d' % ((48 + part) * 4096))
            p.wait(lg='tr%d' % part)
            for b in range(2):
                o = re + 16 * part + 8 * b + 4
                p('buffer_store_dwordx4 v[%d:%d], v%d, %s, s40 offen offset:%d%s' % (o, o + 3, vL16, WS, 1024 * b, opt.get('h_sc', SC)), tag='hs')
        return r + [lambda: stores(0), lambda: stores(1)]
    masks()
    if B:
        sidejob_setup(p, SJO); s2_srd()
        if not SJP: sj_dma()
    else: c_srd(); p('s_mov_b64 %s, %s' % (S2(sBIM2), S2(sBIM)))
    if B: p('v_lshlrev_b32 v49, 5, v%d' % vHH); p('v_add_u32 v49, %d, v49' % (SMO + 384))
    p.wait(vm='sm'); p('s_barrier')
    st('sm')
    for x in par_reads() + gw_reads(): put(x)
    pre = []
    if B:
        for T in range(4):
            for x in bias_reads(176, T): put(x)
    pre += [lambda: p.wait(lg='par')]
    late = []
    for g in range(NG):
        su = setup(g); cut = opt.get('sucut', 999)
        pre += su[:cut]; late += su[cut:]
    if B:
        for T in range(4): pre += [lambda T=T: p.wait(lg='b1%d' % T)] + unpack(FAC + 16 * T, 176 + 8 * T, 8)
    nearly = max(0, len(pre) - opt.get('sp1', 12) * 8)
    for x in pre[:nearly] + sprinkle(pre[nearly:], dma_stage(1), opt.get('sp1', 12)): put(x)
    if B and SJP: sj_dma()
    for x in third_set(): put(x)
    st('issued')
    pend = sync1(0)
    st('first')
    for x in reads1(0) + reads1(1) + gate_reads(0): put(x)
    fill = late
    prio = gate_step(0)
    p.marks = {}
    bar = lambda s_: 16 * s_ - 8
    events = {28: [nonce_load], bar(9) + 2: [get_nonce]}
    if B and SJM:
        events[bar(SJM + 2) + 4] = [sj_read]; events[bar(SJM + 2) + 12] = [sj_store]
        events[186] = [lambda: p.wait(vm='sjs')]; events[188] = [w2_signal]
    elif B and not SJL:
        events[bar(1 + SJP) - 1] = [sj_read]; events[bar(1 + SJP) + 6] = [sj_store]
        WS_ = opt.get('wsb', 9); del events[bar(9) + 2]
        events[bar(WS_) - 1] = [lambda: p.wait(vm='sjs')]; events[bar(WS_) + opt.get('wso', 10)] = [get_nonce, w2_signal]
    if B and SJL:
        events[opt.get('sjr', 200)] = [sj_read]; events[opt.get('sjr', 200) + 6] = [sj_store]
    assert LOOK == 3
    nslots = 240 if B else 160
    GAP = opt.get('gap', 6)
    if B:
        ep = [ffn_epi(T) for T in range(4)]
        if opt.get('fburst', 1):
            fill2 = [x for e in ep for x in e[:-1]] + [lambda: [e[-1]() for e in ep]] + ([gstore[0]] if opt.get('gmerge', 0) else []) + [lambda: st('fst')] + lb_expect()
        else: fill2 = ep[0] + ep[1] + ep[2] + ep[3] + [lambda: st('fst')] + lb_expect()
        cq = cD(0, 16); ncq = 0
        if SJL: events[opt.get('sjd', 182)] = [sj_dma]
        else: events[opt.get('wpoll', 230)] = [fl_issue('W')]
    rd = []
    for i in range(nslots):
        if i < 160:
            k, T = divmod(i, 4)
            if T == 0:
                if k + 2 < 40:
                    rd = reads1(k + 2)
                    if (k + 2) % 4 == 0:
                        pend += sync1((k + 2) // 4)
                        rd = gate_reads((k + 2) // 4) + rd; prio += gate_step((k + 2) // 4)
                        if k + 2 == 36: prio += gate_fin()
                p.wait(lg='k%d' % k)
            p(mfma1(k, T))
        else:
            if i == 160:
                for x in prio + fill: put(x)
                st('pass1'); prio = []; fill = fill2
                c_srd()
            if i % 2 == 0: p.wait(lg=['m%d' % (i - 160), 'm%d' % (i - 159)])
            p(mfma2(i - 160))
        budget = GAP
        if opt.get('fine') == 1 and i % 16 == 9 and i < 160: st('s%d' % i)
        if opt.get('fine') == 2 and i % 8 == 0 and i > 160: st('s%d' % i)
        m = i + L2 - 160
        if B and 0 <= m < 80:
            if m in (0, 32, 64): p.wait(vm='s2c%d' % (m // 32), lg='all'); p('s_barrier')
            for x in reads2(m): put(x); budget -= 1
        nrd = -(-len(rd) // (4 - i % 4))
        for _ in range(nrd): put(rd.pop(0)); budget -= 1
        if pend and (i % 2 == 1 or sum(not isinstance(x, str) for x in pend) > (23 - i % 16 if i % 16 >= 8 else 7 - i % 16) // 2 + 1):
            while isinstance(pend[0], str): put(pend.pop(0)); budget -= 1
            budget -= 3 if callable(pend[0]) else 1
            put(pend.pop(0))
            while pend and isinstance(pend[0], str): put(pend.pop(0)); budget -= 1
        elif B and i > 160 and i % 2 == 1 and cq and i >= opt.get('cstart', 161) and (ncq < 16 or (ncq < 24 and m > 32) or m > 64):
            put(cq.pop(0)); ncq += 1; budget -= 2
        for x in events.pop(i, []): put(x); budget -= 1
        if i == 146: assert not (B and pend); fill += c_setup()
        if i < 160:
            if i % 16 >= 13 or i % 16 < 8:
                n = 0
                while prio and budget > 0 and n < 2: put(prio.pop(0)); budget -= 1; n += 1
            want = -(-len(fill) // max(1, 158 - i)) if i >= 2 else 0
            for _ in range(min(want, budget)):
                if fill: put(fill.pop(0))
        elif i > 160:
            while fill and budget > 0: put(fill.pop(0)); budget -= 1
        p.check_depth()
    assert not pend and not rd and not events
    bpre = b_loads(0) + b_loads(1) + b_loads(2)
    if B:
        assert not fill
        for x in cq: put(x)
        st('pass2')
        signal(0, ['hf', 'sjs', 'gst'])()
        for x in scanA1(0): put(x)
        if not SJL: fl_check('W', False)()
        p.wait(lg='ex'); p('s_barrier')
        for x in ex_reads(0, 52): put(x)
        if SJL: w2_signal()
        hid_srd()
        p.wait(lg='exr0')
        for x in ex_prefix(0, 52, True) + ex_pub(0, 52): put(x)
        st('pub')
        e0 = [52 + 4 * k for k in range(8)]
        LBR = opt.get('lbr', -1)
        if SJL:
            NX = 25; NP = opt.get('np', 21)
            for x in cR(0, 9) + sprinkle(cR(9, 16) + ex_own(0, 52) + scanA2(0), cD(16, NP) + [fl_issue('FW')] + cD(NP, NX), 4): put(x)
            st('end1')
            fl_check('FW')()
            st('fok')
            if LBR < 0: lb_loads(0, e0)
            for x in a_loads(0) + bpre[:7] + a_loads(1) + bpre[7:]: put(x)
        else:
            NX = opt.get('nx', 22); NP = opt.get('np', 18)
            for x in cR(0, 6) + sprinkle(cR(6, 16) + ex_own(0, 52) + scanA2(0), bpre + cD(16, NP) + [fl_issue(0)] + cD(NP, NX), 3): put(x)
            if LBR < 0: lb_loads(0, e0)
            st('end1')
            fl_check(0)()
            st('fok')
            NY = min(25, NX + opt.get('ny', 3))
            for x in a_loads(0) + a_loads(1) + cD(NX, NY): put(x)
            NX = NY
        if LBR < 0:
            st('lbstart'); lb_finish(0, e0); st('lbdone')
            for x in scanB(0, True): put(x)
            extra = {8: cR(16, 20)}
            sigS, geo = 2, 1
        else:
            extra = {LBR: [lambda: lb_loads(0, e0)], LBR + 1: [lambda: (st('lbstart'), lb_finish(0, e0), st('lbdone'))] + scanB(0, False), 8: cR(16, 20)}
            sigS, geo = LBR + 4, LBR + 4
    else:
        for x in prio + fill: put(x)
        st('pass1')
        c0 = 0
        for x in interleave(scanA1(0), scanA1(1)): put(x)
        p.wait(lg='all'); p('s_barrier')
        for x in ex_reads(0, 52) + ex_reads(1, 72): put(x)
        hid_srd()
        p.wait(lg='exr1')
        for x in interleave(ex_prefix(0, 52, True), ex_prefix(1, 72, True)) + ex_pub(0, 52) + ex_pub(1, 72): put(x)
        st('pub')
        signal(0, 'gst')()
        if not SJL: fl_issue('W')()
        NA = opt.get('na', 20)
        for x in sprinkle(ex_own(0, 52) + ex_own(1, 72) + lb_expect() + scanA2(0) + scanA2(1), cD(c0, 16), 8) + cR(0, NA - 16) + cD(16, NA): put(x)
        e0 = [60 + 4 * k for k in range(8)]
        e1 = [84, 88] + e0[2:] if LBQ else e0
        lb_loads(0, e0)
        if LBQ: lb_loads(1, e1)
        if not SJL: fl_check('W')()
        for x in cR(NA - 16, 16): put(x)
        st('lbstart')
        lb_finish(0, e0)
        if not LBQ: lb_loads(1, e0)
        if SJL:
            for x in sprinkle(scanB(0, True), cD(NA, 25), 4): put(x)
            NA = 25
            fl_issue('FW')()
        else:
            fl_issue(0)()
            for x in sprinkle(scanB(0, True), bpre, 4): put(x)
        lb_finish(1, e1)
        st('lbdone'); st('end1')
        if SJL:
            for x in scanB(1, True): put(x)
            fl_check('FW')()
            st('fok')
            for x in a_loads(0) + bpre[:7] + a_loads(1) + bpre[7:]: put(x)
        else:
            fl_check(0)()
            st('fok')
            for x in sprinkle(scanB(1, True), a_loads(0) + a_loads(1), 3): put(x)
        extra = {8: cR(16, 20)}
        sigS, geo = 2, 1
    NL = NX if B else NA
    xload = {i: c_dma(NL + i) for i in range(25 - NL)}
    phase2(p, opt, st, a_loads, b_loads, b_reg, c_read, signal, fl_issue, fl_check, extra, xload, sigS, geo)

def phase2(p, opt, st, a_loads, b_loads, b_reg, c_read, signal, fl_issue, fl_check, extra, xload, sigS, geo):
    put = p.put
    ACCB, ACCA = 96, 176
    vG, vX, vLR, vOut = 32, 52, 62, 67
    vCR, vLW, t = 72, 82, 84
    rXT, rO, rSM = 44, 16, 52
    def geom():
        r = []
        def srds():
            p('s_mul_i32 s40, s%d, 160' % sCT); p('s_mul_i32 s41, s%d, %d' % (sRT, 64 * 1280)); p('s_add_u32 s41, s41, s40')
            srd(p, rXT, sX, 64 * 1280 - 1280 + 160, 's41')
            p('s_lshl_b32 s41, s41, 1')
            srd(p, rO, sOUT, 64 * 2560 - 2560 + 320, 's41')
            p('s_lshl_b32 s41, s%d, 9' % sRT); p('s_add_u32 s41, s41, %d' % WS_G)
            p('s_cmp_eq_u32 s%d, 1' % sWV); p('s_cselect_b32 s65, 256, 0'); p('s_add_u32 s41, s41, s65')
            p('s_cmp_eq_u32 s%d, 2' % sWV)
            p('s_cselect_b32 s%d, s%d, s%d' % (rSM, sDSK, sB2)); p('s_cselect_b32 s%d, s%d, s%d' % (rSM + 1, sDSK + 1, sB2 + 1))
            p('s_cmp_lt_u32 s%d, 2' % sWV)
            p('s_cselect_b32 s%d, s%d, s%d' % (rSM, sWS, rSM)); p('s_cselect_b32 s%d, s%d, s%d' % (rSM + 1, sWS + 1, rSM + 1))
            p('s_cselect_b32 s40, s41, s40')
            p('s_mov_b32 s65, 160'); p('s_cselect_b32 s%d, 256, s65' % (rSM + 2))
            p('s_add_u32 s%d, s%d, s40' % (rSM, rSM)); p('s_addc_u32 s%d, s%d, 0' % (rSM + 1, rSM + 1)); p('s_mov_b32 s%d, 0x20000' % (rSM + 3))
        r.append(srds)
        for i in range(5):
            r += ['v_add_u32 v%d, %d, v0' % (t, 256 * i), 'v_mul_u32_u24 v%d, 0xcccd, v%d' % (t + 1, t), 'v_lshrrev_b32 v%d, 20, v%d' % (t + 1, t + 1),
                  'v_mul_u32_u24 v%d, 20, v%d' % (t + 2, t + 1), 'v_sub_u32 v%d, v%d, v%d' % (t + 2, t, t + 2),
                  'v_mul_u32_u24 v%d, 1280, v%d' % (t + 3, t + 1), 'v_lshl_add_u32 v%d, v%d, 3, v%d' % (t + 3, t + 2, t + 3),
                  ('buffer_load_dwordx2 v[%d:%d], v%d, %s, 0 offen' % (vX + 2 * i, vX + 2 * i + 1, t + 3, S4(rXT)), 'X'),
                  'v_lshlrev_b32 v%d, 1, v%d' % (vOut + i, t + 3), 'v_bfe_u32 v%d, v%d, 1, 2' % (t + 3, t + 1), 'v_xor_b32 v%d, v%d, v%d' % (t + 3, t + 3, t + 2), 'v_mul_u32_u24 v%d, 320, v%d' % (vLR + i, t + 1),
                  'v_add_u32 v%d, %d, v%d' % (vLR + i, PB, vLR + i), 'v_lshl_add_u32 v%d, v%d, 4, v%d' % (vLR + i, t + 3, vLR + i),
                  'v_lshl_add_u32 v%d, v%d, 3, s66' % (vCR + 2 * i, t + 2), 'v_lshl_add_u32 v%d, v%d, 3, s66' % (vCR + 2 * i + 1, t + 1)]
        r += ['v_and_b32 v%d, 15, v%d' % (t, vLANE), 'v_mul_u32_u24 v%d, 320, v%d' % (vLW, t), 'v_lshrrev_b32 v%d, 4, v%d' % (t + 1, vLANE),
              'v_bfe_u32 v%d, v%d, 1, 2' % (t + 2, t), 'v_xor_b32 v%d, v%d, v%d' % (t + 1, t + 1, t + 2),
              'v_lshl_add_u32 v%d, v%d, 4, v%d' % (vLW, t + 1, vLW), 'v_mul_u32_u24 v%d, %d, v%d' % (t + 1, 64 * 320, vWAVE),
              'v_add_u32 v%d, v%d, v%d' % (vLW, vLW, t + 1), 'v_add_u32 v%d, %d, v%d' % (vLW, PB, vLW),
              'v_lshl_add_u32 v%d, v%d, 3, s66' % (vLW + 1, t), 'v_lshlrev_b32 v%d, 2, v%d' % (48, vLANE)]
        return r
    def sm_dma():
        p('s_lshl_b32 s40, s%d, 8' % sWV); p('s_add_u32 m0, s40, %d' % SM2)
        p('buffer_load_dword v48, %s, 0 offen sc1 lds' % S4(rSM), tag='SM')
    def bias():
        def f_sync(): p.wait(vm=['SM', 'X']); p('s_barrier')
        r = [f_sync]
        r += [('ds_read_b64 v[%d:%d], v%d offset:%d' % (vG + 2 * m, vG + 2 * m + 1, vLW + 1, 128 * m), 'g') for m in range(4)]
        for i in range(5):
            r += [('ds_read_b64 v[%d:%d], v%d' % (t, t + 1, vCR + 2 * i + 1), 'c'), ('ds_read_b64 v[%d:%d], v%d offset:512' % (t + 2, t + 3, vCR + 2 * i), 'c'),
                  ('ds_read_b64 v[%d:%d], v%d offset:768' % (t + 4, t + 5, vCR + 2 * i), 'c')]
            for h in range(2):
                r += ['v_lshlrev_b32 v%d, 16, v%d' % (t + 6 + 2 * h, vX + 2 * i + h), 'v_and_b32 v%d, 0xffff0000, v%d' % (t + 7 + 2 * h, vX + 2 * i + h)]
            r.append(lambda: p.wait(lg='c'))
            for h in range(2):
                r += ['v_lshlrev_b32 v48, 16, v%d' % (t + 2 + h), 'v_and_b32 v49, 0xffff0000, v%d' % (t + 2 + h),
                      'v_lshlrev_b32 v50, 16, v%d' % (t + 4 + h), 'v_and_b32 v51, 0xffff0000, v%d' % (t + 4 + h)]
                for e in range(2):
                    d = (vCR if h else vX) + 2 * i + e
                    r += ['v_mul_f32 v%d, v%d, v%d' % (48 + e, 48 + e, t + 6 + 2 * h + e), 'v_mul_f32 v%d, v%d, v%d' % (d, t + 1, 50 + e),
                          'v_fmac_f32 v%d, v%d, v%d' % (d, t, 48 + e)]
        r += ['v_add_f32 v%d, v%d, v%d' % (vG + 2 * m, vG + 2 * m, vG + 2 * m) for m in range(4)]
        return r
    def scale():
        r = []
        for m in range(4):
            for n in range(5):
                r += ['v_mul_f32 v%d, v%d, v%d' % (ACCB + 20 * m + 4 * n + z, vG + 2 * m + 1, ACCB + 20 * m + 4 * n + z) for z in range(4)]
        return r
    def comb(k, pk):
        n, m = divmod(k, 5)[::-1] if opt.get('tsplit', 1) else divmod(k, 4)
        a = ACCA + 20 * m + 4 * n; bb = ACCB + 20 * m + 4 * n
        if pk:
            for r in (0, 2): p('v_pk_fma_f32 %s, %s, %s, %s op_sel:[0,0,0] op_sel_hi:[0,1,1]' % (P2(bb + r), P2(vG + 2 * m), P2(a + r), P2(bb + r)))
        else:
            for r in range(4): p('v_fmac_f32 v%d, v%d, v%d' % (bb + r, vG + 2 * m, a + r))
        p('ds_write_b128 v%d, v[%d:%d] offset:%d' % (vLW, bb, bb + 3, m * 16 * 320 + n * 64), tag='w')
    p('s_mov_b32 s66, %d' % SM2)
    fill = []
    NS = 22; LA = 2
    NF0 = opt.get('nf0', 9)
    seq = list(range(NF0)); rest = list(range(NF0, 12)); sr = list(range(12, 22))
    for j in range(len(rest)):
        n = -(-(len(sr) - 3) // (len(rest) - j))
        seq += sr[:n] + [rest[j]]; sr = sr[n:]
    seq += sr
    pos = {r: i for i, r in enumerate(seq)}
    bq = []; nb = 3
    for i in range(NS):
        r = seq[i]; pre = []
        fill += extra.get(i, [])
        if i == sigS: pre += [signal(1, ['hs', 'gst'])]
        if i == geo: fill += geom() + [sm_dma]
        if i == geo + 3: fill += bias()
        if i == pos[12] - LA - 1: pre += [fl_issue(1)]
        if i == pos[12] - LA: pre += [fl_check(1)]
        if i == pos[11] + 1: fill += scale()
        if i == pos[13] + 1:
            fill = [x for n in range(5) for x in c_read(20 + n, AX + 8 * n)] + fill
        if i == pos[13] + 3: pre += [lambda: (p.wait(lg='cr24'), p('s_barrier'))]
        p.wait(vm=['A%d' % r, 'B%d' % r])
        if opt.get('fine') == 3 and i not in (0, 6, 12): st('r%d' % i)
        if i == 0: st('p2first')
        if i == 6: st('p2_6')
        if i == 12: st('p2_12')
        while nb < 12 and pos[nb - 3] < i: bq.append([nb, b_loads(nb)]); nb += 1
        nxt = a_loads(seq[i + LA], i + LA) if i + LA < NS else []
        if bq:
            f, it = bq[0]; left = sum(not isinstance(x, str) for x in it)
            n = -(-left // max(1, pos[f] - LA - i + 1))
            while n:
                x = it.pop(0); nxt.append(x)
                if not isinstance(x, str): n -= 1
            if not it: bq.pop(0)
        nxt += xload.get(i, [])
        acc = ACCB if r < 12 else ACCA
        first = r in (0, 12)
        bh = AH + 16 * (i % 3)
        k = 0
        TS = opt.get('tsplit', 1)
        for n, m in ([(n, m) for m in range(4) for n in range(5)] if (i == NS - 1 and TS) else [(n, m) for n in range(5) for m in range(4)]):
            if True:
                a = acc + 20 * m + 4 * n
                bk, bw = b_reg(r, n)
                p('v_mfma_f32_16x16x32_bf16 v[%d:%d], %s[%d:%d], a[%d:%d], %s' % (a, a + 3, bk, bw, bw + 3, bh + 4 * m, bh + 4 * m + 3,
                                                                              '0' if first else 'v[%d:%d]' % (a, a + 3)))
                k += 1
                if k == 1:
                    for x in pre: put(x)
                if nxt and (k % 2 == 1 or sum(not isinstance(x, str) for x in nxt) > (21 - k) // 2):
                    while isinstance(nxt[0], str): put(nxt.pop(0))
                    put(nxt.pop(0))
                for _ in range(opt.get('fill2', 3) if i < 12 else 2):
                    if fill: put(fill.pop(0))
                if i == NS - 1 and 3 < k < (14 if TS else 99): comb(k - 4, False)
        assert not nxt and not (i == NS - 2 and fill)
        p.check_depth()
    assert not bq and nb == 12
    assert not fill
    st('mainend')
    R = ACCA
    def rd(i):
        for w in range(4):
            p('ds_read_b128 v[%d:%d], v%d offset:%d' % (R + 16 * i + 4 * w, R + 16 * i + 4 * w + 3, vLR + i, w * 64 * 320), tag='r%d' % i)
    def fin(i):
        p.wait(lg='r%d' % i)
        for r in (0, 2):
            p('v_pk_add_f32 %s, %s, %s' % (P2(R + 16 * i + r), P2(R + 16 * i + r), P2(R + 16 * i + 4 + r)))
            p('v_pk_add_f32 %s, %s, %s' % (P2(R + 16 * i + 8 + r), P2(R + 16 * i + 8 + r), P2(R + 16 * i + 12 + r)))
        bb = {0: vX + 2 * i, 2: vCR + 2 * i}
        for r in (0, 2): p('v_pk_add_f32 %s, %s, %s' % (P2(bb[r]), P2(bb[r]), P2(R + 16 * i + r)))
        for r in (0, 2): p('v_pk_add_f32 %s, %s, %s' % (P2(R + 16 * i + r), P2(bb[r]), P2(R + 16 * i + 8 + r)))
        p('buffer_store_dwordx4 v[%d:%d], v%d, %s, 0 offen%s' % (R + 16 * i, R + 16 * i + 3, vOut + i, S4(rO), opt.get('out_sc', SC)), tag='o')
    if TS:
        p.wait(lg='all'); p('s_barrier')
        rd(0); rd(1)
        for k in range(10, 15): comb(k, True)
        fin(0)
        for k in range(15, 20): comb(k, True)
        fin(1)
        p.wait(lg='all'); p('s_barrier')
        st('red')
        for i in range(2, 5): rd(i)
        for i in range(2, 5): fin(i)
    else:
        for k in range(17, 20): comb(k, True)
        p.wait(lg='all'); p('s_barrier')
        st('red')
        for i in range(5): rd(i)
        for i in range(5): fin(i)
    st('stored')
    if opt.get('echo'):
        p.wait(vm='all'); st('drained'); p.wait(lg='all', force=True)
        l = p.newlabel('L_echo'); ins = 's_memtime' if opt['echo'] == 'cyc' else 's_memrealtime'
        if opt['echo'] == 'cyc': p('s_mov_b32 s1, 20000')
        else: p('s_sub_u32 s1, s%d, s0' % sST)
        p(ins + ' s[4:5]'); p.wait(lg='all', force=True)
        p.label(l)
        p(ins + ' s[6:7]'); p.wait(lg='all', force=True)
        p('s_sub_u32 s6, s6, s4'); p('s_cmp_lt_u32 s6, s1'); p('s_cbranch_scc1 ' + l)
    if opt.get('stamps'):
        p.wait(vm='all'); st('drained'); st('rt1')
    st.dump(sWS, 60, 48)
```
